```python
import torch

def _softmax(x, axis=-1):
    return torch.softmax(x, dim=axis)

def _gelu(x):
    return torch.nn.functional.gelu(x, approximate='tanh')

def _silu(x):
    return torch.nn.functional.silu(x)

def _sigmoid(x):
    return torch.sigmoid(x)

def _layernorm(x, axis=-1, eps=1e-05):
    m = x.mean(dim=axis, keepdim=True)
    v = x.var(dim=axis, keepdim=True, unbiased=False)
    return (x - m) / torch.sqrt(v + eps)

def _scatter_add(tgt, idx, src, axis=0):
    return tgt.clone().index_add_(axis, idx, src)

def _segment_sum(src, seg, n):
    out = torch.zeros((n,) + src.shape[1:], dtype=src.dtype)
    return out.index_add_(0, seg, src)

def _pad(x, pw):
    flat = tuple((v for pair in reversed(pw) for v in pair))
    return torch.nn.functional.pad(x, flat)
kernel_name = 'parallel_sum__linear_attn_block__mixer_gmlp__prompt'

def setup_inputs():

    _w = lambda a: (lambda t: t.to(torch.bfloat16) if t.is_floating_point() else t)(torch.as_tensor(a))

    def _A_setup():
        B, S, D = (1, 2048, 448)
        return {'x': _w((lambda *s: torch.randn(*s, dtype=torch.bfloat16) * 0.05)(B, S, D)), 'wqkv': _w((lambda *s: torch.randn(*s, dtype=torch.bfloat16) * 1.6)(D, 3 * D)), 'wo': _w((lambda *s: torch.randn(*s, dtype=torch.bfloat16) * 0.2)(D, D))}
    _A_in = _A_setup()

    def _B_setup():
        B, S, D, F = (1, 2048, 448, 1792)
        Fh = F // 2
        return {'x': _w((lambda *s: torch.randn(*s, dtype=torch.bfloat16) * 0.05)(B, S, D)), 'w_in': _w((lambda *s: torch.randn(*s, dtype=torch.bfloat16) * 0.4)(D, 2 * Fh)), 'w_sp': _w(0.01 * (lambda *s: torch.randn(*s, dtype=torch.bfloat16) * 0.4)(S, S)), 'b_sp': _w(1.0 + 0.01 * (lambda *s: torch.randn(*s, dtype=torch.bfloat16) * 0.05)(S)), 'w_out': _w((lambda *s: torch.randn(*s, dtype=torch.bfloat16) * 0.05)(Fh, D))}
    _B_in = _B_setup()
    return {'A_x': _A_in['x'], 'A_wqkv': _A_in['wqkv'], 'A_wo': _A_in['wo'], 'B_x': _B_in['x'], 'B_w_in': _B_in['w_in'], 'B_w_sp': _B_in['w_sp'], 'B_b_sp': _B_in['b_sp'], 'B_w_out': _B_in['w_out']}

def reference(A_x, A_wqkv, A_wo, B_x, B_w_in, B_w_sp, B_b_sp, B_w_out):

    def _A_ref(x, wqkv, wo):
        B, S, D = x.shape
        H = 16
        Dh = D // H
        qkv = (lambda x, *d: x.permute(*d))((x @ wqkv).reshape(B, S, 3, H, Dh), 2, 0, 3, 1, 4)
        q, k, v = (qkv[0], qkv[1], qkv[2])
        phi = lambda t: torch.where(t > 0, t + 1, torch.exp(t)) + 1e-06
        pq, pk = (phi(q), phi(k))
        kv = torch.einsum('bhsd,bhse->bhde', pk, v)
        z = torch.einsum('bhsd->bhd', pk)
        num = torch.einsum('bhqd,bhde->bhqe', pq, kv)
        den = torch.einsum('bhqd,bhd->bhq', pq, z)[..., None] + 1e-06
        o = num / den
        return (lambda x, *d: x.permute(*d))(o, 0, 2, 1, 3).reshape(B, S, D) @ wo

    def _B_ref(x, w_in, w_sp, b_sp, w_out):
        B, S, D = x.shape
        F = w_in.shape[-1]
        Fh = F // 2
        z = _gelu(torch.einsum('bsd,df->bsf', x, w_in))
        z1 = z[..., :Fh].clone()
        z2 = _layernorm(z[..., Fh:], axis=-1)
        g = torch.einsum('ts,bsf->btf', w_sp, z2) + b_sp[None, :, None]
        return torch.einsum('bsf,fd->bsd', z1 * g, w_out)
    x = A_x
    xn = _layernorm(x, axis=-1)
    return x + _A_ref(xn, A_wqkv, A_wo) + _B_ref(xn, B_w_in, B_w_sp, B_b_sp, B_w_out)
```

```python
class Asm:
    def __init__(self):
        self.l = []
        self.uid = 0
    def __call__(self, s):
        for line in s.strip("\n").split("\n"):
            self.l.append(line)
    def label(self, base="L"):
        self.uid += 1
        return f"{base}_{self.uid}"
    def text(self):
        return "\n".join(self.l) + "\n"

def kernel_begin(a, name):
    a(f""".globl {name}
.p2align 8
.type {name},@function
{name}:""")

def kernel_desc(name, vgpr, sgpr=96, accum=None):
    if accum is None:
        accum = min(256, (vgpr + 3) // 4 * 4)
    return f""".p2align 6
.amdhsa_kernel {name}
  .amdhsa_next_free_vgpr {vgpr}
  .amdhsa_next_free_sgpr {sgpr}
  .amdhsa_accum_offset {accum}
  .amdhsa_group_segment_fixed_size 0
  .amdhsa_kernarg_size 88
  .amdhsa_user_sgpr_count 2
  .amdhsa_user_sgpr_kernarg_segment_ptr 1
  .amdhsa_system_sgpr_workgroup_id_x 1
.end_amdhsa_kernel
"""

def srd(a, d, base, nbytes):
    a(f"""s_mov_b32 s{d}, s{base}
s_and_b32 s{d+1}, s{base+1}, 0xffff
s_mov_b32 s{d+2}, {nbytes}
s_mov_b32 s{d+3}, 0x20000""")
```

```python
from asmlib import *
import struct

def f32(x):
    return "0x%08x" % struct.unpack("<I", struct.pack("<f", x))[0]

WS_Z2 = 0x0000000
WS_Z1 = 0x0400000
WS_Q = 0x0800000
WS_K = 0x0A00000
WS_V = 0x0C00000
WS_ST = 0x0E00000
WS_AF = 0x1000000
WS_WF = 0x2000000
WS_SIZE = 0x3000000
WS_STAMP = 0x8000000

class VM:
    def __init__(self, a):
        self.a = a
        self.q = []
    def issue(self, tag, text):
        self.a(text)
        self.q.append(tag)
    def wait(self, *tags):
        last = -1
        for i, t in enumerate(self.q):
            if t in tags:
                last = i
        if last < 0:
            return
        n = len(self.q) - 1 - last
        assert n <= 63, n
        self.a(f"s_waitcnt vmcnt({n})")
        self.q = self.q[last + 1:]
    def copy(self, a=None):
        v = VM(a or self.a)
        v.q = list(self.q)
        return v

GELU_C0 = -2.0 * 0.7978845608028654 * 1.4426950408889634
GELU_C1 = GELU_C0 * 0.044715
LOG2E = 1.4426950408889634

class Stamp:
    def __init__(self, a, on, kern=0):
        self.a, self.on, self.kern = a, on, kern
    def mark(self, i, real=False):
        if self.on:
            self.a(f"{'s_memrealtime' if real else 's_memtime'} s[{70+2*i}:{71+2*i}]")
    def clear(self):
        if self.on:
            for i in range(14):
                self.a(f"s_mov_b32 s{70+2*i}, 0")
    def flush(self, s_ws, s_wave):
        if not self.on:
            return
        a = self.a
        a("s_waitcnt vmcnt(0)")
        self.mark(12)
        self.mark(13, True)
        a(f"""s_waitcnt lgkmcnt(0)
s_mov_b64 exec, 1
s_lshl_b32 s98, s2, 9
s_lshl_b32 s99, s{s_wave}, 6
s_add_u32 s98, s98, s99
s_add_u32 s98, s98, {WS_STAMP + self.kern * 0x100000}
s_mov_b32 s{s_ws+2}, 0x10000000
v_mov_b32 v20, 0""")
        for i in range(14):
            a(f"v_mov_b32 v{2+i}, s{70+2*i}")
        a("v_mov_b32 v16, 0\nv_mov_b32 v17, 0")
        for q in range(4):
            a(f"buffer_store_dwordx4 v[{2+4*q}:{5+4*q}], v20, s[{s_ws}:{s_ws+3}], s98 offen offset:{16*q}")
```

```python
from common import *

XRING = 24576
WRING = 90112
SCR = 155648
DEAD = 57344
P1_LDS = 163840
P1_VGPR = 256

V_LANE = 1
V_X0, V_X1, V_DA, V_DB = 2, 3, 4, 5
XR, WR = 6, 10
V_L16, V_T0 = 14, 15
A0 = 16
ACC = [128, 144]
WB = 160
BR, NBR = 160, 5
TMP = 180
R16 = 204
V_S, V_Q = 224, 225
V_R, V_C0, V_C1, V_RI, V_L2E = 226, 227, 228, 229, 230
SEL = 232
XE, CE = 236, 240
T4 = 248
V_KO, V_L8, V_CSA = 252, 253, 254
CSA = 220
import os
ROTMODE = int(os.environ.get("P1_ROT", "7"))
DEPTH = int(os.environ.get("P1_DEPTH", "3"))
STATS = os.environ.get("P1_STATS", "valu")

S_X, S_WA, S_WB, S_WS = 12, 16, 20, 24
S_RB, S_G, S_WAVE, S_RW, S_CH = 28, 29, 30, 31, 32
S_T0, S_T1, S_T2, S_T3 = 33, 34, 35, 36
S_PK = 37
S_XB = 38
S_AB = 39
S_A64 = 40
S_D1 = 41
S_BB = 42
S_B64 = 43
S_MX, S_MW = 44, 45
S_ROT = 46
S_O = 47
S_D3 = 51
S_SA, S_SB = 52, 53
S_HI = 54

STORE_FLAGS = os.environ.get("SF", " sc1")

def interleave(a, main, fill):
    n = len(main)
    k = 0
    for i, m in enumerate(main):
        m()
        tgt = (len(fill) * (i + 1) + n - 1) // n
        while k < tgt:
            fill[k]()
            k += 1

def mf(acc, w, x, orient, first=False):
    c = "0" if first else f"v[{acc}:{acc+15}]"
    if orient:
        return f"v_mfma_f32_32x32x16_bf16 v[{acc}:{acc+15}], v[{w}:{w+3}], v[{x}:{x+3}], {c}"
    return f"v_mfma_f32_32x32x16_bf16 v[{acc}:{acc+15}], v[{x}:{x+3}], v[{w}:{w+3}], {c}"

def adv_pk(a):
    a(f"""s_add_u32 s{S_PK}, s{S_PK}, 1
s_cmp_eq_u32 s{S_PK}, 7
s_cselect_b32 s{S_PK}, 0, s{S_PK}""")

def piece_dma(a, vm, j):
    xs = XRING + ((j + 1) & 3) * 16384
    ws = WRING + (j & 3) * 16384
    def x0():
        a(f"""s_lshl_b32 s{S_T0}, s{S_PK}, 7
s_add_u32 m0, s{S_MX}, {xs}
s_add_u32 s{S_T0}, s{S_T0}, s{S_XB}""")
        vm.issue(f"p{j}", f"buffer_load_dwordx4 v{V_X0}, s[{S_X}:{S_X+3}], s{S_T0} offen lds")
    def x1():
        a(f"""s_add_u32 m0, s{S_MX}, {xs + 1024}
s_mul_i32 s{S_T1}, s{S_PK}, s{S_A64}""")
        vm.issue(f"p{j}", f"buffer_load_dwordx4 v{V_X1}, s[{S_X}:{S_X+3}], s{S_T0} offen lds")
    def w0():
        a(f"""s_add_u32 m0, s{S_MW}, {ws}
s_add_u32 s{S_T1}, s{S_T1}, s{S_AB}""")
        vm.issue(f"p{j}", f"buffer_load_dwordx4 v{V_DA}, s[{S_WA}:{S_WA+3}], s{S_T1} offen lds")
    def w1():
        a(f"""s_add_u32 m0, s{S_MW}, {ws + 8192}
s_add_u32 s{S_T1}, s{S_T1}, s{S_D1}""")
        vm.issue(f"p{j}", f"buffer_load_dwordx4 v{V_DA}, s[{S_WA}:{S_WA+3}], s{S_T1} offen lds")
        adv_pk(a)
    return [x0, x1, w0, w1]

def line_dma(a, vm, b, which):
    def f():
        if which == 2:
            a(f"""s_mul_i32 s{S_T1}, s{S_PK}, s{S_B64}
s_add_u32 m0, s{S_MW}, {b * 8192}
s_add_u32 s{S_T1}, s{S_T1}, s{S_BB}""")
            vm.issue("w2", f"buffer_load_dwordx4 v{V_DB}, s[{S_WB}:{S_WB+3}], s{S_T1} offen lds")
        else:
            a(f"""s_mul_i32 s{S_T1}, s{S_PK}, s{S_A64}
s_add_u32 m0, s{S_MW}, {WRING + b * 8192}
s_add_u32 s{S_T1}, s{S_T1}, s{S_D3}""")
            vm.issue("w3", f"buffer_load_dwordx4 v{V_DA}, s[{S_WA}:{S_WA+3}], s{S_T1} offen lds")
        adv_pk(a)
    return f

def I(a, s):
    return lambda: a(s)

PBAR = int(os.environ.get('P1_PBAR', '1'))
DOFF = 4 if DEPTH == 3 else 0
RG = int(os.environ.get('P1_RG', '4'))
DS = [0, 2, 4, 6, 12, 21, 30, 39, 48] if RG == 4 else [6 * g for g in range(9)]
def phase_a(a, vm, o0, o1, st):
    for j in range(8):
        main, reads, dots, dmas, extra = [], [], [], [], []
        if j < 7:
            if j == 0:
                st.mark(11)
            vm.wait(f"p{j}")
            if j == 0:
                st.mark(10)
            a("s_barrier")
            if j in (0, 3, 6):
                st.mark(3 + j // 3)
            xs = ((j + 1) & 3) * 16384
            ws = (j & 3) * 16384
            for i in range(4):
                x = A0 + 16 * j + 4 * i
                reads.append(I(a, f"ds_read_b128 v[{x}:{x+3}], v{XR+i} offset:{xs}"))
                for L in range(2):
                    b = WB + 32 * (j & 1) + 16 * L + 4 * i
                    reads.append(I(a, f"ds_read_b64_tr_b16 v[{b}:{b+1}], v{WR+i} offset:{ws + L*8192}"))
                    reads.append(I(a, f"ds_read_b64_tr_b16 v[{b+2}:{b+3}], v{WR+i} offset:{ws + L*8192 + 512}"))
            if j + DEPTH < 7:
                dmas = piece_dma(a, vm, j + DEPTH)
            elif j + DEPTH == 7:
                dmas = [line_dma(a, vm, b, 2) for b in range(4)]
            elif j + DEPTH == 8:
                dmas = [line_dma(a, vm, b, 2) for b in range(4, 7)]
        if j > 0:
            p = j - 1
            for i in range(4):
                x = A0 + 16 * p + 4 * i
                for L in range(2):
                    b = WB + 32 * (p & 1) + 16 * L + 4 * i
                    main.append(I(a, mf(ACC[L], b, x, (o0, o1)[L], p == 0 and i == 0)))
            for L in range(2):
                b = WB + 32 * (p & 1) + 16 * L
                c = CE + 4 * L
                extra.append(I(a, f"v_mfma_f32_16x16x32_bf16 v[{c}:{c+3}], v[{SEL}:{SEL+3}], v[{b}:{b+3}], " + ("0" if p == 0 else f"v[{c}:{c+3}]")))
            for d in range(8):
                x = A0 + 16 * p + d
                t = T4 + 2 * (d & 1)
                dots.append(I(a, f"v_lshlrev_b32 v{t}, 16, v{x}"))
                dots.append(I(a, f"v_and_b32 v{t+1}, 0xffff0000, v{x}"))
                dots.append(I(a, f"v_add_f32 v{V_S}, v{V_S}, v{t}"))
                dots.append(I(a, f"v_fmac_f32 v{V_Q}, v{t}, v{t}"))
                dots.append(I(a, f"v_add_f32 v{V_R}, v{V_R}, v{t+1}"))
                dots.append(I(a, f"v_fmac_f32 v{V_C0}, v{t+1}, v{t+1}"))
        X = os.environ.get("P1_X", "")
        if "d" in X: dots = []
        if "r" in X: reads = [r for k, r in enumerate(reads) if k % 5 == 0]
        if "x" in X: reads = [r for k, r in enumerate(reads) if k % 5 != 0]
        if "m" in X and j >= 1: dmas = []
        if "f" in X and main: main = [main[0]] + [lambda: None] * 7; extra = [lambda: None] * 2
        if main:
            fill = []
            for g in range(8):
                fill.append([reads[k] for k in range(len(reads)) if k * RG // max(len(reads), 1) == g] +
                            dots[DS[g]:DS[g + 1]] + ([dmas[g - DOFF]] if 0 <= g - DOFF < len(dmas) else []) +
                            ([extra[g // 4]] if g % 4 == 1 else []))
            for g in range(8):
                main[g]()
                for f in fill[g]:
                    f()
        else:
            for f in reads + dmas:
                f()
        if j < 7:
            a("s_waitcnt lgkmcnt(0)")

def m_loop(a, acc, orient, cs):
    D = 4
    def rd(p):
        b = BR + 4 * (p % NBR)
        off = (p >> 2) * 8192
        a(f"ds_read_b64_tr_b16 v[{b}:{b+1}], v{WR + (p & 3)} offset:{off}")
        a(f"ds_read_b64_tr_b16 v[{b+2}:{b+3}], v{WR + (p & 3)} offset:{off+512}")
    for p in range(D):
        rd(p)
    for p in range(28):
        ahead = min(D - 1, 27 - p)
        a(f"s_waitcnt lgkmcnt({2*ahead})")
        b = BR + 4 * (p % NBR)
        a(mf(acc, b, A0 + 4 * p, orient, p == 0))
        if (p & 3) == 0:
            a(f"v_mfma_f32_16x16x32_bf16 v[{cs}:{cs+3}], v[{SEL}:{SEL+3}], v[{b}:{b+3}], " + ("0" if p == 0 else f"v[{cs}:{cs+3}]"))
        if p + D < 28:
            rd(p + D)

def cs_write(a, cs, slot):
    a(f"ds_write_b32 v{V_CSA}, v{cs} offset:{slot * 2048}")

def ce_build(a, ce, src):
    a(f"""v_add_f32 v{src}, v{src}, v{src+1}
v_add_f32 v{src+2}, v{src+2}, v{src+3}
v_add_f32 v{src}, v{src}, v{src+2}
v_and_b32 v{src+1}, 0xffff0000, v{src}
v_sub_f32 v{src}, v{src}, v{src+1}
v_cvt_pk_bf16_f32 v{ce}, v{src+1}, v{src}""")

def store_tile(a, vm, kind, src, so):
    ws = f"s[{S_WS}:{S_WS+3}]"
    if kind in "GL":
        vm.issue("st", f"buffer_store_dwordx4 v[{src}:{src+3}], v{V_L16}, {ws}, s{so} offen{STORE_FLAGS}")
        vm.issue("st", f"buffer_store_dwordx4 v[{src+4}:{src+7}], v{V_L16}, {ws}, s{so} offen offset:1024{STORE_FLAGS}")
    elif kind == "Q":
        for i in range(4):
            vm.issue("st", f"buffer_store_dwordx2 v[{src+2*i}:{src+2*i+1}], v{V_L8}, {ws}, s{so} offen offset:{512*i}{STORE_FLAGS}")
    else:
        vm.issue("st", f"buffer_store_dwordx4 v[{src}:{src+3}], v{V_KO}, {ws}, s{so} offen{STORE_FLAGS}")
        a(f"s_add_u32 s{S_T0}, s{so}, 14336")
        vm.issue("st", f"buffer_store_dwordx4 v[{src+4}:{src+7}], v{V_KO}, {ws}, s{S_T0} offen{STORE_FLAGS}")

def epilogue(a, vm, kind, acc, so):
    T = TMP
    R = (lambda r: V_R) if kind in "GLQ" else (lambda r: R16 + r)
    if kind == "G":
        for r in range(16):
            a(f"v_mul_f32 v{T+r}, v{acc+r}, v{acc+r}")
        for r in range(16):
            a(f"v_fma_f32 v{T+r}, v{T+r}, v{V_C1}, v{V_C0}")
        for r in range(16):
            a(f"v_mul_f32 v{T+r}, v{T+r}, v{acc+r}")
        for r in range(16):
            a(f"v_exp_f32 v{T+r}, v{T+r}")
        for r in range(16):
            a(f"v_fma_f32 v{T+r}, v{T+r}, v{V_RI}, v{V_RI}")
        for r in range(16):
            a(f"v_rcp_f32 v{T+r}, v{T+r}")
        for r in range(16):
            a(f"v_mul_f32 v{acc+r}, v{T+r}, v{acc+r}")
    elif kind in "QK":
        for r in range(16):
            a(f"v_fmaak_f32 v{acc+r}, v{acc+r}, v{R(r)}, {f32(1e-6)}")
        for r in range(16):
            a(f"v_fmaak_f32 v{T+r}, v{acc+r}, v{V_L2E}, {f32(-1e-6*LOG2E)}")
        for r in range(16):
            a(f"v_exp_f32_e64 v{T+r}, v{T+r} clamp")
        for r in range(16):
            a(f"v_max_f32 v{acc+r}, {f32(1e-6)}, v{acc+r}")
        for r in range(16):
            a(f"v_add_f32 v{acc+r}, v{acc+r}, v{T+r}")
    else:
        for r in range(16):
            a(f"v_mul_f32 v{acc+r}, v{acc+r}, v{R(r)}")
    for r in range(8):
        a(f"v_cvt_pk_bf16_f32 v{T+16+r}, v{acc+2*r}, v{acc+2*r+1}")
    store_tile(a, vm, kind, T + 16, so)
    if kind == "G":
        for r in range(16):
            a(f"v_add_f32 v{V_S}, v{V_S}, v{acc+r}")
            a(f"v_fmac_f32 v{V_Q}, v{acc+r}, v{acc+r}")

def late_fix(a, acc, orient, slot):
    a(f"""ds_read_b128 v[{T4}:{T4+3}], v{V_T0} offset:{slot * 2048}
s_waitcnt lgkmcnt(0)""")
    ce_build(a, CE, T4)
    a("s_nop 1")
    a(mf(acc, CE, XE, orient))
    a("s_nop 11")

def kind_body(a, vm0, kinds, st, lab):
    vm = vm0.copy()
    ori = [k in "GLQ" for k in kinds]
    phase_a(a, vm, ori[0], ori[1], st)
    a(f"""s_lshl_b32 s{S_T0}, s{S_WAVE}, 9
s_add_u32 s{S_T0}, s{S_T0}, {SCR + 4096}
v_lshl_add_u32 v{V_T0}, v{V_LANE}, 3, s{S_T0}
v_add_f32 v{V_S}, v{V_S}, v{V_R}
v_add_f32 v{V_Q}, v{V_Q}, v{V_C0}
ds_write_b64 v{V_T0}, v[{V_S}:{V_Q}]""")
    cs_write(a, CE, 0)
    cs_write(a, CE + 4, 1)
    for r in (1, 2, 3, 5, 6, 7):
        a(f"v_mov_b32 v{CE+r}, 0")
    a(f"""v_xor_b32 v{V_T0}, 2048, v{V_T0}
s_waitcnt lgkmcnt(0)
s_barrier""")
    st.mark(6)
    a(f"""ds_read_b64 v[{TMP}:{TMP+1}], v{V_T0}
v_and_b32 v{V_T0}, 0xfffffff0, v{V_CSA}
ds_read_b128 v[{T4}:{T4+3}], v{V_T0}
ds_read_b128 v[{TMP+4}:{TMP+7}], v{V_T0} offset:2048""")
    if len(kinds) == 4:
        for b in range(7):
            line_dma(a, vm, b, 3)()
    for i in range(4):
        a(f"v_subrev_u32 v{WR+i}, {WRING}, v{WR+i}")
    a(f"""s_waitcnt lgkmcnt(2)
v_add_f32 v{V_S}, v{V_S}, v{TMP}
v_add_f32 v{V_Q}, v{V_Q}, v{TMP+1}
v_mov_b32 v{TMP}, v{V_S}
v_mov_b32 v{TMP+1}, v{V_Q}
s_nop 1
v_permlane32_swap_b32 v{TMP}, v{V_S}
v_permlane32_swap_b32 v{TMP+1}, v{V_Q}
v_add_f32 v{V_S}, v{V_S}, v{TMP}
v_add_f32 v{V_Q}, v{V_Q}, v{TMP+1}
v_mul_f32 v{V_S}, {f32(-1/448)}, v{V_S}
v_mul_f32 v{V_Q}, {f32(1/448)}, v{V_Q}
v_and_b32 v{TMP}, 0xffff0000, v{V_S}
v_fma_f32 v{V_Q}, -v{V_S}, v{V_S}, v{V_Q}
v_sub_f32 v{TMP+1}, v{V_S}, v{TMP}
v_max_f32 v{V_Q}, 0, v{V_Q}
v_cndmask_b32 v{TMP}, v{TMP}, v{TMP+1}, s[{S_HI}:{S_HI+1}]
v_add_f32 v{V_Q}, {f32(1e-5)}, v{V_Q}
v_cvt_pk_bf16_f32 v{XE}, v{TMP}, v{TMP}
v_rsq_f32 v{V_R}, v{V_Q}
s_waitcnt lgkmcnt(0)""")
    ce_build(a, CE, T4)
    ce_build(a, CE + 4, TMP + 4)
    a("s_nop 0")
    a(mf(ACC[0], CE, XE, ori[0]))
    a(mf(ACC[1], CE + 4, XE, ori[1]))
    if not all(ori):
        a(f"""s_lshl_b32 s{S_T0}, s{S_WAVE}, 8
s_add_u32 s{S_T0}, s{S_T0}, {DEAD}
v_lshl_add_u32 v{TMP}, v{V_LANE}, 2, s{S_T0}
ds_write_b32 v{TMP}, v{V_R}
v_lshrrev_b32 v{TMP+1}, 5, v{V_LANE}
v_lshl_add_u32 v{TMP}, v{TMP+1}, 4, s{S_T0}
s_waitcnt lgkmcnt(0)""")
        for q in range(4):
            a(f"ds_read_b128 v[{R16+4*q}:{R16+4*q+3}], v{TMP} offset:{32*q}")
    if kinds[0] == "G":
        a(f"""v_mul_f32 v{V_RI}, v{V_Q}, v{V_R}
v_mul_f32 v{V_C0}, {f32(GELU_C0)}, v{V_R}
v_mul_f32 v{V_C1}, v{V_R}, v{V_R}
v_mul_f32 v{V_C1}, v{V_C1}, v{V_R}
v_mul_f32 v{V_C1}, {f32(GELU_C1)}, v{V_C1}
v_mov_b32 v{V_S}, 0
v_mov_b32 v{V_Q}, 0
s_nop 4""")
    else:
        a("s_waitcnt lgkmcnt(0)\ns_nop 4")
    epilogue(a, vm, kinds[0], ACC[0], S_O)
    vm.wait("w2")
    st.mark(7)
    a(f"""s_barrier
s_cmp_eq_u32 s{S_CH}, 0
s_cbranch_scc0 {lab}_CH1""")
    for ch in range(2):
        v = vm.copy()
        if ch == 0:
            epilogue(a, v, kinds[1], ACC[1], S_O + 1)
            st.mark(8)
            m_loop(a, ACC[0], ori[2], CSA)
            a("s_nop 2")
            cs_write(a, CSA, 0)
        else:
            a(f"{lab}_CH1:")
            m_loop(a, ACC[0], ori[2], CSA)
            a("s_nop 2")
            cs_write(a, CSA, 0)
            st.mark(8)
            epilogue(a, v, kinds[1], ACC[1], S_O + 1)
            if kinds[0] == "G":
                a(f"""s_lshl_b32 s{S_T0}, s{S_RW}, 9
s_add_u32 s{S_T0}, s{S_T0}, {DEAD}
v_lshl_add_u32 v{TMP}, v{V_LANE}, 3, s{S_T0}
ds_write_b64 v{TMP}, v[{V_S}:{V_Q}]""")
        if len(kinds) == 4:
            v.wait("w3")
        a("s_waitcnt lgkmcnt(0)")
        st.mark(9)
        a("s_barrier")
        if len(kinds) == 4 and ch == 1:
            for i in range(4):
                a(f"v_add_u32 v{WR+i}, {WRING}, v{WR+i}")
                a(f"v_xor_b32 v{WR+i}, s{S_T3}, v{WR+i}")
            m_loop(a, ACC[1], ori[3], CSA)
            a("s_nop 2")
            cs_write(a, CSA, 1)
        late_fix(a, ACC[0], ori[2], 0)
        epilogue(a, v, kinds[2], ACC[0], S_O + 2)
        if kinds[0] == "G" and ch == 0:
            a(f"""s_lshl_b32 s{S_T0}, s{S_RW}, 9
s_add_u32 s{S_T0}, s{S_T0}, {DEAD}
v_lshl_add_u32 v{TMP}, v{V_LANE}, 3, s{S_T0}
ds_read_b64 v[{TMP+2}:{TMP+3}], v{TMP}
s_waitcnt lgkmcnt(0)
v_add_f32 v{V_S}, v{V_S}, v{TMP+2}
v_add_f32 v{V_Q}, v{V_Q}, v{TMP+3}
v_mov_b32 v{TMP}, v{V_S}
v_mov_b32 v{TMP+1}, v{V_Q}
s_nop 1
v_permlane32_swap_b32 v{TMP}, v{V_S}
v_permlane32_swap_b32 v{TMP+1}, v{V_Q}
v_add_f32 v{V_S}, v{V_S}, v{TMP}
v_add_f32 v{V_Q}, v{V_Q}, v{TMP+1}
s_mov_b32 exec_hi, 0
buffer_store_dwordx2 v[{V_S}:{V_Q}], v{V_L8}, s[{S_WS}:{S_WS+3}], s{S_O+3} offen{STORE_FLAGS}""")
        if len(kinds) == 4:
            a("s_waitcnt lgkmcnt(0)\ns_barrier")
            if ch == 1:
                late_fix(a, ACC[1], ori[3], 1)
                epilogue(a, v, kinds[3], ACC[1], S_O + 3)
        a("s_branch P1_END")

def gen_p1(a, name, stamp=False):
    kernel_begin(a, name)
    vm = VM(a)
    a(f"""s_cmp_ge_u32 s2, 256
s_cbranch_scc1 P1_EXIT
s_load_dwordx4 s[60:63], s[0:1], 0
s_load_dwordx2 s[64:65], s[0:1], 32
s_load_dwordx2 s[68:69], s[0:1], 80""")
    st = Stamp(a, stamp, 0)
    st.clear()
    st.mark(0, True)
    st.mark(1)
    a(f"""v_and_b32 v{V_LANE}, 63, v0
v_lshrrev_b32 v{V_T0}, 6, v0
s_and_b32 s{S_T0}, s2, 1
v_readfirstlane_b32 s{S_WAVE}, v{V_T0}
s_lshl_b32 s{S_T0}, s{S_T0}, 3
s_bfe_u32 s{S_T1}, s2, 0x30003
s_add_u32 s{S_RB}, s{S_T0}, s{S_T1}
s_bfe_u32 s{S_T0}, s2, 0x20001
s_lshl_b32 s{S_T0}, s{S_T0}, 2
s_lshr_b32 s{S_T2}, s2, 6
s_add_u32 s{S_G}, s{S_T0}, s{S_T2}
s_and_b32 s{S_RW}, s{S_WAVE}, 3
s_lshr_b32 s{S_CH}, s{S_WAVE}, 2
""" + {7: f"""s_lshl_b32 s{S_T2}, s{S_T2}, 1
s_add_u32 s{S_T1}, s{S_T1}, s{S_T2}
s_sub_u32 s{S_T2}, s{S_T1}, 7
s_cmp_ge_u32 s{S_T1}, 7
s_cselect_b32 s{S_PK}, s{S_T2}, s{S_T1}
""", 1: f"s_mov_b32 s{S_PK}, 0\n", 2: f"""s_xor_b32 s{S_T1}, s{S_T1}, s{S_T2}
s_and_b32 s{S_T1}, s{S_T1}, 1
s_lshl_b32 s{S_PK}, s{S_T1}, 2
""", 4: f"""s_add_u32 s{S_T1}, s{S_T1}, s{S_T2}
s_and_b32 s{S_T1}, s{S_T1}, 3
s_lshl_b32 s{S_PK}, s{S_T1}, 1
"""}[ROTMODE] + f"""; x base: (rb*128 + 16*wave) * 896
s_lshl_b32 s{S_T0}, s{S_RB}, 3
s_add_u32 s{S_T0}, s{S_T0}, s{S_WAVE}
s_mul_i32 s{S_XB}, s{S_T0}, {16*896}
s_lshl_b32 s{S_MX}, s{S_WAVE}, 11
s_lshl_b32 s{S_MW}, s{S_WAVE}, 10
; strides: A: g<7 ? 3584 : 2688 ; B: g<14 ? 3584 : 2688
s_movk_i32 s{S_T0}, 2688
s_movk_i32 s{S_T1}, 3584
s_cmp_lt_u32 s{S_G}, 7
s_cselect_b32 s{S_SA}, s{S_T1}, s{S_T0}
s_cmp_lt_u32 s{S_G}, 14
s_cselect_b32 s{S_SB}, s{S_T1}, s{S_T0}
s_lshl_b32 s{S_A64}, s{S_SA}, 6
s_lshl_b32 s{S_B64}, s{S_SB}, 6
; column bases. L0: g<7: 1792+256g ; g<14: 128(g-7) ; else 1792+512(g-14)
s_lshl_b32 s{S_T0}, s{S_G}, 8
s_add_u32 s{S_T0}, s{S_T0}, 1792
s_lshl_b32 s{S_T1}, s{S_G}, 7
s_sub_u32 s{S_T2}, s{S_T1}, 896
s_cmp_lt_u32 s{S_G}, 7
s_cselect_b32 s{S_T0}, s{S_T0}, s{S_T2}
s_movk_i32 s{S_D1}, 128
s_cselect_b32 s{S_D1}, s{S_D1}, 896
s_lshl_b32 s{S_T2}, s{S_G}, 9
s_sub_u32 s{S_T2}, s{S_T2}, {14*512 - 1792}
s_add_u32 s{S_T3}, s{S_T2}, 256
s_cmp_lt_u32 s{S_G}, 14
s_cselect_b32 s{S_T0}, s{S_T0}, s{S_T2}
s_cselect_b32 s{S_D1}, s{S_D1}, 128
s_cselect_b32 s{S_T1}, s{S_T1}, s{S_T3}
s_lshl_b32 s{S_T2}, s{S_WAVE}, 3
s_mul_i32 s{S_T3}, s{S_T2}, s{S_SA}
s_add_u32 s{S_AB}, s{S_T3}, s{S_T0}
s_add_u32 s{S_D3}, s{S_T3}, {1792 + 384}
s_mul_i32 s{S_T3}, s{S_T2}, s{S_SB}
s_add_u32 s{S_BB}, s{S_T3}, s{S_T1}
; lane parts of DMA
v_lshrrev_b32 v{T4}, 3, v{V_LANE}
v_and_b32 v{T4+1}, 7, v{V_LANE}
v_lshrrev_b32 v{T4+2}, 4, v{V_LANE}
v_xor_b32 v{T4+2}, v{T4+2}, v{T4+1}
v_mul_u32_u24 v{V_X0}, 896, v{T4}
v_xor_b32 v{T4+3}, 4, v{T4+2}
v_lshl_add_u32 v{V_X1}, v{T4+3}, 4, v{V_X0}
v_lshl_add_u32 v{V_X0}, v{T4+2}, 4, v{V_X0}
v_add_u32 v{V_X1}, {8*896}, v{V_X1}
v_lshlrev_b32 v{T4+2}, 1, v{T4}
v_and_b32 v{T4+2}, 4, v{T4+2}
v_xor_b32 v{T4+2}, v{T4+2}, v{T4+1}
v_lshlrev_b32 v{T4+2}, 4, v{T4+2}
v_mad_u32_u24 v{V_DA}, v{T4}, s{S_SA}, v{T4+2}
v_mad_u32_u24 v{V_DB}, v{T4}, s{S_SB}, v{T4+2}
s_mul_i32 s{S_WA+2}, s{S_SA}, 448
s_mul_i32 s{S_WB+2}, s{S_SB}, 448
s_mov_b32 s{S_WA+3}, 0x20000
s_mov_b32 s{S_WB+3}, 0x20000
s_waitcnt lgkmcnt(0)""")
    srd(a, S_X, 60, 2048 * 896)
    a(f"""s_cmp_lt_u32 s{S_G}, 7
s_cselect_b32 s{S_WA}, s64, s62
s_cselect_b32 s{S_WA+1}, s65, s63
s_and_b32 s{S_WA+1}, s{S_WA+1}, 0xffff""")
    st.mark(2)
    for j in range(DEPTH):
        for f in piece_dma(a, vm, j):
            f()
        if j == 0 and PBAR:
            a("s_barrier")
    a(f"""s_cmp_lt_u32 s{S_G}, 14
s_cselect_b32 s{S_WB}, s64, s62
s_cselect_b32 s{S_WB+1}, s65, s63
s_and_b32 s{S_WB+1}, s{S_WB+1}, 0xffff""")
    srd(a, S_WS, 68, WS_SIZE)
    a(f"""s_lshl_b32 s{S_T0}, s{S_CH}, 1
s_xor_b32 s{S_T0}, s{S_T0}, s{S_RW}
v_and_b32 v{T4}, 31, v{V_LANE}
v_lshrrev_b32 v{T4+1}, 5, v{V_LANE}
v_bfe_u32 v{T4+2}, v{V_LANE}, 1, 3
v_xor_b32 v{T4+2}, v{T4+2}, v{T4+1}
s_lshl_b32 s{S_T1}, s{S_T0}, 1
v_xor_b32 v{T4+2}, s{S_T1}, v{T4+2}
v_lshlrev_b32 v{T4+2}, 4, v{T4+2}
v_lshl_add_u32 v{T4+2}, v{T4}, 7, v{T4+2}
s_lshl_b32 s{S_T1}, s{S_RW}, 12
s_add_u32 s{S_T1}, s{S_T1}, {XRING}""")
    for i in range(4):
        a(f"v_xor_b32 v{XR+i}, {i << 5}, v{T4+2}")
        a(f"v_add_u32 v{XR+i}, s{S_T1}, v{XR+i}")
    a(f"""v_lshlrev_b32 v{V_KO}, 5, v{T4}
v_lshl_add_u32 v{V_KO}, v{T4+1}, 4, v{V_KO}
s_lshl_b32 s{S_T1}, s{S_CH}, 6
v_and_b32 v{T4}, 3, v{V_LANE}
v_lshlrev_b32 v{T4}, 3, v{T4}
v_and_b32 v{T4+2}, 16, v{V_LANE}
v_lshl_add_u32 v{T4}, v{T4+2}, 1, v{T4}
v_and_b32 v{T4+2}, 8, v{V_LANE}
v_lshlrev_b32 v{T4+2}, 3, v{T4+2}
v_xor_b32 v{T4+2}, s{S_T1}, v{T4+2}
v_or_b32 v{T4}, v{T4}, v{T4+2}
v_bfe_u32 v{T4+2}, v{V_LANE}, 2, 2
v_lshl_add_u32 v{T4}, v{T4+2}, 7, v{T4}
v_lshl_add_u32 v{T4}, v{T4+1}, 10, v{T4}
s_lshl_b32 s{S_T0}, s{S_T0}, 11
v_or_b32 v{T4}, s{S_T0}, v{T4}""")
    for i in range(4):
        a(f"v_xor_b32 v{WR+i}, {i << 11}, v{T4}")
        a(f"v_add_u32 v{WR+i}, {WRING}, v{WR+i}")
    a(f"""v_lshlrev_b32 v{V_L16}, 4, v{V_LANE}
v_lshlrev_b32 v{V_L8}, 3, v{V_LANE}
s_lshl_b32 s{S_T0}, s{S_CH}, 10
s_lshl_b32 s{S_T1}, s{S_RW}, 2
s_add_u32 s{S_T0}, s{S_T0}, s{S_T1}
s_add_u32 s{S_T0}, s{S_T0}, {SCR}
v_add_u32 v{V_CSA}, s{S_T0}, v{V_L16}
v_mov_b32 v{V_S}, 0
v_mov_b32 v{V_Q}, 0
v_mov_b32 v{V_R}, 0
v_mov_b32 v{V_C0}, 0
s_mov_b32 s{S_HI}, 0xf0f00f0f
s_mov_b32 s{S_HI+1}, 0xf0f00f0f
v_mov_b32 v{T4}, 0x3f803f80
v_cndmask_b32 v{SEL}, 0, v{T4}, s[{S_HI}:{S_HI+1}]
v_cndmask_b32 v{SEL+1}, 0, v{T4}, s[{S_HI}:{S_HI+1}]
v_cndmask_b32 v{SEL+2}, 0, v{T4}, s[{S_HI}:{S_HI+1}]
v_cndmask_b32 v{SEL+3}, 0, v{T4}, s[{S_HI}:{S_HI+1}]
s_mov_b32 s{S_HI}, 0
s_mov_b32 s{S_HI+1}, -1
v_mov_b32 v{XE+1}, 0
v_mov_b32 v{V_L2E}, {f32(LOG2E)}
v_mov_b32 v{XE+2}, 0
v_mov_b32 v{XE+3}, 0
s_lshl_b32 s{S_T0}, s{S_RB}, 2
s_add_u32 s{S_T0}, s{S_T0}, s{S_RW}
s_mul_i32 s{S_T1}, s{S_T0}, {28*2048}
s_lshr_b32 s{S_T2}, s{S_T1}, 1
s_lshl_b32 s{S_T3}, s{S_G}, 1
s_add_u32 s{S_T3}, s{S_T3}, s{S_CH}
s_lshl_b32 s{S_O+2}, s{S_T3}, 11
s_add_u32 s{S_O+2}, s{S_O+2}, s{S_T1}
s_add_u32 s{S_O+2}, s{S_O+2}, {WS_Z1}
s_cmp_ge_u32 s{S_G}, 14
s_cbranch_scc1 P1_KC
s_cmp_ge_u32 s{S_G}, 7
s_cbranch_scc1 P1_KB
s_lshl_b32 s{S_T3}, s{S_G}, 2
s_add_u32 s{S_T3}, s{S_T3}, s{S_CH}
s_lshl_b32 s{S_T3}, s{S_T3}, 11
s_add_u32 s{S_O}, s{S_T3}, s{S_T1}
s_add_u32 s{S_O+1}, s{S_O}, 4096
s_lshl_b32 s{S_T3}, s{S_G}, 14
s_lshl_b32 s{S_T0}, s{S_T0}, 8
s_add_u32 s{S_T3}, s{S_T3}, s{S_T0}
s_add_u32 s{S_O+3}, s{S_T3}, {WS_ST}""")
    assert WS_Z2 == 0
    kind_body(a, vm, "GGL", st, "P1_A")
    a(f"""P1_KB:
s_sub_u32 s{S_T3}, s{S_T3}, 14
s_lshl_b32 s{S_T0}, s{S_T3}, 11
s_add_u32 s{S_T0}, s{S_T0}, s{S_T2}
s_add_u32 s{S_O}, s{S_T0}, {WS_Q}
s_lshl_b32 s{S_T0}, s{S_T3}, 10
s_add_u32 s{S_T0}, s{S_T0}, s{S_T2}
s_add_u32 s{S_O+1}, s{S_T0}, {WS_K}""")
    kind_body(a, vm, "QKL", st, "P1_B")
    a(f"""P1_KC:
s_and_b32 s{S_T0}, s{S_G}, 1
s_lshl_b32 s{S_T1}, s{S_T0}, 3
s_add_u32 s{S_T1}, s{S_T1}, s{S_CH}
s_lshl_b32 s{S_T1}, s{S_T1}, 10
s_add_u32 s{S_T2}, s{S_T2}, {WS_V}
s_add_u32 s{S_O}, s{S_T1}, s{S_T2}
s_add_u32 s{S_O+1}, s{S_O}, 2048
s_add_u32 s{S_O+2}, s{S_O}, 4096
s_lshl_b32 s{S_T1}, s{S_T0}, 10
s_add_u32 s{S_T1}, s{S_T1}, s{S_T2}
s_add_u32 s{S_O+3}, s{S_T1}, 6144
s_xor_b32 s{S_T0}, s{S_T0}, 1
s_lshl_b32 s{S_T3}, s{S_T0}, 6""")
    kind_body(a, vm, "VVVV", st, "P1_C")
    a("P1_END:")
    st.flush(S_WS, S_WAVE)
    a("P1_EXIT:")
    a("s_endpgm")
```

```python
from common import *
import os
P2_LDS = 163840
P2_VGPR = 232
WSL = 0
ZSL = 65536
ZT = 2304
ZSTG = 8 * ZT
TAB = ZSL + 2 * ZSTG
D = int(os.environ.get("P2_D", "2"))
NST = 16
STORE_FLAGS = os.environ.get("SF", " sc1")

S_SP, S_WS, S_B, S_W2 = 12, 16, 20, 24
S_WAVE, S_T0, S_T1, S_T2, S_T3 = 28, 29, 30, 31, 32
S_KH, S_TT, S_FQ, S_ST = 33, 34, 35, 36
S_AB, S_ZB, S_MW, S_O, S_C1 = 37, 38, 39, 40, 41
S_M = 42
S_M2 = 44
S_J = 46
V_LANE, V_T0, V_T1, V_T2 = 1, 2, 3, 4

def I(a, s):
    return lambda: a(s)

def compute_path(a, st):
    vm = VM(a)
    AR, BRD, V_L16, V_C0 = 5, 6, 10, 11
    ACC, FR, Z1, GZ, TP = 16, 80, 112, 144, 208
    ws = f"s[{S_WS}:{S_WS+3}]"
    a(f"""v_lshlrev_b32 v{V_T0}, 5, v0
s_lshl_b32 s{S_T0}, s{S_KH}, 13
s_add_u32 s{S_T0}, s{S_T0}, {WS_ST}""")
    for p in range(7):
        for q in range(2):
            r = GZ + 8 * p + 4 * q
            vm.issue("s", f"buffer_load_dwordx4 v[{r}:{r+3}], v{V_T0}, {ws}, s{S_T0} offen offset:{16*q}")
        if p < 6:
            a(f"s_add_u32 s{S_T0}, s{S_T0}, 16384")
    a(f"""v_and_b32 v{V_T1}, 31, v{V_LANE}
v_lshlrev_b32 v{V_T2}, 1, v{V_T1}
s_lshr_b32 s{S_T1}, s{S_WAVE}, 1
s_lshl_b32 s{S_T2}, s{S_TT}, 1
s_add_u32 s{S_T2}, s{S_T2}, s{S_T1}
s_lshl_b32 s{S_T3}, s{S_T2}, 7""")
    vm.issue("b", f"buffer_load_ushort v{TP}, v{V_T2}, s[{S_B}:{S_B+3}], s{S_T3} offen")
    vm.issue("b", f"buffer_load_ushort v{TP+1}, v{V_T2}, s[{S_B}:{S_B+3}], s{S_T3} offen offset:64")
    a(f"""; z1 / AF offsets: tt32 = S_T2*2 + ti ; ftg = 4fq + 2fh
s_and_b32 s{S_T0}, s{S_WAVE}, 1
s_lshl_b32 s{S_T3}, s{S_FQ}, 1
s_add_u32 s{S_T3}, s{S_T3}, s{S_T0}
s_lshl_b32 s{S_T3}, s{S_T3}, 12
s_mul_i32 s{S_ZB}, s{S_T2}, {2*28*2048}
s_add_u32 s{S_ZB}, s{S_ZB}, s{S_T3}
s_add_u32 s{S_ZB}, s{S_ZB}, {WS_Z1}
s_mul_i32 s{S_O}, s{S_T2}, {2*144*1024}
s_add_u32 s{S_O}, s{S_O}, s{S_T3}
s_mul_i32 s{S_T3}, s{S_KH}, {56*1024}
s_add_u32 s{S_O}, s{S_O}, s{S_T3}
s_add_u32 s{S_O}, s{S_O}, {WS_AF + 32*1024}
v_lshlrev_b32 v{V_L16}, 4, v{V_LANE}
v_lshrrev_b32 v{V_T2}, 5, v{V_LANE}
v_bfe_u32 v{AR}, v{V_LANE}, 1, 3
v_xor_b32 v{AR}, v{AR}, v{V_T2}
v_lshlrev_b32 v{AR}, 4, v{AR}
v_lshl_add_u32 v{AR}, v{V_T1}, 7, v{AR}
s_lshl_b32 s{S_T1}, s{S_T1}, 13""")
    for k in range(4):
        a(f"v_xor_b32 v{BRD+k}, {k << 5}, v{AR}")
        a(f"v_add_u32 v{BRD+k}, s{S_T1}, v{BRD+k}")
    a(f"""v_bfe_u32 v{AR}, v{V_LANE}, 4, 1
v_lshlrev_b32 v{AR}, 1, v{AR}
v_and_b32 v{V_T1}, 1, v{V_LANE}
v_add_u32 v{AR}, v{AR}, v{V_T1}
v_mul_u32_u24 v{AR}, 576, v{AR}
v_lshl_add_u32 v{AR}, v{V_T2}, 7, v{AR}
v_bfe_u32 v{V_T1}, v{V_LANE}, 2, 2
v_lshl_add_u32 v{AR}, v{V_T1}, 4, v{AR}
v_bfe_u32 v{V_T1}, v{V_LANE}, 1, 1
v_lshl_add_u32 v{AR}, v{V_T1}, 3, v{AR}
s_mul_i32 s{S_T0}, s{S_T0}, {2*ZT}
s_add_u32 s{S_T0}, s{S_T0}, {ZSL}
v_add_u32 v{AR}, s{S_T0}, v{AR}
v_mov_b32 v{V_C0}, {f32(GELU_C0)}
s_mov_b32 s{S_C1}, {f32(GELU_C1)}
v_add_u32 v{V_T0}, {TAB}, v{V_T0}""")
    vm.wait("s")
    for p in range(1, 7):
        for r in range(0, 8, 2):
            a(f"v_pk_add_f32 v[{GZ+r}:{GZ+r+1}], v[{GZ+r}:{GZ+r+1}], v[{GZ+8*p+r}:{GZ+8*p+r+1}]")
    for r in range(0, 8, 2):
        a(f"v_mul_f32 v{GZ+r}, {f32(-1/896)}, v{GZ+r}")
        a(f"v_mul_f32 v{GZ+r+1}, {f32(1/896)}, v{GZ+r+1}")
    for r in range(0, 8, 2):
        a(f"v_fma_f32 v{GZ+r+1}, -v{GZ+r}, v{GZ+r}, v{GZ+r+1}")
    for r in range(0, 8, 2):
        a(f"v_max_f32 v{GZ+r+1}, 0, v{GZ+r+1}")
    for r in range(0, 8, 2):
        a(f"v_add_f32 v{GZ+r+1}, {f32(1e-5)}, v{GZ+r+1}")
    for r in range(0, 8, 2):
        a(f"v_rsq_f32 v{GZ+r+1}, v{GZ+r+1}")
    a("s_nop 0")
    for r in range(0, 8, 2):
        a(f"v_mul_f32 v{GZ+r}, v{GZ+r}, v{GZ+r+1}")
    a(f"""ds_write_b128 v{V_T0}, v[{GZ}:{GZ+3}]
ds_write_b128 v{V_T0}, v[{GZ+4}:{GZ+7}] offset:16
s_waitcnt lgkmcnt(0)""")
    st.mark(2)
    a("s_barrier")
    vm.wait("b")
    a(f"""s_cmp_eq_u32 s{S_KH}, 0
s_cselect_b32 s{S_T0}, 16, 31
v_lshlrev_b32 v{TP}, s{S_T0}, v{TP}
v_lshlrev_b32 v{TP+1}, s{S_T0}, v{TP+1}
s_cselect_b32 s{S_T0}, -1, 0
v_and_b32 v{TP}, s{S_T0}, v{TP}
v_and_b32 v{TP+1}, s{S_T0}, v{TP+1}""")
    for fi in range(2):
        for ti in range(2):
            for r in range(16):
                a(f"v_mov_b32 v{ACC + 32*fi + 16*ti + r}, v{TP+ti}")
    gl = []
    for grp in range(16):
        e0 = 4 * grp
        t = TP + 4 * (grp & 1)
        for e in range(4):
            src = Z1 + (e0 + e) // 2
            gl.append(f"v_lshlrev_b32 v{GZ+e0+e}, 16, v{src}" if e % 2 == 0 else f"v_and_b32 v{GZ+e0+e}, 0xffff0000, v{src}")
        for e in range(4):
            gl.append(f"v_mul_f32 v{t+e}, v{GZ+e0+e}, v{GZ+e0+e}")
        for e in range(4):
            gl.append(f"v_fma_f32 v{t+e}, v{t+e}, s{S_C1}, v{V_C0}")
        for e in range(4):
            gl.append(f"v_mul_f32 v{t+e}, v{t+e}, v{GZ+e0+e}")
        for e in range(4):
            gl.append(f"v_exp_f32 v{t+e}, v{t+e}")
        for e in range(4):
            gl.append(f"v_add_f32 v{t+e}, 1.0, v{t+e}")
        for e in range(4):
            gl.append(f"v_rcp_f32 v{t+e}, v{t+e}")
        for e in range(4):
            gl.append(f"v_mul_f32 v{GZ+e0+e}, v{GZ+e0+e}, v{t+e}")
    G0 = 5
    ngap = (NST - G0) * 16
    gi = [0, 0]
    def fill():
        gi[1] += 1
        tgt = min(len(gl), (len(gl) * gi[1] + ngap - 1) // ngap)
        while gi[0] < tgt:
            a(gl[gi[0]])
            gi[0] += 1
    def reads(n, ks):
        f = FR + 16 * (ks & 1)
        zo = (n & 1) * ZSTG + (ks >> 1) * 4 * ZT + (ks & 1) * 256
        wo = (n & 3) * 16384
        l = []
        for i in range(2):
            l.append(f"ds_read_b64_tr_b16 v[{f+4*i}:{f+4*i+1}], v{AR} offset:{zo + i*ZT}")
            l.append(f"ds_read_b64_tr_b16 v[{f+4*i+2}:{f+4*i+3}], v{AR} offset:{zo + i*ZT + 64}")
            l.append(f"ds_read_b128 v[{f+8+4*i}:{f+8+4*i+3}], v{BRD+ks} offset:{wo + i*4096}")
        return l
    def mfmas(ks, rl, gel):
        f = FR + 16 * (ks & 1)
        k = 0
        for fi, ti in ((0, 0), (1, 0), (0, 1), (1, 1)):
            c = ACC + 32 * fi + 16 * ti
            a(f"v_mfma_f32_32x32x16_bf16 v[{c}:{c+15}], v[{f+4*fi}:{f+4*fi+3}], v[{f+8+4*ti}:{f+8+4*ti+3}], v[{c}:{c+15}]")
            for s in rl[2 * k:2 * k + 2]:
                a(s)
            k += 1
            if gel:
                fill()
    for n in range(NST):
        a("s_barrier")
        if n in (0, 4, 8, 12):
            st.mark(3 + n // 4)
        gel = n >= G0
        if n == G0:
            vm.wait("z1")
        if n == 0:
            for s in reads(0, 0):
                a(s)
        else:
            mfmas(3, reads(n, 0), gel)
        if n == 1:
            for ti in range(2):
                if ti:
                    a(f"s_add_u32 s{S_ZB}, s{S_ZB}, {28*2048}")
                for fi in range(2):
                    for q in range(2):
                        r = Z1 + 16 * fi + 8 * ti + 4 * q
                        vm.issue("z1", f"buffer_load_dwordx4 v[{r}:{r+3}], v{V_L16}, {ws}, s{S_ZB} offen offset:{fi*2048 + q*1024}")
        for ks in range(3):
            a("s_waitcnt lgkmcnt(0)")
            mfmas(ks, reads(n, ks + 1), gel)
        a("s_waitcnt lgkmcnt(0)")
    st.mark(7)
    mfmas(3, [], False)
    while gi[0] < len(gl):
        a(gl[gi[0]]); gi[0] += 1
    a("s_nop 8")
    for ti in range(2):
        if ti:
            a(f"s_add_u32 s{S_O}, s{S_O}, {144*1024}")
        for fi in range(2):
            c = ACC + 32 * fi + 16 * ti
            g = GZ + 32 * fi + 16 * ti
            for r in range(0, 16, 2):
                a(f"v_pk_mul_f32 v[{c+r}:{c+r+1}], v[{c+r}:{c+r+1}], v[{g+r}:{g+r+1}]")
            o = FR + 8 * (2 * ti + fi)
            for r in range(8):
                a(f"v_cvt_pk_bf16_f32 v{o+r}, v{c+2*r}, v{c+2*r+1}")
            for q in range(2):
                vm.issue("st", f"buffer_store_dwordx4 v[{o+4*q}:{o+4*q+3}], v{V_L16}, {ws}, s{S_O} offen offset:{fi*2048 + q*1024}{STORE_FLAGS}")
    a("s_branch P2_END")

def loader_path(a, st):
    vm = VM(a)
    VD, V_L16, V_ZW, V_TB = 5, 9, 10, 11
    RAW, UP, RM = 16, 80, 112
    ws = f"s[{S_WS}:{S_WS+3}]"
    a(f"""s_sub_u32 s{S_T0}, s{S_WAVE}, 4
v_lshrrev_b32 v{V_T0}, 3, v{V_LANE}
v_and_b32 v{V_T1}, 7, v{V_LANE}
v_lshrrev_b32 v{V_T2}, 4, v{V_LANE}
v_xor_b32 v{V_T2}, v{V_T2}, v{V_T1}
v_lshlrev_b32 v{V_T0}, 12, v{V_T0}
v_lshl_add_u32 v{VD}, v{V_T2}, 4, v{V_T0}
v_xor_b32 v{VD+1}, 64, v{VD}
v_add_u32 v{VD+1}, {8*4096}, v{VD+1}
v_add_u32 v{VD+2}, {16*4096}, v{VD}
v_add_u32 v{VD+3}, {16*4096}, v{VD+1}
s_lshl_b32 s{S_AB}, s{S_TT}, 2
s_add_u32 s{S_AB}, s{S_AB}, s{S_T0}
s_lshl_b32 s{S_AB}, s{S_AB}, 17
s_lshl_b32 s{S_T1}, s{S_KH}, 11
s_add_u32 s{S_AB}, s{S_AB}, s{S_T1}
s_lshl_b32 s{S_MW}, s{S_T0}, 12
s_lshr_b32 s{S_T1}, s{S_T0}, 1
s_lshl_b32 s{S_T2}, s{S_KH}, 5
s_add_u32 s{S_T2}, s{S_T2}, s{S_T1}
s_mul_i32 s{S_ZB}, s{S_T2}, {28*2048}
s_lshl_b32 s{S_T2}, s{S_FQ}, 1
s_and_b32 s{S_T3}, s{S_T0}, 1
s_add_u32 s{S_T2}, s{S_T2}, s{S_T3}
s_lshl_b32 s{S_T2}, s{S_T2}, 12
s_add_u32 s{S_ZB}, s{S_ZB}, s{S_T2}
v_lshlrev_b32 v{V_L16}, 4, v{V_LANE}""")
    def issue(n):
        a(f"""s_mul_i32 s{S_T2}, s{S_ST}, {2*28*2048}
s_lshl_b32 s{S_T3}, s{S_ST}, 7
s_add_u32 s{S_T2}, s{S_T2}, s{S_ZB}
s_add_u32 s{S_T3}, s{S_T3}, s{S_AB}""")
        for q in range(4):
            r = RAW + 16 * (n % (D + 1)) + 4 * q
            vm.issue(f"z{n}", f"buffer_load_dwordx4 v[{r}:{r+3}], v{V_L16}, {ws}, s{S_T2} offen offset:{q*1024}")
        for i in range(4):
            a(f"s_add_u32 m0, s{S_MW}, {WSL + (n & 3)*16384 + i*1024}")
            if i == 0:
                a(f"s_add_u32 s{S_ST}, s{S_ST}, 1")
            elif i == 1:
                a(f"s_and_b32 s{S_ST}, s{S_ST}, 15")
            else:
                a("s_nop 0")
            vm.issue(f"w{n}", f"buffer_load_dwordx4 v{VD+i}, s[{S_SP}:{S_SP+3}], s{S_T3} offen lds")
    a(f"s_mov_b32 s{S_J}, s{S_ST}")
    for n in range(D):
        issue(n)
    a(f"""v_lshrrev_b32 v{V_T0}, 5, v{V_LANE}
v_and_b32 v{V_T1}, 31, v{V_LANE}
v_mul_u32_u24 v{V_ZW}, 576, v{V_T0}
v_lshl_add_u32 v{V_ZW}, v{V_T1}, 4, v{V_ZW}
s_mul_i32 s{S_T2}, s{S_T0}, {2*ZT}
s_add_u32 s{S_T2}, s{S_T2}, {ZSL}
v_add_u32 v{V_ZW}, s{S_T2}, v{V_ZW}
s_lshl_b32 s{S_T1}, s{S_T1}, 8
s_add_u32 s{S_T1}, s{S_T1}, {TAB}
v_lshl_add_u32 v{V_TB}, v{V_T1}, 3, s{S_T1}""")
    st.mark(2)
    a("s_barrier")
    def tabread(n):
        a(f"""s_lshl_b32 s{S_T0}, s{S_J}, 9
v_add_u32 v{V_T0}, s{S_T0}, v{V_TB}
s_add_u32 s{S_J}, s{S_J}, 1
ds_read_b64 v[{RM+2*(n&1)}:{RM+2*(n&1)+1}], v{V_T0}
s_and_b32 s{S_J}, s{S_J}, 15""")
    tabread(0)
    for n in range(NST):
        if n + D < NST:
            issue(n + D)
        a("s_waitcnt lgkmcnt(0)")
        if n + 1 < NST:
            tabread(n + 1)
        vm.wait(f"z{n}")
        rm = RM + 2 * (n & 1)
        for q in range(4):
            r = RAW + 16 * (n % (D + 1)) + 4 * q
            u = UP + 8 * q
            for d in range(4):
                a(f"v_lshlrev_b32 v{u+2*d}, 16, v{r+d}")
                a(f"v_and_b32 v{u+2*d+1}, 0xffff0000, v{r+d}")
            for d in range(8):
                a(f"v_fma_f32 v{u+d}, v{u+d}, v{rm+1}, v{rm}")
            for d in range(4):
                a(f"v_cvt_pk_bf16_f32 v{u+d}, v{u+2*d}, v{u+2*d+1}")
            a(f"ds_write_b128 v{V_ZW}, v[{u}:{u+3}] offset:{(n&1)*ZSTG + (q>>1)*ZT + (q&1)*1152}")
        vm.wait(f"w{n}")
        a("s_waitcnt lgkmcnt(0)")
        if n in (0, 4, 8, 12):
            st.mark(3 + n // 4)
        a("s_barrier")
    a("s_branch P2_END")

def spare_path(a, st):
    vm = VM(a)
    ws = f"s[{S_WS}:{S_WS+3}]"
    V_KO, V_L8, V_L8B, V_L16, V_TR = 5, 6, 7, 8, 9
    KF, QF, ACC, ZAC, ONE, KVB, TP = 16, 144, 176, 192, 208, 212, 220
    WIMG = 65536
    a(f"""s_lshr_b32 s{S_T0}, s{S_J}, 1
v_and_b32 v{V_T0}, 31, v{V_LANE}
v_lshrrev_b32 v{V_T1}, 5, v{V_LANE}
v_lshlrev_b32 v{V_KO}, 5, v{V_T0}
v_lshl_add_u32 v{V_KO}, v{V_T1}, 4, v{V_KO}
s_mul_i32 s{S_T1}, s{S_WAVE}, {8*28672}
s_mul_i32 s{S_T2}, s{S_T0}, 896
s_add_u32 s{S_T1}, s{S_T1}, s{S_T2}
s_add_u32 s{S_T1}, s{S_T1}, {WS_K}""")
    for i in range(16):
        a(f"s_add_u32 s{S_T3}, s{S_T1}, {WS_V - WS_K}")
        vm.issue(f"k{i}", f"buffer_load_dwordx4 v[{KF+8*i}:{KF+8*i+3}], v{V_KO}, {ws}, s{S_T1} offen")
        vm.issue(f"k{i}", f"buffer_load_dwordx4 v[{KF+8*i+4}:{KF+8*i+7}], v{V_KO}, {ws}, s{S_T3} offen")
        a(f"s_add_u32 s{S_T1}, s{S_T1}, 14336")
    a(f"""v_lshlrev_b32 v{V_L8}, 3, v{V_LANE}
v_lshlrev_b32 v{V_L8B}, 3, v{V_T0}
v_lshlrev_b32 v{V_L16}, 4, v{V_LANE}
s_and_b32 s{S_T1}, s{S_J}, 1
s_lshl_b32 s{S_T1}, s{S_T1}, 3
s_add_u32 s{S_T1}, s{S_T1}, s{S_WAVE}
s_mul_i32 s{S_O}, s{S_T1}, {4*144*1024}
s_lshl_b32 s{S_T3}, s{S_T0}, 11
s_add_u32 s{S_O}, s{S_O}, s{S_T3}
s_add_u32 s{S_O}, s{S_O}, {WS_AF}
s_mul_i32 s{S_T1}, s{S_T1}, {4*28672}
s_lshl_b32 s{S_T2}, s{S_T2}, 1
s_add_u32 s{S_T1}, s{S_T1}, s{S_T2}
s_add_u32 s{S_T1}, s{S_T1}, {WS_Q}""")
    for u in range(4):
        for i in range(4):
            r = QF + 8 * u + 2 * i
            vm.issue("q", f"buffer_load_dwordx2 v[{r}:{r+1}], v{V_L8 if i < 3 else V_L8B}, {ws}, s{S_T1} offen offset:{512*i}")
        a(f"s_add_u32 s{S_T1}, s{S_T1}, 28672")
    a(f"""s_mul_i32 s{S_T1}, s{S_T0}, 28
s_and_b32 s{S_T2}, s{S_J}, 1
s_lshl_b32 s{S_T2}, s{S_T2}, 4
s_add_u32 s{S_T1}, s{S_T1}, s{S_T2}
s_mul_i32 s{S_T1}, s{S_T1}, 896
s_lshl_b32 s{S_T2}, s{S_WAVE}, 10
s_add_u32 s{S_T1}, s{S_T1}, s{S_T2}
s_add_u32 m0, s{S_T2}, {WIMG}
s_mul_i32 s{S_T3}, s{S_J}, {32*896}
s_add_u32 s{S_T3}, s{S_T3}, s{S_T2}""")
    vm.issue("w", f"buffer_load_dwordx4 v{V_L16}, s[{S_B}:{S_B+3}], s{S_T1} offen lds")
    a(f"s_add_u32 m0, s{S_T2}, {WIMG + 8192}\ns_add_u32 s{S_T1}, s{S_T1}, 8192")
    vm.issue("w", f"buffer_load_dwordx4 v{V_L16}, s[{S_B}:{S_B+3}], s{S_T1} offen lds")
    for i in range(4):
        a(f"s_add_u32 m0, s{S_T2}, {WIMG + 16384 + 8192*i}\ns_nop 0")
        vm.issue("w", f"buffer_load_dwordx4 v{V_L16}, s[{S_W2}:{S_W2+3}], s{S_T3} offen lds")
        a(f"s_add_u32 s{S_T3}, s{S_T3}, 8192")
    for r in range(4):
        a(f"v_mov_b32 v{ONE+r}, 0x3f803f80")
    a(f"""s_mov_b32 s{S_M}, 0x10000000
s_mov_b32 s{S_M+1}, 0x10000000
s_mov_b32 s{S_M2}, -1
s_mov_b32 s{S_M2+1}, 0""")
    for i in range(16):
        vm.wait(f"k{i}")
        c0 = "0" if i == 0 else f"v[{ACC}:{ACC+15}]"
        c1 = "0" if i == 0 else f"v[{ZAC}:{ZAC+15}]"
        a(f"v_mfma_f32_32x32x16_bf16 v[{ACC}:{ACC+15}], v[{KF+8*i}:{KF+8*i+3}], v[{KF+8*i+4}:{KF+8*i+7}], {c0}")
        a(f"v_mfma_f32_32x32x16_bf16 v[{ZAC}:{ZAC+15}], v[{KF+8*i}:{KF+8*i+3}], v[{ONE}:{ONE+3}], {c1}")
    st.mark(2)
    a(f"""s_lshl_b32 s{S_T1}, s{S_WAVE}, 12
v_add_u32 v{V_T2}, s{S_T1}, v{V_L8}
s_nop 10""")
    for r in range(16):
        a(f"v_cndmask_b32 v{ACC+r}, v{ACC+r}, v{ZAC+r}, s[{S_M}:{S_M+1}]")
    for p in range(8):
        a(f"ds_write_b64 v{V_T2}, v[{ACC+2*p}:{ACC+2*p+1}] offset:{512*p}")
    a(f"""s_lshl_b32 s{S_T1}, s{S_WAVE}, 9
v_add_u32 v{V_T2}, s{S_T1}, v{V_L8}""")
    vm.wait("w")
    a("s_waitcnt lgkmcnt(0)\ns_barrier")
    for w in range(8):
        a(f"ds_read_b64 v[{ACC+2*w}:{ACC+2*w+1}], v{V_T2} offset:{4096*w}")
    a(f"""s_cmp_ge_u32 s{S_WAVE}, 6
s_cselect_b32 s{S_M+1}, 0, -1
s_mov_b32 s{S_M}, -1
s_lshl_b32 s{S_T1}, s{S_WAVE}, 2
s_add_u32 s{S_T1}, s{S_T1}, 32768
v_lshl_add_u32 v{V_T2}, v{V_LANE}, 5, s{S_T1}
s_waitcnt lgkmcnt(0)""")
    for w in (4, 2, 1):
        for k in range(w):
            a(f"v_pk_add_f32 v[{ACC+2*k}:{ACC+2*k+1}], v[{ACC+2*k}:{ACC+2*k+1}], v[{ACC+2*(k+w)}:{ACC+2*(k+w)+1}]")
    a(f"""v_cvt_pk_bf16_f32 v{ACC}, v{ACC}, v{ACC+1}
v_cndmask_b32 v{ACC}, 0, v{ACC}, s[{S_M}:{S_M+1}]
ds_write_b32 v{V_T2}, v{ACC}
v_lshlrev_b32 v{V_T2}, 5, v{V_LANE}
s_waitcnt lgkmcnt(0)
s_barrier
ds_read_b128 v[{KVB}:{KVB+3}], v{V_T2} offset:32768
ds_read_b128 v[{KVB+4}:{KVB+7}], v{V_T2} offset:32784
s_waitcnt lgkmcnt(0)""")
    st.mark(3)
    for u in range(4):
        c = KF + 16 * u
        a(f"v_mfma_f32_32x32x16_bf16 v[{c}:{c+15}], v[{KVB}:{KVB+3}], v[{QF+8*u}:{QF+8*u+3}], 0")
        a(f"v_mfma_f32_32x32x16_bf16 v[{c}:{c+15}], v[{KVB+4}:{KVB+7}], v[{QF+8*u+4}:{QF+8*u+7}], v[{c}:{c+15}]")
    a("s_nop 5")
    for u in range(4):
        c = KF + 16 * u
        o = KF + 64 + 8 * u
        a(f"""v_add_f32 v{TP}, {f32(1e-6)}, v{c+12}
v_mov_b32 v{TP+1}, v{TP}
s_nop 1
v_permlane32_swap_b32 v{TP+1}, v{TP}
v_rcp_f32 v{TP}, v{TP}
s_nop 0""")
        for r in range(16):
            a(f"v_mul_f32 v{c+r}, v{c+r}, v{TP}")
        for r in range(8):
            a(f"v_cvt_pk_bf16_f32 v{o+r}, v{c+2*r}, v{c+2*r+1}")
        a(f"v_cndmask_b32 v{o+6}, 0, v{o+6}, s[{S_M2}:{S_M2+1}]")
        a(f"v_cndmask_b32 v{o+7}, 0, v{o+7}, s[{S_M2}:{S_M2+1}]")
        vm.issue("st", f"buffer_store_dwordx4 v[{o}:{o+3}], v{V_L16}, {ws}, s{S_O} offen{STORE_FLAGS}")
        vm.issue("st", f"buffer_store_dwordx4 v[{o+4}:{o+7}], v{V_L16}, {ws}, s{S_O} offen offset:1024{STORE_FLAGS}")
        a(f"s_add_u32 s{S_O}, s{S_O}, {144*1024}")
    st.mark(4)
    a(f"""s_cmp_eq_u32 s{S_WAVE}, 7
s_cbranch_scc1 P2_END
v_bfe_u32 v{V_T0}, v{V_LANE}, 2, 2
v_lshl_add_u32 v{V_T0}, v{V_T1}, 2, v{V_T0}
v_mul_u32_u24 v{V_TR}, 896, v{V_T0}
v_and_b32 v{V_T0}, 16, v{V_LANE}
v_lshl_add_u32 v{V_TR}, v{V_T0}, 1, v{V_TR}
v_and_b32 v{V_T0}, 3, v{V_LANE}
v_lshl_add_u32 v{V_TR}, v{V_T0}, 3, v{V_TR}
s_lshl_b32 s{S_T1}, s{S_WAVE}, 7
s_add_u32 s{S_T1}, s{S_T1}, {WIMG}
v_add_u32 v{V_TR}, s{S_T1}, v{V_TR}""")
    base = [0, 16384, 16384 + 14336]
    for k in range(3):
        for n in range(2):
            r = QF + 8 * k + 4 * n
            a(f"ds_read_b64_tr_b16 v[{r}:{r+1}], v{V_TR} offset:{base[k] + 64*n}")
            a(f"ds_read_b64_tr_b16 v[{r+2}:{r+3}], v{V_TR} offset:{base[k] + 64*n + 8*896}")
    a(f"""s_bitcmp1_b32 s{S_J}, 0
s_cselect_b32 s{S_M+1}, 0, -1
s_mul_i32 s{S_T1}, s{S_WAVE}, {2*88*1024}
s_add_u32 s{S_T1}, s{S_T1}, {WS_WF}
s_lshl_b32 s{S_T2}, s{S_J}, 10
s_add_u32 s{S_T3}, s{S_T1}, s{S_T2}
s_add_u32 s{S_T1}, s{S_T3}, s{S_T2}
s_add_u32 s{S_T1}, s{S_T1}, {32*1024}
s_waitcnt lgkmcnt(0)""")
    for n in range(2):
        r = QF + 4 * n
        a(f"v_cndmask_b32 v{r+2}, 0, v{r+2}, s[{S_M}:{S_M+1}]")
        a(f"v_cndmask_b32 v{r+3}, 0, v{r+3}, s[{S_M}:{S_M+1}]")
        vm.issue("st", f"buffer_store_dwordx4 v[{r}:{r+3}], v{V_L16}, {ws}, s{S_T3} offen{STORE_FLAGS}")
        a(f"s_add_u32 s{S_T3}, s{S_T3}, {88*1024}")
    a(f"""s_cmp_ge_u32 s{S_J}, 28
s_cbranch_scc1 P2_END""")
    for n in range(2):
        for k in (1, 2):
            r = QF + 8 * k + 4 * n
            vm.issue("st", f"buffer_store_dwordx4 v[{r}:{r+3}], v{V_L16}, {ws}, s{S_T1} offen offset:{(k-1)*1024}{STORE_FLAGS}")
        a(f"s_add_u32 s{S_T1}, s{S_T1}, {88*1024}")

def gen_p2(a, name, stamp=False):
    kernel_begin(a, name)
    a(f"""s_cmp_ge_u32 s2, 256
s_cbranch_scc1 P2_EXIT
s_load_dwordx4 s[60:63], s[0:1], 40
s_load_dwordx2 s[64:65], s[0:1], 56
s_load_dwordx2 s[66:67], s[0:1], 16
s_load_dwordx2 s[68:69], s[0:1], 80""")
    st = Stamp(a, stamp, 1)
    st.clear()
    st.mark(0, True)
    st.mark(1)
    a(f"""v_and_b32 v{V_LANE}, 63, v0
v_lshrrev_b32 v{V_T0}, 6, v0
s_and_b32 s{S_KH}, s2, 1
v_readfirstlane_b32 s{S_WAVE}, v{V_T0}
s_bfe_u32 s{S_T0}, s2, 0x20001
s_bfe_u32 s{S_T1}, s2, 0x20003
s_lshl_b32 s{S_TT}, s{S_T0}, 2
s_add_u32 s{S_TT}, s{S_TT}, s{S_T1}
s_lshr_b32 s{S_FQ}, s2, 5
s_lshl_b32 s{S_T1}, s{S_T1}, 1
s_add_u32 s{S_T1}, s{S_T1}, s{S_FQ}
s_lshl_b32 s{S_T1}, s{S_T1}, 1
s_and_b32 s{S_ST}, s{S_T1}, 15
s_sub_u32 s{S_J}, s2, 224
s_waitcnt lgkmcnt(0)""")
    srd(a, S_WS, 68, WS_SIZE)
    a(f"""s_cmp_ge_u32 s2, 224
s_cbranch_scc1 P2_SPARE
s_cmp_ge_u32 s{S_WAVE}, 4
s_cbranch_scc1 P2_LOAD""")
    srd(a, S_B, 62, 4096)
    compute_path(a, st)
    a("P2_LOAD:")
    srd(a, S_SP, 60, 2048 * 4096)
    loader_path(a, st)
    a("P2_SPARE:")
    srd(a, S_B, 66, 448 * 896)
    srd(a, S_W2, 64, 896 * 896)
    spare_path(a, st)
    a("P2_END:")
    st.flush(S_WS, S_WAVE)
    a("P2_EXIT:")
    a("s_endpgm")
```

```python
from common import *
import os
P3_GRID, P3_BLOCK, P3_LDS, P3_VGPR = 224, 256, 49152, 256
NRING = int(os.environ.get("P3_RING", "40"))
AHEAD = int(os.environ.get("P3_AHEAD", "36"))
SF3 = os.environ.get('SF3', '')
S_X, S_WS, S_OUT = 12, 16, 20
S_WAVE, S_T0, S_T1, S_T2, S_T3 = 28, 29, 30, 31, 32
S_A, S_B = 33, 35
S_AO, S_BO = 37, 39
S_RH, S_RO, S_XO = 41, 42, 43
V_LANE, V_T0, V_T1, V_L16, V_XO, V_W = 1, 2, 3, 4, 5, 6
XV, ACC, RING = 8, 16, 80

def gen_p3(a, name, stamp=False):
    kernel_begin(a, name)
    vm = VM(a)
    ws = f"s[{S_WS}:{S_WS+3}]"
    a(f"""s_cmp_ge_u32 s2, 224
s_cbranch_scc1 P3_EXIT
s_load_dwordx2 s[60:61], s[0:1], 0
s_load_dwordx2 s[62:63], s[0:1], 64
s_load_dwordx2 s[68:69], s[0:1], 80""")
    st = Stamp(a, stamp, 2)
    st.clear()
    st.mark(0, True)
    st.mark(1)
    a(f"""v_and_b32 v{V_LANE}, 63, v0
v_lshrrev_b32 v{V_T0}, 6, v0
s_and_b32 s{S_T0}, s2, 7
v_readfirstlane_b32 s{S_WAVE}, v{V_T0}
s_bfe_u32 s{S_T1}, s2, 0x20003
s_lshl_b32 s{S_T0}, s{S_T0}, 2
s_add_u32 s{S_T0}, s{S_T0}, s{S_T1}      ; m64
s_lshr_b32 s{S_T2}, s2, 5                ; n64
; rotations
s_mul_i32 s{S_T1}, s{S_T1}, 3
s_lshl_b32 s{S_T3}, s{S_T2}, 1
s_add_u32 s{S_RH}, s{S_T1}, s{S_T3}
s_add_u32 s{S_RO}, s{S_T1}, s{S_T2}
s_and_b32 s{S_RO}, s{S_RO}, 7
s_sub_u32 s{S_T1}, s{S_RH}, 14
s_cmp_ge_u32 s{S_RH}, 14
s_cselect_b32 s{S_RH}, s{S_T1}, s{S_RH}
s_lshl_b32 s{S_RH}, s{S_RH}, 10
s_lshl_b32 s{S_RO}, s{S_RO}, 10
""" + (f"s_mov_b32 s{S_RH}, 0\ns_mov_b32 s{S_RO}, 0\n" if os.environ.get("P3_ROT", "0") == "0" else "") + f"""; own tiles: tt = 2*m64 + (w>>1), nt = 2*n64 + (w&1) ; other = ^1
s_lshl_b32 s{S_T0}, s{S_T0}, 1
s_lshr_b32 s{S_T1}, s{S_WAVE}, 1
s_add_u32 s{S_T0}, s{S_T0}, s{S_T1}
s_lshl_b32 s{S_T2}, s{S_T2}, 1
s_and_b32 s{S_T1}, s{S_WAVE}, 1
s_add_u32 s{S_T2}, s{S_T2}, s{S_T1}
s_mul_i32 s{S_XO}, s{S_T0}, {32*896}
s_lshl_b32 s{S_T1}, s{S_T2}, 6
s_add_u32 s{S_XO}, s{S_XO}, s{S_T1}
s_lshl_b32 s{S_T1}, s{S_WAVE}, 13
s_mul_i32 s{S_T3}, s{S_WAVE}, {6*1024}
s_add_u32 s{S_T3}, s{S_T3}, {32*1024}
s_mul_i32 s{S_AO}, s{S_T0}, {144*1024}
s_xor_b32 s{S_T0}, s{S_T0}, 1
s_mul_i32 s{S_AO+1}, s{S_T0}, {144*1024}
s_mul_i32 s{S_BO}, s{S_T2}, {88*1024}
s_xor_b32 s{S_T2}, s{S_T2}, 1
s_mul_i32 s{S_BO+1}, s{S_T2}, {88*1024}
s_add_u32 s{S_T0}, s{S_T1}, {WS_AF}
s_add_u32 s{S_T2}, s{S_T1}, {WS_WF}
s_add_u32 s{S_AO}, s{S_AO}, s{S_T0}
s_add_u32 s{S_AO+1}, s{S_AO+1}, s{S_T0}
s_add_u32 s{S_BO}, s{S_BO}, s{S_T2}
s_add_u32 s{S_BO+1}, s{S_BO+1}, s{S_T2}
s_add_u32 s{S_A}, s{S_AO}, s{S_T3}
s_add_u32 s{S_A+1}, s{S_AO+1}, s{S_T3}
s_add_u32 s{S_B}, s{S_BO}, s{S_T3}
s_add_u32 s{S_B+1}, s{S_BO+1}, s{S_T3}
v_lshlrev_b32 v{V_L16}, 4, v{V_LANE}
v_add_u32 v{V_T1}, s{S_RH}, v{V_L16}
v_add_u32 v{V_T0}, s{S_RO}, v{V_L16}
v_add_u32 v{V_W}, {56*1024}, v{V_T1}
s_waitcnt lgkmcnt(0)""")
    srd(a, S_WS, 68, WS_SIZE)
    steps = ["h"] * 14 + ["o"] * 8
    loads = []
    slot = [0]
    regs = []
    def alloc():
        r = RING + 4 * (slot[0] % NRING)
        slot[0] += 1
        return r
    ops = []
    for si, ty in enumerate(steps):
        if ty == "h":
            rr = [alloc() for _ in range(6)]
            rr[1], rr[2] = rr[2], rr[1]
            ls = [(rr[0], V_T1, S_B), (rr[2], V_T1, S_A), (rr[1], V_T1, S_B + 1), (rr[3], V_T1, S_A + 1), (rr[4], V_W, S_A), (rr[5], V_W, S_A + 1)]
            post = f"""s_add_u32 s{S_RH}, s{S_RH}, 1024
s_cmp_eq_u32 s{S_RH}, {14*1024}
s_cselect_b32 s{S_RH}, 0, s{S_RH}
v_add_u32 v{V_T1}, s{S_RH}, v{V_L16}
v_add_u32 v{V_W}, {56*1024}, v{V_T1}"""
        else:
            rr = [alloc() for _ in range(4)]
            rr[1], rr[2] = rr[2], rr[1]
            ls = [(rr[0], V_T0, S_BO), (rr[2], V_T0, S_AO), (rr[1], V_T0, S_BO + 1), (rr[3], V_T0, S_AO + 1)]
            post = f"""s_add_u32 s{S_RO}, s{S_RO}, 1024
s_and_b32 s{S_RO}, s{S_RO}, 8191
v_add_u32 v{V_T0}, s{S_RO}, v{V_L16}"""
        regs.append(rr)
        for k, (r, v, s) in enumerate(ls):
            ops.append((si, k, f"buffer_load_dwordx4 v[{r}:{r+3}], v{v}, {ws}, s{s} offen", post if k == len(ls) - 1 else None))
    nxt = [0]
    def pump(limit):
        while nxt[0] < min(limit, len(ops)):
            si, k, t, post = ops[nxt[0]]
            vm.issue(f"l{si}_{k}", t)
            if post:
                a(post)
            nxt[0] += 1
    pump(AHEAD)
    srd(a, S_X, 60, 2048 * 896)
    srd(a, S_OUT, 62, 2048 * 896)
    a(f"""v_and_b32 v{XV}, 31, v{V_LANE}
v_lshrrev_b32 v{XV+1}, 5, v{V_LANE}
v_mul_u32_u24 v{V_XO}, 896, v{XV}
v_lshl_add_u32 v{V_XO}, v{XV+1}, 4, v{V_XO}""")
    done = 0
    first = [True] * 4
    def mf(q, b, x):
        c = ACC + 16 * q
        a(f"v_mfma_f32_32x32x16_bf16 v[{c}:{c+15}], v[{b}:{b+3}], v[{x}:{x+3}], " + ("0" if first[q] else f"v[{c}:{c+15}]"))
        first[q] = False
    for si, ty in enumerate(steps):
        rr = regs[si]
        if si == 0: st.mark(2)
        if si == 1: st.mark(3)
        if si == 7: st.mark(4)
        if si == 14: st.mark(5)
        seq = [(1, 0, rr[0], rr[2]), (2, 1, rr[1], rr[2]), (3, 2, rr[0], rr[3]), (3, 3, rr[1], rr[3])]
        if ty == "h":
            seq += [(4, 0, rr[0], rr[4]), (4, 1, rr[1], rr[4]), (5, 2, rr[0], rr[5]), (5, 3, rr[1], rr[5])]
        n = len(rr)
        for k, (w, q, b, x) in enumerate(seq):
            vm.wait(f"l{si}_{w}")
            mf(q, b, x)
            allow = min(done + NRING, done + AHEAD + (n * (k + 1)) // len(seq))
            pump(allow)
        done += n
        if si == 15:
            vm.issue("x", f"buffer_load_dwordx4 v[{XV}:{XV+3}], v{V_XO}, s[{S_X}:{S_X+3}], s{S_XO} offen")
            vm.issue("x", f"buffer_load_dwordx4 v[{XV+4}:{XV+7}], v{V_XO}, s[{S_X}:{S_X+3}], s{S_XO} offen offset:32")
    st.mark(6)
    for lq in (1, 2, 3):
        a(f"""s_xor_b32 s{S_T0}, s{S_WAVE}, {lq}
s_mul_i32 s{S_T0}, s{S_T0}, 12288
v_add_u32 v{RING+lq}, s{S_T0}, v{V_L16}""")
    a(f"""s_mul_i32 s{S_T0}, s{S_WAVE}, 12288
v_add_u32 v{V_T0}, s{S_T0}, v{V_L16}""")
    for lq in (1, 2, 3):
        for k in range(4):
            c = ACC + 16 * lq + 4 * k
            a(f"ds_write_b128 v{RING+lq}, v[{c}:{c+3}] offset:{(lq-1)*4096 + k*1024}")
    a("s_waitcnt lgkmcnt(0)\ns_barrier")
    for k in range(12):
        c = ACC + 16 + 4 * k
        a(f"ds_read_b128 v[{c}:{c+3}], v{V_T0} offset:{k*1024}")
    vm.wait("x")
    U = RING + 8
    for d in range(8):
        a(f"v_lshlrev_b32 v{U+2*d}, 16, v{XV+d}")
        a(f"v_and_b32 v{U+2*d+1}, 0xffff0000, v{XV+d}")
    for lq in (1, 2, 3):
        a(f"s_waitcnt lgkmcnt({12 - 4*lq})")
        for r in range(0, 16, 2):
            a(f"v_pk_add_f32 v[{ACC+r}:{ACC+r+1}], v[{ACC+r}:{ACC+r+1}], v[{ACC+16*lq+r}:{ACC+16*lq+r+1}]")
    a("s_nop 1")
    for g in (0, 8):
        for d in range(4):
            a(f"v_permlane32_swap_b32 v{ACC+g+d}, v{ACC+g+4+d}")
    for r in range(0, 16, 2):
        a(f"v_pk_add_f32 v[{ACC+r}:{ACC+r+1}], v[{ACC+r}:{ACC+r+1}], v[{U+r}:{U+r+1}]")
    for r in range(8):
        a(f"v_cvt_pk_bf16_f32 v{XV+r}, v{ACC+2*r}, v{ACC+2*r+1}")
    a(f"""buffer_store_dwordx4 v[{XV}:{XV+3}], v{V_XO}, s[{S_OUT}:{S_OUT+3}], s{S_XO} offen{SF3}
buffer_store_dwordx4 v[{XV+4}:{XV+7}], v{V_XO}, s[{S_OUT}:{S_OUT+3}], s{S_XO} offen offset:32{SF3}""")
    st.flush(S_WS, S_WAVE)
    a("P3_EXIT:")
    a("s_endpgm")
```

```python
import sys, argparse
from common import *
import p1
HDR = open("parallel_sum__linear_attn_block__mixer_gmlp__prompt.s.ref").read().split("\n")
HDR = [l for l in HDR if l.startswith(";") and "@launch" not in l and "Override" not in l and "grid=ceil" not in l]

def build(path, parts, stamp=False, extra_empty=0):
    a = Asm()
    launches = []
    descs = []
    body = Asm()
    for p in parts:
        if p == "p1":
            launches.append(("p1_kernel", 256, 512, p1.P1_LDS))
            p1.gen_p1(body, "p1_kernel", stamp)
            descs.append(kernel_desc("p1_kernel", p1.P1_VGPR, 100))
        elif p == "p2":
            import p2
            launches.append(("p2_kernel", 256, 512, p2.P2_LDS))
            p2.gen_p2(body, "p2_kernel", stamp)
            descs.append(kernel_desc("p2_kernel", p2.P2_VGPR, 100))
        elif p == "p3":
            import p3
            launches.append(("p3_kernel", p3.P3_GRID, p3.P3_BLOCK, p3.P3_LDS))
            p3.gen_p3(body, "p3_kernel", stamp)
            descs.append(kernel_desc("p3_kernel", p3.P3_VGPR, 100))
    if extra_empty:
        kernel_begin(body, "e_kernel")
        body("s_endpgm")
        descs.append(kernel_desc("e_kernel", 8, 16))
        for i in range(extra_empty):
            launches.append(("e_kernel", 256, 64, 0))
    for l in HDR:
        a(l)
    for (n, g, b, lds) in launches:
        a(f"; @launch kernel={n} grid=({g},1,1) block=({b},1,1) lds={lds}")
    a('.amdgcn_target "amdgcn-amd-amdhsa--gfx950"')
    a(".text")
    a(body.text())
    a('.section .rodata,"a"')
    for d in descs:
        a(d)
    open(path, "w").write(a.text())

if __name__ == "__main__":
    ap = argparse.ArgumentParser()
    ap.add_argument("out"); ap.add_argument("parts"); ap.add_argument("--stamp", action="store_true"); ap.add_argument("--empty", type=int, default=0)
    x = ap.parse_args()
    build(x.out, x.parts.split(","), x.stamp, x.empty)
```

```python
from asmlib import *
import struct

def f32(x):
    return "0x%08x" % struct.unpack("<I", struct.pack("<f", x))[0]

WS_Z2 = 0x0000000
WS_Z1 = 0x0400000
WS_Q = 0x0800000
WS_K = 0x0A00000
WS_V = 0x0C00000
WS_ST = 0x0E00000
WS_SF = 0x0F00000
WS_AF = 0x1000000
WS_WF = 0x2000000
WS_SIZE = 0x3000000
WS_STAMP = 0x8000000

class VM:
    def __init__(self, a):
        self.a = a
        self.q = []
    def issue(self, tag, text):
        self.a(text)
        self.q.append(tag)
    def wait(self, *tags):
        last = -1
        for i, t in enumerate(self.q):
            if t in tags:
                last = i
        if last < 0:
            return
        n = len(self.q) - 1 - last
        assert n <= 63, n
        self.a(f"s_waitcnt vmcnt({n})")
        self.q = self.q[last + 1:]
    def copy(self, a=None):
        v = VM(a or self.a)
        v.q = list(self.q)
        return v

GELU_C0 = -2.0 * 0.7978845608028654 * 1.4426950408889634
GELU_C1 = GELU_C0 * 0.044715
LOG2E = 1.4426950408889634

class Stamp:
    def __init__(self, a, on, kern=0):
        self.a, self.on, self.kern = a, on, kern
    def mark(self, i, real=False):
        if self.on:
            self.a(f"{'s_memrealtime' if real else 's_memtime'} s[{70+2*i}:{71+2*i}]")
    def clear(self):
        if self.on:
            for i in range(14):
                self.a(f"s_mov_b32 s{70+2*i}, 0")
    def flush(self, s_ws, s_wave):
        if not self.on:
            return
        a = self.a
        a("s_waitcnt vmcnt(0)")
        self.mark(12)
        self.mark(13, True)
        a(f"""s_waitcnt lgkmcnt(0)
s_mov_b64 exec, 1
s_lshl_b32 s98, s2, 9
s_lshl_b32 s99, s{s_wave}, 6
s_add_u32 s98, s98, s99
s_add_u32 s98, s98, {WS_STAMP + self.kern * 0x100000}
s_mov_b32 s{s_ws+2}, 0x10000000
v_mov_b32 v20, 0""")
        for i in range(14):
            a(f"v_mov_b32 v{2+i}, s{70+2*i}")
        a("v_mov_b32 v16, 0\nv_mov_b32 v17, 0")
        for q in range(4):
            a(f"buffer_store_dwordx4 v[{2+4*q}:{5+4*q}], v20, s[{s_ws}:{s_ws+3}], s98 offen offset:{16*q}")


def finalize_stats(a, NP, s_ws, s_dbg, s_part, s_st, v_l16, T, lab_end, st_flags):
    NL = (NP + 3) // 4
    a(f"""s_waitcnt vmcnt(0)
s_mov_b64 exec, 1
v_mov_b32 v{T}, 1
v_mov_b32 v{T+1}, 0
s_lshl_b32 s58, s{s_st}, 2
buffer_atomic_add v{T}, v{T+1}, s[{s_dbg}:{s_dbg+3}], s58 offen sc0 sc1
s_waitcnt vmcnt(0)
v_readfirstlane_b32 s59, v{T}
s_mov_b64 exec, -1
s_cmp_lg_u32 s59, {NP-1}
s_cbranch_scc1 {lab_end}""")
    if NP % 4:
        for r in range(4):
            a(f"v_mov_b32 v{T+4*(NL-1)+r}, 0")
    for i in range(NL):
        if i == NL - 1 and NP % 4:
            m = (1 << (16 * (NP % 4))) - 1
            a(f"s_mov_b32 exec_lo, 0x{m & 0xffffffff:x}\ns_mov_b32 exec_hi, 0x{m >> 32:x}")
        if i == 4:
            a(f"s_add_u32 s{s_part}, s{s_part}, 4096")
        a(f"buffer_load_dwordx4 v[{T+4*i}:{T+4*i+3}], v{v_l16}, s[{s_ws}:{s_ws+3}], s{s_part} offen offset:{(i&3)*1024} sc0 sc1")
    a("s_mov_b64 exec, -1")
    a(f"s_lshl_b32 s58, s{s_st}, 8\ns_add_u32 s58, s58, {WS_SF}")
    for i in range(1, NL):
        a(f"s_waitcnt vmcnt({NL-1-i})")
        for h in (0, 2):
            a(f"v_pk_add_f32 v[{T+h}:{T+h+1}], v[{T+h}:{T+h+1}], v[{T+4*i+h}:{T+4*i+h+1}]")
    for op in ("v_permlane32_swap_b32", "v_permlane16_swap_b32"):
        for r in range(4):
            a(f"v_mov_b32 v{T+4+r}, v{T+r}")
        a("s_nop 1")
        for r in range(4):
            a(f"{op} v{T+4+r}, v{T+r}")
        for h in (0, 2):
            a(f"v_pk_add_f32 v[{T+h}:{T+h+1}], v[{T+h}:{T+h+1}], v[{T+4+h}:{T+4+h+1}]")
    for r in (0, 2):
        a(f"v_mul_f32 v{T+r}, {f32(-1/896)}, v{T+r}")
        a(f"v_mul_f32 v{T+r+1}, {f32(1/896)}, v{T+r+1}")
    for r in (0, 2):
        a(f"v_fma_f32 v{T+r+1}, -v{T+r}, v{T+r}, v{T+r+1}")
    for r in (0, 2):
        a(f"v_max_f32 v{T+r+1}, 0, v{T+r+1}")
    for r in (0, 2):
        a(f"v_add_f32 v{T+r+1}, {f32(1e-5)}, v{T+r+1}")
    for r in (0, 2):
        a(f"v_rsq_f32 v{T+r+1}, v{T+r+1}")
    a("s_nop 0")
    for r in (0, 2):
        a(f"v_mul_f32 v{T+r}, v{T+r}, v{T+r+1}")
    a(f"""s_mov_b64 exec, 0xffff
buffer_store_dwordx4 v[{T}:{T+3}], v{v_l16}, s[{s_ws}:{s_ws+3}], s58 offen{st_flags}""")
```

```python
from common import *
import os
R1 = 0
RING = 57344
DEAD = RING + 57344
SCR = 155648
P1_LDS = 163840
P1_VGPR = 256
E = os.environ.get
ROTMODE = int(E("P1_ROT", "1"))
STORE_FLAGS = E("SF", " sc1")
PF1 = int(E("P1_PF1", "2"))
PF2 = int(E("P1_PF2", "0"))
CSTAT = E("P1_CSTAT", "valu")
POLL_AT = int(E("P1_POLL", "42"))
X = E("P1_X", "")

V_LANE = 1
V_X0, V_X1, V_DA, V_DB = 2, 3, 4, 5
XR, WR = 6, 10
V_L16, V_T0 = 14, 15
A0 = 16
V_S, V_Q = 224, 225
V_R, V_C0, V_C1, V_RI, V_L2E = 226, 227, 228, 229, 230
V_PF = V_X1
SEL = 232
XE, CE = 236, 240
T4 = 248
V_KO, V_L8, V_CSA, V_DUM = 252, 253, 254, 255

S_SP = 4
S_PFO, S_CNT, S_REC = 8, 9, 10
S_X, S_WA, S_WB, S_WS = 12, 16, 20, 24
S_RB, S_G, S_WAVE, S_RW, S_CH = 28, 29, 30, 31, 32
S_T0, S_T1, S_T2, S_T3 = 33, 34, 35, 36
S_PK = 37
S_XB = 38
S_L = 39
S_A64 = 43
S_MR, S_MW = 44, 45
S_XO = 46
S_O = 47
S_SA = 52
S_SPIN = 53
S_HI = 54
B64 = 64 * 2688

class K:
    def __init__(s, kinds):
        s.kinds = kinds
        s.nA = 2 if kinds[0] == "V" else 1
        s.WST = (2 + s.nA) * 1024
        s.SLOT = 8 * s.WST
        s.NSL = 98304 // s.SLOT
        s.DEPTH = s.NSL - 1
        s.ori = [k in "GLQ" for k in kinds]
        s.WB, s.CV, s.CSA = 160, 212, 220
        if s.nA == 1:
            s.ACC = [128, 144, 160]
            s.BR, s.TMP, s.R16, s.XS = 176, 196, A0, CE + 4
            s.stat = E("P1_ASTAT", "mix")
        else:
            s.ACC = [128, 144, 160, 128]
            s.BR, s.TMP, s.R16, s.XS = 192, 176, 176, 228
            s.stat = CSTAT
NBR = 5

class LG:
    def __init__(self, a):
        self.a, self.q = a, []
    def issue(self, tag, text):
        self.a(text)
        self.q.append(tag)
    def wait(self, *tags):
        last = -1
        for i, t in enumerate(self.q):
            if t in tags:
                last = i
        if last < 0:
            return
        n = min(15, len(self.q) - 1 - last)
        self.a(f"s_waitcnt lgkmcnt({n})")
        self.q = self.q[len(self.q) - n:] if n else []
    def all(self):
        if self.q:
            self.a("s_waitcnt lgkmcnt(0)")
        self.q = []
    def copy(self):
        v = LG(self.a)
        v.q = list(self.q)
        return v

def mf(acc, w, x, orient, first=False):
    c = "0" if first else f"v[{acc}:{acc+15}]"
    if orient:
        return f"v_mfma_f32_32x32x16_bf16 v[{acc}:{acc+15}], v[{w}:{w+3}], v[{x}:{x+3}], {c}"
    return f"v_mfma_f32_32x32x16_bf16 v[{acc}:{acc+15}], v[{x}:{x+3}], v[{w}:{w+3}], {c}"

def mf16(c, b, first):
    return f"v_mfma_f32_16x16x32_bf16 v[{c}:{c+3}], v[{SEL}:{SEL+3}], v[{b}:{b+3}], " + ("0" if first else f"v[{c}:{c+3}]")

def adv_pk(a):
    if ROTMODE != 1:
        a(f"""s_add_u32 s{S_PK}, s{S_PK}, 1
s_cmp_eq_u32 s{S_PK}, 7
s_cselect_b32 s{S_PK}, 0, s{S_PK}""")

def line_src(L):
    if L == 1:
        return V_DB, S_WB, str(B64)
    return V_DA, S_WA, f"s{S_A64}"

def w_off(a, L, dst):
    v, s, st = line_src(L)
    if ROTMODE == 1:
        return S_L + L
    a(f"s_mul_i32 s{dst}, s{S_PK}, {st}\ns_add_u32 s{dst}, s{dst}, s{S_L+L}")
    return dst

def w_adv(a, L):
    if ROTMODE == 1:
        a(f"s_add_u32 s{S_L+L}, s{S_L+L}, {line_src(L)[2]}")

def piece_dma(a, vm, k, j):
    sl = RING + (j % k.NSL) * k.SLOT
    def x0():
        a(f"s_add_u32 m0, s{S_MR}, {sl}")
        if ROTMODE == 1:
            a(f"s_add_u32 s{S_T0}, s{S_XB}, {128 * j}")
        else:
            a(f"s_lshl_b32 s{S_T0}, s{S_PK}, 7\ns_add_u32 s{S_T0}, s{S_T0}, s{S_XB}")
        vm.issue(f"p{j}", f"buffer_load_dwordx4 v{V_X0}, s[{S_X}:{S_X+3}], s{S_T0} offen lds")
    def x1():
        vm.issue(f"p{j}", f"buffer_load_dwordx4 v{V_X1}, s[{S_X}:{S_X+3}], s{S_T0} offen offset:{(1+k.nA)*1024} lds")
    def w(L):
        def f():
            v, s, _ = line_src(L)
            o = w_off(a, L, S_T1)
            vm.issue(f"p{j}", f"buffer_load_dwordx4 v{v}, s[{s}:{s+3}], s{o} offen offset:{(1+L)*1024} lds")
            w_adv(a, L)
            if L == k.nA - 1:
                adv_pk(a)
        return f
    return [x0, x1] + [w(L) for L in range(k.nA)]

def line_dma(a, vm, L, b, base, tag):
    def f():
        v, s, _ = line_src(L)
        a(f"s_add_u32 m0, s{S_MW}, {base + b * 8192}")
        o = w_off(a, L, S_T1)
        if ROTMODE == 1:
            a("s_nop 0")
        vm.issue(tag, f"buffer_load_dwordx4 v{v}, s[{s}:{s+3}], s{o} offen lds")
        w_adv(a, L)
        adv_pk(a)
    return f

def I(a, s):
    return lambda: a(s)

def spread(n, lst):
    return [lst[len(lst) * i // n: len(lst) * (i + 1) // n] for i in range(n)]

def ce_build(ce, src):
    return [f"v_add_f32 v{src}, v{src}, v{src+1}",
            f"v_add_f32 v{src+2}, v{src+2}, v{src+3}",
            f"v_add_f32 v{src}, v{src}, v{src+2}",
            f"v_and_b32 v{src+1}, 0xffff0000, v{src}",
            f"v_sub_f32 v{src}, v{src}, v{src+1}",
            f"v_cvt_pk_bf16_f32 v{ce}, v{src+1}, v{src}"]

def store_tile(a, vm, kind, src, so):
    ws = f"s[{S_WS}:{S_WS+3}]"
    l = []
    if kind in "GL":
        l.append(lambda: vm.issue("st", f"buffer_store_dwordx4 v[{src}:{src+3}], v{V_L16}, {ws}, s{so} offen{STORE_FLAGS}"))
        l.append(lambda: vm.issue("st", f"buffer_store_dwordx4 v[{src+4}:{src+7}], v{V_L16}, {ws}, s{so} offen offset:1024{STORE_FLAGS}"))
    elif kind == "Q":
        for i in range(4):
            l.append(lambda i=i: vm.issue("st", f"buffer_store_dwordx2 v[{src+2*i}:{src+2*i+1}], v{V_L8}, {ws}, s{so} offen offset:{512*i}{STORE_FLAGS}"))
    else:
        l.append(lambda: vm.issue("st", f"buffer_store_dwordx4 v[{src}:{src+3}], v{V_KO}, {ws}, s{so} offen{STORE_FLAGS}"))
        def second():
            a(f"s_add_u32 s{so}, s{so}, 14336")
            vm.issue("st", f"buffer_store_dwordx4 v[{src+4}:{src+7}], v{V_KO}, {ws}, s{so} offen{STORE_FLAGS}")
        l.append(second)
    return l

def epilogue(a, vm, k, kind, acc, so):
    T = k.TMP
    R = (lambda r: V_R) if kind in "GLQ" else (lambda r: k.R16 + r)
    s = []
    for h in range(2):
        rs = range(8 * h, 8 * h + 8)
        if kind == "G":
            s += [f"v_mul_f32 v{T+r}, v{acc+r}, v{acc+r}" for r in rs]
            s += [f"v_fma_f32 v{T+r}, v{T+r}, v{V_C1}, v{V_C0}" for r in rs]
            s += [f"v_mul_f32 v{T+r}, v{T+r}, v{acc+r}" for r in rs]
            s += [f"v_exp_f32 v{T+r}, v{T+r}" for r in rs]
            s += [f"v_fma_f32 v{T+r}, v{T+r}, v{V_RI}, v{V_RI}" for r in rs]
            s += [f"v_rcp_f32 v{T+r}, v{T+r}" for r in rs]
            s += [f"v_mul_f32 v{acc+r}, v{T+r}, v{acc+r}" for r in rs]
            for r in rs:
                s.append(f"v_add_f32 v{V_S}, v{V_S}, v{acc+r}" if r else f"v_mov_b32 v{V_S}, v{acc}")
                s.append(f"v_fmac_f32 v{V_Q}, v{acc+r}, v{acc+r}" if r else f"v_mul_f32 v{V_Q}, v{acc}, v{acc}")
        elif kind in "QK":
            s += [f"v_fmaak_f32 v{acc+r}, v{acc+r}, v{R(r)}, {f32(1e-6)}" for r in rs]
            s += [f"v_fmaak_f32 v{T+r}, v{acc+r}, v{V_L2E}, {f32(-1e-6*LOG2E)}" for r in rs]
            s += [f"v_exp_f32_e64 v{T+r}, v{T+r} clamp" for r in rs]
            s += [f"v_max_f32 v{acc+r}, {f32(1e-6)}, v{acc+r}" for r in rs]
            s += [f"v_add_f32 v{acc+r}, v{acc+r}, v{T+r}" for r in rs]
        else:
            s += [f"v_mul_f32 v{acc+r}, v{acc+r}, v{R(r)}" for r in rs]
    l = [I(a, x) for x in s]
    if kind != "G":
        l += [I(a, f"v_cvt_pk_bf16_f32 v{k.CV+r}, v{acc+2*r}, v{acc+2*r+1}") for r in range(8)]
        l += store_tile(a, vm, kind, k.CV, so)
    return l

def phase_a(a, vm, lg, k, st, tail_fill):
    nA = k.nA
    late = [line_dma(a, vm, nA, b, R1, "wa" if b < 3 else "wb") for b in range(7)]
    lsp = spread(k.DEPTH, late) if k.DEPTH == 3 else [late[:4], late[4:]]
    if k.DEPTH == 3:
        lsp = [late[:3], late[3:5], late[5:]]
    XS = k.XS
    for j in range(8):
        main, reads, dots, dmas, extra = [], [], [], [], []
        if j < 7:
            vm.wait(f"p{j}")
            a("s_barrier")
            if j in (0, 3, 6):
                st.mark(3 + j // 3)
            so = (j % k.NSL) * k.SLOT
            for i in range(4):
                x = A0 + 16 * j + 4 * i
                xr, xo = (XR + i, so) if so < 65536 else (None, None)
                reads.append(("x", x, i, so))
                for L in range(nA):
                    b = k.WB + 16 * nA * (j & 1) + 16 * L + 4 * i
                    reads.append(("w", b, i, so + L * 1024))
                    reads.append(("w", b + 2, i, so + L * 1024 + 512))
            def rd(t, r, i, off):
                def f():
                    if t == "x":
                        lg.issue("a", f"ds_read_b128 v[{r}:{r+3}], v{XR+i} offset:{off - hi(off)}")
                    else:
                        lg.issue("a", f"ds_read_b64_tr_b16 v[{r}:{r+1}], v{WR+i} offset:{off - hi(off)}")
                return f
            hi = lambda off: 49152 if so >= 49152 else 0
            prev = ((j - 1) % k.NSL) * k.SLOT if j else 0
            if (prev >= 49152) != (so >= 49152):
                op = "v_add_u32" if so >= 49152 else "v_subrev_u32"
                for r in list(range(XR, XR + 4)) + list(range(WR, WR + 4)):
                    a(f"{op} v{r}, 49152, v{r}")
            reads = [rd(*r) for r in reads]
            if j + k.DEPTH < 7:
                dmas = piece_dma(a, vm, k, j + k.DEPTH)
            else:
                dmas = lsp[j + k.DEPTH - 7]
            if j == k.DEPTH and k.kinds[0] == "V":
                def flag():
                    a(f"s_cmp_eq_u32 s{S_WAVE}, 7\ns_cselect_b64 exec, 1, 0")
                    a(f"buffer_store_dword v{V_DUM}, v{XE+1}, s[{S_SP}:{S_SP+3}], s{S_CNT} offen sc1")
                    a(f"s_mov_b64 exec, -1")
                assert "clr" not in vm.q
                dmas = dmas + [flag]
        else:
            vm.wait("wa")
            a("s_barrier")
            reads = tail_fill
        if j > 0:
            p = j - 1
            for i in range(4):
                x = A0 + 16 * p + 4 * i
                for L in range(nA):
                    b = k.WB + 16 * nA * (p & 1) + 16 * L + 4 * i
                    main.append(I(a, mf(k.ACC[L], b, x, k.ori[L], p == 0 and i == 0)))
            for L in range(nA):
                extra.append(I(a, mf16(CE + 4 * L, k.WB + 16 * nA * (p & 1) + 16 * L, p == 0)))
            if k.stat == "mix":
                for i in range(2):
                    extra.append(I(a, mf16(XS, A0 + 16 * p + 4 * i, p == 0 and i == 0)))
            for d in range(8):
                x = A0 + 16 * p + d
                t = T4 + 2 * (d & 1)
                dots.append(I(a, f"v_lshlrev_b32 v{t}, 16, v{x}"))
                dots.append(I(a, f"v_and_b32 v{t+1}, 0xffff0000, v{x}"))
                if k.stat != "mix":
                    dots.append(I(a, f"v_add_f32 v{V_S}, v{V_S}, v{t}"))
                dots.append(I(a, f"v_fmac_f32 v{V_Q}, v{t}, v{t}"))
                if k.stat != "mix":
                    dots.append(I(a, f"v_add_f32 v{V_R}, v{V_R}, v{t+1}"))
                dots.append(I(a, f"v_fmac_f32 v{V_C0}, v{t+1}, v{t+1}"))
        if main:
            n = len(main)
            rs, ds, ms, es = spread(n, reads), spread(n, dots), spread(n, dmas), spread(n, extra)
            for g in range(n):
                main[g]()
                for f in rs[g] + ms[g] + ds[g] + es[g]:
                    f()
        else:
            for f in reads + dmas:
                f()
        if j < 7:
            lg.all()
    return XS

def kind_body(a, vm0, k, st, lab):
    vm = Vm = vm0.copy()
    lg = LG(a)
    kinds, ori, nA = k.kinds, k.ori, k.nA
    G = kinds[0] == "G"
    T = k.TMP
    D = 4
    dbg = f"s[{S_SP}:{S_SP+3}]"
    ws = f"s[{S_WS}:{S_WS+3}]"
    nl = 2 if nA == 1 else 1
    NS = 28 * nl
    def rd(p):
        b = k.BR + 4 * (p % NBR)
        off = ((p % 28) >> 2) * 8192
        def f0():
            if p == 28:
                for i in range(4):
                    a(f"v_add_u32 v{WR+i}, {RING}, v{WR+i}")
            lg.issue(f"r{p}", f"ds_read_b64_tr_b16 v[{b}:{b+1}], v{WR + (p & 3)} offset:{off}")
        return [f0, lambda: lg.issue(f"r{p}", f"ds_read_b64_tr_b16 v[{b+2}:{b+3}], v{WR + (p & 3)} offset:{off+512}")]
    def wr_fix():
        for i in range(4):
            a(f"s_xor_b32 s{S_T2}, s{S_XO}, {i}\ns_lshl_b32 s{S_T2}, s{S_T2}, 11")
            a(f"v_add_u32 v{WR+i}, s{S_T2}, v{V_T0}")
    tail = [wr_fix] + [f for p in range(D) for f in rd(p)]
    XS = phase_a(a, vm, lg, k, st, tail)
    st.mark(6)
    pre = []
    if k.stat == "mix":
        pre.append(I(a, f"v_add_f32 v{XS+1}, v{V_Q}, v{V_C0}"))
        xs = XS
    else:
        pre.append(I(a, f"v_add_f32 v{V_S}, v{V_S}, v{V_R}\nv_add_f32 v{V_Q}, v{V_Q}, v{V_C0}"))
        xs = V_S
    pre.append(I(a, f"""s_lshl_b32 s{S_T0}, s{S_WAVE}, 9
s_add_u32 s{S_T0}, s{S_T0}, {SCR + 4096}
v_add_u32 v{V_T0}, s{S_T0}, v{V_L8}"""))
    pre.append(lambda: lg.issue("w", f"ds_write_b64 v{V_T0}, v[{xs}:{xs+1}]"))
    for L in range(nA):
        pre.append(lambda L=L: lg.issue("w", f"ds_write_b32 v{V_CSA}, v{CE+4*L} offset:{L*2048}"))
    pre.append(I(a, f"v_xor_b32 v{V_T0}, 2048, v{V_T0}"))
    def bar(*vtags):
        def f():
            vm.wait(*vtags)
            lg.wait("w")
            a("s_barrier")
        return f
    F0 = [lambda: lg.issue("x", f"ds_read_b64 v[{T}:{T+1}], v{V_T0}"),
          I(a, f"v_and_b32 v{V_T0}, 0xfffffff0, v{V_CSA}")]
    for L in range(nA):
        F0.append(lambda L=L: lg.issue("c", f"ds_read_b128 v[{T+4+4*L}:{T+7+4*L}], v{V_T0} offset:{L*2048}"))
    F0.append(GAP)
    F0.append(lambda: lg.wait("x"))
    F0 += [I(a, s) for s in f"""v_add_f32 v{V_S}, v{xs}, v{T}
v_add_f32 v{V_Q}, v{xs+1}, v{T+1}
v_mov_b32 v{T}, v{V_S}
v_mov_b32 v{T+1}, v{V_Q}
v_mov_b32 v{CE+1}, 0
v_mov_b32 v{CE+2}, 0
v_permlane32_swap_b32 v{T+1}, v{V_Q}""".split("\n")]
    if k.stat != "mix":
        F0 += [I(a, f"v_permlane32_swap_b32 v{T}, v{V_S}"), I(a, f"v_add_f32 v{V_S}, v{V_S}, v{T}")]
    F0 += [I(a, s) for s in f"""v_add_f32 v{V_Q}, v{V_Q}, v{T+1}
v_mul_f32 v{V_S}, {f32(-1/448)}, v{V_S}
v_mul_f32 v{V_Q}, {f32(1/448)}, v{V_Q}
v_and_b32 v{T}, 0xffff0000, v{V_S}
v_fma_f32 v{V_Q}, -v{V_S}, v{V_S}, v{V_Q}
v_sub_f32 v{T+1}, v{V_S}, v{T}
v_max_f32 v{V_Q}, 0, v{V_Q}
v_cndmask_b32 v{T}, v{T}, v{T+1}, s[{S_HI}:{S_HI+1}]
v_add_f32 v{V_Q}, {f32(1e-5)}, v{V_Q}
v_cvt_pk_bf16_f32 v{XE}, v{T}, v{T}
v_rsq_f32 v{V_R}, v{V_Q}
v_mov_b32 v{CE+3}, 0""".split("\n")]
    if nA == 2:
        F0 += [I(a, f"v_mov_b32 v{CE+r}, 0") for r in (5, 6, 7)]
    F0.append(lambda: lg.wait("c"))
    for L in range(nA):
        F0 += [I(a, s) for s in ce_build(CE + 4 * L, T + 4 + 4 * L)]
    def r16(_=None):
        t0, t1 = XR, XR + 1
        l = [I(a, f"""s_lshl_b32 s{S_T2}, s{S_WAVE}, 8
s_add_u32 s{S_T2}, s{S_T2}, {DEAD}
v_lshl_add_u32 v{t0}, v{V_LANE}, 2, s{S_T2}"""),
             lambda: lg.issue("q", f"ds_write_b32 v{t0}, v{V_R}"),
             I(a, f"v_lshrrev_b32 v{t1}, 5, v{V_LANE}"),
             I(a, f"v_lshl_add_u32 v{t1}, v{t1}, 4, s{S_T2}")]
        for q in range(4):
            l.append(lambda q=q: lg.issue("q", f"ds_read_b128 v[{k.R16+4*q}:{k.R16+4*q+3}], v{t1} offset:{32*q}"))
        return l
    if G:
        F0 += [I(a, s) for s in f"""v_mul_f32 v{V_RI}, v{V_Q}, v{V_R}
v_mul_f32 v{V_C0}, {f32(GELU_C0)}, v{V_R}""".split("\n")]
    else:
        F0 += r16()[:2]
    for L in range(nA):
        F0.append(I(a, mf(k.ACC[L], CE + 4 * L, XE, ori[L])))
    if G:
        F0 += [I(a, s) for s in f"""v_mul_f32 v{V_C1}, v{V_R}, v{V_R}
v_mul_f32 v{V_C1}, v{V_C1}, v{V_R}
v_mul_f32 v{V_C1}, {f32(GELU_C1)}, v{V_C1}""".split("\n")]
    else:
        F0 += r16()[2:]
    F0 += [GAP, GAP, GAP]
    if not G:
        F0.append(lambda: lg.wait("q"))
    F0 += epilogue(a, vm, k, kinds[0], k.ACC[0], S_O)
    if nA == 2:
        F0 += epilogue(a, vm, k, kinds[1], k.ACC[1], S_O + 1)
    def fix(acc, orient, slot):
        return ([lambda: lg.issue("c", f"ds_read_b128 v[{T4}:{T4+3}], v{V_T0} offset:{slot*2048}"), GAP, lambda: lg.wait("c")] +
                [I(a, s) for s in ce_build(CE, T4)] + [I(a, "s_nop 1"), I(a, mf(acc, CE, XE, orient))])
    ev = {}
    fl = []
    def touch(n, first):
        l = []
        for i in range(n):
            l.append(lambda i=i: vm.issue("pf", f"buffer_load_dword v{V_DUM}, v{V_PF}, s[{S_X}:{S_X+3}], s{S_PFO} offen offset:{(first + i) * 512}"))
        return l
    def flag_check():
        vm.wait("cnt")
        a(f"""v_readfirstlane_b32 s{S_T0}, v{V_X0}
s_cmp_eq_u32 s{S_T0}, 0
s_cbranch_scc1 {lab}_CW
{lab}_CR:""")
    lateL = nA + 1
    dm = [line_dma(a, vm, lateL, b, RING, "wc") for b in range(7)]
    if G:
        F0 += [I(a, f"v_mov_b32 v{T}, v{V_S}"), I(a, f"v_mov_b32 v{T+1}, v{V_Q}"), I(a, f"v_and_b32 v{T+2}, 0xff, v{V_L8}"), I(a, "s_nop 0"),
               I(a, f"v_permlane32_swap_b32 v{T}, v{V_S}"), I(a, f"v_permlane32_swap_b32 v{T+1}, v{V_Q}"),
               I(a, f"v_add_f32 v{V_S}, v{V_S}, v{T}"), I(a, f"v_add_f32 v{V_Q}, v{V_Q}, v{T+1}"),
               flag_check,
               lambda: vm.issue("st", f"buffer_store_dwordx2 v[{V_S}:{V_Q}], v{T+2}, {ws}, s{S_REC} offen sc1"),
               I(a, f"s_and_b32 s{S_REC}, s{S_REC}, 0xfffff000")]
        dm = [lambda: vm.issue("cnt", f"buffer_load_dword v{V_X0}, v{XE+1}, {dbg}, s{S_CNT} offen sc1")] + dm
    def srdfix():
        srd(a, S_X, 66, 2048 * 4096)
        a(f"""v_and_b32 v{V_PF}, 0x200, v{V_L16}
v_mul_u32_u24 v{V_PF}, 7, v{V_PF}
v_add_u32 v{V_PF}, v{V_PF}, v{V_L16}""")
    ev[1] = pre
    ev[3] = [bar()]
    fl.append((0, 8, dm + [srdfix] + touch(PF1, 0)))
    ev[12 - D] = [bar("wb")]
    if nl == 2:
        fl.append((3, 27, F0))
        ev[28 - D] = [bar("wc")]
        ev[28] = [lambda: lg.issue("w", f"ds_write_b32 v{V_CSA}, v{k.CSA} offset:2048")]
        ev[30] = [bar()]
        F1 = fix(k.ACC[1], ori[1], 1)
        if not ori[1]:
            rr = r16(V_X0)
            F1 = rr[:4] + F1 + [("min", 33)] + rr[4:]
        F1 += [GAP, GAP, GAP]
        if not ori[1]:
            F1.append(lambda: lg.wait("q"))
        F1 += epilogue(a, vm, k, kinds[1], k.ACC[1], S_O + 1)
        fl.append((30, 50, F1))
    else:
        fl.append((3, 27, F0))
    PL = A0 + 16
    assert POLL_AT >= 37
    def poll_issue(v):
        for i in range(4):
            if i == 3:
                a("s_mov_b32 exec_hi, 0")
            t = f"buffer_load_dwordx4 v[{PL+4*i}:{PL+4*i+3}], v{V_L16}, {ws}, s{S_REC} offen offset:{i*1024} sc1"
            if v: v.issue("pl", t)
            else: a(t)
        a("s_mov_b32 exec_hi, -1")
    def poll_check(lb):
        a(f"""v_max3_u32 v{T4}, v{PL+1}, v{PL+3}, v{PL+5}
v_max3_u32 v{T4+1}, v{PL+7}, v{PL+9}, v{PL+11}
v_max3_u32 v{T4}, v{T4}, v{PL+13}, v{PL+15}
v_max_u32 v{T4}, v{T4}, v{T4+1}
v_cmp_eq_u32 vcc, -1, v{T4}
s_cbranch_vccnz {lb}""")
    ool = []
    if G:
        def cnt_check():
            a(f"""v_mov_b32 v{PL+12}, 0
v_mov_b32 v{PL+13}, 0
v_mov_b32 v{PL+14}, 0
v_mov_b32 v{PL+15}, 0""")
            poll_issue(vm)
            for f in touch(PF2, PF1):
                f()
        ev[POLL_AT] = [cnt_check]
        ool.append(f"""{lab}_CW:
buffer_load_dword v{V_X0}, v{XE+1}, {dbg}, s{S_CNT} offen sc1
s_waitcnt vmcnt(0)
v_readfirstlane_b32 s{S_T0}, v{V_X0}
s_sub_u32 s{S_SPIN}, s{S_SPIN}, 1
s_cbranch_scc1 {lab}_CR
s_cmp_eq_u32 s{S_T0}, 0
s_cbranch_scc1 {lab}_CW
s_branch {lab}_CR""")
    pos = [0] * len(fl)
    hold = [0] * len(fl)
    for p in range(NS):
        for f in ev.get(p, []):
            f()
        if p in (14, 28, 42):
            st.mark(7 + (p - 14) // 14)
        lg.wait(f"r{p}")
        L = nA + p // 28
        b = k.BR + 4 * (p % NBR)
        a(mf(k.ACC[L], b, A0 + 4 * (p % 28), ori[L], p % 28 == 0))
        if p + D < NS:
            for f in rd(p + D):
                f()
        for n, (s0, s1, lst) in enumerate(fl):
            if p < s0:
                continue
            left = len(lst) - pos[n]
            cnt = left if p >= s1 else (left + (s1 - p)) // (s1 - p + 1)
            while cnt > 0 and pos[n] < len(lst):
                f = lst[pos[n]]
                if isinstance(f, tuple):
                    if p < f[1]:
                        break
                    pos[n] += 1
                    continue
                pos[n] += 1
                if f is GAP:
                    break
                f()
                cnt -= 1
        if (p & 3) == 0:
            a(mf16(k.CSA, b, p % 28 == 0))
    for n, (s0, s1, lst) in enumerate(fl):
        assert pos[n] == len(lst), (n, pos[n], len(lst))
    st.mark(10)
    def run(lst):
        for f in lst:
            if f is not GAP:
                f()
    LL = nA + nl - 1
    a(f"ds_write_b32 v{V_CSA}, v{k.CSA}")
    if G:
        vm.wait("pl")
        a(f"{lab}_PR:")
        poll_check(f"{lab}_PW")
        a(f"{lab}_PX:")
        ool.append(("retry",))
        for i in (1, 2, 3):
            for h in (0, 2):
                a(f"v_pk_add_f32 v[{PL+h}:{PL+h+1}], v[{PL+h}:{PL+h+1}], v[{PL+4*i+h}:{PL+4*i+h+1}]")
        for op in ("v_permlane32_swap_b32", "v_permlane16_swap_b32"):
            for r in range(4):
                a(f"v_mov_b32 v{PL+4+r}, v{PL+r}")
            if op == "v_permlane32_swap_b32":
                a(f"""s_lshl_b32 s{S_T0}, s{S_RW}, 9
s_add_u32 s{S_T0}, s{S_T0}, {SCR + 4096}
s_lshl_b32 s{S_T1}, s{S_CH}, 8
s_add_u32 s{S_T1}, s{S_T1}, s{S_T0}""")
            else:
                a(f"""v_and_b32 v{T4}, 0xff, v{V_L16}
v_add_u32 v{T4}, s{S_T1}, v{T4}""")
            for r in range(4):
                a(f"{op} v{PL+4+r}, v{PL+r}")
            for h in (0, 2):
                a(f"v_pk_add_f32 v[{PL+h}:{PL+h+1}], v[{PL+h}:{PL+h+1}], v[{PL+4+h}:{PL+4+h+1}]")
        a(f"""ds_write_b128 v{T4}, v[{PL}:{PL+3}]
v_and_b32 v{PL+8}, 0xff, v{V_L8}
v_add_u32 v{PL+8}, s{S_T0}, v{PL+8}""")
    if nA == 2:
        vm.wait("wc")
    a("s_waitcnt lgkmcnt(0)\ns_barrier")
    lg.q = []
    st.mark(11)
    if G:
        lg.issue("z", f"ds_read2_b64 v[{PL}:{PL+3}], v{PL+8} offset1:32")
        run(fix(k.ACC[LL], ori[LL], 0))
        a(f"""v_pk_add_f32 v[{PL}:{PL+1}], v[{PL}:{PL+1}], v[{PL+2}:{PL+3}]
v_mul_f32 v{PL}, {f32(-1/896)}, v{PL}
v_mul_f32 v{PL+1}, {f32(1/896)}, v{PL+1}
v_fma_f32 v{PL+1}, -v{PL}, v{PL}, v{PL+1}
v_max_f32 v{PL+1}, 0, v{PL+1}
v_add_f32 v{PL+1}, {f32(1e-5)}, v{PL+1}
v_rsq_f32 v{PL+1}, v{PL+1}
s_nop 0
v_mul_f32 v{PL}, v{PL}, v{PL+1}""")
        z = k.ACC[0]
        for r in range(0, 16, 2):
            a(f"v_pk_fma_f32 v[{z+r}:{z+r+1}], v[{z+r}:{z+r+1}], v[{PL}:{PL+1}], v[{PL}:{PL+1}] op_sel:[0,1,0] op_sel_hi:[1,1,0]")
        for r in range(8):
            a(f"v_cvt_pk_bf16_f32 v{T+r}, v{z+2*r}, v{z+2*r+1}")
        run(store_tile(a, vm, "G", T, S_O))
        run(epilogue(a, vm, k, kinds[LL], k.ACC[LL], S_O + LL))
        a("s_branch P1_END")
    else:
        a(f"s_cmp_eq_u32 s{S_CH}, 0\ns_cbranch_scc0 {lab}_CH1")
        v0, l0 = vm.q[:], lg.q[:]
        run(fix(k.ACC[2], ori[2], 0))
        a("s_nop 11")
        run(epilogue(a, vm, k, kinds[2], k.ACC[2], S_O + 2))
        a("s_barrier\ns_branch P1_END")
        a(f"{lab}_CH1:")
        vm.q, lg.q = v0, l0
        for i in range(4):
            a(f"v_add_u32 v{WR+i}, {RING}, v{WR+i}")
            a(f"v_xor_b32 v{WR+i}, s{S_T3}, v{WR+i}")
        for p in range(D):
            run(rd(p))
        F = fix(k.ACC[2], ori[2], 0) + [GAP, GAP, GAP] + epilogue(a, vm, k, kinds[2], k.ACC[2], S_O + 2)
        q = 0
        for p in range(28):
            lg.wait(f"r{p}")
            b = k.BR + 4 * (p % NBR)
            a(mf(k.ACC[3], b, A0 + 4 * p, ori[3], p == 0))
            if p + D < 28:
                run(rd(p + D))
            for c in range(3):
                if q < len(F):
                    f = F[q]; q += 1
                    if f is GAP: break
                    f()
            if (p & 3) == 0:
                a(mf16(k.CSA, b, p == 0))
        assert q == len(F)
        a(f"ds_write_b32 v{V_CSA}, v{k.CSA} offset:2048\ns_waitcnt lgkmcnt(0)\ns_barrier")
        lg.q = []
        run(fix(k.ACC[3], ori[3], 1))
        a("s_nop 11")
        run(epilogue(a, vm, k, kinds[3], k.ACC[3], S_O + 3))
        a("s_branch P1_END")
    for o in ool:
        if o == ("retry",):
            a(f"""{lab}_PW:
s_sub_u32 s{S_SPIN}, s{S_SPIN}, 1
s_cbranch_scc1 {lab}_PX""")
            poll_issue(None)
            a(f"s_waitcnt vmcnt(0)\ns_branch {lab}_PR")
        else:
            a(o)

GAP = object()

def kind_start(a, vm, k, st):
    nA = k.nA
    a(f"""s_mul_i32 s{S_MR}, s{S_WAVE}, {k.WST}
v_add_u32 v{V_X1}, {8*896 - (1+nA)*1024}, v{V_X1}""")
    if nA == 1:
        a(f"""s_mul_i32 s{S_T2}, s{S_WAVE}, {8*3584}
s_lshl_b32 s{S_T3}, s{S_G}, 7
s_add_u32 s{S_L+2}, s{S_T2}, s{S_T3}
s_add_u32 s{S_L}, s{S_L+2}, {1792 - 1024}
s_add_u32 s{S_L+1}, s{S_T1}, s{S_T3}
s_mov_b32 s{S_A64}, {64*3584}
v_mul_u32_u24 v{V_DA}, 3584, v{T4}
v_add_u32 v{V_DA}, v{V_DA}, v{T4+2}
s_waitcnt lgkmcnt(0)""")
        srd(a, S_WA, 64, 448 * 3584)
    else:
        a(f"""s_and_b32 s{S_T3}, s{S_G}, 1
s_lshl_b32 s{S_T3}, s{S_T3}, 9
s_add_u32 s{S_T3}, s{S_T3}, s{S_T1}
s_add_u32 s{S_L}, s{S_T3}, {1792 - 1024}
s_add_u32 s{S_L+1}, s{S_T3}, {1792 + 256 - 2048}
s_add_u32 s{S_L+2}, s{S_T3}, {1792 + 128}
s_add_u32 s{S_L+3}, s{S_T1}, {1792 + 384}
s_mov_b32 s{S_A64}, {B64}
v_mov_b32 v{V_DA}, v{V_DB}
s_waitcnt lgkmcnt(0)""")
        srd(a, S_WA, 62, 448 * 2688)
        srd(a, S_WB, 62, 448 * 2688)
    srd(a, S_X, 60, 2048 * 896)
    st.mark(2)
    for j in range(k.DEPTH):
        for f in piece_dma(a, vm, k, j):
            f()
        if j == 0 and PBAR:
            a("s_barrier")
    if nA == 1:
        srd(a, S_WB, 62, 448 * 2688)
    srd(a, S_WS, 58, WS_SIZE)
    srd(a, S_SP, 56, 256)
    a(f"""s_lshl_b32 s{S_T0}, s{S_CH}, 1
s_xor_b32 s{S_XO}, s{S_T0}, s{S_RW}
v_and_b32 v{T4}, 31, v{V_LANE}
v_lshrrev_b32 v{T4+1}, 5, v{V_LANE}
v_bfe_u32 v{T4+2}, v{V_LANE}, 1, 3
v_xor_b32 v{T4+2}, v{T4+2}, v{T4+1}
s_lshl_b32 s{S_T1}, s{S_XO}, 1
v_xor_b32 v{T4+2}, s{S_T1}, v{T4+2}
v_lshlrev_b32 v{T4+2}, 4, v{T4+2}
v_and_b32 v{T4+3}, 7, v{V_LANE}
v_lshl_add_u32 v{T4+2}, v{T4+3}, 7, v{T4+2}
v_bfe_u32 v{T4+3}, v{V_LANE}, 3, 1
v_mul_u32_u24 v{XR}, {(1+nA)*1024}, v{T4+3}
v_bfe_u32 v{T4+3}, v{V_LANE}, 4, 1
v_mul_u32_u24 v{T4+3}, {k.WST}, v{T4+3}
s_mul_i32 s{S_T1}, s{S_RW}, {2*k.WST}
s_add_u32 s{S_T1}, s{S_T1}, {RING}
v_add3_u32 v{T4+3}, v{T4+3}, v{XR}, s{S_T1}""")
    for i in range(4):
        a(f"v_xor_b32 v{XR+i}, {i << 5}, v{T4+2}")
        a(f"v_add_u32 v{XR+i}, v{T4+3}, v{XR+i}")
    a(f"""v_lshlrev_b32 v{V_KO}, 5, v{T4}
v_lshl_add_u32 v{V_KO}, v{T4+1}, 4, v{V_KO}
s_lshl_b32 s{S_T1}, s{S_CH}, 6
v_and_b32 v{T4}, 3, v{V_LANE}
v_lshlrev_b32 v{T4}, 3, v{T4}
v_and_b32 v{T4+2}, 16, v{V_LANE}
v_lshl_add_u32 v{T4}, v{T4+2}, 1, v{T4}
v_and_b32 v{T4+2}, 8, v{V_LANE}
v_lshlrev_b32 v{T4+2}, 3, v{T4+2}
v_xor_b32 v{T4+2}, s{S_T1}, v{T4+2}
v_or_b32 v{T4}, v{T4}, v{T4+2}
v_bfe_u32 v{T4+2}, v{V_LANE}, 2, 2
v_lshl_add_u32 v{T4}, v{T4+2}, 7, v{T4}
v_lshl_add_u32 v{V_T0}, v{T4+1}, 10, v{T4}
v_mul_u32_u24 v{T4+1}, {k.WST}, v{T4+1}
v_add_u32 v{T4}, v{T4}, v{T4+1}""")
    for i in range(4):
        a(f"""s_xor_b32 s{S_T2}, s{S_XO}, {i}
s_mul_i32 s{S_T2}, s{S_T2}, {2*k.WST}
s_add_u32 s{S_T2}, s{S_T2}, {RING + 1024}
v_add_u32 v{WR+i}, s{S_T2}, v{T4}""")
    a(f"""v_lshlrev_b32 v{V_L16}, 4, v{V_LANE}
v_lshlrev_b32 v{V_L8}, 3, v{V_LANE}
s_lshl_b32 s{S_T0}, s{S_CH}, 10
s_lshl_b32 s{S_T1}, s{S_RW}, 2
s_add_u32 s{S_T0}, s{S_T0}, s{S_T1}
s_add_u32 s{S_T0}, s{S_T0}, {SCR}
v_add_u32 v{V_CSA}, s{S_T0}, v{V_L16}
v_mov_b32 v{V_S}, 0
v_mov_b32 v{V_Q}, 0
v_mov_b32 v{V_R}, 0
v_mov_b32 v{V_C0}, 0
s_mov_b32 s{S_HI}, 0xf0f00f0f
s_mov_b32 s{S_HI+1}, 0xf0f00f0f
v_mov_b32 v{T4}, 0x3f803f80
v_cndmask_b32 v{SEL}, 0, v{T4}, s[{S_HI}:{S_HI+1}]
v_cndmask_b32 v{SEL+1}, 0, v{T4}, s[{S_HI}:{S_HI+1}]
v_cndmask_b32 v{SEL+2}, 0, v{T4}, s[{S_HI}:{S_HI+1}]
v_cndmask_b32 v{SEL+3}, 0, v{T4}, s[{S_HI}:{S_HI+1}]
s_mov_b32 s{S_HI}, 0
s_mov_b32 s{S_HI+1}, -1
v_mov_b32 v{XE+1}, 0
v_mov_b32 v{XE+2}, 0
v_mov_b32 v{XE+3}, 0
v_mov_b32 v{V_DUM}, 1
s_lshl_b32 s{S_MW}, s{S_WAVE}, 10
s_mov_b32 s{S_SPIN}, 0x8000
s_bfe_u32 s{S_T0}, s2, 0x20001
s_lshl_b32 s{S_T0}, s{S_T0}, 5
s_lshr_b32 s{S_T1}, s2, 3
s_add_u32 s{S_T0}, s{S_T0}, s{S_T1}
s_lshl_b32 s{S_T0}, s{S_T0}, 3
s_add_u32 s{S_T0}, s{S_T0}, s{S_WAVE}
s_lshl_b32 s{S_PFO}, s{S_T0}, 13
s_and_b32 s{S_T0}, s2, 1
s_lshl_b32 s{S_T0}, s{S_T0}, 11
s_add_u32 s{S_PFO}, s{S_PFO}, s{S_T0}
s_lshl_b32 s{S_T0}, s{S_RB}, 2
s_add_u32 s{S_T0}, s{S_T0}, s{S_RW}
s_mul_i32 s{S_T2}, s{S_T0}, 28672""")
    if nA == 1:
        a(f"""v_mov_b32 v{V_L2E}, {f32(LOG2E)}
s_lshl_b32 s{S_T3}, s{S_G}, 1
s_add_u32 s{S_T3}, s{S_T3}, s{S_CH}
s_lshl_b32 s{S_O}, s{S_T3}, 17
s_lshl_b32 s{S_T1}, s{S_T0}, 11
s_add_u32 s{S_O}, s{S_O}, s{S_T1}
; z1
s_lshl_b32 s{S_T1}, s{S_T3}, 10
s_add_u32 s{S_T1}, s{S_T1}, s{S_T2}
s_lshl_b32 s{S_O+2}, s{S_T1}, 1
s_add_u32 s{S_O+2}, s{S_O+2}, {WS_Z1}""")
        assert WS_Z2 == 0
        if k.kinds[1] == "Q":
            a(f"""s_lshl_b32 s{S_T1}, s{S_T3}, 11
s_add_u32 s{S_T1}, s{S_T1}, s{S_T2}
s_add_u32 s{S_O+1}, s{S_T1}, {WS_Q}""")
        else:
            a(f"s_add_u32 s{S_O+1}, s{S_T1}, {WS_K - 14*1024}")
        a(f"""; record: ST + st*8192 + ch*4096 + g*256
s_lshl_b32 s{S_T0}, s{S_T0}, 1
s_add_u32 s{S_T0}, s{S_T0}, s{S_CH}
s_lshl_b32 s{S_T0}, s{S_T0}, 4
s_add_u32 s{S_T0}, s{S_T0}, s{S_G}
s_lshl_b32 s{S_T0}, s{S_T0}, 8
s_add_u32 s{S_REC}, s{S_T0}, {WS_ST}
s_lshl_b32 s{S_CNT}, s{S_RB}, 3
s_and_b32 s{S_T0}, s{S_RW}, 2
s_add_u32 s{S_CNT}, s{S_CNT}, s{S_T0}
s_lshl_b32 s{S_CNT}, s{S_CNT}, 1""")
    else:
        a(f"""; tiles 8(g-14) + ch + 0,4,2 ; extra tile 6 + (g-14)
s_and_b32 s{S_T0}, s{S_G}, 1
s_lshl_b32 s{S_T1}, s{S_T0}, 3
s_add_u32 s{S_T1}, s{S_T1}, s{S_CH}
s_lshl_b32 s{S_T1}, s{S_T1}, 10
s_add_u32 s{S_T2}, s{S_T2}, {WS_V}
s_add_u32 s{S_O}, s{S_T1}, s{S_T2}
s_add_u32 s{S_O+1}, s{S_O}, 4096
s_add_u32 s{S_O+2}, s{S_O}, 2048
s_lshl_b32 s{S_T1}, s{S_T0}, 10
s_add_u32 s{S_T1}, s{S_T1}, s{S_T2}
s_add_u32 s{S_O+3}, s{S_T1}, 6144
s_lshl_b32 s{S_CNT}, s{S_RB}, 2
s_add_u32 s{S_CNT}, s{S_CNT}, s{S_T0}
s_lshl_b32 s{S_CNT}, s{S_CNT}, 2
s_lshl_b32 s{S_T1}, s{S_RB}, 1
s_add_u32 s{S_T1}, s{S_T1}, s{S_T0}
s_lshl_b32 s{S_T1}, s{S_T1}, 3
s_add_u32 s{S_T1}, s{S_T1}, s{S_WAVE}
s_lshl_b32 s{S_T1}, s{S_T1}, 11
s_add_u32 s{S_REC}, s{S_T1}, {WS_ST}
s_xor_b32 s{S_T0}, s{S_T0}, 1
s_lshl_b32 s{S_T3}, s{S_T0}, 6
v_mov_b32 v{T4}, -1
v_mov_b32 v{T4+1}, -1
v_mov_b32 v{T4+2}, -1
v_mov_b32 v{T4+3}, -1""")
        for i in range(2):
            vm.issue("clr", f"buffer_store_dwordx4 v[{T4}:{T4+3}], v{V_L16}, s[{S_WS}:{S_WS+3}], s{S_REC} offen offset:{1024*i} sc1")

PBAR = int(E('P1_PBAR', '1'))
def gen_p1(a, name, stamp=False):
    kernel_begin(a, name)
    a(f"""s_cmp_ge_u32 s2, 256
s_cbranch_scc1 P1_EXIT
s_load_dwordx4 s[60:63], s[0:1], 0
s_load_dwordx4 s[64:67], s[0:1], 32
s_load_dwordx4 s[56:59], s[0:1], 72""")
    st = Stamp(a, stamp, 0)
    st.clear()
    st.mark(0, True)
    st.mark(1)
    a(f"""v_and_b32 v{V_LANE}, 63, v0
v_lshrrev_b32 v{V_T0}, 6, v0
s_and_b32 s{S_T0}, s2, 1
v_readfirstlane_b32 s{S_WAVE}, v{V_T0}
s_lshl_b32 s{S_T0}, s{S_T0}, 3
s_bfe_u32 s{S_T1}, s2, 0x30003
s_add_u32 s{S_RB}, s{S_T0}, s{S_T1}
s_bfe_u32 s{S_T0}, s2, 0x20001
s_lshl_b32 s{S_T0}, s{S_T0}, 2
s_lshr_b32 s{S_T2}, s2, 6
s_add_u32 s{S_G}, s{S_T0}, s{S_T2}
s_and_b32 s{S_RW}, s{S_WAVE}, 3
s_lshr_b32 s{S_CH}, s{S_WAVE}, 2
""" + {7: f"""s_lshl_b32 s{S_T2}, s{S_T2}, 1
s_add_u32 s{S_T1}, s{S_T1}, s{S_T2}
s_sub_u32 s{S_T2}, s{S_T1}, 7
s_cmp_ge_u32 s{S_T1}, 7
s_cselect_b32 s{S_PK}, s{S_T2}, s{S_T1}
""", 1: "", 2: f"""s_xor_b32 s{S_T1}, s{S_T1}, s{S_T2}
s_and_b32 s{S_T1}, s{S_T1}, 1
s_lshl_b32 s{S_PK}, s{S_T1}, 2
""", 4: f"""s_add_u32 s{S_T1}, s{S_T1}, s{S_T2}
s_and_b32 s{S_T1}, s{S_T1}, 3
s_lshl_b32 s{S_PK}, s{S_T1}, 1
"""}[ROTMODE] + f"""; x base: (rb*128 + 16*wave) * 896
s_lshl_b32 s{S_T0}, s{S_RB}, 3
s_add_u32 s{S_T0}, s{S_T0}, s{S_WAVE}
s_mul_i32 s{S_XB}, s{S_T0}, {16*896}
s_mul_i32 s{S_T1}, s{S_WAVE}, {8*2688}
; lane parts of DMA
v_lshrrev_b32 v{T4}, 3, v{V_LANE}
v_and_b32 v{T4+1}, 7, v{V_LANE}
v_lshrrev_b32 v{T4+2}, 4, v{V_LANE}
v_xor_b32 v{T4+2}, v{T4+2}, v{T4+1}
v_mul_u32_u24 v{V_X0}, 896, v{T4}
v_xor_b32 v{T4+3}, 4, v{T4+2}
v_lshl_add_u32 v{V_X1}, v{T4+3}, 4, v{V_X0}
v_lshl_add_u32 v{V_X0}, v{T4+2}, 4, v{V_X0}
v_lshlrev_b32 v{T4+2}, 1, v{T4}
v_and_b32 v{T4+2}, 4, v{T4+2}
v_xor_b32 v{T4+2}, v{T4+2}, v{T4+1}
v_lshlrev_b32 v{T4+2}, 4, v{T4+2}
v_mul_u32_u24 v{V_DB}, 2688, v{T4}
v_add_u32 v{V_DB}, v{V_DB}, v{T4+2}
s_cmp_ge_u32 s{S_G}, 14
s_cbranch_scc1 P1_KC
s_cmp_ge_u32 s{S_G}, 7
s_cbranch_scc1 P1_KB""")
    for lab, kinds in (("P1_A", "GQL"), ("P1_B", "GKL"), ("P1_C", "VVVV")):
        a(f"{lab.replace('_', '_K')}:")
        k = K(kinds)
        vm = VM(a)
        kind_start(a, vm, k, st)
        kind_body(a, vm, k, st, lab)
    a("P1_END:")
    st.flush(S_WS, S_WAVE)
    a("P1_EXIT:")
    a("s_endpgm")
```

```python
from common import *
import os
P2_LDS = 163840
P2_VGPR = 248
D = int(os.environ.get("P2_D", "3"))
NWS = int(os.environ.get("P2_NS", str(D + 1)))
ZT = 2048
ZSTG = 8 * ZT
ZSL = 0
WSL = NWS * ZSTG
G0 = int(os.environ.get("P2_G0", "3"))
BST = int(os.environ.get("P2_BST", "12"))
LEAD = int(os.environ.get("P2_LEAD", "40"))
GTAIL = int(os.environ.get("P2_GT", "8"))
PRIO_C = int(os.environ.get("P2_PC", "0"))
PRIO_L = int(os.environ.get("P2_PL", "0"))
X = os.environ.get("P2_X", "")
VPOS = [int(c) for c in os.environ.get("P2_VP", "00246888")]
NST = 16
STORE_FLAGS = os.environ.get("SF", " sc1")

S_SP, S_WS, S_B, S_W2 = 12, 16, 20, 24
S_WAVE, S_T0, S_T1, S_T2, S_T3 = 28, 29, 30, 31, 32
S_KH, S_TT, S_FQ, S_ST = 33, 34, 35, 36
S_AB, S_ZB, S_MW, S_O, S_C1 = 37, 38, 39, 40, 41
S_M = 42
S_M2 = 44
S_J = 46
V_LANE, V_T0, V_T1, V_T2 = 1, 2, 3, 4

def I(a, s):
    return lambda: a(s)

def compute_path(a, st):
    vm = VM(a)
    AR, BRD, V_L16, AR1, V_C0 = 5, 6, 10, 11, 12
    ACC, FR, Z1, GZ, TP = 16, 80, 112, 144, 208
    BF, ONE = 232, 240
    ws = f"s[{S_WS}:{S_WS+3}]"
    if PRIO_C:
        a(f"s_setprio {PRIO_C}")
    a(f"""v_and_b32 v{V_T1}, 31, v{V_LANE}
v_lshlrev_b32 v{BF+1}, 1, v{V_T1}
s_lshr_b32 s{S_T1}, s{S_WAVE}, 1
s_lshl_b32 s{S_T2}, s{S_TT}, 1
s_add_u32 s{S_T2}, s{S_T2}, s{S_T1}
s_lshl_b32 s{S_AB}, s{S_T2}, 7""")
    a(f"""; z1 / AF offsets: tt32 = S_T2*2 + ti ; ftg = 4fq + 2fh
s_and_b32 s{S_T0}, s{S_WAVE}, 1
s_lshl_b32 s{S_T3}, s{S_FQ}, 1
s_add_u32 s{S_T3}, s{S_T3}, s{S_T0}
s_lshl_b32 s{S_T3}, s{S_T3}, 12
s_mul_i32 s{S_ZB}, s{S_T2}, {2*28*2048}
s_add_u32 s{S_ZB}, s{S_ZB}, s{S_T3}
s_add_u32 s{S_ZB}, s{S_ZB}, {WS_Z1}
s_mul_i32 s{S_O}, s{S_T2}, {2*144*1024}
s_add_u32 s{S_O}, s{S_O}, s{S_T3}
s_mul_i32 s{S_T3}, s{S_KH}, {56*1024}
s_add_u32 s{S_O}, s{S_O}, s{S_T3}
s_add_u32 s{S_O}, s{S_O}, {WS_AF + 32*1024}
v_lshlrev_b32 v{V_L16}, 4, v{V_LANE}
v_lshrrev_b32 v{V_T2}, 5, v{V_LANE}
v_bfe_u32 v{AR}, v{V_LANE}, 1, 3
v_xor_b32 v{AR}, v{AR}, v{V_T2}
v_lshlrev_b32 v{AR}, 4, v{AR}
v_lshl_add_u32 v{AR}, v{V_T1}, 7, v{AR}
s_lshl_b32 s{S_T1}, s{S_T1}, 13
s_add_u32 s{S_T1}, s{S_T1}, {WSL}""")
    for k in range(4):
        a(f"v_xor_b32 v{BRD+k}, {k << 5}, v{AR}")
        a(f"v_add_u32 v{BRD+k}, s{S_T1}, v{BRD+k}")
    a(f"""v_bfe_u32 v{AR}, v{V_LANE}, 4, 1
v_lshlrev_b32 v{AR}, 1, v{AR}
v_and_b32 v{V_T1}, 1, v{V_LANE}
v_add_u32 v{AR}, v{AR}, v{V_T1}
v_mul_u32_u24 v{AR}, 576, v{AR}
v_lshlrev_b32 v{V_T2}, 7, v{V_T2}
v_xor_b32 v{AR}, v{AR}, v{V_T2}
v_bfe_u32 v{V_T1}, v{V_LANE}, 2, 2
v_lshl_add_u32 v{AR}, v{V_T1}, 4, v{AR}
v_bfe_u32 v{V_T1}, v{V_LANE}, 1, 1
v_lshl_add_u32 v{AR}, v{V_T1}, 3, v{AR}
s_mul_i32 s{S_T0}, s{S_T0}, {2*ZT}
s_add_u32 s{S_T0}, s{S_T0}, {ZSL}
v_add_u32 v{AR}, s{S_T0}, v{AR}
v_xor_b32 v{AR1}, 64, v{AR}
v_mov_b32 v{V_C0}, {f32(GELU_C0)}
s_mov_b32 s{S_M}, {f32(GELU_C1)}""")
    a(f"""s_cmp_eq_u32 s{S_KH}, 0
s_cselect_b32 s{S_M2}, -1, 0
s_mov_b32 s{S_M2+1}, 0""")
    for r in (2, 3, 4):
        a(f"v_mov_b32 v{BF+r}, 0")
    for r in range(4):
        a(f"v_mov_b32 v{ONE+r}, 0x3f803f80")
    def bias_load():
        vm.issue("b", f"buffer_load_ushort v{BF}, v{BF+1}, s[{S_B}:{S_B+3}], s{S_AB} offen")
        vm.issue("b", f"buffer_load_ushort v{BF+5}, v{BF+1}, s[{S_B}:{S_B+3}], s{S_AB} offen offset:64")
    def bias_prep():
        vm.wait("b")
        a(f"""v_cndmask_b32 v{BF}, 0, v{BF}, s[{S_M2}:{S_M2+1}]
v_cndmask_b32 v{BF+5}, 0, v{BF+5}, s[{S_M2}:{S_M2+1}]
v_mov_b32 v{BF+1}, 0""")
    def bias_mf(k):
        fi, ti = ((0, 0), (1, 0), (0, 1), (1, 1))[k]
        c = ACC + 32 * fi + 16 * ti
        a(f"v_mfma_f32_32x32x16_bf16 v[{c}:{c+15}], v[{ONE}:{ONE+3}], v[{BF+2*ti}:{BF+2*ti+3}], v[{c}:{c+15}]")
    st.mark(2)
    gl = []
    def pr(r):
        return f"v[{r}:{r+1}]"
    for grp in range(16):
        e0 = 4 * grp
        t = TP + 4 * (grp & 1)
        for e in range(4):
            src = Z1 + (e0 + e) // 2
            gl.append(f"v_lshlrev_b32 v{GZ+e0+e}, 16, v{src}" if e % 2 == 0 else f"v_and_b32 v{GZ+e0+e}, 0xffff0000, v{src}")
        for e in range(4):
            gl.append(f"v_mul_f32 v{t+e}, v{GZ+e0+e}, v{GZ+e0+e}")
        for e in range(4):
            gl.append(f"v_fma_f32 v{t+e}, v{t+e}, s{S_M}, v{V_C0}")
        for e in range(4):
            gl.append(f"v_mul_f32 v{t+e}, v{t+e}, v{GZ+e0+e}")
        for e in range(4):
            gl.append(f"v_exp_f32 v{t+e}, v{t+e}")
        for e in range(4):
            gl.append(f"v_add_f32 v{t+e}, 1.0, v{t+e}")
        for e in range(4):
            gl.append(f"v_rcp_f32 v{t+e}, v{t+e}")
        for e in range(4):
            gl.append(f"v_mul_f32 v{GZ+e0+e}, v{GZ+e0+e}, v{t+e}")
    if "g" in X: gl = []
    G0G, GEND = G0 * 16, 256 - GTAIL
    ngap = GEND - G0G
    gi = [0, 0, 0]
    def zissue(li):
        fi, ti, q = li >> 2, (li >> 1) & 1, li & 1
        r = Z1 + 4 * li
        vm.issue(f"z{li}", f"buffer_load_dwordx4 v[{r}:{r+3}], v{V_L16}, {ws}, s{S_ZB + 0 if ti == 0 else S_C1} offen offset:{fi*2048 + q*1024}")
    def fill():
        g = gi[1]
        gi[1] += 1
        while gi[2] < 8 and g >= G0G + ngap * gi[2] // 8 - LEAD:
            zissue(gi[2])
            gi[2] += 1
        if g < G0G:
            return
        tgt = min(len(gl), (len(gl) * (g - G0G + 1) + ngap - 1) // ngap)
        while gi[0] < tgt:
            if gi[0] % 64 == 0:
                vm.wait(f"z{gi[0] // 64}")
            a(gl[gi[0]])
            gi[0] += 1
    a(f"s_add_u32 s{S_C1}, s{S_ZB}, {28*2048}")
    def reads(n, ks):
        f = FR + 16 * (ks & 1)
        sl = n % NWS
        hi = sl >= 4
        zo = (sl & 3) * ZSTG + (ks >> 1) * 4 * ZT + (ks & 1) * 256
        wo = (sl & 3) * 16384
        l = []
        for i in range(2):
            l.append(f"ds_read_b64_tr_b16 v[{f+4*i}:{f+4*i+1}], v{BRD2+4 if hi else AR} offset:{zo + i*ZT}")
            l.append(f"ds_read_b64_tr_b16 v[{f+4*i+2}:{f+4*i+3}], v{BRD2+5 if hi else AR1} offset:{zo + i*ZT}")
            l.append(f"ds_read_b128 v[{f+8+4*i}:{f+8+4*i+3}], v{(BRD2 if hi else BRD)+ks} offset:{wo + i*4096}")
        return l
    BRD2 = 224
    if NWS > 4:
        for k in range(4):
            a(f"v_add_u32 v{BRD2+k}, 0x10000, v{BRD+k}")
        a(f"v_add_u32 v{BRD2+4}, 0x10000, v{AR}\nv_add_u32 v{BRD2+5}, 0x10000, v{AR1}")
    def mfmas(ks, rl, gel, first=False, bk=None):
        f = FR + 16 * (ks & 1)
        k = 0
        for fi, ti in ((0, 0), (1, 0), (0, 1), (1, 1)):
            c = ACC + 32 * fi + 16 * ti
            a(f"v_mfma_f32_32x32x16_bf16 v[{c}:{c+15}], v[{f+4*fi}:{f+4*fi+3}], v[{f+8+4*ti}:{f+8+4*ti+3}], " + ("0" if first else f"v[{c}:{c+15}]"))
            for s in rl[3 * k:3 * k + 3]:
                a(s)
            if bk is not None and k == (bk + 2) % 4:
                bias_mf(bk)
            k += 1
            if gel:
                fill()
    for n in range(NST):
        if n in (10, 11):
            st.mark(8 + 2 * (n - 10))
        a("s_barrier")
        if n in (10, 11):
            st.mark(9 + 2 * (n - 10))
        if n in (0, 4, 8, 12):
            st.mark(3 + n // 4)
        gel = True
        if n == 0:
            for s in reads(0, 0):
                a(s)
        else:
            mfmas(3, reads(n, 0), gel)
        for ks in range(3):
            a("s_waitcnt lgkmcnt(0)")
            mfmas(ks, reads(n, ks + 1), gel, n == 0 and ks == 0, n - BST if ks == 1 and 0 <= n - BST < 4 else None)
            if ks == 0 and n == BST - 4:
                bias_load()
            if ks == 0 and n == BST:
                bias_prep()
        a("s_waitcnt lgkmcnt(0)")
    st.mark(7)
    mfmas(3, [], False)
    while gi[0] < len(gl):
        a(gl[gi[0]]); gi[0] += 1
    for k, (fi, ti) in enumerate(((0, 0), (1, 0), (0, 1), (1, 1))):
        if k == 0:
            a("s_nop 3")
        if k == 2:
            a(f"s_add_u32 s{S_O}, s{S_O}, {144*1024}")
        c = ACC + 32 * fi + 16 * ti
        g = GZ + 32 * fi + 16 * ti
        o = FR + 8 * (2 * ti + fi)
        for q in range(2):
            for r in range(8 * q, 8 * q + 8, 2):
                a(f"v_pk_mul_f32 v[{c+r}:{c+r+1}], v[{c+r}:{c+r+1}], v[{g+r}:{g+r+1}]")
            for r in range(4 * q, 4 * q + 4):
                a(f"v_cvt_pk_bf16_f32 v{o+r}, v{c+2*r}, v{c+2*r+1}")
            vm.issue("st", f"buffer_store_dwordx4 v[{o+4*q}:{o+4*q+3}], v{V_L16}, {ws}, s{S_O} offen offset:{fi*2048 + q*1024}{STORE_FLAGS}")
    a("s_branch P2_END")

def loader_path(a, st):
    vm = VM(a)
    VD, VZ = 5, 9
    ws = f"s[{S_WS}:{S_WS+3}]"
    if PRIO_L:
        a(f"s_setprio {PRIO_L}")
    def zload(n):
        a(f"s_add_u32 m0, s{S_MW}, {ZSL + (n % NWS)*ZSTG}")
        a(f"s_xor_b32 s{S_T2}, s{S_ZB}, {n << 12}")
        for q in range(4):
            vm.issue(f"s{n}", f"buffer_load_dwordx4 v{VZ+q}, {ws}, s{S_T2} offen offset:{q*1024} lds")
    def wload(n):
        a(f"s_add_u32 m0, s{S_MW}, {WSL + (n % NWS)*16384}")
        a(f"s_xor_b32 s{S_T3}, s{S_AB}, {n << 7}")
        for q in range(4):
            vm.issue(f"s{n}", f"buffer_load_dwordx4 v{VD+q}, s[{S_SP}:{S_SP+3}], s{S_T3} offen offset:{q*1024} lds")
    for n in range(D):
        zload(n)
        wload(n)
    st.mark(2)
    for n in range(NST):
        vm.wait(f"s{n}")
        if n in (0, 4, 8, 12):
            st.mark(3 + n // 4)
        a("s_barrier")
        if n + D < NST:
            zload(n + D)
            wload(n + D)
    a("s_branch P2_END")

def loader_setup(a):
    VD, VZ = 5, 9
    assert WS_Z2 == 0
    a(f"""s_and_b32 s{S_T0}, s{S_WAVE}, 3
s_lshr_b32 s{S_T1}, s{S_T0}, 1
s_lshl_b32 s{S_T2}, s{S_KH}, 4
s_add_u32 s{S_T2}, s{S_T2}, s{S_ST}
s_lshl_b32 s{S_T3}, s{S_T2}, 1
s_add_u32 s{S_T3}, s{S_T3}, s{S_T1}
s_lshl_b32 s{S_ZB}, s{S_T3}, 11
s_lshl_b32 s{S_T3}, s{S_FQ}, 1
s_and_b32 s{S_T1}, s{S_T0}, 1
s_add_u32 s{S_T3}, s{S_T3}, s{S_T1}
s_lshl_b32 s{S_T3}, s{S_T3}, 18
s_add_u32 s{S_ZB}, s{S_ZB}, s{S_T3}
v_lshrrev_b32 v{V_T0}, 3, v{V_LANE}
v_and_b32 v{VZ}, 4, v{V_T0}
v_xor_b32 v{VZ}, v{VZ}, v{V_LANE}
v_lshlrev_b32 v{VZ}, 4, v{VZ}
v_xor_b32 v{VZ+1}, 128, v{VZ}
v_add_u32 v{VZ+2}, {(1 << 17) - 2048}, v{VZ}
v_add_u32 v{VZ+3}, {(1 << 17) - 2048}, v{VZ+1}
v_and_b32 v{VD+1}, 7, v{V_LANE}
v_lshrrev_b32 v{V_T2}, 4, v{V_LANE}
v_xor_b32 v{V_T2}, v{V_T2}, v{VD+1}
v_lshlrev_b32 v{V_T0}, 12, v{V_T0}
v_lshl_add_u32 v{VD}, v{V_T2}, 4, v{V_T0}
v_xor_b32 v{VD+1}, 64, v{VD}
v_add_u32 v{VD+1}, {8*4096 - 1024}, v{VD+1}
v_add_u32 v{VD+2}, {16*4096 - 2048}, v{VD}
v_add_u32 v{VD+3}, {16*4096 - 2048}, v{VD+1}
s_lshl_b32 s{S_AB}, s{S_TT}, 2
s_add_u32 s{S_AB}, s{S_AB}, s{S_T0}
s_lshl_b32 s{S_AB}, s{S_AB}, 17
s_lshl_b32 s{S_T2}, s{S_T2}, 7
s_add_u32 s{S_AB}, s{S_AB}, s{S_T2}
s_lshl_b32 s{S_MW}, s{S_T0}, 12""")

def spare_path(a, st):
    vm = VM(a)
    ws = f"s[{S_WS}:{S_WS+3}]"
    V_KO, V_L8, V_L8B, V_L16, V_TR = 5, 6, 7, 8, 9
    KF, QF, ACC, ZAC, ONE, KVB, TP = 16, 144, 176, 192, 208, 212, 220
    WIMG = 65536
    a(f"""s_lshr_b32 s{S_T0}, s{S_J}, 1
v_and_b32 v{V_T0}, 31, v{V_LANE}
v_lshrrev_b32 v{V_T1}, 5, v{V_LANE}
v_lshlrev_b32 v{V_KO}, 5, v{V_T0}
v_lshl_add_u32 v{V_KO}, v{V_T1}, 4, v{V_KO}
s_mul_i32 s{S_T1}, s{S_WAVE}, {8*28672}
s_mul_i32 s{S_T2}, s{S_T0}, 896
s_add_u32 s{S_T1}, s{S_T1}, s{S_T2}
s_add_u32 s{S_T1}, s{S_T1}, {WS_K}""")
    for i in range(16):
        a(f"s_add_u32 s{S_T3}, s{S_T1}, {WS_V - WS_K}")
        vm.issue(f"k{i}", f"buffer_load_dwordx4 v[{KF+8*i}:{KF+8*i+3}], v{V_KO}, {ws}, s{S_T1} offen")
        vm.issue(f"k{i}", f"buffer_load_dwordx4 v[{KF+8*i+4}:{KF+8*i+7}], v{V_KO}, {ws}, s{S_T3} offen")
        a(f"s_add_u32 s{S_T1}, s{S_T1}, 14336")
    a(f"""v_lshlrev_b32 v{V_L8}, 3, v{V_LANE}
v_lshlrev_b32 v{V_L8B}, 3, v{V_T0}
v_lshlrev_b32 v{V_L16}, 4, v{V_LANE}
s_and_b32 s{S_T1}, s{S_J}, 1
s_lshl_b32 s{S_T1}, s{S_T1}, 3
s_add_u32 s{S_T1}, s{S_T1}, s{S_WAVE}
s_mul_i32 s{S_O}, s{S_T1}, {4*144*1024}
s_lshl_b32 s{S_T3}, s{S_T0}, 11
s_add_u32 s{S_O}, s{S_O}, s{S_T3}
s_add_u32 s{S_O}, s{S_O}, {WS_AF}
s_mul_i32 s{S_T1}, s{S_T1}, {4*28672}
s_lshl_b32 s{S_T2}, s{S_T2}, 1
s_add_u32 s{S_T1}, s{S_T1}, s{S_T2}
s_add_u32 s{S_T1}, s{S_T1}, {WS_Q}""")
    for u in range(4):
        for i in range(4):
            r = QF + 8 * u + 2 * i
            vm.issue("q", f"buffer_load_dwordx2 v[{r}:{r+1}], v{V_L8 if i < 3 else V_L8B}, {ws}, s{S_T1} offen offset:{512*i}")
        a(f"s_add_u32 s{S_T1}, s{S_T1}, 28672")
    a(f"""s_mul_i32 s{S_T1}, s{S_T0}, 28
s_and_b32 s{S_T2}, s{S_J}, 1
s_lshl_b32 s{S_T2}, s{S_T2}, 4
s_add_u32 s{S_T1}, s{S_T1}, s{S_T2}
s_mul_i32 s{S_T1}, s{S_T1}, 896
s_lshl_b32 s{S_T2}, s{S_WAVE}, 10
s_add_u32 s{S_T1}, s{S_T1}, s{S_T2}
s_add_u32 m0, s{S_T2}, {WIMG}
s_mul_i32 s{S_T3}, s{S_J}, {32*896}
s_add_u32 s{S_T3}, s{S_T3}, s{S_T2}""")
    vm.issue("w", f"buffer_load_dwordx4 v{V_L16}, s[{S_B}:{S_B+3}], s{S_T1} offen lds")
    a(f"s_add_u32 m0, s{S_T2}, {WIMG + 8192}\ns_add_u32 s{S_T1}, s{S_T1}, 8192")
    vm.issue("w", f"buffer_load_dwordx4 v{V_L16}, s[{S_B}:{S_B+3}], s{S_T1} offen lds")
    for i in range(4):
        a(f"s_add_u32 m0, s{S_T2}, {WIMG + 16384 + 8192*i}\ns_nop 0")
        vm.issue("w", f"buffer_load_dwordx4 v{V_L16}, s[{S_W2}:{S_W2+3}], s{S_T3} offen lds")
        a(f"s_add_u32 s{S_T3}, s{S_T3}, 8192")
    for r in range(4):
        a(f"v_mov_b32 v{ONE+r}, 0x3f803f80")
    a(f"""s_mov_b32 s{S_M}, 0x10000000
s_mov_b32 s{S_M+1}, 0x10000000
s_mov_b32 s{S_M2}, -1
s_mov_b32 s{S_M2+1}, 0""")
    for i in range(16):
        vm.wait(f"k{i}")
        c0 = "0" if i == 0 else f"v[{ACC}:{ACC+15}]"
        c1 = "0" if i == 0 else f"v[{ZAC}:{ZAC+15}]"
        a(f"v_mfma_f32_32x32x16_bf16 v[{ACC}:{ACC+15}], v[{KF+8*i}:{KF+8*i+3}], v[{KF+8*i+4}:{KF+8*i+7}], {c0}")
        a(f"v_mfma_f32_32x32x16_bf16 v[{ZAC}:{ZAC+15}], v[{KF+8*i}:{KF+8*i+3}], v[{ONE}:{ONE+3}], {c1}")
    st.mark(2)
    a(f"""s_lshl_b32 s{S_T1}, s{S_WAVE}, 12
v_add_u32 v{V_T2}, s{S_T1}, v{V_L8}
s_nop 10""")
    for r in range(16):
        a(f"v_cndmask_b32 v{ACC+r}, v{ACC+r}, v{ZAC+r}, s[{S_M}:{S_M+1}]")
    for p in range(8):
        a(f"ds_write_b64 v{V_T2}, v[{ACC+2*p}:{ACC+2*p+1}] offset:{512*p}")
    a(f"""s_lshl_b32 s{S_T1}, s{S_WAVE}, 9
v_add_u32 v{V_T2}, s{S_T1}, v{V_L8}""")
    vm.wait("w")
    a("s_waitcnt lgkmcnt(0)\ns_barrier")
    for w in range(8):
        a(f"ds_read_b64 v[{ACC+2*w}:{ACC+2*w+1}], v{V_T2} offset:{4096*w}")
    a(f"""s_cmp_ge_u32 s{S_WAVE}, 6
s_cselect_b32 s{S_M+1}, 0, -1
s_mov_b32 s{S_M}, -1
s_lshl_b32 s{S_T1}, s{S_WAVE}, 2
s_add_u32 s{S_T1}, s{S_T1}, 32768
v_lshl_add_u32 v{V_T2}, v{V_LANE}, 5, s{S_T1}
s_waitcnt lgkmcnt(0)""")
    for w in (4, 2, 1):
        for k in range(w):
            a(f"v_pk_add_f32 v[{ACC+2*k}:{ACC+2*k+1}], v[{ACC+2*k}:{ACC+2*k+1}], v[{ACC+2*(k+w)}:{ACC+2*(k+w)+1}]")
    a(f"""v_cvt_pk_bf16_f32 v{ACC}, v{ACC}, v{ACC+1}
v_cndmask_b32 v{ACC}, 0, v{ACC}, s[{S_M}:{S_M+1}]
ds_write_b32 v{V_T2}, v{ACC}
v_lshlrev_b32 v{V_T2}, 5, v{V_LANE}
s_waitcnt lgkmcnt(0)
s_barrier
ds_read_b128 v[{KVB}:{KVB+3}], v{V_T2} offset:32768
ds_read_b128 v[{KVB+4}:{KVB+7}], v{V_T2} offset:32784
s_waitcnt lgkmcnt(0)""")
    st.mark(3)
    for u in range(4):
        c = KF + 16 * u
        a(f"v_mfma_f32_32x32x16_bf16 v[{c}:{c+15}], v[{KVB}:{KVB+3}], v[{QF+8*u}:{QF+8*u+3}], 0")
        a(f"v_mfma_f32_32x32x16_bf16 v[{c}:{c+15}], v[{KVB+4}:{KVB+7}], v[{QF+8*u+4}:{QF+8*u+7}], v[{c}:{c+15}]")
    a("s_nop 5")
    for u in range(4):
        c = KF + 16 * u
        o = KF + 64 + 8 * u
        a(f"""v_add_f32 v{TP}, {f32(1e-6)}, v{c+12}
v_mov_b32 v{TP+1}, v{TP}
s_nop 1
v_permlane32_swap_b32 v{TP+1}, v{TP}
v_rcp_f32 v{TP}, v{TP}
s_nop 0""")
        for r in range(16):
            a(f"v_mul_f32 v{c+r}, v{c+r}, v{TP}")
        for r in range(8):
            a(f"v_cvt_pk_bf16_f32 v{o+r}, v{c+2*r}, v{c+2*r+1}")
        a(f"v_cndmask_b32 v{o+6}, 0, v{o+6}, s[{S_M2}:{S_M2+1}]")
        a(f"v_cndmask_b32 v{o+7}, 0, v{o+7}, s[{S_M2}:{S_M2+1}]")
        vm.issue("st", f"buffer_store_dwordx4 v[{o}:{o+3}], v{V_L16}, {ws}, s{S_O} offen{STORE_FLAGS}")
        vm.issue("st", f"buffer_store_dwordx4 v[{o+4}:{o+7}], v{V_L16}, {ws}, s{S_O} offen offset:1024{STORE_FLAGS}")
        a(f"s_add_u32 s{S_O}, s{S_O}, {144*1024}")
    st.mark(4)
    a(f"""s_cmp_eq_u32 s{S_WAVE}, 7
s_cbranch_scc1 P2_END
v_bfe_u32 v{V_T0}, v{V_LANE}, 2, 2
v_lshl_add_u32 v{V_T0}, v{V_T1}, 2, v{V_T0}
v_mul_u32_u24 v{V_TR}, 896, v{V_T0}
v_and_b32 v{V_T0}, 16, v{V_LANE}
v_lshl_add_u32 v{V_TR}, v{V_T0}, 1, v{V_TR}
v_and_b32 v{V_T0}, 3, v{V_LANE}
v_lshl_add_u32 v{V_TR}, v{V_T0}, 3, v{V_TR}
s_lshl_b32 s{S_T1}, s{S_WAVE}, 7
s_add_u32 s{S_T1}, s{S_T1}, {WIMG}
v_add_u32 v{V_TR}, s{S_T1}, v{V_TR}""")
    base = [0, 16384, 16384 + 14336]
    for k in range(3):
        for n in range(2):
            r = QF + 8 * k + 4 * n
            a(f"ds_read_b64_tr_b16 v[{r}:{r+1}], v{V_TR} offset:{base[k] + 64*n}")
            a(f"ds_read_b64_tr_b16 v[{r+2}:{r+3}], v{V_TR} offset:{base[k] + 64*n + 8*896}")
    a(f"""s_bitcmp1_b32 s{S_J}, 0
s_cselect_b32 s{S_M+1}, 0, -1
s_mul_i32 s{S_T1}, s{S_WAVE}, {2*88*1024}
s_add_u32 s{S_T1}, s{S_T1}, {WS_WF}
s_lshl_b32 s{S_T2}, s{S_J}, 10
s_add_u32 s{S_T3}, s{S_T1}, s{S_T2}
s_add_u32 s{S_T1}, s{S_T3}, s{S_T2}
s_add_u32 s{S_T1}, s{S_T1}, {32*1024}
s_waitcnt lgkmcnt(0)""")
    for n in range(2):
        r = QF + 4 * n
        a(f"v_cndmask_b32 v{r+2}, 0, v{r+2}, s[{S_M}:{S_M+1}]")
        a(f"v_cndmask_b32 v{r+3}, 0, v{r+3}, s[{S_M}:{S_M+1}]")
        vm.issue("st", f"buffer_store_dwordx4 v[{r}:{r+3}], v{V_L16}, {ws}, s{S_T3} offen{STORE_FLAGS}")
        a(f"s_add_u32 s{S_T3}, s{S_T3}, {88*1024}")
    a(f"""s_cmp_ge_u32 s{S_J}, 28
s_cbranch_scc1 P2_END""")
    for n in range(2):
        for k in (1, 2):
            r = QF + 8 * k + 4 * n
            vm.issue("st", f"buffer_store_dwordx4 v[{r}:{r+3}], v{V_L16}, {ws}, s{S_T1} offen offset:{(k-1)*1024}{STORE_FLAGS}")
        a(f"s_add_u32 s{S_T1}, s{S_T1}, {88*1024}")

def gen_p2(a, name, stamp=False):
    kernel_begin(a, name)
    a(f"""s_cmp_ge_u32 s2, 256
s_cbranch_scc1 P2_EXIT
s_load_dwordx4 s[60:63], s[0:1], 40
s_load_dwordx2 s[64:65], s[0:1], 56
s_load_dwordx2 s[66:67], s[0:1], 16
s_load_dwordx2 s[68:69], s[0:1], 80""")
    st = Stamp(a, stamp, 1)
    st.clear()
    st.mark(0, True)
    if "2" in X:
        a("s_mov_b32 s59, 0\nP2_AGAIN:")
    st.mark(1)
    a(f"""v_and_b32 v{V_LANE}, 63, v0
v_lshrrev_b32 v{V_T0}, 6, v0
s_and_b32 s{S_KH}, s2, 1
v_readfirstlane_b32 s{S_WAVE}, v{V_T0}
s_bfe_u32 s{S_T0}, s2, 0x20001
s_bfe_u32 s{S_T1}, s2, 0x20003
s_lshl_b32 s{S_TT}, s{S_T0}, 2
s_add_u32 s{S_TT}, s{S_TT}, s{S_T1}
s_lshr_b32 s{S_FQ}, s2, 5
""" + {"2": f"""s_lshl_b32 s{S_T1}, s{S_T1}, 1
s_add_u32 s{S_T1}, s{S_T1}, s{S_FQ}
s_lshl_b32 s{S_T1}, s{S_T1}, 1
s_and_b32 s{S_ST}, s{S_T1}, 15
""", "0": f"s_mov_b32 s{S_ST}, 0\n", "1": f"s_lshl_b32 s{S_ST}, s{S_FQ}, 1\n", "3": f"s_and_b32 s{S_ST}, s{S_FQ}, 1\n", "4": f"s_and_b32 s{S_ST}, s{S_FQ}, 3\n"}[os.environ.get("P2_ROT", "0")] + f"""s_sub_u32 s{S_J}, s2, 224""")
    loader_setup(a)
    a("s_waitcnt lgkmcnt(0)")
    srd(a, S_WS, 68, WS_SIZE)
    a(f"""s_cmp_ge_u32 s2, 224
s_cbranch_scc1 P2_SPARE
s_cmp_ge_u32 s{S_WAVE}, 4
s_cbranch_scc1 P2_LOAD""")
    srd(a, S_B, 62, 4096)
    compute_path(a, st)
    a("P2_LOAD:")
    srd(a, S_SP, 60, 2048 * 4096)
    loader_path(a, st)
    a("P2_SPARE:")
    srd(a, S_B, 66, 448 * 896)
    srd(a, S_W2, 64, 896 * 896)
    spare_path(a, st)
    a("P2_END:")
    if "2" in X:
        a("""s_waitcnt vmcnt(0)
s_barrier
s_add_u32 s59, s59, 1
s_cmp_lt_u32 s59, 2
s_cbranch_scc1 P2_AGAIN""")
    st.flush(S_WS, S_WAVE)
    a("P2_EXIT:")
    a("s_endpgm")
```

```python
import sys
from common import *
src, dst = sys.argv[1], sys.argv[2]
WG = int(sys.argv[3]) if len(sys.argv) > 3 else 9
L = open(src).read().split("\n")
idx = [i for i, l in enumerate(L) if l.startswith("; @launch")]
NK = len(idx)
out = L[:idx[-1] + 1] + ["; @launch kernel=sum_kernel grid=(1,1,1) block=(256,1,1) lds=1024"] + L[idx[-1] + 1:]
r = out.index('.section .rodata,"a"')
a = Asm(); kernel_begin(a, "sum_kernel")
a("""s_cmp_ge_u32 s2, 1
s_cbranch_scc1 SUM_END
s_load_dwordx4 s[4:7], s[0:1], 72
v_mov_b32 v2, 0
v_mov_b32 v3, -1
v_mov_b32 v4, 0
v_min_u32 v1, 223, v0
v_lshlrev_b32 v1, 9, v1
ds_write2_b32 v2, v3, v4 offset0:0 offset1:1
ds_write2_b32 v2, v3, v4 offset0:2 offset1:3
ds_write2_b32 v2, v3, v4 offset0:4 offset1:5
s_waitcnt lgkmcnt(0)
s_barrier""")
srd(a, 12, 6, 268435456)
srd(a, 16, 4, 256)
for k in range(NK):
    a(f"s_mov_b32 s20, {WS_STAMP + k * 0x100000}")
    for w in range(4):
        a(f"buffer_load_dword v{8+2*w}, v1, s[12:15], s20 offen offset:{w*64}")
        a(f"buffer_load_dword v{9+2*w}, v1, s[12:15], s20 offen offset:{w*64+52}")
    a("s_waitcnt vmcnt(0)")
    for w in range(4):
        a(f"ds_min_u32 v2, v{8+2*w} offset:{8*k}")
        a(f"ds_max_u32 v2, v{9+2*w} offset:{8*k+4}")
a("""s_waitcnt lgkmcnt(0)
s_barrier
ds_read_b128 v[8:11], v2
ds_read_b64 v[12:13], v2 offset:16""")
sel = eval(sys.argv[4]) if len(sys.argv) > 4 else [(0, 3), (0, 5), (0, 10), (0, 12), (1, 3), (1, 4), (1, 7), (1, 12), (2, 3), (2, 12)]
for i, (k, s) in enumerate(sel):
    a(f"s_mov_b32 s20, {WS_STAMP + k * 0x100000 + WG * 512}")
    a(f"buffer_load_dword v{14+i}, v2, s[12:15], s20 offen offset:{4*s}")
    a(f"buffer_load_dword v{30+i}, v2, s[12:15], s20 offen offset:4")
a("s_waitcnt vmcnt(0) lgkmcnt(0)")
for i in range(5, -1, -1):
    a(f"v_sub_u32 v{8+i}, v{8+i}, v8")
for i in range(len(sel)):
    a(f"v_sub_u32 v{14+i}, v{14+i}, v{30+i}")
a("""v_cmp_eq_u32 vcc, 0, v0
s_and_saveexec_b64 s[30:31], vcc
s_cbranch_execz SUM_END""")
for q in range(4):
    a(f"buffer_store_dwordx4 v[{8+4*q}:{11+4*q}], v2, s[16:19], 0 offen offset:{16*q}")
a("SUM_END:\ns_endpgm")
out = out[:r] + a.text().split("\n") + out[r:] + kernel_desc("sum_kernel", 64, 64).split("\n")
open(dst, "w").write("\n".join(out))
```

```python
from asmlib import *
import struct

def f32(x):
    return "0x%08x" % struct.unpack("<I", struct.pack("<f", x))[0]

WS_Z2 = 0x0000000
WS_Z1 = 0x0400000
WS_Q = 0x0800000
WS_K = 0x0A00000
WS_V = 0x0C00000
WS_ST = 0x0E00000
WS_XB = 0x0E40000
WS_SF = 0x0F00000
WS_FL = 0x0F00000
WS_F2 = WS_FL + 0x8000
WS_F3 = WS_FL + 0xC000
WS_FZ = WS_FL + 0xD000
WS_AF = 0x1000000
WS_WF = 0x2000000
WS_SIZE = 0x3000000
WS_STAMP = 0x8000000

class VM:
    def __init__(self, a):
        self.a = a
        self.q = []
    def issue(self, tag, text):
        self.a(text)
        self.q.append(tag)
    def wait(self, *tags):
        last = -1
        for i, t in enumerate(self.q):
            if t in tags:
                last = i
        if last < 0:
            return
        n = len(self.q) - 1 - last
        assert n <= 63, n
        self.a(f"s_waitcnt vmcnt({n})")
        self.q = self.q[last + 1:]
    def copy(self, a=None):
        v = VM(a or self.a)
        v.q = list(self.q)
        return v

GELU_C0 = -2.0 * 0.7978845608028654 * 1.4426950408889634
GELU_C1 = GELU_C0 * 0.044715
LOG2E = 1.4426950408889634

class Stamp:
    def __init__(self, a, on, kern=0):
        self.a, self.on, self.kern = a, on, kern
    def mark(self, i, real=False):
        if self.on:
            self.a(f"{'s_memrealtime' if real else 's_memtime'} s[{70+2*i}:{71+2*i}]")
    def clear(self):
        if self.on:
            for i in range(14):
                self.a(f"s_mov_b32 s{70+2*i}, 0")
    def flush(self, s_ws, s_wave):
        if not self.on:
            return
        a = self.a
        a("s_waitcnt vmcnt(0)")
        self.mark(12)
        self.mark(13, True)
        a(f"""s_waitcnt lgkmcnt(0)
s_mov_b64 exec, 1
s_lshl_b32 s98, s2, 9
s_lshl_b32 s99, s{s_wave}, 6
s_add_u32 s98, s98, s99
s_add_u32 s98, s98, {WS_STAMP + self.kern * 0x100000}
s_mov_b32 s{s_ws+2}, 0x10000000
v_mov_b32 v20, 0""")
        for i in range(14):
            a(f"v_mov_b32 v{2+i}, s{70+2*i}")
        a("v_mov_b32 v16, 0\nv_mov_b32 v17, 0")
        for q in range(4):
            a(f"buffer_store_dwordx4 v[{2+4*q}:{5+4*q}], v20, s[{s_ws}:{s_ws+3}], s98 offen offset:{16*q}")


def finalize_stats(a, NP, s_ws, s_dbg, s_part, s_st, v_l16, T, lab_end, st_flags):
    NL = (NP + 3) // 4
    a(f"""s_waitcnt vmcnt(0)
s_mov_b64 exec, 1
v_mov_b32 v{T}, 1
v_mov_b32 v{T+1}, 0
s_lshl_b32 s58, s{s_st}, 2
buffer_atomic_add v{T}, v{T+1}, s[{s_dbg}:{s_dbg+3}], s58 offen sc0 sc1
s_waitcnt vmcnt(0)
v_readfirstlane_b32 s59, v{T}
s_mov_b64 exec, -1
s_cmp_lg_u32 s59, {NP-1}
s_cbranch_scc1 {lab_end}""")
    if NP % 4:
        for r in range(4):
            a(f"v_mov_b32 v{T+4*(NL-1)+r}, 0")
    for i in range(NL):
        if i == NL - 1 and NP % 4:
            m = (1 << (16 * (NP % 4))) - 1
            a(f"s_mov_b32 exec_lo, 0x{m & 0xffffffff:x}\ns_mov_b32 exec_hi, 0x{m >> 32:x}")
        if i == 4:
            a(f"s_add_u32 s{s_part}, s{s_part}, 4096")
        a(f"buffer_load_dwordx4 v[{T+4*i}:{T+4*i+3}], v{v_l16}, s[{s_ws}:{s_ws+3}], s{s_part} offen offset:{(i&3)*1024} sc0 sc1")
    a("s_mov_b64 exec, -1")
    a(f"s_lshl_b32 s58, s{s_st}, 8\ns_add_u32 s58, s58, {WS_SF}")
    for i in range(1, NL):
        a(f"s_waitcnt vmcnt({NL-1-i})")
        for h in (0, 2):
            a(f"v_pk_add_f32 v[{T+h}:{T+h+1}], v[{T+h}:{T+h+1}], v[{T+4*i+h}:{T+4*i+h+1}]")
    for op in ("v_permlane32_swap_b32", "v_permlane16_swap_b32"):
        for r in range(4):
            a(f"v_mov_b32 v{T+4+r}, v{T+r}")
        a("s_nop 1")
        for r in range(4):
            a(f"{op} v{T+4+r}, v{T+r}")
        for h in (0, 2):
            a(f"v_pk_add_f32 v[{T+h}:{T+h+1}], v[{T+h}:{T+h+1}], v[{T+4+h}:{T+4+h+1}]")
    for r in (0, 2):
        a(f"v_mul_f32 v{T+r}, {f32(-1/896)}, v{T+r}")
        a(f"v_mul_f32 v{T+r+1}, {f32(1/896)}, v{T+r+1}")
    for r in (0, 2):
        a(f"v_fma_f32 v{T+r+1}, -v{T+r}, v{T+r}, v{T+r+1}")
    for r in (0, 2):
        a(f"v_max_f32 v{T+r+1}, 0, v{T+r+1}")
    for r in (0, 2):
        a(f"v_add_f32 v{T+r+1}, {f32(1e-5)}, v{T+r+1}")
    for r in (0, 2):
        a(f"v_rsq_f32 v{T+r+1}, v{T+r+1}")
    a("s_nop 0")
    for r in (0, 2):
        a(f"v_mul_f32 v{T+r}, v{T+r}, v{T+r+1}")
    a(f"""s_mov_b64 exec, 0xffff
buffer_store_dwordx4 v[{T}:{T+3}], v{v_l16}, s[{s_ws}:{s_ws+3}], s58 offen{st_flags}""")


class Stamp2:
    V = 231
    def __init__(self, a, on):
        self.a, self.on, self.pend = a, on, []
    def copy(self):
        t = Stamp2(self.a, self.on)
        t.pend = list(self.pend)
        return t
    def init(self):
        if self.on:
            self.a(f"v_mov_b32 v{self.V}, 0")
    def mark(self, i, real=False):
        if self.on:
            n = len(self.pend)
            assert n < 10, self.pend
            self.a(f"{'s_memrealtime' if real else 's_memtime'} s[{80+2*n}:{81+2*n}]")
            self.pend.append(i)
    def fold(self):
        if self.on and self.pend:
            self.a("s_waitcnt lgkmcnt(0)")
            for n, i in enumerate(self.pend):
                self.a(f"v_writelane_b32 v{self.V}, s{80+2*n}, {i}")
            self.pend = []
    def flush(self, s_ws, s_wave):
        if not self.on:
            return
        a = self.a
        self.fold()
        a("s_waitcnt vmcnt(0)")
        self.mark(62)
        self.mark(63, True)
        self.fold()
        a(f"""s_mov_b64 exec, -1
s_lshl_b32 s98, s2, 11
s_lshl_b32 s99, s{s_wave}, 8
s_add_u32 s98, s98, s99
s_add_u32 s98, s98, {WS_STAMP}
s_mov_b32 s{s_ws+2}, 0x10000000
v_mbcnt_lo_u32_b32 v2, -1, 0
v_mbcnt_hi_u32_b32 v2, -1, v2
v_lshlrev_b32 v2, 2, v2
buffer_store_dword v{self.V}, v2, s[{s_ws}:{s_ws+3}], s98 offen""")
```

```python
from common import *
import os
R1 = 0
RING = 57344
SCR = RING + 57344
DEAD = SCR + 8192
P1_LDS = 163840
P1_VGPR = 256
E = os.environ.get
ROTMODE = 1
STORE_FLAGS = E("SF", " sc1")
PFL = [int(x) for x in E("P1_PFL", "12,47").split(",")]
PFROW = int(E("P1_PFROW", "0"))
WPF = int(E("P1_WPF", "13"))
CSTAT = E("P1_CSTAT", "valu")
POLL_AT = int(E("P1_POLL", "36"))
F0_END = int(E("P1_F0E", "22"))
ZF0, ZF1 = int(E("P1_ZF0", "40")), int(E("P1_ZF1", "46"))
F1_END = int(E("P1_F1E", "50"))
TOUCH = int(E("P1_TOUCH", "0"))

P_X, P_QKV, P_WO, P_WIN, P_SP, P_BSP, P_WOUT, P_DBG, P_WS, P_OUT = 64, 66, 68, 72, 74, 76, 78, 56, 58, 60
X = E("P1_X", "")

V_LANE = 1
V_X0, V_X1, V_DA, V_DB = 2, 3, 4, 5
XR, WR = 6, 10
V_L16, V_T0 = 14, 15
A0 = 16
V_S, V_Q = 224, 225
V_R, V_C0, V_C1, V_RI, V_L2E = 226, 227, 228, 229, 230
V_PF = 0
SEL = 232
XE, CE = 236, 240
T4 = 248
V_KO, V_L8, V_CSA, V_DUM = 252, 253, 254, 255

S_SP = 4
S_PFO, S_CNT, S_REC, S_FL = 8, 9, 10, 11
S_X, S_WA, S_WB, S_WS = 12, 16, 20, 24
S_RB, S_G, S_WAVE, S_RW, S_CH = 28, 29, 30, 31, 32
S_T0, S_T1, S_T2, S_T3 = 33, 34, 35, 36
S_PK = 37
S_XB = 38
S_L = 39
S_A64 = 43
S_MR, S_MW = 44, 45
S_XO = 46
S_O = 47
S_SA = 52
S_SPIN = 53
S_HI = 54
B64 = 64 * 2688

class K:
    def __init__(s, kinds):
        s.kinds = kinds
        s.nA = 2 if kinds[0] == "V" else 1
        s.WST = (2 + s.nA) * 1024
        s.SLOT = 8 * s.WST
        s.NSL = 98304 // s.SLOT
        s.DEPTH = s.NSL - 1
        s.ori = [k in "GLQ" for k in kinds]
        s.WB, s.CV, s.CSA = 160, 212, 220
        if s.nA == 1:
            s.ACC = [128, 144, 160]
            s.BR, s.TMP, s.R16, s.XS = 176, 196, A0, CE + 4
            s.stat = E("P1_ASTAT", "mix")
        else:
            s.ACC = [128, 144, 160, 128]
            s.BR, s.TMP, s.R16, s.XS = 192, 176, 176, 228
            s.stat = CSTAT
NBR = 5

class LG:
    def __init__(self, a):
        self.a, self.q = a, []
    def issue(self, tag, text):
        self.a(text)
        self.q.append(tag)
    def wait(self, *tags):
        last = -1
        for i, t in enumerate(self.q):
            if t in tags:
                last = i
        if last < 0:
            return
        n = min(15, len(self.q) - 1 - last)
        self.a(f"s_waitcnt lgkmcnt({n})")
        self.q = self.q[len(self.q) - n:] if n else []
    def all(self):
        if self.q:
            self.a("s_waitcnt lgkmcnt(0)")
        self.q = []
    def copy(self):
        v = LG(self.a)
        v.q = list(self.q)
        return v

def mf(acc, w, x, orient, first=False):
    c = "0" if first else f"v[{acc}:{acc+15}]"
    if orient:
        return f"v_mfma_f32_32x32x16_bf16 v[{acc}:{acc+15}], v[{w}:{w+3}], v[{x}:{x+3}], {c}"
    return f"v_mfma_f32_32x32x16_bf16 v[{acc}:{acc+15}], v[{x}:{x+3}], v[{w}:{w+3}], {c}"

def mf16(c, b, first):
    return f"v_mfma_f32_16x16x32_bf16 v[{c}:{c+3}], v[{SEL}:{SEL+3}], v[{b}:{b+3}], " + ("0" if first else f"v[{c}:{c+3}]")

def adv_pk(a):
    if ROTMODE != 1:
        a(f"""s_add_u32 s{S_PK}, s{S_PK}, 1
s_cmp_eq_u32 s{S_PK}, 7
s_cselect_b32 s{S_PK}, 0, s{S_PK}""")

def line_src(L):
    if L == 1:
        return V_DB, S_WB, str(B64)
    return V_DA, S_WA, f"s{S_A64}"

def w_off(a, L, dst):
    v, s, st = line_src(L)
    if ROTMODE == 1:
        return S_L + L
    a(f"s_mul_i32 s{dst}, s{S_PK}, {st}\ns_add_u32 s{dst}, s{dst}, s{S_L+L}")
    return dst

def w_adv(a, L):
    if ROTMODE == 1:
        a(f"s_add_u32 s{S_L+L}, s{S_L+L}, {line_src(L)[2]}")

def piece_dma(a, vm, k, j):
    sl = RING + (j % k.NSL) * k.SLOT
    def x0():
        a(f"s_add_u32 m0, s{S_MR}, {sl}")
        if ROTMODE == 1:
            a(f"s_add_u32 s{S_T0}, s{S_XB}, {128 * j}")
        else:
            a(f"s_lshl_b32 s{S_T0}, s{S_PK}, 7\ns_add_u32 s{S_T0}, s{S_T0}, s{S_XB}")
        vm.issue(f"p{j}", f"buffer_load_dwordx4 v{V_X0}, s[{S_X}:{S_X+3}], s{S_T0} offen lds")
    def x1():
        vm.issue(f"p{j}", f"buffer_load_dwordx4 v{V_X1}, s[{S_X}:{S_X+3}], s{S_T0} offen offset:{(1+k.nA)*1024} lds")
    def w(L):
        def f():
            v, s, _ = line_src(L)
            o = w_off(a, L, S_T1)
            vm.issue(f"p{j}", f"buffer_load_dwordx4 v{v}, s[{s}:{s+3}], s{o} offen offset:{(1+L)*1024} lds")
            w_adv(a, L)
            if L == k.nA - 1:
                adv_pk(a)
        return f
    return [x0, x1] + [w(L) for L in range(k.nA)]

def line_dma(a, vm, L, b, base, tag):
    def f():
        v, s, _ = line_src(L)
        a(f"s_add_u32 m0, s{S_MW}, {base + b * 8192}")
        o = w_off(a, L, S_T1)
        if ROTMODE == 1:
            a("s_nop 0")
        vm.issue(tag, f"buffer_load_dwordx4 v{v}, s[{s}:{s+3}], s{o} offen lds")
        w_adv(a, L)
        adv_pk(a)
    return f

def I(a, s):
    return lambda: a(s)

def spread(n, lst):
    return [lst[len(lst) * i // n: len(lst) * (i + 1) // n] for i in range(n)]

def ce_build(ce, src):
    return [f"v_add_f32 v{src}, v{src}, v{src+1}",
            f"v_add_f32 v{src+2}, v{src+2}, v{src+3}",
            f"v_add_f32 v{src}, v{src}, v{src+2}",
            f"v_and_b32 v{src+1}, 0xffff0000, v{src}",
            f"v_sub_f32 v{src}, v{src}, v{src+1}",
            f"v_cvt_pk_bf16_f32 v{ce}, v{src+1}, v{src}"]

def store_tile(a, vm, kind, src, so):
    tg = "st" + kind
    ws = f"s[{S_WS}:{S_WS+3}]"
    l = []
    if kind in "GL":
        l.append(lambda: vm.issue(tg, f"buffer_store_dwordx4 v[{src}:{src+3}], v{V_L16}, {ws}, s{so} offen{STORE_FLAGS}"))
        l.append(lambda: vm.issue(tg, f"buffer_store_dwordx4 v[{src+4}:{src+7}], v{V_L16}, {ws}, s{so} offen offset:1024{STORE_FLAGS}"))
    elif kind == "Q":
        for i in range(4):
            l.append(lambda i=i: vm.issue(tg, f"buffer_store_dwordx2 v[{src+2*i}:{src+2*i+1}], v{V_L8}, {ws}, s{so} offen offset:{512*i}{STORE_FLAGS}"))
    else:
        l.append(lambda: vm.issue(tg, f"buffer_store_dwordx4 v[{src}:{src+3}], v{V_KO}, {ws}, s{so} offen{STORE_FLAGS}"))
        def second():
            a(f"s_add_u32 s{so}, s{so}, 14336")
            vm.issue(tg, f"buffer_store_dwordx4 v[{src+4}:{src+7}], v{V_KO}, {ws}, s{so} offen{STORE_FLAGS}")
        l.append(second)
    return l

def epilogue(a, vm, k, kind, acc, so):
    T = k.TMP
    R = (lambda r: V_R) if kind in "GLQ" else (lambda r: k.R16 + r)
    s = []
    for h in range(2):
        rs = range(8 * h, 8 * h + 8)
        if kind == "G":
            s += [f"v_mul_f32 v{T+r}, v{acc+r}, v{acc+r}" for r in rs]
            s += [f"v_fma_f32 v{T+r}, v{T+r}, v{V_C1}, v{V_C0}" for r in rs]
            s += [f"v_mul_f32 v{T+r}, v{T+r}, v{acc+r}" for r in rs]
            s += [f"v_exp_f32 v{T+r}, v{T+r}" for r in rs]
            s += [f"v_fma_f32 v{T+r}, v{T+r}, v{V_RI}, v{V_RI}" for r in rs]
            s += [f"v_rcp_f32 v{T+r}, v{T+r}" for r in rs]
            s += [f"v_mul_f32 v{acc+r}, v{T+r}, v{acc+r}" for r in rs]
            for r in rs:
                s.append(f"v_add_f32 v{V_S}, v{V_S}, v{acc+r}" if r else f"v_mov_b32 v{V_S}, v{acc}")
                s.append(f"v_fmac_f32 v{V_Q}, v{acc+r}, v{acc+r}" if r else f"v_mul_f32 v{V_Q}, v{acc}, v{acc}")
        elif kind in "QK":
            s += [f"v_fmaak_f32 v{acc+r}, v{acc+r}, v{R(r)}, {f32(1e-6)}" for r in rs]
            s += [f"v_fmaak_f32 v{T+r}, v{acc+r}, v{V_L2E}, {f32(-1e-6*LOG2E)}" for r in rs]
            s += [f"v_exp_f32_e64 v{T+r}, v{T+r} clamp" for r in rs]
            s += [f"v_max_f32 v{acc+r}, {f32(1e-6)}, v{acc+r}" for r in rs]
            s += [f"v_add_f32 v{acc+r}, v{acc+r}, v{T+r}" for r in rs]
        else:
            s += [f"v_mul_f32 v{acc+r}, v{acc+r}, v{R(r)}" for r in rs]
    l = [I(a, x) for x in s]
    if kind != "G":
        l += [I(a, f"v_cvt_pk_bf16_f32 v{k.CV+r}, v{acc+2*r}, v{acc+2*r+1}") for r in range(8)]
        l += store_tile(a, vm, kind, k.CV, so)
    return l

def phase_a(a, vm, lg, k, st, tail_fill):
    nA = k.nA
    late = [line_dma(a, vm, nA, b, R1, "wa" if b < 3 else "wb") for b in range(7)]
    lsp = spread(k.DEPTH, late) if k.DEPTH == 3 else [late[:4], late[4:]]
    if k.DEPTH == 3:
        lsp = [late[:3], late[3:5], late[5:]]
    XS = k.XS
    for j in range(8):
        main, reads, dots, dmas, extra = [], [], [], [], []
        if j < 7:
            vm.wait(f"p{j}")
            a("s_barrier")
            if j in (0, 3, 6):
                st.mark(3 + j // 3)
            so = (j % k.NSL) * k.SLOT
            for i in range(4):
                x = A0 + 16 * j + 4 * i
                xr, xo = (XR + i, so) if so < 65536 else (None, None)
                reads.append(("x", x, i, so))
                for L in range(nA):
                    b = k.WB + 16 * nA * (j & 1) + 16 * L + 4 * i
                    reads.append(("w", b, i, so + L * 1024))
                    reads.append(("w", b + 2, i, so + L * 1024 + 512))
            def rd(t, r, i, off):
                def f():
                    if t == "x":
                        lg.issue("a", f"ds_read_b128 v[{r}:{r+3}], v{XR+i} offset:{off - hi(off)}")
                    else:
                        lg.issue("a", f"ds_read_b64_tr_b16 v[{r}:{r+1}], v{WR+i} offset:{off - hi(off)}")
                return f
            hi = lambda off: 49152 if so >= 49152 else 0
            prev = ((j - 1) % k.NSL) * k.SLOT if j else 0
            if (prev >= 49152) != (so >= 49152):
                op = "v_add_u32" if so >= 49152 else "v_subrev_u32"
                for r in list(range(XR, XR + 4)) + list(range(WR, WR + 4)):
                    a(f"{op} v{r}, 49152, v{r}")
            reads = [rd(*r) for r in reads]
            if j + k.DEPTH < 7:
                dmas = piece_dma(a, vm, k, j + k.DEPTH)
            else:
                dmas = lsp[j + k.DEPTH - 7]
            if j == k.DEPTH and k.kinds[0] == "V":
                def flag():
                    a(f"s_cmp_eq_u32 s{S_WAVE}, 7\ns_cselect_b64 exec, 1, 0")
                    a(f"buffer_store_dword v{V_DUM}, v{XE+1}, s[{S_SP}:{S_SP+3}], s{S_CNT} offen sc1")
                    a(f"s_mov_b64 exec, -1")
                assert "clr" not in vm.q
                dmas = dmas + [flag]
        else:
            vm.wait("wa")
            a("s_barrier")
            reads = tail_fill
        if j > 0:
            p = j - 1
            for i in range(4):
                x = A0 + 16 * p + 4 * i
                for L in range(nA):
                    b = k.WB + 16 * nA * (p & 1) + 16 * L + 4 * i
                    main.append(I(a, mf(k.ACC[L], b, x, k.ori[L], p == 0 and i == 0)))
            for L in range(nA):
                extra.append(I(a, mf16(CE + 4 * L, k.WB + 16 * nA * (p & 1) + 16 * L, p == 0)))
            if k.stat == "mix":
                for i in range(2):
                    extra.append(I(a, mf16(XS, A0 + 16 * p + 4 * i, p == 0 and i == 0)))
            for d in range(8):
                x = A0 + 16 * p + d
                t = T4 + 2 * (d & 1)
                dots.append(I(a, f"v_lshlrev_b32 v{t}, 16, v{x}"))
                dots.append(I(a, f"v_and_b32 v{t+1}, 0xffff0000, v{x}"))
                if k.stat != "mix":
                    dots.append(I(a, f"v_add_f32 v{V_S}, v{V_S}, v{t}"))
                dots.append(I(a, f"v_fmac_f32 v{V_Q}, v{t}, v{t}"))
                if k.stat != "mix":
                    dots.append(I(a, f"v_add_f32 v{V_R}, v{V_R}, v{t+1}"))
                dots.append(I(a, f"v_fmac_f32 v{V_C0}, v{t+1}, v{t+1}"))
        if main:
            n = len(main)
            rs, ds, ms, es = spread(n, reads), spread(n, dots), spread(n, dmas), spread(n, extra)
            for g in range(n):
                main[g]()
                for f in rs[g] + ms[g] + ds[g] + es[g]:
                    f()
        else:
            for f in reads + dmas:
                f()
        if j < 7:
            lg.all()
    return XS

def kind_body(a, vm0, k, st, lab, hook_main, hook_att):
    vm = Vm = vm0.copy()
    lg = LG(a)
    kinds, ori, nA = k.kinds, k.ori, k.nA
    G = kinds[0] == "G"
    T = k.TMP
    D = 4
    dbg = f"s[{S_SP}:{S_SP+3}]"
    ws = f"s[{S_WS}:{S_WS+3}]"
    nl = 2 if nA == 1 else 1
    NS = 28 * nl
    def rd(p):
        b = k.BR + 4 * (p % NBR)
        off = ((p % 28) >> 2) * 8192
        def f0():
            if p == 28:
                for i in range(4):
                    a(f"v_add_u32 v{WR+i}, {RING}, v{WR+i}")
            lg.issue(f"r{p}", f"ds_read_b64_tr_b16 v[{b}:{b+1}], v{WR + (p & 3)} offset:{off}")
        return [f0, lambda: lg.issue(f"r{p}", f"ds_read_b64_tr_b16 v[{b+2}:{b+3}], v{WR + (p & 3)} offset:{off+512}")]
    def wr_fix():
        for i in range(4):
            a(f"s_xor_b32 s{S_T2}, s{S_XO}, {i}\ns_lshl_b32 s{S_T2}, s{S_T2}, 11")
            a(f"v_add_u32 v{WR+i}, s{S_T2}, v{V_T0}")
    tail = [wr_fix] + [f for p in range(D) for f in rd(p)]
    XS = phase_a(a, vm, lg, k, st, tail)
    st.mark(6)
    pre = []
    if k.stat == "mix":
        pre.append(I(a, f"v_add_f32 v{XS+1}, v{V_Q}, v{V_C0}"))
        xs = XS
    else:
        pre.append(I(a, f"v_add_f32 v{V_S}, v{V_S}, v{V_R}\nv_add_f32 v{V_Q}, v{V_Q}, v{V_C0}"))
        xs = V_S
    pre.append(I(a, f"""s_lshl_b32 s{S_T0}, s{S_WAVE}, 9
s_add_u32 s{S_T0}, s{S_T0}, {SCR + 4096}
v_add_u32 v{V_T0}, s{S_T0}, v{V_L8}"""))
    pre.append(lambda: lg.issue("w", f"ds_write_b64 v{V_T0}, v[{xs}:{xs+1}]"))
    for L in range(nA):
        pre.append(lambda L=L: lg.issue("w", f"ds_write_b32 v{V_CSA}, v{CE+4*L} offset:{L*2048}"))
    pre.append(I(a, f"v_xor_b32 v{V_T0}, 2048, v{V_T0}"))
    def bar(*vtags):
        def f():
            vm.wait(*vtags)
            lg.wait("w")
            a("s_barrier")
        return f
    F0 = [lambda: lg.issue("x", f"ds_read_b64 v[{T}:{T+1}], v{V_T0}"),
          I(a, f"v_and_b32 v{V_T0}, 0xfffffff0, v{V_CSA}")]
    for L in range(nA):
        F0.append(lambda L=L: lg.issue("c", f"ds_read_b128 v[{T+4+4*L}:{T+7+4*L}], v{V_T0} offset:{L*2048}"))
    F0.append(GAP)
    F0.append(lambda: lg.wait("x"))
    F0 += [I(a, s) for s in f"""v_add_f32 v{V_S}, v{xs}, v{T}
v_add_f32 v{V_Q}, v{xs+1}, v{T+1}
v_mov_b32 v{T}, v{V_S}
v_mov_b32 v{T+1}, v{V_Q}
v_mov_b32 v{CE+1}, 0
v_mov_b32 v{CE+2}, 0
v_permlane32_swap_b32 v{T+1}, v{V_Q}""".split("\n")]
    if k.stat != "mix":
        F0 += [I(a, f"v_permlane32_swap_b32 v{T}, v{V_S}"), I(a, f"v_add_f32 v{V_S}, v{V_S}, v{T}")]
    F0 += [I(a, s) for s in f"""v_add_f32 v{V_Q}, v{V_Q}, v{T+1}
v_mul_f32 v{V_S}, {f32(-1/448)}, v{V_S}
v_mul_f32 v{V_Q}, {f32(1/448)}, v{V_Q}
v_and_b32 v{T}, 0xffff0000, v{V_S}
v_fma_f32 v{V_Q}, -v{V_S}, v{V_S}, v{V_Q}
v_sub_f32 v{T+1}, v{V_S}, v{T}
v_max_f32 v{V_Q}, 0, v{V_Q}
v_cndmask_b32 v{T}, v{T}, v{T+1}, s[{S_HI}:{S_HI+1}]
v_add_f32 v{V_Q}, {f32(1e-5)}, v{V_Q}
v_cvt_pk_bf16_f32 v{XE}, v{T}, v{T}
v_rsq_f32 v{V_R}, v{V_Q}
v_mov_b32 v{CE+3}, 0""".split("\n")]
    if nA == 2:
        F0 += [I(a, f"v_mov_b32 v{CE+r}, 0") for r in (5, 6, 7)]
    F0.append(lambda: lg.wait("c"))
    for L in range(nA):
        F0 += [I(a, s) for s in ce_build(CE + 4 * L, T + 4 + 4 * L)]
    def r16(_=None):
        t0, t1 = XR, XR + 1
        l = [I(a, f"""s_lshl_b32 s{S_T2}, s{S_WAVE}, 8
s_add_u32 s{S_T2}, s{S_T2}, {DEAD}
v_lshl_add_u32 v{t0}, v{V_LANE}, 2, s{S_T2}"""),
             lambda: lg.issue("q", f"ds_write_b32 v{t0}, v{V_R}"),
             I(a, f"v_lshrrev_b32 v{t1}, 5, v{V_LANE}"),
             I(a, f"v_lshl_add_u32 v{t1}, v{t1}, 4, s{S_T2}")]
        for q in range(4):
            l.append(lambda q=q: lg.issue("q", f"ds_read_b128 v[{k.R16+4*q}:{k.R16+4*q+3}], v{t1} offset:{32*q}"))
        return l
    if G:
        F0 += [I(a, s) for s in f"""v_mul_f32 v{V_RI}, v{V_Q}, v{V_R}
v_mul_f32 v{V_C0}, {f32(GELU_C0)}, v{V_R}""".split("\n")]
    else:
        F0 += r16()[:2]
    for L in range(nA):
        F0.append(I(a, mf(k.ACC[L], CE + 4 * L, XE, ori[L])))
    if G:
        F0 += [I(a, s) for s in f"""v_mul_f32 v{V_C1}, v{V_R}, v{V_R}
v_mul_f32 v{V_C1}, v{V_C1}, v{V_R}
v_mul_f32 v{V_C1}, {f32(GELU_C1)}, v{V_C1}""".split("\n")]
    else:
        F0 += r16()[2:]
    F0 += [GAP, GAP, GAP]
    if not G:
        F0.append(lambda: lg.wait("q"))
    F0 += epilogue(a, vm, k, kinds[0], k.ACC[0], S_O)
    if nA == 2:
        F0 += epilogue(a, vm, k, kinds[1], k.ACC[1], S_O + 1)
    def fix(acc, orient, slot):
        return ([lambda: lg.issue("c", f"ds_read_b128 v[{T4}:{T4+3}], v{V_T0} offset:{slot*2048}"), GAP, lambda: lg.wait("c")] +
                [I(a, s) for s in ce_build(CE, T4)] + [I(a, "s_nop 1"), I(a, mf(acc, CE, XE, orient))])
    ev = {}
    fl = []
    NPT = len(PFL)
    def touch(i):
        def f():
            if PFROW:
                vm.issue("pf", f"buffer_load_dword v{V_DUM}, v{V_PF}, s[{S_X}:{S_X+3}], s{S_PFO} offen")
                a(f"s_add_u32 s{S_PFO}, s{S_PFO}, {512 * 4096 // NPT}")
            else:
                vm.issue("pf", f"buffer_load_dword v{V_DUM}, v{V_PF}, s[{S_X}:{S_X+3}], s{S_PFO} offen offset:{i * 2048 // NPT}")
        return f
    def wtouch():
        a(f"""s_mul_i32 s{S_T0}, s2, {8*224}
s_mul_i32 s{S_T1}, s{S_WAVE}, 224
s_add_u32 s{S_T0}, s{S_T0}, s{S_T1}
s_lshl_b32 s{S_T1}, s{S_T0}, 1""")
        vm.issue("pf", f"buffer_load_dword v{V_DUM}, v{V_L8}, s[{S_WA}:{S_WA+3}], s{S_T0} offen")
        vm.issue("pf", f"buffer_load_dword v{V_DUM}, v{V_L8}, s[{S_WB}:{S_WB+3}], s{S_T1} offen")
    def flag_check():
        vm.wait("cnt")
        a(f"""{lab}_CR:
v_cmp_eq_u32 vcc, 0, v{V_X0}
s_and_b64 vcc, vcc, s[{S_L+1}:{S_L+2}]
s_cbranch_vccnz {lab}_CW
{lab}_CX:""")
    def cnt_load(f):
        a(f"v_lshrrev_b32 v{V_X0}, 1, v{V_L8}")
        f(f"buffer_load_dword v{V_X0}, v{V_X0}, {dbg}, 0 offen sc1")
    ool = [f"""{lab}_CW:
s_addk_i32 s{S_SPIN}, -1
s_cmp_lt_i32 s{S_SPIN}, 0
s_cbranch_scc1 {lab}_CX""", lambda: cnt_load(a), f"""s_waitcnt vmcnt(0)
s_branch {lab}_CR"""]
    lateL = nA + 1
    dm = [line_dma(a, vm, lateL, b, RING, "wc") for b in range(7)]
    XA = XR + 2
    if G:
        F0 += [I(a, f"v_mov_b32 v{T}, v{V_S}"), I(a, f"v_mov_b32 v{T+1}, v{V_Q}"),
               I(a, f"s_lshl_b32 s{S_T0}, s{S_WAVE}, 9\ns_add_u32 s{S_T0}, s{S_T0}, {SCR + 4096}\nv_add_u32 v{XA}, s{S_T0}, v{V_L8}"),
               I(a, f"v_mov_b32 v{V_C0}, 1"),
               I(a, f"v_permlane32_swap_b32 v{T}, v{V_S}"), I(a, f"v_permlane32_swap_b32 v{T+1}, v{V_Q}"),
               I(a, f"v_add_f32 v{V_S}, v{V_S}, v{T}"), I(a, f"v_add_f32 v{V_Q}, v{V_Q}, v{T+1}"),
               lambda: lg.issue("w", f"ds_write_b64 v{XA}, v[{V_S}:{V_Q}]"),
               I(a, f"v_xor_b32 v{XA}, 2048, v{XA}")]
        def rec_store():
            a(f"""s_lshl_b32 s{S_T0}, s{S_CH}, 4
s_lshl_b32 exec_lo, 0xffff, s{S_T0}
s_mov_b32 exec_hi, 0""")
            vm.issue("rec", f"buffer_store_dwordx2 v[{V_S}:{V_Q}], v{V_L8}, {ws}, s{S_REC} offen sc1")
            a(f"s_mov_b64 exec, -1\ns_and_b32 s{S_REC}, s{S_REC}, 0xfffff000")
        FR_ = [lambda: lg.issue("x", f"ds_read_b64 v[{T}:{T+1}], v{XA}"), flag_check, GAP, lambda: lg.wait("x"),
               I(a, f"v_add_f32 v{V_S}, v{V_S}, v{T}"), I(a, f"v_add_f32 v{V_Q}, v{V_Q}, v{T+1}"), rec_store]
    else:
        F0.append(I(a, f"v_mov_b32 v{V_C0}, 1"))
    dm = [lambda: cnt_load(lambda t: vm.issue("cnt", t))] + dm
    def srdfix():
        if G:
            srd(a, S_X, P_SP, 2048 * 4096)
            srd(a, S_WA, P_WO, 448 * 896)
            srd(a, S_WB, P_WOUT, 896 * 896)
        a(f"""s_mov_b32 s{S_L+1}, 0x33333333
s_mov_b32 s{S_L+2}, 0x33333333""")
    ev[1] = pre
    ev[3] = [bar()]
    fl.append((0, 8, dm + [srdfix]))
    if G:
        for i, p in enumerate(PFL):
            if p >= 0:
                fl.append((p, p, [touch(i)]))
        if WPF >= 0:
            fl.append((WPF, WPF, [wtouch]))
    ev[12 - D] = [bar("wb")]
    PL = [V_X0, V_DA, XR, XR + 2, CE + 4, CE + 6, V_C1]
    def poll_issue(v):
        for i in range(7):
            t = f"buffer_load_dwordx2 v[{PL[i]}:{PL[i]+1}], v{V_L8}, {ws}, s{S_REC} offen offset:{i*512} sc1"
            if v: v.issue("pl", t)
            else: a(t)
    if nl == 2:
        fl.append((3, F0_END, F0))
        assert F0_END < 28 - D
        ev[28 - D] = [bar("wc")]
        fl.append((28 - D, 28 - D + 1, FR_))
        ev[28] = [lambda: lg.issue("w", f"ds_write_b32 v{V_CSA}, v{k.CSA} offset:2048")]
        ev[30] = [bar()]
        F1 = fix(k.ACC[1], ori[1], 1)
        if not ori[1]:
            rr = r16(V_X0)
            F1 = rr[:4] + F1 + [("min", 33)] + rr[4:]
        F1 += [GAP, GAP, GAP]
        if not ori[1]:
            F1.append(lambda: lg.wait("q"))
        F1 += epilogue(a, vm, k, kinds[1], k.ACC[1], S_O + 1)
        fl.append((30, F1_END, F1))
        assert POLL_AT >= 36
        ev[POLL_AT] = [lambda: poll_issue(vm)]
        def poll_check():
            vm.wait("pl")
            a(f"""{lab}_PR:
v_max3_u32 v{V_S}, v{PL[0]+1}, v{PL[1]+1}, v{PL[2]+1}
v_max3_u32 v{V_Q}, v{PL[3]+1}, v{PL[4]+1}, v{PL[5]+1}
v_max3_u32 v{V_S}, v{V_S}, v{V_Q}, v{PL[6]+1}
v_cmp_eq_u32 vcc, -1, v{V_S}
s_cbranch_vccnz {lab}_PW
{lab}_PX:""")
        ool += [f"""{lab}_PW:
s_addk_i32 s{S_SPIN}, -1
s_cmp_lt_i32 s{S_SPIN}, 0
s_cbranch_scc1 {lab}_PX""", lambda: poll_issue(None), f"s_waitcnt vmcnt(0)\ns_branch {lab}_PR"]
        ZF = [poll_check]
        for x, y in ((0, 1), (2, 3), (4, 5), (0, 2), (4, 6), (0, 4)):
            for h in range(2):
                ZF.append(I(a, f"v_add_f32 v{PL[x]+h}, v{PL[x]+h}, v{PL[y]+h}"))
        p0, p1 = PL[0], PL[1]
        z = k.ACC[0]
        ZF += [I(a, t) for t in f"""v_mov_b32 v{p1}, v{p0}
v_mov_b32 v{p1+1}, v{p0+1}
s_nop 0
v_permlane32_swap_b32 v{p1}, v{p0}
v_permlane32_swap_b32 v{p1+1}, v{p0+1}
v_add_f32 v{p0}, v{p0}, v{p1}
v_add_f32 v{p0+1}, v{p0+1}, v{p1+1}
v_mul_f32 v{p0}, {f32(-1/896)}, v{p0}
v_mul_f32 v{p0+1}, {f32(1/896)}, v{p0+1}
v_fma_f32 v{p0+1}, -v{p0}, v{p0}, v{p0+1}
v_max_f32 v{p0+1}, 0, v{p0+1}
v_add_f32 v{p0+1}, {f32(1e-5)}, v{p0+1}
v_rsq_f32 v{p0+1}, v{p0+1}
s_nop 0
v_mul_f32 v{p0}, v{p0}, v{p0+1}""".split("\n")]
        stz = store_tile(a, vm, "G", z, S_O)
        for hf in range(2):
            ZF += [I(a, f"v_fma_f32 v{z+r}, v{z+r}, v{p0+1}, v{p0}") for r in range(8 * hf, 8 * hf + 8)]
            ZF += [I(a, f"v_cvt_pk_bf16_f32 v{z+r}, v{z+2*r}, v{z+2*r+1}") for r in range(4 * hf, 4 * hf + 4)]
            ZF.append(stz[hf])
        fl.append((ZF0, ZF1, ZF))
    else:
        fl.append((3, 27, F0))
    pos = [0] * len(fl)
    for p in range(NS):
        for f in ev.get(p, []):
            f()
        if p in (14, 28, 42):
            st.mark(7 + (p - 14) // 14)
        lg.wait(f"r{p}")
        L = nA + p // 28
        b = k.BR + 4 * (p % NBR)
        a(mf(k.ACC[L], b, A0 + 4 * (p % 28), ori[L], p % 28 == 0))
        if p + D < NS:
            for f in rd(p + D):
                f()
        for n, (s0, s1, lst) in enumerate(fl):
            if p < s0:
                continue
            left = len(lst) - pos[n]
            cnt = left if p >= s1 else (left + (s1 - p)) // (s1 - p + 1)
            while cnt > 0 and pos[n] < len(lst):
                f = lst[pos[n]]
                if isinstance(f, tuple):
                    if p < f[1]:
                        break
                    pos[n] += 1
                    continue
                pos[n] += 1
                if f is GAP:
                    break
                f()
                cnt -= 1
            if p + 1 == 28 - D and lst is F0 and nl == 2:
                assert pos[n] == len(lst)
        if (p & 3) == 0:
            a(mf16(k.CSA, b, p % 28 == 0))
    for n, (s0, s1, lst) in enumerate(fl):
        assert pos[n] == len(lst), (n, pos[n], len(lst))
    st.fold()
    st.mark(10)
    def run(lst):
        for f in lst:
            if f is not GAP:
                f()
    LL = nA + nl - 1
    a(f"ds_write_b32 v{V_CSA}, v{k.CSA}")
    if G:
        vm.wait("stG")
        vm.q = ["st1"]
        if lab == "P1_A":
            a("P1_GT:")
            def last(mid):
                a("s_waitcnt lgkmcnt(0)\ns_barrier")
                lg.q = []
                st.mark(11)
                if mid:
                    mid()
                run(fix(k.ACC[LL], ori[LL], 0))
                a("s_nop 11")
                run(epilogue(a, vm, k, kinds[LL], k.ACC[LL], S_O + LL))
            hook_main(a, vm, st, last)
        else:
            st.pend = []
            a("s_branch P1_GT")
    else:
        vm.wait("wc")
        a("s_waitcnt lgkmcnt(0)\ns_barrier")
        lg.q = []
        st.mark(11)
        a(f"s_cmp_eq_u32 s{S_CH}, 0\ns_cbranch_scc0 {lab}_CH1")
        v0, l0 = vm.q[:], lg.q[:]
        run(fix(k.ACC[2], ori[2], 0))
        a("s_nop 11")
        run(epilogue(a, vm, k, kinds[2], k.ACC[2], S_O + 2))
        a(f"s_barrier\ns_branch {lab}_J")
        a(f"{lab}_CH1:")
        vm.q, lg.q = v0, l0
        for i in range(4):
            a(f"v_add_u32 v{WR+i}, {RING}, v{WR+i}")
            a(f"v_xor_b32 v{WR+i}, s{S_T3}, v{WR+i}")
        for p in range(D):
            run(rd(p))
        F = fix(k.ACC[2], ori[2], 0) + [GAP, GAP, GAP] + epilogue(a, vm, k, kinds[2], k.ACC[2], S_O + 2)
        q = 0
        for p in range(28):
            lg.wait(f"r{p}")
            b = k.BR + 4 * (p % NBR)
            a(mf(k.ACC[3], b, A0 + 4 * p, ori[3], p == 0))
            if p + D < 28:
                run(rd(p + D))
            for c in range(3):
                if q < len(F):
                    f = F[q]; q += 1
                    if f is GAP: break
                    f()
            if (p & 3) == 0:
                a(mf16(k.CSA, b, p == 0))
        assert q == len(F)
        a(f"ds_write_b32 v{V_CSA}, v{k.CSA} offset:2048\ns_waitcnt lgkmcnt(0)\ns_barrier")
        lg.q = []
        run(fix(k.ACC[3], ori[3], 1))
        a("s_nop 11")
        run(epilogue(a, vm, k, kinds[3], k.ACC[3], S_O + 3))
        a(f"{lab}_J:")
        vm.q = ["stV"]
        flag_check()
        hook_att(a, vm, st)
    for o in ool:
        if callable(o):
            o()
        else:
            a(o)

TAILQ = []
GAP = object()

def kind_start(a, vm, k, st):
    nA = k.nA
    a(f"""s_mul_i32 s{S_MR}, s{S_WAVE}, {k.WST}
v_add_u32 v{V_X1}, {8*896 - (1+nA)*1024}, v{V_X1}""")
    if nA == 1:
        a(f"""s_mul_i32 s{S_T2}, s{S_WAVE}, {8*3584}
s_lshl_b32 s{S_T3}, s{S_G}, 7
s_add_u32 s{S_L+2}, s{S_T2}, s{S_T3}
s_add_u32 s{S_L}, s{S_L+2}, {1792 - 1024}
s_add_u32 s{S_L+1}, s{S_T1}, s{S_T3}
s_mov_b32 s{S_A64}, {64*3584}
v_mul_u32_u24 v{V_DA}, 3584, v{T4}
v_add_u32 v{V_DA}, v{V_DA}, v{T4+2}
s_waitcnt lgkmcnt(0)""")
        srd(a, S_WA, P_WIN, 448 * 3584)
    else:
        a(f"""s_and_b32 s{S_T3}, s{S_G}, 1
s_lshl_b32 s{S_T3}, s{S_T3}, 9
s_add_u32 s{S_T3}, s{S_T3}, s{S_T1}
s_add_u32 s{S_L}, s{S_T3}, {1792 - 1024}
s_add_u32 s{S_L+1}, s{S_T3}, {1792 + 256 - 2048}
s_add_u32 s{S_L+2}, s{S_T3}, {1792 + 128}
s_add_u32 s{S_L+3}, s{S_T1}, {1792 + 384}
s_mov_b32 s{S_A64}, {B64}
v_mov_b32 v{V_DA}, v{V_DB}
s_waitcnt lgkmcnt(0)""")
        srd(a, S_WA, P_QKV, 448 * 2688)
        srd(a, S_WB, P_QKV, 448 * 2688)
    srd(a, S_X, P_X, 2048 * 896)
    st.mark(2)
    for j in range(k.DEPTH):
        for f in piece_dma(a, vm, k, j):
            f()
        if j == 0:
            lab = a.label("P1_T")
            strd = 3584 if nA == 1 else 2688
            if TOUCH:
                a(f"""s_and_b32 s{S_T2}, s{S_RB}, 3
s_mul_i32 s{S_T2}, s{S_T2}, 112
s_and_b32 s{S_T3}, s{S_WAVE}, 1
s_lshl_b32 s{S_T3}, s{S_T3}, 6
s_add_u32 s{S_T2}, s{S_T2}, s{S_T3}
s_lshl_b32 s{S_T3}, s{S_WAVE}, 3
s_sub_u32 s{S_T2}, s{S_T2}, s{S_T3}
s_mul_i32 s{S_T2}, s{S_T2}, {strd}
s_add_u32 s{S_T2}, s{S_T2}, s{S_L}
s_and_b32 s{S_T3}, s{S_WAVE}, {2 * (nA - 1)}
s_lshl_b32 s{S_T3}, s{S_T3}, 7
s_add_u32 s{S_T2}, s{S_T2}, s{S_T3}
s_add_u32 s{S_T2}, s{S_T2}, {(1024 - 64 * strd) & 0xffffffff}
v_mul_u32_u24 v{XR}, {strd}, v{V_LANE}
s_lshl_b32 s{S_T3}, s{S_RB}, 2
s_add_u32 s{S_T3}, s{S_T3}, s{S_PK}
s_mul_i32 s{S_T3}, s{S_T3}, {32*896}
s_lshl_b32 s{S_T1}, s{S_WAVE}, 13
s_add_u32 s{S_T3}, s{S_T3}, s{S_T1}
v_lshlrev_b32 v{XR+1}, 7, v{V_LANE}""")
            if PBAR:
                a("s_barrier")
            if TOUCH:
                a(f"""s_cmp_ge_u32 s{S_WAVE}, 4
s_cbranch_scc1 {lab}w
buffer_load_dword v{A0+96}, v{XR+1}, s[{S_X}:{S_X+3}], s{S_T3} offen
s_branch {lab}e
{lab}w:""")
                vm.issue("t0", f"""buffer_load_dword v{A0+96}, v{XR}, s[{S_WA}:{S_WA+3}], s{S_T2} offen
{lab}e:""")
    if nA == 1:
        srd(a, S_WB, P_QKV, 448 * 2688)
    srd(a, S_WS, P_WS, WS_SIZE)
    srd(a, S_SP, P_DBG, 256)
    a(f"""s_lshl_b32 s{S_T0}, s{S_CH}, 1
s_xor_b32 s{S_XO}, s{S_T0}, s{S_RW}
v_and_b32 v{T4}, 31, v{V_LANE}
v_lshrrev_b32 v{T4+1}, 5, v{V_LANE}
v_bfe_u32 v{T4+2}, v{V_LANE}, 1, 3
v_xor_b32 v{T4+2}, v{T4+2}, v{T4+1}
s_lshl_b32 s{S_T1}, s{S_XO}, 1
v_xor_b32 v{T4+2}, s{S_T1}, v{T4+2}
v_lshlrev_b32 v{T4+2}, 4, v{T4+2}
v_and_b32 v{T4+3}, 7, v{V_LANE}
v_lshl_add_u32 v{T4+2}, v{T4+3}, 7, v{T4+2}
v_bfe_u32 v{T4+3}, v{V_LANE}, 3, 1
v_mul_u32_u24 v{XR}, {(1+nA)*1024}, v{T4+3}
v_bfe_u32 v{T4+3}, v{V_LANE}, 4, 1
v_mul_u32_u24 v{T4+3}, {k.WST}, v{T4+3}
s_mul_i32 s{S_T1}, s{S_RW}, {2*k.WST}
s_add_u32 s{S_T1}, s{S_T1}, {RING}
v_add3_u32 v{T4+3}, v{T4+3}, v{XR}, s{S_T1}""")
    for i in range(4):
        a(f"v_xor_b32 v{XR+i}, {i << 5}, v{T4+2}")
        a(f"v_add_u32 v{XR+i}, v{T4+3}, v{XR+i}")
    a(f"""v_lshlrev_b32 v{V_KO}, 5, v{T4}
v_lshl_add_u32 v{V_KO}, v{T4+1}, 4, v{V_KO}
s_lshl_b32 s{S_T1}, s{S_CH}, 6
v_and_b32 v{T4}, 3, v{V_LANE}
v_lshlrev_b32 v{T4}, 3, v{T4}
v_and_b32 v{T4+2}, 16, v{V_LANE}
v_lshl_add_u32 v{T4}, v{T4+2}, 1, v{T4}
v_and_b32 v{T4+2}, 8, v{V_LANE}
v_lshlrev_b32 v{T4+2}, 3, v{T4+2}
v_xor_b32 v{T4+2}, s{S_T1}, v{T4+2}
v_or_b32 v{T4}, v{T4}, v{T4+2}
v_bfe_u32 v{T4+2}, v{V_LANE}, 2, 2
v_lshl_add_u32 v{T4}, v{T4+2}, 7, v{T4}
v_lshl_add_u32 v{V_T0}, v{T4+1}, 10, v{T4}
v_mul_u32_u24 v{T4+1}, {k.WST}, v{T4+1}
v_add_u32 v{T4}, v{T4}, v{T4+1}""")
    for i in range(4):
        a(f"""s_xor_b32 s{S_T2}, s{S_XO}, {i}
s_mul_i32 s{S_T2}, s{S_T2}, {2*k.WST}
s_add_u32 s{S_T2}, s{S_T2}, {RING + 1024}
v_add_u32 v{WR+i}, s{S_T2}, v{T4}""")
    a(f"""v_lshlrev_b32 v{V_L16}, 4, v{V_LANE}
v_lshlrev_b32 v{V_L8}, 3, v{V_LANE}
s_lshl_b32 s{S_T0}, s{S_CH}, 10
s_lshl_b32 s{S_T1}, s{S_RW}, 2
s_add_u32 s{S_T0}, s{S_T0}, s{S_T1}
s_add_u32 s{S_T0}, s{S_T0}, {SCR}
v_add_u32 v{V_CSA}, s{S_T0}, v{V_L16}
v_mov_b32 v{V_S}, 0
v_mov_b32 v{V_Q}, 0
v_mov_b32 v{V_R}, 0
v_mov_b32 v{V_C0}, 0
s_mov_b32 s{S_HI}, 0xf0f00f0f
s_mov_b32 s{S_HI+1}, 0xf0f00f0f
v_mov_b32 v{T4}, 0x3f803f80
v_cndmask_b32 v{SEL}, 0, v{T4}, s[{S_HI}:{S_HI+1}]
v_cndmask_b32 v{SEL+1}, 0, v{T4}, s[{S_HI}:{S_HI+1}]
v_cndmask_b32 v{SEL+2}, 0, v{T4}, s[{S_HI}:{S_HI+1}]
v_cndmask_b32 v{SEL+3}, 0, v{T4}, s[{S_HI}:{S_HI+1}]
s_mov_b32 s{S_HI}, 0
s_mov_b32 s{S_HI+1}, -1
v_mov_b32 v{XE+1}, 0
v_mov_b32 v{XE+2}, 0
v_mov_b32 v{XE+3}, 0
v_mov_b32 v{V_DUM}, 1
s_lshl_b32 s{S_MW}, s{S_WAVE}, 10
s_mov_b32 s{S_SPIN}, {E("SPIN", "0x8000")}
s_lshl_b32 s{S_T0}, s{S_RB}, 2
s_add_u32 s{S_T0}, s{S_T0}, s{S_RW}
s_mul_i32 s{S_T2}, s{S_T0}, 28672""")
    if nA == 1:
        nper = -(-8192 // len(PFL) // 224)
        lg2 = 4 if PFROW else {1: 4, 2: 3, 4: 2, 8: 1}[len(PFL)]
        a(f"""; w_sp touch: line L = (idx*8 + wave)*n + lane*n/64 ; base y*512*4096 + kh*2048
s_and_b32 s{S_T1}, s2, -8
s_add_u32 s{S_T1}, s{S_T1}, s{S_WAVE}
s_mul_i32 s{S_T1}, s{S_T1}, {nper}
v_mul_u32_u24 v{V_PF}, {nper}, v{V_LANE}
v_lshrrev_b32 v{V_PF}, 6, v{V_PF}
v_add_u32 v{V_PF}, s{S_T1}, v{V_PF}
v_lshrrev_b32 v{T4}, {lg2}, v{V_PF}
v_and_b32 v{V_PF}, {(1 << lg2) - 1}, v{V_PF}
v_lshlrev_b32 v{V_PF}, 7, v{V_PF}
v_lshl_add_u32 v{V_PF}, v{T4}, 12, v{V_PF}
s_and_b32 s{S_T1}, s2, 6
s_lshl_b32 s{S_PFO}, s{S_T1}, 20
s_and_b32 s{S_T1}, s2, 1
s_lshl_b32 s{S_T1}, s{S_T1}, 11
s_add_u32 s{S_PFO}, s{S_PFO}, s{S_T1}
v_mov_b32 v{V_L2E}, {f32(LOG2E)}
s_lshl_b32 s{S_T3}, s{S_G}, 1
s_add_u32 s{S_T3}, s{S_T3}, s{S_CH}
s_lshl_b32 s{S_O}, s{S_T3}, 17
s_lshl_b32 s{S_T1}, s{S_T0}, 11
s_add_u32 s{S_O}, s{S_O}, s{S_T1}
; z1
s_lshl_b32 s{S_T1}, s{S_T3}, 10
s_add_u32 s{S_T1}, s{S_T1}, s{S_T2}
s_lshl_b32 s{S_O+2}, s{S_T1}, 1
s_add_u32 s{S_O+2}, s{S_O+2}, {WS_Z1}""")
        assert WS_Z2 == 0
        if k.kinds[1] == "Q":
            a(f"""s_lshl_b32 s{S_T1}, s{S_T3}, 11
s_add_u32 s{S_T1}, s{S_T1}, s{S_T2}
s_add_u32 s{S_O+1}, s{S_T1}, {WS_Q}""")
        else:
            a(f"s_add_u32 s{S_O+1}, s{S_T1}, {WS_K - 14*1024}")
        a(f"""; record: ST + st*4096 + g*256
s_lshl_b32 s{S_T0}, s{S_T0}, 4
s_add_u32 s{S_T0}, s{S_T0}, s{S_G}
s_lshl_b32 s{S_T0}, s{S_T0}, 8
s_add_u32 s{S_REC}, s{S_T0}, {WS_ST}
s_and_b32 s{S_T0}, s{S_G}, 14
s_lshr_b32 s{S_T1}, s{S_RB}, 3
s_add_u32 s{S_T0}, s{S_T0}, s{S_T1}
s_lshl_b32 s{S_T0}, s{S_T0}, 4
s_and_b32 s{S_T1}, s{S_G}, 1
s_add_u32 s{S_T0}, s{S_T0}, s{S_T1}
s_lshl_b32 s{S_T0}, s{S_T0}, 3
s_and_b32 s{S_T1}, s{S_RB}, 7
s_add_u32 s{S_T0}, s{S_T0}, s{S_T1}
s_lshl_b32 s{S_T0}, s{S_T0}, 2
s_add_u32 s{S_CNT}, s{S_T0}, {WS_FZ}""")
    else:
        a(f"""; tiles 8(g-14) + ch + 0,4,2 ; extra tile 6 + (g-14)
s_and_b32 s{S_T0}, s{S_G}, 1
s_lshl_b32 s{S_T1}, s{S_T0}, 3
s_add_u32 s{S_T1}, s{S_T1}, s{S_CH}
s_lshl_b32 s{S_T1}, s{S_T1}, 10
s_add_u32 s{S_T2}, s{S_T2}, {WS_V}
s_add_u32 s{S_O}, s{S_T1}, s{S_T2}
s_add_u32 s{S_O+1}, s{S_O}, 4096
s_add_u32 s{S_O+2}, s{S_O}, 2048
s_lshl_b32 s{S_T1}, s{S_T0}, 10
s_add_u32 s{S_T1}, s{S_T1}, s{S_T2}
s_add_u32 s{S_O+3}, s{S_T1}, 6144
s_lshl_b32 s{S_CNT}, s{S_RB}, 2
s_add_u32 s{S_CNT}, s{S_CNT}, s{S_T0}
s_lshl_b32 s{S_CNT}, s{S_CNT}, 2
s_lshl_b32 s{S_T1}, s{S_RB}, 1
s_add_u32 s{S_T1}, s{S_T1}, s{S_T0}
s_lshl_b32 s{S_T1}, s{S_T1}, 3
s_add_u32 s{S_T1}, s{S_T1}, s{S_WAVE}
s_lshl_b32 s{S_T2}, s{S_T1}, 8
s_add_u32 s{S_T2}, s{S_T2}, {WS_FL}
s_lshl_b32 s{S_T1}, s{S_T1}, 10
s_add_u32 s{S_REC}, s{S_T1}, {WS_ST}
s_xor_b32 s{S_T0}, s{S_T0}, 1
s_lshl_b32 s{S_T3}, s{S_T0}, 6
v_mov_b32 v{T4}, -1
v_mov_b32 v{T4+1}, -1
v_mov_b32 v{T4+2}, -1
v_mov_b32 v{T4+3}, -1
v_lshlrev_b32 v{V_L2E}, 2, v{V_LANE}""")
        vm.issue("clr", f"buffer_store_dwordx4 v[{T4}:{T4+3}], v{V_L16}, s[{S_WS}:{S_WS+3}], s{S_REC} offen sc1")
        vm.issue("clr", f"buffer_store_dword v{XE+1}, v{V_L2E}, s[{S_WS}:{S_WS+3}], s{S_T2} offen sc1")
    a(f"""; own flags: FL + rb*2048 + g*4
s_lshl_b32 s{S_FL}, s{S_RB}, 9
s_add_u32 s{S_FL}, s{S_FL}, s{S_G}
s_lshl_b32 s{S_FL}, s{S_FL}, 2
s_add_u32 s{S_FL}, s{S_FL}, {WS_FL}""")

PBAR = int(E('P1_PBAR', '1'))
def gen_p1(a, name, st, hook_main, hook_att):
    kernel_begin(a, name)
    a(f"""s_cmp_ge_u32 s2, 256
s_cbranch_scc1 K_EXIT
s_load_dwordx16 s[64:79], s[0:1], 0
s_load_dwordx4 s[56:59], s[0:1], 72
s_load_dwordx2 s[60:61], s[0:1], 64""")
    st.mark(0, True)
    st.mark(1)
    st.init()
    a(f"""v_and_b32 v{V_LANE}, 63, v0
v_lshrrev_b32 v{V_T0}, 6, v0
s_bfe_u32 s{S_T0}, s2, 0x20001
v_readfirstlane_b32 s{S_WAVE}, v{V_T0}
s_lshr_b32 s{S_T1}, s2, 3
s_mul_i32 s{S_T2}, s{S_T0}, 28
s_add_u32 s{S_T2}, s{S_T2}, s{S_T1}
s_lshr_b32 s{S_G}, s{S_T2}, 3
s_and_b32 s{S_RB}, s{S_T2}, 7
s_and_b32 s{S_PK}, s{S_G}, 3
s_lshr_b32 s{S_T2}, s{S_T0}, 1
s_lshl_b32 s{S_T0}, s{S_T0}, 2
s_xor_b32 s{S_T0}, s{S_T0}, s{S_T1}
s_and_b32 s{S_T0}, s{S_T0}, 7
s_add_u32 s{S_T3}, s{S_T2}, 14
s_xor_b32 s{S_T2}, s{S_T2}, 3
s_cmp_ge_u32 s{S_T1}, 28
s_cselect_b32 s{S_G}, s{S_T3}, s{S_G}
s_cselect_b32 s{S_RB}, s{S_T0}, s{S_RB}
s_cselect_b32 s{S_PK}, s{S_T2}, s{S_PK}
s_and_b32 s{S_T0}, s2, 1
s_lshl_b32 s{S_T0}, s{S_T0}, 3
s_add_u32 s{S_RB}, s{S_RB}, s{S_T0}
s_and_b32 s{S_RW}, s{S_WAVE}, 3
s_lshr_b32 s{S_CH}, s{S_WAVE}, 2
s_lshl_b32 s{S_T0}, s{S_RB}, 3
s_add_u32 s{S_T0}, s{S_T0}, s{S_WAVE}
s_mul_i32 s{S_XB}, s{S_T0}, {16*896}
s_mul_i32 s{S_T1}, s{S_WAVE}, {8*2688}
v_lshrrev_b32 v{T4}, 3, v{V_LANE}
v_and_b32 v{T4+1}, 7, v{V_LANE}
v_lshrrev_b32 v{T4+2}, 4, v{V_LANE}
v_xor_b32 v{T4+2}, v{T4+2}, v{T4+1}
v_mul_u32_u24 v{V_X0}, 896, v{T4}
v_xor_b32 v{T4+3}, 4, v{T4+2}
v_lshl_add_u32 v{V_X1}, v{T4+3}, 4, v{V_X0}
v_lshl_add_u32 v{V_X0}, v{T4+2}, 4, v{V_X0}
v_lshlrev_b32 v{T4+2}, 1, v{T4}
v_and_b32 v{T4+2}, 4, v{T4+2}
v_xor_b32 v{T4+2}, v{T4+2}, v{T4+1}
v_lshlrev_b32 v{T4+2}, 4, v{T4+2}
v_mul_u32_u24 v{V_DB}, 2688, v{T4}
v_add_u32 v{V_DB}, v{V_DB}, v{T4+2}
s_cmp_ge_u32 s{S_G}, 14
s_cbranch_scc1 P1_KC
s_cmp_ge_u32 s{S_G}, 7
s_cbranch_scc1 P1_KB""")
    for lab, kinds in (("P1_A", "GQL"), ("P1_B", "GKL"), ("P1_C", "VVVV")):
        a(f"{lab.replace('_', '_K')}:")
        k = K(kinds)
        vm = VM(a)
        s2 = st.copy()
        kind_start(a, vm, k, s2)
        kind_body(a, vm, k, s2, lab, hook_main, hook_att)
```

```python
from common import *
import os
import f1
from f1 import LG, I, S_WS, S_WAVE, S_RW, S_CH, S_T0, S_T1, S_T2, S_T3, S_SPIN, S_FL, V_LANE, V_L16, V_L8, V_KO, XE
from f1 import P_X, P_WO, P_BSP, P_WOUT, P_OUT, S_CNT, V_S
E = os.environ.get
G0 = int(E("P2_G0", "6"))
Z1B = int(E("P2_Z1B", "1"))
N0 = int(E("P2_N0", "4"))
BST = int(E("P2_BST", "12"))
LEAD = int(E("P2_LEAD", "40"))
GTAIL = int(E("P2_GT", "8"))
AHEAD = int(E("P3_AHEAD", "8"))
EARLY = int(E("P2_EARLY", "-1"))
ATOUCH = int(E("A_TOUCH", "1"))
SF = " sc1"
NST = 16
SLOT = [0, 131072, 65536, 98304]
HB = 57344
S_SP, S_X = 12, 12
S_OUT, S_WO, S_W2, S_B = 4, 16, 20, 20
S_TT, S_FQ, S_KH, S_ZB, S_AB, S_MW, S_O, S_C1, S_M = 28, 29, 37, 38, 39, 40, 41, 42, 43
S_M2 = 44
S_M64, S_A, S_XO = 46, 47, 48
ws = f"s[{S_WS}:{S_WS+3}]"
ACC3, AFR, BFR, EFR, XV, TR, V_XO, V_W = 16, 48, 192, 216, 224, 244, 250, 251

def spoll(a, lab, loads, regs, ool, sleep=0):
    a(f"{lab}_R:")
    a(loads)
    a("s_waitcnt lgkmcnt(0)")
    for r in regs[1:]:
        a(f"s_and_b64 s[{regs[0]}:{regs[0]+1}], s[{regs[0]}:{regs[0]+1}], s[{r}:{r+1}]")
    a(f"""s_and_b32 s{regs[0]}, s{regs[0]}, s{regs[0]+1}
s_cbranch_scc1 {lab}_X
{f"s_sleep {sleep}" if sleep else ""}
s_addk_i32 s{S_SPIN}, -1
s_cmp_lt_i32 s{S_SPIN}, 0
s_cbranch_scc0 {lab}_R
{lab}_X:""")

def p3_tr_setup(a, T):
    a(f"""v_bfe_u32 v{T}, v{V_LANE}, 2, 2
v_lshrrev_b32 v{T+1}, 5, v{V_LANE}
v_lshl_add_u32 v{T}, v{T+1}, 2, v{T}
v_lshlrev_b32 v{TR}, 7, v{T}
v_and_b32 v{T}, 3, v{V_LANE}
v_lshl_add_u32 v{TR}, v{T}, 3, v{TR}
v_and_b32 v{T}, 16, v{V_LANE}
v_lshl_add_u32 v{TR}, v{T}, 1, v{TR}
v_and_b32 v{T}, 8, v{V_LANE}
v_lshl_add_u32 v{TR}, v{T}, 3, v{TR}
s_lshl_b32 s{S_T0}, s{S_RW}, 5
v_xor_b32 v{TR}, s{S_T0}, v{TR}
s_lshl_b32 s{S_T0}, s{S_RW}, 11
s_add_u32 s{S_T0}, s{S_T0}, {HB}
v_add_u32 v{TR+2}, s{S_T0}, v{TR}
s_mul_i32 s{S_T0}, s{S_RW}, 14336
v_add_u32 v{TR}, s{S_T0}, v{TR}
v_xor_b32 v{TR+1}, 64, v{TR}
v_xor_b32 v{TR+3}, 64, v{TR+2}
v_add_u32 v{TR+4}, 0x10000, v{TR+2}
v_add_u32 v{TR+5}, 0x10000, v{TR+3}""")

def b_reads(kind, i, dst):
    if kind == "o":
        r, off = TR, (28 * (i >> 1) + 16 * (i & 1)) * 128
    else:
        r, off = (TR + 2, i * 8192) if i < 8 else (TR + 4, i * 8192 - 65536)
    return [f"ds_read_b64_tr_b16 v[{dst+4*ni+2*h}:{dst+4*ni+2*h+1}], v{r+ni} offset:{off + 1024*h}" for ni in range(2) for h in range(2)]

def p3_setup(a):
    srd(a, S_X, P_X, 2048 * 896)
    srd(a, S_OUT, P_OUT, 2048 * 896)
    a(f"""; tt32 = 2*m64 + ch
s_lshl_b32 s{S_T0}, s{S_M64}, 1
s_add_u32 s{S_T0}, s{S_T0}, s{S_CH}
s_mul_i32 s{S_XO}, s{S_T0}, {32*896}
s_lshl_b32 s{S_T1}, s{S_FQ}, 2
s_add_u32 s{S_T1}, s{S_T1}, s{S_RW}
s_lshl_b32 s{S_T1}, s{S_T1}, 5
s_add_u32 s{S_XO}, s{S_XO}, s{S_T1}
s_mul_i32 s{S_T0}, s{S_T0}, {144*1024}
s_add_u32 s{S_T0}, s{S_T0}, {WS_AF}
s_lshl_b32 s{S_T1}, s{S_RW}, 13
s_add_u32 s{S_A}, s{S_T0}, s{S_T1}
s_mul_i32 s{S_T1}, s{S_RW}, {14*1024}
s_add_u32 s{S_O}, s{S_T0}, s{S_T1}
s_add_u32 s{S_O}, s{S_O}, {32*1024}
v_and_b32 v{V_XO}, 31, v{V_LANE}
v_mul_u32_u24 v{V_XO}, 896, v{V_XO}
v_lshrrev_b32 v{V_W}, 5, v{V_LANE}
v_lshl_add_u32 v{V_XO}, v{V_W}, 4, v{V_XO}
v_add_u32 v{V_W}, {56*1024}, v{V_L16}""")

def loader(a, vm, st, last, ool):
    VD, VZ, VP, VB = 2, 6, 10, 11
    T0, T2 = 12, 13
    last(None)
    st.mark(12)
    ids(a)
    a(f"""; z2 base: (4fq + 2(lw&1)) << 17 + (kh*32 + (lw>>1)) << 11
s_lshr_b32 s{S_T1}, s{S_RW}, 1
s_lshl_b32 s{S_T3}, s{S_KH}, 5
s_add_u32 s{S_T3}, s{S_T3}, s{S_T1}
s_lshl_b32 s{S_ZB}, s{S_T3}, 11
s_lshl_b32 s{S_T3}, s{S_FQ}, 1
s_and_b32 s{S_T1}, s{S_RW}, 1
s_add_u32 s{S_T3}, s{S_T3}, s{S_T1}
s_lshl_b32 s{S_T3}, s{S_T3}, 18
s_add_u32 s{S_ZB}, s{S_ZB}, s{S_T3}
v_lshrrev_b32 v{T0}, 3, v{V_LANE}
v_and_b32 v{VD+1}, 7, v{V_LANE}
v_lshrrev_b32 v{T2}, 4, v{V_LANE}
v_xor_b32 v{T2}, v{T2}, v{VD+1}
v_lshlrev_b32 v{VZ}, 12, v{T0}
v_lshl_add_u32 v{VD}, v{T2}, 4, v{VZ}
v_lshlrev_b32 v{T2}, 1, v{T0}
v_and_b32 v{T2}, 4, v{T2}
v_xor_b32 v{T2}, v{T2}, v{VD+1}
v_xor_b32 v{VD+1}, 64, v{VD}
v_add_u32 v{VD+1}, {8*4096 - 1024}, v{VD+1}
v_add_u32 v{VD+2}, {16*4096 - 2048}, v{VD}
v_add_u32 v{VD+3}, {16*4096 - 2048}, v{VD+1}
s_lshl_b32 s{S_AB}, s{S_TT}, 2
s_add_u32 s{S_AB}, s{S_AB}, s{S_RW}
s_lshl_b32 s{S_AB}, s{S_AB}, 17
s_lshl_b32 s{S_T2}, s{S_KH}, 11
s_add_u32 s{S_AB}, s{S_AB}, s{S_T2}
s_lshl_b32 s{S_MW}, s{S_RW}, 12""")
    def zload(n):
        a(f"s_add_u32 m0, s{S_MW}, {SLOT[n & 3]}")
        a(f"s_add_u32 s{S_T2}, s{S_ZB}, {n << 12}")
        for q in range(4):
            vm.issue(f"s{n}", f"buffer_load_dwordx4 v{VZ+q}, {ws}, s{S_T2} offen offset:{q*1024} lds")
    def wload(n):
        a(f"s_add_u32 m0, s{S_MW}, {SLOT[n & 3] + 16384}")
        a(f"s_add_u32 s{S_T3}, s{S_AB}, {n << 7}")
        for q in range(4):
            vm.issue(f"s{n}", f"buffer_load_dwordx4 v{VD+q}, s[{S_SP}:{S_SP+3}], s{S_T3} offen offset:{q*1024} lds")
    def bdma(tag, sr, lds, mw, grow, gmul, n):
        a(f"""s_mul_i32 s{S_T2}, s{S_RW}, {gmul * 896}
s_lshl_b32 s{S_T3}, s{S_FQ}, 7
s_add_u32 s{S_T2}, s{S_T2}, s{S_T3}
s_add_u32 s{S_T2}, s{S_T2}, {grow * 896}
s_mul_i32 s{S_T3}, s{S_RW}, {mw}""")
        for k in range(n):
            if k % 4 == 0:
                a(f"s_add_u32 m0, s{S_T3}, {lds + k * 1024}")
            if k:
                a(f"s_add_u32 s{S_T2}, s{S_T2}, {7168 - 1024 if k % 4 else 7168 + 3072}")
            else:
                a("s_nop 0")
            vm.issue(tag, f"buffer_load_dwordx4 v{VB}, s[{sr}:{sr+3}], s{S_T2} offen offset:{(k % 4) * 1024} lds")
    def hblocks(tag, bs, at=None):
        a(f"""s_mul_i32 s{S_T2}, s{S_RW}, {224 * 896}
s_lshl_b32 s{S_T3}, s{S_FQ}, 7
s_add_u32 s{S_T2}, s{S_T2}, s{S_T3}
s_lshl_b32 s{S_T3}, s{S_RW}, 11""")
        for b in bs:
            a(f"s_add_u32 m0, s{S_T3}, {HB + (b if at is None else at) * 8192}")
            for k in range(2):
                a(f"s_add_u32 s{S_T1}, s{S_T2}, {(16 * b + 8 * k) * 896 - 1024 * k}")
                vm.issue(tag, f"buffer_load_dwordx4 v{VB}, s[{S_W2}:{S_W2+3}], s{S_T1} offen offset:{k * 1024} lds")
    wload(0)
    wload(1)
    a(f"""v_mul_u32_u24 v{VB}, 896, v{T0}
v_lshl_add_u32 v{VB}, v{T2}, 4, v{VB}""")
    def early():
        hblocks("E", [13], 0)
        bdma("wo", S_WO, 32768, 6144, 256, 48, 6)
    if EARLY == -1:
        early()
    a(f"""v_and_b32 v{VZ}, 4, v{T0}
v_xor_b32 v{VZ}, v{VZ}, v{V_LANE}
v_lshlrev_b32 v{VZ}, 4, v{VZ}
v_xor_b32 v{VZ+1}, 128, v{VZ}
v_add_u32 v{VZ+2}, {(1 << 17) - 2048}, v{VZ}
v_add_u32 v{VZ+3}, {(1 << 17) - 2048}, v{VZ+1}
s_lshl_b32 s{S_C1}, s{S_TT}, 8
s_add_u32 s{S_C1}, s{S_C1}, s{S_FQ}
s_lshl_b32 s{S_C1}, s{S_C1}, 3
s_add_u32 s{S_C1}, s{S_C1}, {WS_FL + 1024}""")
    p3_tr_setup(a, T0)
    vm.wait("st1")
    a("s_barrier")
    st.mark(13)
    zload(0)
    zload(1)
    for n in range(NST):
        if n == N0:
            a(f"s_cmp_lg_u32 s{S_RW}, 0\ns_cbranch_scc1 L_Z1_X")
            spoll(a, "L_Z1", f"s_buffer_load_dwordx2 s[72:73], {ws}, s{S_C1} glc", [72], ool)
        vm.wait(f"s{n}", *(["E"] if n == 15 else []))
        if n in (0, 4, 8, 12):
            st.mark(14 + n // 4)
        a("s_barrier")
        if n + 2 < NST:
            zload(n + 2)
            wload(n + 2)
        if n == EARLY:
            early()
        if n == 14:
            bdma("wo", S_WO, 0, 8192, 0, 64, 8)
        if n == 15:
            for t in b_reads("h", 0, EFR):
                a(t)
            hblocks("hb", [9, 10, 11, 12])
    vm.wait("wo")
    st.fold()
    a("s_waitcnt lgkmcnt(0)")
    st.mark(18)
    a("s_barrier")
    hblocks("hb", range(9))
    p3_setup(a)
    st.mark(19)
    a(f"""s_cmp_lg_u32 s{S_RW}, 0
s_cbranch_scc1 P3_GO
s_lshl_b32 s{S_T0}, s{S_M64}, 7
s_add_u32 s{S_T0}, s{S_T0}, {WS_F3}""")
    spoll(a, "L_O", f"s_buffer_load_dwordx16 s[64:79], {ws}, s{S_T0} glc", list(range(64, 80, 2)), ool)
    a("s_branch P3_GO")

def compute(a, vm, st, last, ool):
    lg = LG(a)
    AD = [2, 224, 8, 8]
    AO = [0, 0, 0, 32768]
    V_C0 = 15
    ACC, FR, Z1, GZ, TP, BF, ONE = 16, 80, 128, 144, 208, 232, 240
    T1, T2 = TP, TP + 1
    def wflag(n, vo, so, off=0):
        a(f"""s_cmp_eq_u32 s{S_RW}, 0
s_cselect_b64 exec, {(1 << n) - 1}, 0
buffer_store_dword v0, v{vo}, {ws}, s{so} offen offset:{off} sc1
s_mov_b64 exec, -1""")
    a(f"v_lshlrev_b32 v{V_S}, 7, v{V_LANE}\nv_mov_b32 v0, 1")
    last(lambda: wflag(4, V_S, S_CNT))
    st.mark(12)
    ids(a)
    AR, BRD = 2, 4
    a(f"""v_and_b32 v{T1}, 31, v{V_LANE}
v_lshrrev_b32 v{T2}, 5, v{V_LANE}
v_bfe_u32 v{AR}, v{V_LANE}, 1, 3
v_xor_b32 v{AR}, v{AR}, v{T2}
v_lshlrev_b32 v{AR}, 4, v{AR}
v_lshl_add_u32 v{AR}, v{T1}, 7, v{AR}
s_lshr_b32 s{S_T1}, s{S_RW}, 1
s_lshl_b32 s{S_T3}, s{S_T1}, 13
s_add_u32 s{S_T3}, s{S_T3}, 16384
v_add_u32 v{BRD}, s{S_T3}, v{AR}""")
    for k in range(1, 4):
        a(f"v_xor_b32 v{BRD+k}, {k << 5}, v{BRD}")
    a(f"""v_lshlrev_b32 v{BF+1}, 1, v{T1}
v_bfe_u32 v{AR}, v{V_LANE}, 4, 1
v_lshlrev_b32 v{AR}, 1, v{AR}
v_and_b32 v{T1}, 1, v{V_LANE}
v_add_u32 v{AR}, v{AR}, v{T1}
v_mul_u32_u24 v{AR}, 576, v{AR}
v_lshlrev_b32 v{T2}, 7, v{T2}
v_xor_b32 v{AR}, v{AR}, v{T2}
v_bfe_u32 v{T1}, v{V_LANE}, 2, 2
v_lshl_add_u32 v{AR}, v{T1}, 4, v{AR}
v_bfe_u32 v{T1}, v{V_LANE}, 1, 1
v_lshl_add_u32 v{AR}, v{T1}, 3, v{AR}
s_and_b32 s{S_T0}, s{S_RW}, 1
s_lshl_b32 s{S_T3}, s{S_T0}, 12
v_add_u32 v{AR}, s{S_T3}, v{AR}
v_xor_b32 v{AR+1}, 64, v{AR}
s_lshl_b32 s{S_T2}, s{S_TT}, 1
s_add_u32 s{S_T2}, s{S_T2}, s{S_T1}
s_lshl_b32 s{S_AB}, s{S_T2}, 7
s_lshl_b32 s{S_T3}, s{S_FQ}, 1
s_add_u32 s{S_T3}, s{S_T3}, s{S_T0}
s_lshl_b32 s{S_T3}, s{S_T3}, 12
s_mul_i32 s{S_ZB}, s{S_T2}, {2*28*2048}
s_add_u32 s{S_ZB}, s{S_ZB}, s{S_T3}
s_add_u32 s{S_ZB}, s{S_ZB}, {WS_Z1}
s_add_u32 s{S_C1}, s{S_ZB}, {28*2048}
s_mul_i32 s{S_O}, s{S_T2}, {2*144*1024}
s_add_u32 s{S_O}, s{S_O}, s{S_T3}
s_mul_i32 s{S_T3}, s{S_KH}, {56*1024}
s_add_u32 s{S_O}, s{S_O}, s{S_T3}
s_add_u32 s{S_O}, s{S_O}, {WS_AF + 32*1024}
s_lshl_b32 s{S_MW}, s{S_T2}, 2
s_lshr_b32 s{S_T3}, s{S_FQ}, 1
s_add_u32 s{S_MW}, s{S_MW}, s{S_T3}
s_lshl_b32 s{S_MW}, s{S_MW}, 3
s_and_b32 s{S_T3}, s{S_FQ}, 1
s_add_u32 s{S_MW}, s{S_MW}, s{S_T3}
s_lshl_b32 s{S_MW}, s{S_MW}, 1
s_add_u32 s{S_MW}, s{S_MW}, s{S_KH}
s_lshl_b32 s{S_MW}, s{S_MW}, 1
s_add_u32 s{S_MW}, s{S_MW}, s{S_T0}
s_lshl_b32 s{S_MW}, s{S_MW}, 2
s_add_u32 s{S_MW}, s{S_MW}, {WS_F2}
s_mov_b32 s{S_M}, {f32(GELU_C1)}
s_cmp_eq_u32 s{S_KH}, 0
s_cselect_b32 s{S_M2}, -1, 0
s_mov_b32 s{S_M2+1}, 0""")
    srd(a, S_B, P_BSP, 4096)
    a(f"""s_cmp_lg_u32 s{S_RW}, 1
s_cbranch_scc1 L_Z_X
s_lshl_b32 s{S_T0}, s{S_FQ}, 1
s_add_u32 s{S_T0}, s{S_T0}, s{S_KH}
s_lshl_b32 s{S_T0}, s{S_T0}, 2
s_lshr_b32 s{S_T1}, s{S_TT}, 2
s_add_u32 s{S_T0}, s{S_T0}, s{S_T1}
s_lshl_b32 s{S_T0}, s{S_T0}, 7
s_add_u32 s{S_T0}, s{S_T0}, {WS_FZ}
s_add_u32 s{S_T1}, s{S_T0}, 32""")
    spoll(a, "L_Z", f"s_buffer_load_dwordx8 s[72:79], {ws}, s{S_T0} glc\ns_buffer_load_dwordx8 s[12:19], {ws}, s{S_T1} glc", [72, 74, 76, 78, 12, 14, 16, 18], ool)
    vm.wait("st1")
    a("s_barrier")
    wflag(8, V_S, S_FL)
    pre = [f"v_add_u32 v{224+i}, 0x20000, v{2+i}" for i in range(6)] + [f"v_add_u32 v{8+i}, 0x10000, v{2+i}" for i in range(6)]
    pre += [f"v_mov_b32 v{V_C0}, {f32(GELU_C0)}"] + [f"v_mov_b32 v{BF+r}, 0" for r in (2, 3, 4)] + [f"v_mov_b32 v{ONE+r}, 0x3f803f80" for r in range(4)]
    for t in pre:
        a(t)
    p3_tr_setup(a, TP)
    def bias_load():
        vm.issue("b", f"buffer_load_ushort v{BF}, v{BF+1}, s[{S_B}:{S_B+3}], s{S_AB} offen")
        vm.issue("b", f"buffer_load_ushort v{BF+5}, v{BF+1}, s[{S_B}:{S_B+3}], s{S_AB} offen offset:64")
    def bias_prep():
        vm.wait("b")
        a(f"""v_cndmask_b32 v{BF}, 0, v{BF}, s[{S_M2}:{S_M2+1}]
v_cndmask_b32 v{BF+5}, 0, v{BF+5}, s[{S_M2}:{S_M2+1}]
v_mov_b32 v{BF+1}, 0""")
    QD = ((0, 0), (1, 0), (0, 1), (1, 1))
    def bias_mf(k):
        fi, ti = QD[k]
        c = ACC + 32 * fi + 16 * ti
        a(f"v_mfma_f32_32x32x16_bf16 v[{c}:{c+15}], v[{ONE}:{ONE+3}], v[{BF+2*ti}:{BF+2*ti+3}], v[{c}:{c+15}]")
    gl = []
    for grp in range(16):
        e0 = 4 * grp
        t = TP + 4 * (grp & 1)
        for e in range(4):
            src = Z1 + ((e0 + e) // 2) % 16
            gl.append(f"v_lshlrev_b32 v{GZ+e0+e}, 16, v{src}" if e % 2 == 0 else f"v_and_b32 v{GZ+e0+e}, 0xffff0000, v{src}")
        gl += [f"v_mul_f32 v{t+e}, v{GZ+e0+e}, v{GZ+e0+e}" for e in range(4)]
        gl += [f"v_fma_f32 v{t+e}, v{t+e}, s{S_M}, v{V_C0}" for e in range(4)]
        gl += [f"v_mul_f32 v{t+e}, v{t+e}, v{GZ+e0+e}" for e in range(4)]
        gl += [f"v_exp_f32 v{t+e}, v{t+e}" for e in range(4)]
        gl += [f"v_add_f32 v{t+e}, 1.0, v{t+e}" for e in range(4)]
        gl += [f"v_rcp_f32 v{t+e}, v{t+e}" for e in range(4)]
        gl += [f"v_mul_f32 v{GZ+e0+e}, v{GZ+e0+e}, v{t+e}" for e in range(4)]
    G0G, GEND = G0 * 16, 256 - GTAIL
    ngap = GEND - G0G
    assert G0G - LEAD >= (4 * N0 - 2) * 4
    gi = [0, 0, 0]
    def zissue(li):
        fi, ti, q = li >> 2, (li >> 1) & 1, li & 1
        assert li < 4 or gi[0] >= 64 * (li - 4) + 36
        r = Z1 + 4 * (li & 3)
        vm.issue(f"z{li}", f"buffer_load_dwordx4 v[{r}:{r+3}], v{V_L16}, {ws}, s{S_ZB if ti == 0 else S_C1} offen offset:{fi*2048 + q*1024}")
    def fill():
        g = gi[1]
        gi[1] += 1
        while gi[2] < 8 and g >= G0G + ngap * gi[2] // 8 - LEAD:
            zissue(gi[2])
            gi[2] += 1
        if g < G0G:
            return
        tgt = min(len(gl), (len(gl) * (g - G0G + 1) + ngap - 1) // ngap)
        while gi[0] < tgt:
            if gi[0] % 64 == 0:
                vm.wait(f"z{gi[0] // 64}")
            a(gl[gi[0]])
            gi[0] += 1
    def reads(p):
        n, ks = p >> 2, p & 3
        f = FR + 16 * (p % 3)
        ad, ao = AD[n & 3], AO[n & 3]
        zo = ao + (ks >> 1) * 8192 + (ks & 1) * 256
        l = []
        for i in range(2):
            l.append(f"ds_read_b64_tr_b16 v[{f+4*i}:{f+4*i+1}], v{ad} offset:{zo + i*2048}")
            l.append(f"ds_read_b64_tr_b16 v[{f+4*i+2}:{f+4*i+3}], v{ad+1} offset:{zo + i*2048}")
            l.append(f"ds_read_b128 v[{f+8+4*i}:{f+8+4*i+3}], v{ad+2+ks} offset:{ao + i*4096}")
        return [(f"r{p}", t) for t in l]
    st.mark(13)
    a("s_barrier")
    st.mark(14)
    for t in reads(0) + reads(1):
        lg.issue(*t)
    for p in range(64):
        n, ks = p >> 2, p & 3
        if ks == 2 and n < 15:
            if n + 1 == Z1B:
                a("s_waitcnt vmcnt(0)")
                vm.q = []
            a("s_barrier")
            if n + 1 == Z1B:
                wflag(1, BF + 2, S_FL, 1024)
            if n + 1 in (4, 8, 12):
                st.mark(14 + (n + 1) // 4)
        lg.wait(f"r{p}")
        if p == 63:
            lg.all()
            st.fold()
            st.mark(18)
        rl = reads(p + 2) if p + 2 < 64 else []
        if p == 59:
            rl = rl + [("E", t) for t in b_reads("h", 0, EFR)]
        f = FR + 16 * (p % 3)
        for k, (fi, ti) in enumerate(QD):
            c = ACC + 32 * fi + 16 * ti
            a(f"v_mfma_f32_32x32x16_bf16 v[{c}:{c+15}], v[{f+4*fi}:{f+4*fi+3}], v[{f+8+4*ti}:{f+8+4*ti+3}], " + ("0" if p == 0 else f"v[{c}:{c+15}]"))
            for t in (rl[2 * k:2 * k + 2] if k < 3 else rl[6:]):
                lg.issue(*t)
            if ks == 1 and 0 <= n - BST < 4 and k == (n - BST + 2) % 4:
                bias_mf(n - BST)
            fill()
        if ks == 0 and n == BST - 4:
            bias_load()
        if ks == 0 and n == BST:
            bias_prep()
    assert gi[0] == len(gl)
    for k, (fi, ti) in enumerate(QD):
        if k == 0:
            a("s_nop 3")
        if k == 2:
            a(f"s_add_u32 s{S_O}, s{S_O}, {144*1024}")
        c = ACC + 32 * fi + 16 * ti
        g = GZ + 32 * fi + 16 * ti
        o = FR + 8 * (2 * ti + fi) + 16
        for q in range(2):
            for r in range(8 * q, 8 * q + 8, 2):
                a(f"v_pk_mul_f32 v[{c+r}:{c+r+1}], v[{c+r}:{c+r+1}], v[{g+r}:{g+r+1}]")
            for r in range(4 * q, 4 * q + 4):
                a(f"v_cvt_pk_bf16_f32 v{o+r}, v{c+2*r}, v{c+2*r+1}")
            vm.issue("st", f"buffer_store_dwordx4 v[{o+4*q}:{o+4*q+3}], v{V_L16}, {ws}, s{S_O} offen offset:{fi*2048 + q*1024}{SF}")
    a("s_barrier")
    p3_setup(a)
    a(f"""v_mov_b32 v{TP}, 1
s_mov_b64 exec, 1""")
    st.mark(19)
    a(f"""s_waitcnt vmcnt(0)
buffer_store_dword v{TP}, v{BF+2}, {ws}, s{S_MW} offen sc1
s_mov_b64 exec, -1""")

def phase3(a, st, ool):
    vm, lg = VM(a), LG(a)
    a("P3_GO:")
    st.mark(20)
    a("s_barrier")
    st.mark(21)
    horder = [9, 10, 11, 12, 0, 1, 2, 3, 4, 5, 6, 7, 8, 13]
    vm.q = ["hb"]
    for i in range(8):
        if i == 4:
            a(f"s_add_u32 s{S_A}, s{S_A}, 4096")
        vm.issue(f"a{i}", f"buffer_load_dwordx4 v[{AFR+4*i}:{AFR+4*i+3}], v{V_L16}, {ws}, s{S_A} offen offset:{(i & 3) * 1024}")
    vm.issue("x", f"buffer_load_dwordx4 v[{XV}:{XV+3}], v{V_XO}, s[{S_X}:{S_X+3}], s{S_XO} offen")
    steps = [("o", i) for i in range(8)] + [("h", b) for b in horder]
    def breads(si):
        ty, i = steps[si]
        if (ty, i) == ("h", 13):
            return []
        return [(f"b{si}", t) for t in b_reads(ty, i, BFR + 8 * (si % 3))]
    for t in breads(0) + breads(1):
        lg.issue(*t)
    vm.wait("hb")
    st.mark(22)
    a(f"""s_cmp_lg_u32 s{S_WAVE}, 0
s_cbranch_scc1 L_H_X
s_lshl_b32 s{S_T0}, s{S_M64}, 9
s_add_u32 s{S_T0}, s{S_T0}, {WS_F2}
s_add_u32 s{S_T1}, s{S_T0}, 128
s_add_u32 s{S_T2}, s{S_T0}, 256
s_add_u32 s{S_T3}, s{S_T0}, 384""")
    spoll(a, "L_H", f"""s_buffer_load_dwordx8 s[56:63], {ws}, s{S_T0} glc
s_buffer_load_dwordx8 s[64:71], {ws}, s{S_T1} glc
s_buffer_load_dwordx8 s[72:79], {ws}, s{S_T2} glc
s_buffer_load_dwordx4 s[8:11], {ws}, s{S_T3} glc""", list(range(56, 80, 2)) + [8, 10], ool)
    a("s_barrier")
    st.mark(23)
    hl = []
    for j, b in enumerate(horder):
        for h in range(2):
            r = AFR + 32 + 8 * j + 4 * h
            hl.append((f"a{8 + 2*j + h}", b, f"buffer_load_dwordx4 v[{r}:{r+3}], v{V_W if h else V_L16}, {ws}, s{S_T0} offen offset:{(b & 3) * 1024}"))
    nx = [0, -1]
    def pump(lim):
        while nx[0] < min(lim, len(hl)):
            tag, b, t = hl[nx[0]]
            if b >> 2 != nx[1]:
                nx[1] = b >> 2
                a(f"s_add_u32 s{S_T0}, s{S_O}, {(b >> 2) * 4096}")
            vm.issue(tag, t)
            nx[0] += 1
    cons = 0
    pump(AHEAD - 6)
    for si, (ty, i) in enumerate(steps):
        if si == 8: st.mark(24)
        if si == 15: st.mark(25)
        if si == 11:
            a("s_barrier")
        bf = EFR if (ty, i) == ("h", 13) else BFR + 8 * (si % 3)
        rl = breads(si + 2) if si + 2 < len(steps) else []
        lg.wait(f"b{si}")
        na = 1 if ty == "o" else 2
        for h in range(na):
            vm.wait(f"a{cons}")
            x = AFR + 4 * cons
            for ni in range(2):
                c = ACC3 + 16 * ni
                a(f"v_mfma_f32_32x32x16_bf16 v[{c}:{c+15}], v[{bf+4*ni}:{bf+4*ni+3}], v[{x}:{x+3}], " + ("0" if si == 0 else f"v[{c}:{c+15}]"))
                k = 2 * h + ni
                for t in (rl[2 * k:2 * k + 2] if na == 1 else rl[k:k + 1]):
                    lg.issue(*t)
                if ni == 0:
                    pump(cons + 1 - 8 + AHEAD + (2 if ty == "o" else 0))
            cons += 1
    st.mark(26)
    U = AFR
    for lp in (1, 2, 3):
        a(f"""s_xor_b32 s{S_T0}, s{S_WAVE}, {lp}
s_mul_i32 s{S_T0}, s{S_T0}, 6144
v_add_u32 v{BFR+lp}, s{S_T0}, v{V_L16}""")
    a(f"""s_mul_i32 s{S_T0}, s{S_WAVE}, 6144
v_add_u32 v{BFR}, s{S_T0}, v{V_L16}""")
    for d in range(4):
        a(f"v_lshlrev_b32 v{U+2*d}, 16, v{XV+d}")
        a(f"v_and_b32 v{U+2*d+1}, 0xffff0000, v{XV+d}")
    for lp in (1, 2, 3):
        for k in range(2):
            c = ACC3 + 8 * lp + 4 * k
            a(f"ds_write_b128 v{BFR+lp}, v[{c}:{c+3}] offset:{(lp-1)*2048 + k*1024}")
    a("s_waitcnt lgkmcnt(0)\ns_barrier")
    for k in range(6):
        c = ACC3 + 8 + 4 * k
        a(f"ds_read_b128 v[{c}:{c+3}], v{BFR} offset:{k*1024}")
    for lp in (1, 2, 3):
        a(f"s_waitcnt lgkmcnt({6 - 2*lp})")
        for r in range(0, 8, 2):
            a(f"v_pk_add_f32 v[{ACC3+r}:{ACC3+r+1}], v[{ACC3+r}:{ACC3+r+1}], v[{ACC3+8*lp+r}:{ACC3+8*lp+r+1}]")
    a("s_nop 1")
    for d in range(4):
        a(f"v_permlane32_swap_b32 v{ACC3+d}, v{ACC3+4+d}")
    for r in range(0, 8, 2):
        a(f"v_pk_add_f32 v[{ACC3+r}:{ACC3+r+1}], v[{ACC3+r}:{ACC3+r+1}], v[{U+r}:{U+r+1}]")
    for r in range(4):
        a(f"v_cvt_pk_bf16_f32 v{XV+r}, v{ACC3+2*r}, v{ACC3+2*r+1}")
    a(f"buffer_store_dwordx4 v[{XV}:{XV+3}], v{V_XO}, s[{S_OUT}:{S_OUT+3}], s{S_XO} offen")
    st.flush(S_WS, S_WAVE)
    a("s_endpgm")

def ids(a):
    a(f"""s_and_b32 s{S_KH}, s2, 1
s_bfe_u32 s{S_T0}, s2, 0x20001
s_bfe_u32 s{S_T1}, s2, 0x20003
s_lshl_b32 s{S_TT}, s{S_T0}, 2
s_add_u32 s{S_TT}, s{S_TT}, s{S_T1}
s_and_b32 s{S_T0}, s2, 7
s_lshl_b32 s{S_M64}, s{S_T0}, 2
s_add_u32 s{S_M64}, s{S_M64}, s{S_T1}
s_lshr_b32 s{S_FQ}, s2, 5""")

def hook_main(a, vm, st, last):
    ool = []
    a(f"""s_cmp_eq_u32 s{S_CH}, 0
s_cbranch_scc0 P2_CMP""")
    q0, p0 = list(vm.q), list(st.pend)
    loader(a, vm, st, last, ool)
    pl = list(st.pend)
    a("P2_CMP:")
    vm.q, st.pend = q0, p0
    compute(a, vm, st, last, ool)
    assert st.pend == pl
    phase3(a, st, ool)
    for o in ool:
        a(o)

def hook_att(a, vm, st):
    V_T0, V_T1, V_T2, V_L8B = 2, 3, 4, 5
    KF, QF, ACC, ZAC, ONE, KVB, TP = 16, 144, 176, 192, 208, 212, 220
    S_H, S_HF, S_MK = 28, 29, 42
    st.mark(12)
    a(f"""; head = 2x + (c&1) ; half = c>>1
s_and_b32 s{S_T0}, s2, 7
s_lshl_b32 s{S_H}, s{S_T0}, 1
s_bfe_u32 s{S_T0}, s2, 0x10003
s_add_u32 s{S_H}, s{S_H}, s{S_T0}
s_bfe_u32 s{S_HF}, s2, 0x10004
s_lshl_b32 s{S_T3}, s{S_HF}, 3
s_add_u32 s{S_O}, s{S_T3}, s{S_WAVE}
v_lshlrev_b32 v{V_T0}, 7, v{V_LANE}
v_mov_b32 v{V_T1}, 1
s_waitcnt vmcnt(0)
s_barrier
s_cmp_eq_u32 s{S_WAVE}, 0
s_cselect_b64 exec, 0xff, 0
buffer_store_dword v{V_T1}, v{V_T0}, {ws}, s{S_FL} offen sc1""")
    st.mark(13)
    if ATOUCH:
        srd(a, 20, P_BSP, 4096)
        a(f"s_cmp_eq_u32 s{S_WAVE}, 0\ns_cselect_b64 exec, -1, 0")
        a(f"buffer_load_dword v{TP}, v{V_T0}, s[20:23], 0 offen")
    a(f"""s_mov_b64 exec, -1
s_and_b32 s{S_T0}, s2, 7
s_lshl_b32 s{S_T0}, s{S_T0}, 7
s_add_u32 s{S_T0}, s{S_T0}, {WS_FL}
s_lshl_b32 s{S_T2}, s{S_WAVE}, 12
s_add_u32 s{S_T2}, s{S_T2}, s{S_T0}
s_add_u32 s{S_T3}, s{S_T2}, 2048
s_lshl_b32 s{S_M2}, s{S_O}, 11
s_add_u32 s{S_M2}, s{S_M2}, s{S_T0}""")
    spoll(a, "A_KV", f"s_buffer_load_dwordx16 s[56:71], {ws}, s{S_T2} glc\ns_buffer_load_dwordx16 s[8:23], {ws}, s{S_T3} glc", list(range(56, 72, 2)) + list(range(8, 24, 2)), None, 2)
    vm.q = []
    st.mark(14)
    a(f"""s_mul_i32 s{S_T1}, s{S_WAVE}, {8*28672}
s_mul_i32 s{S_T2}, s{S_H}, 896
s_add_u32 s{S_T1}, s{S_T1}, s{S_T2}
s_add_u32 s{S_T1}, s{S_T1}, {WS_K}
s_mul_i32 s{S_T0}, s{S_HF}, {8*14336}
s_add_u32 s{S_T1}, s{S_T1}, s{S_T0}
s_lshl_b32 s{S_T0}, s{S_T0}, 1
v_add_u32 v{V_T2}, {WS_V - WS_K}, v{V_KO}""")
    for i in range(16):
        vm.issue(f"k{i}", f"buffer_load_dwordx4 v[{KF+8*i}:{KF+8*i+3}], v{V_KO}, {ws}, s{S_T1} offen")
        vm.issue(f"k{i}", f"buffer_load_dwordx4 v[{KF+8*i+4}:{KF+8*i+7}], v{V_T2}, {ws}, s{S_T1} offen")
        a(f"s_add_u32 s{S_T1}, s{S_T1}, 14336")
        if i == 7:
            a(f"s_sub_u32 s{S_T1}, s{S_T1}, s{S_T0}")
    spoll(a, "A_Q", f"s_buffer_load_dwordx8 s[56:63], {ws}, s{S_M2} glc", list(range(56, 64, 2)), None, 2)
    a(f"""v_and_b32 v{V_L8B}, 0xff, v{V_L8}
s_mul_i32 s{S_T1}, s{S_O}, {4*28672}
s_lshl_b32 s{S_T2}, s{S_T2}, 1
s_add_u32 s{S_T1}, s{S_T1}, s{S_T2}
s_add_u32 s{S_T1}, s{S_T1}, {WS_Q}
s_lshl_b32 s{S_C1+1}, s{S_O}, 8
s_lshl_b32 s{S_T3}, s{S_H}, 2
s_add_u32 s{S_FL}, s{S_C1+1}, s{S_T3}
s_add_u32 s{S_FL}, s{S_FL}, {WS_F3}
s_mul_i32 s{S_O}, s{S_O}, {4*144*1024}
s_lshl_b32 s{S_T3}, s{S_H}, 11
s_add_u32 s{S_O}, s{S_O}, s{S_T3}
s_add_u32 s{S_O}, s{S_O}, {WS_AF}""")
    for u in range(4):
        for i in range(4):
            r = QF + 8 * u + 2 * i
            vm.issue("q", f"buffer_load_dwordx2 v[{r}:{r+1}], v{V_L8 if i < 3 else V_L8B}, {ws}, s{S_T1} offen offset:{512*i}")
        a(f"s_add_u32 s{S_T1}, s{S_T1}, 28672")
    for r in range(4):
        a(f"v_mov_b32 v{ONE+r}, 0x3f803f80")
    a(f"""s_mov_b32 s{S_MK}, 0x10000000
s_mov_b32 s{S_MK+1}, 0x10000000
s_mov_b32 s{S_M2}, -1
s_mov_b32 s{S_M2+1}, 0""")
    for i in range(16):
        vm.wait(f"k{i}")
        c0 = "0" if i == 0 else f"v[{ACC}:{ACC+15}]"
        c1 = "0" if i == 0 else f"v[{ZAC}:{ZAC+15}]"
        a(f"v_mfma_f32_32x32x16_bf16 v[{ACC}:{ACC+15}], v[{KF+8*i}:{KF+8*i+3}], v[{KF+8*i+4}:{KF+8*i+7}], {c0}")
        a(f"v_mfma_f32_32x32x16_bf16 v[{ZAC}:{ZAC+15}], v[{KF+8*i}:{KF+8*i+3}], v[{ONE}:{ONE+3}], {c1}")
    st.mark(15)
    a(f"""s_lshl_b32 s{S_T1}, s{S_WAVE}, 12
v_add_u32 v{V_T2}, s{S_T1}, v{V_L8}
s_nop 10""")
    for r in range(16):
        a(f"v_cndmask_b32 v{ACC+r}, v{ACC+r}, v{ZAC+r}, s[{S_MK}:{S_MK+1}]")
    for p in range(8):
        a(f"ds_write_b64 v{V_T2}, v[{ACC+2*p}:{ACC+2*p+1}] offset:{512*p}")
    a(f"""s_lshl_b32 s{S_T1}, s{S_WAVE}, 9
v_add_u32 v{V_T2}, s{S_T1}, v{V_L8}""")
    a("s_waitcnt lgkmcnt(0)\ns_barrier")
    for w in range(8):
        a(f"ds_read_b64 v[{ACC+2*w}:{ACC+2*w+1}], v{V_T2} offset:{4096*w}")
    a(f"""s_cmp_ge_u32 s{S_WAVE}, 6
s_cselect_b32 s{S_MK+1}, 0, -1
s_mov_b32 s{S_MK}, -1
s_lshl_b32 s{S_T1}, s{S_WAVE}, 2
s_add_u32 s{S_T1}, s{S_T1}, 32768
v_lshl_add_u32 v{V_T2}, v{V_LANE}, 5, s{S_T1}
s_waitcnt lgkmcnt(0)""")
    for w in (4, 2, 1):
        for k in range(w):
            a(f"v_pk_add_f32 v[{ACC+2*k}:{ACC+2*k+1}], v[{ACC+2*k}:{ACC+2*k+1}], v[{ACC+2*(k+w)}:{ACC+2*(k+w)+1}]")
    a(f"""v_cvt_pk_bf16_f32 v{ACC}, v{ACC}, v{ACC+1}
v_cndmask_b32 v{ACC}, 0, v{ACC}, s[{S_MK}:{S_MK+1}]
ds_write_b32 v{V_T2}, v{ACC}
v_lshlrev_b32 v{V_T2}, 5, v{V_LANE}
s_waitcnt lgkmcnt(0)
s_barrier
ds_read_b128 v[{KVB}:{KVB+3}], v{V_T2} offset:32768
ds_read_b128 v[{KVB+4}:{KVB+7}], v{V_T2} offset:32784
s_waitcnt lgkmcnt(0)""")
    vm.wait("q")
    st.mark(16)
    for u in range(4):
        c = KF + 16 * u
        a(f"v_mfma_f32_32x32x16_bf16 v[{c}:{c+15}], v[{KVB}:{KVB+3}], v[{QF+8*u}:{QF+8*u+3}], 0")
        a(f"v_mfma_f32_32x32x16_bf16 v[{c}:{c+15}], v[{KVB+4}:{KVB+7}], v[{QF+8*u+4}:{QF+8*u+7}], v[{c}:{c+15}]")
    a("s_nop 5")
    for u in range(4):
        c = KF + 16 * u
        o = KF + 64 + 8 * u
        a(f"""v_add_f32 v{TP}, {f32(1e-6)}, v{c+12}
v_mov_b32 v{TP+1}, v{TP}
s_nop 1
v_permlane32_swap_b32 v{TP+1}, v{TP}
v_rcp_f32 v{TP}, v{TP}
s_nop 0""")
        for r in range(16):
            a(f"v_mul_f32 v{c+r}, v{c+r}, v{TP}")
        for r in range(8):
            a(f"v_cvt_pk_bf16_f32 v{o+r}, v{c+2*r}, v{c+2*r+1}")
        a(f"v_cndmask_b32 v{o+6}, 0, v{o+6}, s[{S_M2}:{S_M2+1}]")
        a(f"v_cndmask_b32 v{o+7}, 0, v{o+7}, s[{S_M2}:{S_M2+1}]")
        vm.issue("st", f"buffer_store_dwordx4 v[{o}:{o+3}], v{V_L16}, {ws}, s{S_O} offen{SF}")
        vm.issue("st", f"buffer_store_dwordx4 v[{o+4}:{o+7}], v{V_L16}, {ws}, s{S_O} offen offset:1024{SF}")
        a(f"s_add_u32 s{S_O}, s{S_O}, {144*1024}")
    st.mark(17)
    a(f"""v_mov_b32 v{TP}, 1
v_lshlrev_b32 v{TP+1}, 7, v{V_LANE}
s_mov_b64 exec, 3
s_waitcnt vmcnt(0)
buffer_store_dword v{TP}, v{TP+1}, {ws}, s{S_FL} offen sc1""")
    st.flush(S_WS, S_WAVE)
    a("s_endpgm")
```

```python
import sys, argparse
from common import *
import f1, f23
HDR = open("parallel_sum__linear_attn_block__mixer_gmlp__prompt.s.ref").read().split("\n")
HDR = [l for l in HDR if l.startswith(";") and "@launch" not in l and "Override" not in l and "grid=ceil" not in l]
NAME = "parallel_sum__linear_attn_block__mixer_gmlp__prompt_kernel"
def build(path, stamp=False):
    a = Asm()
    for l in HDR:
        a(l)
    a(f"; @launch grid=(256,1,1) block=(512,1,1) lds=163840")
    a('.amdgcn_target "amdgcn-amd-amdhsa--gfx950"')
    a(".text")
    st = Stamp2(a, stamp)
    f1.gen_p1(a, NAME, st, f23.hook_main, f23.hook_att)
    a("K_EXIT:\ns_endpgm")
    a('.section .rodata,"a"')
    a(kernel_desc(NAME, 256, 100))
    open(path, "w").write(a.text())
if __name__ == "__main__":
    build(sys.argv[1], "--stamp" in sys.argv)
```

```python
from common import *
import os
R1 = 0
RING = 57344
SCR = RING + 57344
DEAD = SCR + 8192
P1_LDS = 163840
P1_VGPR = 256
E = os.environ.get
ROTMODE = 1
STORE_FLAGS = E("SF", " sc1")
PFL = [int(x) for x in E("P1_PFL", "12,47").split(",")]
PFROW = int(E("P1_PFROW", "0"))
WPF = int(E("P1_WPF", "13"))
NTP, NTX, NTW, NTO = [" nt" if c == "1" else "" for c in E("P1_NT", "1000")]
WSB = int(E("WSB", "0"), 0)
CSTAT = E("P1_CSTAT", "valu")
POLL_AT = int(E("P1_POLL", "36"))
F0_END = int(E("P1_F0E", "22"))
ZF0, ZF1 = int(E("P1_ZF0", "40")), int(E("P1_ZF1", "46"))
F1_END = int(E("P1_F1E", "50"))
TOUCH = int(E("P1_TOUCH", "0"))

P_X, P_QKV, P_WO, P_WIN, P_SP, P_BSP, P_WOUT, P_DBG, P_WS, P_OUT = 64, 66, 68, 72, 74, 76, 78, 56, 58, 60
X = E("P1_X", "")

V_LANE = 1
V_X0, V_X1, V_DA, V_DB = 2, 3, 4, 5
XR, WR = 6, 10
V_L16, V_T0 = 14, 15
A0 = 16
V_S, V_Q = 224, 225
V_R, V_C0, V_C1, V_RI, V_L2E = 226, 227, 228, 229, 230
V_PF = 0
SEL = 232
XE, CE = 236, 240
T4 = 248
V_KO, V_L8, V_CSA, V_DUM = 252, 253, 254, 255

S_SP = 4
S_PFO, S_CNT, S_REC, S_FL = 8, 9, 10, 11
S_X, S_WA, S_WB, S_WS = 12, 16, 20, 24
S_RB, S_G, S_WAVE, S_RW, S_CH = 28, 29, 30, 31, 32
S_T0, S_T1, S_T2, S_T3 = 33, 34, 35, 36
S_PK = 37
S_XB = 38
S_L = 39
S_A64 = 43
S_MR, S_MW = 44, 45
S_XO = 46
S_O = 47
S_SA = 52
S_SPIN = 53
S_HI = 54
B64 = 64 * 2688

class K:
    def __init__(s, kinds):
        s.kinds = kinds
        s.nA = 2 if kinds[0] == "V" else 1
        s.WST = (2 + s.nA) * 1024
        s.SLOT = 8 * s.WST
        s.NSL = 98304 // s.SLOT
        s.DEPTH = s.NSL - 1
        s.ori = [k in "GLQ" for k in kinds]
        s.WB, s.CV, s.CSA = 160, 212, 220
        if s.nA == 1:
            s.ACC = [128, 144, 160]
            s.BR, s.TMP, s.R16, s.XS = 176, 196, A0, CE + 4
            s.stat = E("P1_ASTAT", "mix")
        else:
            s.ACC = [128, 144, 160, 128]
            s.BR, s.TMP, s.R16, s.XS = 192, 176, 176, 228
            s.stat = CSTAT
NBR = 5

class LG:
    def __init__(self, a):
        self.a, self.q = a, []
    def issue(self, tag, text):
        self.a(text)
        self.q.append(tag)
    def wait(self, *tags):
        last = -1
        for i, t in enumerate(self.q):
            if t in tags:
                last = i
        if last < 0:
            return
        n = min(15, len(self.q) - 1 - last)
        self.a(f"s_waitcnt lgkmcnt({n})")
        self.q = self.q[len(self.q) - n:] if n else []
    def all(self):
        if self.q:
            self.a("s_waitcnt lgkmcnt(0)")
        self.q = []
    def copy(self):
        v = LG(self.a)
        v.q = list(self.q)
        return v

def mf(acc, w, x, orient, first=False):
    c = "0" if first else f"v[{acc}:{acc+15}]"
    if orient:
        return f"v_mfma_f32_32x32x16_bf16 v[{acc}:{acc+15}], v[{w}:{w+3}], v[{x}:{x+3}], {c}"
    return f"v_mfma_f32_32x32x16_bf16 v[{acc}:{acc+15}], v[{x}:{x+3}], v[{w}:{w+3}], {c}"

def mf16(c, b, first):
    return f"v_mfma_f32_16x16x32_bf16 v[{c}:{c+3}], v[{SEL}:{SEL+3}], v[{b}:{b+3}], " + ("0" if first else f"v[{c}:{c+3}]")

def adv_pk(a):
    if ROTMODE != 1:
        a(f"""s_add_u32 s{S_PK}, s{S_PK}, 1
s_cmp_eq_u32 s{S_PK}, 7
s_cselect_b32 s{S_PK}, 0, s{S_PK}""")

def line_src(L):
    if L == 1:
        return V_DB, S_WB, str(B64)
    return V_DA, S_WA, f"s{S_A64}"

def w_off(a, L, dst):
    v, s, st = line_src(L)
    if ROTMODE == 1:
        return S_L + L
    a(f"s_mul_i32 s{dst}, s{S_PK}, {st}\ns_add_u32 s{dst}, s{dst}, s{S_L+L}")
    return dst

def w_adv(a, L):
    if ROTMODE == 1:
        a(f"s_add_u32 s{S_L+L}, s{S_L+L}, {line_src(L)[2]}")

def piece_dma(a, vm, k, j):
    sl = RING + (j % k.NSL) * k.SLOT
    def x0():
        a(f"s_add_u32 m0, s{S_MR}, {sl}")
        if ROTMODE == 1:
            a(f"s_add_u32 s{S_T0}, s{S_XB}, {128 * j}")
        else:
            a(f"s_lshl_b32 s{S_T0}, s{S_PK}, 7\ns_add_u32 s{S_T0}, s{S_T0}, s{S_XB}")
        vm.issue(f"p{j}", f"buffer_load_dwordx4 v{V_X0}, s[{S_X}:{S_X+3}], s{S_T0} offen{NTX} lds")
    def x1():
        vm.issue(f"p{j}", f"buffer_load_dwordx4 v{V_X1}, s[{S_X}:{S_X+3}], s{S_T0} offen offset:{(1+k.nA)*1024}{NTX} lds")
    def w(L):
        def f():
            v, s, _ = line_src(L)
            o = w_off(a, L, S_T1)
            vm.issue(f"p{j}", f"buffer_load_dwordx4 v{v}, s[{s}:{s+3}], s{o} offen offset:{(1+L)*1024}{NTW} lds")
            w_adv(a, L)
            if L == k.nA - 1:
                adv_pk(a)
        return f
    return [x0, x1] + [w(L) for L in range(k.nA)]

def line_dma(a, vm, L, b, base, tag):
    def f():
        v, s, _ = line_src(L)
        a(f"s_add_u32 m0, s{S_MW}, {base + b * 8192}")
        o = w_off(a, L, S_T1)
        if ROTMODE == 1:
            a("s_nop 0")
        vm.issue(tag, f"buffer_load_dwordx4 v{v}, s[{s}:{s+3}], s{o} offen{NTW} lds")
        w_adv(a, L)
        adv_pk(a)
    return f

def I(a, s):
    return lambda: a(s)

def spread(n, lst):
    return [lst[len(lst) * i // n: len(lst) * (i + 1) // n] for i in range(n)]

def ce_build(ce, src):
    return [f"v_add_f32 v{src}, v{src}, v{src+1}",
            f"v_add_f32 v{src+2}, v{src+2}, v{src+3}",
            f"v_add_f32 v{src}, v{src}, v{src+2}",
            f"v_and_b32 v{src+1}, 0xffff0000, v{src}",
            f"v_sub_f32 v{src}, v{src}, v{src+1}",
            f"v_cvt_pk_bf16_f32 v{ce}, v{src+1}, v{src}"]

def store_tile(a, vm, kind, src, so):
    tg = "st" + kind
    ws = f"s[{S_WS}:{S_WS+3}]"
    l = []
    if kind in "GL":
        l.append(lambda: vm.issue(tg, f"buffer_store_dwordx4 v[{src}:{src+3}], v{V_L16}, {ws}, s{so} offen{STORE_FLAGS}"))
        l.append(lambda: vm.issue(tg, f"buffer_store_dwordx4 v[{src+4}:{src+7}], v{V_L16}, {ws}, s{so} offen offset:1024{STORE_FLAGS}"))
    elif kind == "Q":
        for i in range(4):
            l.append(lambda i=i: vm.issue(tg, f"buffer_store_dwordx2 v[{src+2*i}:{src+2*i+1}], v{V_L8}, {ws}, s{so} offen offset:{512*i}{STORE_FLAGS}"))
    else:
        l.append(lambda: vm.issue(tg, f"buffer_store_dwordx4 v[{src}:{src+3}], v{V_KO}, {ws}, s{so} offen{STORE_FLAGS}"))
        def second():
            a(f"s_add_u32 s{so}, s{so}, 14336")
            vm.issue(tg, f"buffer_store_dwordx4 v[{src+4}:{src+7}], v{V_KO}, {ws}, s{so} offen{STORE_FLAGS}")
        l.append(second)
    return l

def epilogue(a, vm, k, kind, acc, so):
    T = k.TMP
    R = (lambda r: V_R) if kind in "GLQ" else (lambda r: k.R16 + r)
    s = []
    for h in range(2):
        rs = range(8 * h, 8 * h + 8)
        if kind == "G":
            s += [f"v_mul_f32 v{T+r}, v{acc+r}, v{acc+r}" for r in rs]
            s += [f"v_fma_f32 v{T+r}, v{T+r}, v{V_C1}, v{V_C0}" for r in rs]
            s += [f"v_mul_f32 v{T+r}, v{T+r}, v{acc+r}" for r in rs]
            s += [f"v_exp_f32 v{T+r}, v{T+r}" for r in rs]
            s += [f"v_fma_f32 v{T+r}, v{T+r}, v{V_RI}, v{V_RI}" for r in rs]
            s += [f"v_rcp_f32 v{T+r}, v{T+r}" for r in rs]
            s += [f"v_mul_f32 v{acc+r}, v{T+r}, v{acc+r}" for r in rs]
            for r in rs:
                s.append(f"v_add_f32 v{V_S}, v{V_S}, v{acc+r}" if r else f"v_mov_b32 v{V_S}, v{acc}")
                s.append(f"v_fmac_f32 v{V_Q}, v{acc+r}, v{acc+r}" if r else f"v_mul_f32 v{V_Q}, v{acc}, v{acc}")
        elif kind in "QK":
            s += [f"v_fmaak_f32 v{acc+r}, v{acc+r}, v{R(r)}, {f32(1e-6)}" for r in rs]
            s += [f"v_fmaak_f32 v{T+r}, v{acc+r}, v{V_L2E}, {f32(-1e-6*LOG2E)}" for r in rs]
            s += [f"v_exp_f32_e64 v{T+r}, v{T+r} clamp" for r in rs]
            s += [f"v_max_f32 v{acc+r}, {f32(1e-6)}, v{acc+r}" for r in rs]
            s += [f"v_add_f32 v{acc+r}, v{acc+r}, v{T+r}" for r in rs]
        else:
            s += [f"v_mul_f32 v{acc+r}, v{acc+r}, v{R(r)}" for r in rs]
    l = [I(a, x) for x in s]
    if kind != "G":
        l += [I(a, f"v_cvt_pk_bf16_f32 v{k.CV+r}, v{acc+2*r}, v{acc+2*r+1}") for r in range(8)]
        l += store_tile(a, vm, kind, k.CV, so)
    return l

def phase_a(a, vm, lg, k, st, tail_fill):
    nA = k.nA
    late = [line_dma(a, vm, nA, b, R1, "wa" if b < 3 else "wb") for b in range(7)]
    lsp = spread(k.DEPTH, late) if k.DEPTH == 3 else [late[:4], late[4:]]
    if k.DEPTH == 3:
        lsp = [late[:3], late[3:5], late[5:]]
    XS = k.XS
    for j in range(8):
        main, reads, dots, dmas, extra = [], [], [], [], []
        if j < 7:
            vm.wait(f"p{j}")
            a("s_barrier")
            if j in (0, 3, 6):
                st.mark(3 + j // 3)
            so = (j % k.NSL) * k.SLOT
            for i in range(4):
                x = A0 + 16 * j + 4 * i
                xr, xo = (XR + i, so) if so < 65536 else (None, None)
                reads.append(("x", x, i, so))
                for L in range(nA):
                    b = k.WB + 16 * nA * (j & 1) + 16 * L + 4 * i
                    reads.append(("w", b, i, so + L * 1024))
                    reads.append(("w", b + 2, i, so + L * 1024 + 512))
            def rd(t, r, i, off):
                def f():
                    if t == "x":
                        lg.issue("a", f"ds_read_b128 v[{r}:{r+3}], v{XR+i} offset:{off - hi(off)}")
                    else:
                        lg.issue("a", f"ds_read_b64_tr_b16 v[{r}:{r+1}], v{WR+i} offset:{off - hi(off)}")
                return f
            hi = lambda off: 49152 if so >= 49152 else 0
            prev = ((j - 1) % k.NSL) * k.SLOT if j else 0
            if (prev >= 49152) != (so >= 49152):
                op = "v_add_u32" if so >= 49152 else "v_subrev_u32"
                for r in list(range(XR, XR + 4)) + list(range(WR, WR + 4)):
                    a(f"{op} v{r}, 49152, v{r}")
            reads = [rd(*r) for r in reads]
            if j + k.DEPTH < 7:
                dmas = piece_dma(a, vm, k, j + k.DEPTH)
            else:
                dmas = lsp[j + k.DEPTH - 7]
            if j == k.DEPTH and k.kinds[0] == "V":
                def flag():
                    a(f"s_cmp_eq_u32 s{S_WAVE}, 7\ns_cselect_b64 exec, 1, 0")
                    a(f"buffer_store_dword v{V_DUM}, v{XE+1}, s[{S_SP}:{S_SP+3}], s{S_CNT} offen sc1")
                    a(f"s_mov_b64 exec, -1")
                assert "clr" not in vm.q
                dmas = dmas + [flag]
        else:
            vm.wait("wa")
            a("s_barrier")
            reads = tail_fill
        if j > 0:
            p = j - 1
            for i in range(4):
                x = A0 + 16 * p + 4 * i
                for L in range(nA):
                    b = k.WB + 16 * nA * (p & 1) + 16 * L + 4 * i
                    main.append(I(a, mf(k.ACC[L], b, x, k.ori[L], p == 0 and i == 0)))
            for L in range(nA):
                extra.append(I(a, mf16(CE + 4 * L, k.WB + 16 * nA * (p & 1) + 16 * L, p == 0)))
            if k.stat == "mix":
                for i in range(2):
                    extra.append(I(a, mf16(XS, A0 + 16 * p + 4 * i, p == 0 and i == 0)))
            for d in range(8):
                x = A0 + 16 * p + d
                t = T4 + 2 * (d & 1)
                dots.append(I(a, f"v_lshlrev_b32 v{t}, 16, v{x}"))
                dots.append(I(a, f"v_and_b32 v{t+1}, 0xffff0000, v{x}"))
                if k.stat != "mix":
                    dots.append(I(a, f"v_add_f32 v{V_S}, v{V_S}, v{t}"))
                dots.append(I(a, f"v_fmac_f32 v{V_Q}, v{t}, v{t}"))
                if k.stat != "mix":
                    dots.append(I(a, f"v_add_f32 v{V_R}, v{V_R}, v{t+1}"))
                dots.append(I(a, f"v_fmac_f32 v{V_C0}, v{t+1}, v{t+1}"))
        if main:
            n = len(main)
            rs, ds, ms, es = spread(n, reads), spread(n, dots), spread(n, dmas), spread(n, extra)
            for g in range(n):
                main[g]()
                for f in rs[g] + ms[g] + ds[g] + es[g]:
                    f()
        else:
            for f in reads + dmas:
                f()
        if j < 7:
            lg.all()
    return XS

def kind_body(a, vm0, k, st, lab, hook_main, hook_att):
    vm = Vm = vm0.copy()
    lg = LG(a)
    kinds, ori, nA = k.kinds, k.ori, k.nA
    G = kinds[0] == "G"
    T = k.TMP
    D = 4
    dbg = f"s[{S_SP}:{S_SP+3}]"
    ws = f"s[{S_WS}:{S_WS+3}]"
    nl = 2 if nA == 1 else 1
    NS = 28 * nl
    def rd(p):
        b = k.BR + 4 * (p % NBR)
        off = ((p % 28) >> 2) * 8192
        def f0():
            if p == 28:
                for i in range(4):
                    a(f"v_add_u32 v{WR+i}, {RING}, v{WR+i}")
            lg.issue(f"r{p}", f"ds_read_b64_tr_b16 v[{b}:{b+1}], v{WR + (p & 3)} offset:{off}")
        return [f0, lambda: lg.issue(f"r{p}", f"ds_read_b64_tr_b16 v[{b+2}:{b+3}], v{WR + (p & 3)} offset:{off+512}")]
    def wr_fix():
        for i in range(4):
            a(f"s_xor_b32 s{S_T2}, s{S_XO}, {i}\ns_lshl_b32 s{S_T2}, s{S_T2}, 11")
            a(f"v_add_u32 v{WR+i}, s{S_T2}, v{V_T0}")
    tail = [wr_fix] + [f for p in range(D) for f in rd(p)]
    XS = phase_a(a, vm, lg, k, st, tail)
    st.mark(6)
    pre = []
    if k.stat == "mix":
        pre.append(I(a, f"v_add_f32 v{XS+1}, v{V_Q}, v{V_C0}"))
        xs = XS
    else:
        pre.append(I(a, f"v_add_f32 v{V_S}, v{V_S}, v{V_R}\nv_add_f32 v{V_Q}, v{V_Q}, v{V_C0}"))
        xs = V_S
    pre.append(I(a, f"""s_lshl_b32 s{S_T0}, s{S_WAVE}, 9
s_add_u32 s{S_T0}, s{S_T0}, {SCR + 4096}
v_add_u32 v{V_T0}, s{S_T0}, v{V_L8}"""))
    pre.append(lambda: lg.issue("w", f"ds_write_b64 v{V_T0}, v[{xs}:{xs+1}]"))
    for L in range(nA):
        pre.append(lambda L=L: lg.issue("w", f"ds_write_b32 v{V_CSA}, v{CE+4*L} offset:{L*2048}"))
    pre.append(I(a, f"v_xor_b32 v{V_T0}, 2048, v{V_T0}"))
    def bar(*vtags):
        def f():
            vm.wait(*vtags)
            lg.wait("w")
            a("s_barrier")
        return f
    F0 = [lambda: lg.issue("x", f"ds_read_b64 v[{T}:{T+1}], v{V_T0}"),
          I(a, f"v_and_b32 v{V_T0}, 0xfffffff0, v{V_CSA}")]
    for L in range(nA):
        F0.append(lambda L=L: lg.issue("c", f"ds_read_b128 v[{T+4+4*L}:{T+7+4*L}], v{V_T0} offset:{L*2048}"))
    F0.append(GAP)
    F0.append(lambda: lg.wait("x"))
    F0 += [I(a, s) for s in f"""v_add_f32 v{V_S}, v{xs}, v{T}
v_add_f32 v{V_Q}, v{xs+1}, v{T+1}
v_mov_b32 v{T}, v{V_S}
v_mov_b32 v{T+1}, v{V_Q}
v_mov_b32 v{CE+1}, 0
v_mov_b32 v{CE+2}, 0
v_permlane32_swap_b32 v{T+1}, v{V_Q}""".split("\n")]
    if k.stat != "mix":
        F0 += [I(a, f"v_permlane32_swap_b32 v{T}, v{V_S}"), I(a, f"v_add_f32 v{V_S}, v{V_S}, v{T}")]
    F0 += [I(a, s) for s in f"""v_add_f32 v{V_Q}, v{V_Q}, v{T+1}
v_mul_f32 v{V_S}, {f32(-1/448)}, v{V_S}
v_mul_f32 v{V_Q}, {f32(1/448)}, v{V_Q}
v_and_b32 v{T}, 0xffff0000, v{V_S}
v_fma_f32 v{V_Q}, -v{V_S}, v{V_S}, v{V_Q}
v_sub_f32 v{T+1}, v{V_S}, v{T}
v_max_f32 v{V_Q}, 0, v{V_Q}
v_cndmask_b32 v{T}, v{T}, v{T+1}, s[{S_HI}:{S_HI+1}]
v_add_f32 v{V_Q}, {f32(1e-5)}, v{V_Q}
v_cvt_pk_bf16_f32 v{XE}, v{T}, v{T}
v_rsq_f32 v{V_R}, v{V_Q}
v_mov_b32 v{CE+3}, 0""".split("\n")]
    if nA == 2:
        F0 += [I(a, f"v_mov_b32 v{CE+r}, 0") for r in (5, 6, 7)]
    F0.append(lambda: lg.wait("c"))
    for L in range(nA):
        F0 += [I(a, s) for s in ce_build(CE + 4 * L, T + 4 + 4 * L)]
    def r16(_=None):
        t0, t1 = XR, XR + 1
        l = [I(a, f"""s_lshl_b32 s{S_T2}, s{S_WAVE}, 8
s_add_u32 s{S_T2}, s{S_T2}, {DEAD}
v_lshl_add_u32 v{t0}, v{V_LANE}, 2, s{S_T2}"""),
             lambda: lg.issue("q", f"ds_write_b32 v{t0}, v{V_R}"),
             I(a, f"v_lshrrev_b32 v{t1}, 5, v{V_LANE}"),
             I(a, f"v_lshl_add_u32 v{t1}, v{t1}, 4, s{S_T2}")]
        for q in range(4):
            l.append(lambda q=q: lg.issue("q", f"ds_read_b128 v[{k.R16+4*q}:{k.R16+4*q+3}], v{t1} offset:{32*q}"))
        return l
    if G:
        F0 += [I(a, s) for s in f"""v_mul_f32 v{V_RI}, v{V_Q}, v{V_R}
v_mul_f32 v{V_C0}, {f32(GELU_C0)}, v{V_R}""".split("\n")]
    else:
        F0 += r16()[:2]
    for L in range(nA):
        F0.append(I(a, mf(k.ACC[L], CE + 4 * L, XE, ori[L])))
    if G:
        F0 += [I(a, s) for s in f"""v_mul_f32 v{V_C1}, v{V_R}, v{V_R}
v_mul_f32 v{V_C1}, v{V_C1}, v{V_R}
v_mul_f32 v{V_C1}, {f32(GELU_C1)}, v{V_C1}""".split("\n")]
    else:
        F0 += r16()[2:]
    F0 += [GAP, GAP, GAP]
    if not G:
        F0.append(lambda: lg.wait("q"))
    F0 += epilogue(a, vm, k, kinds[0], k.ACC[0], S_O)
    if nA == 2:
        F0 += epilogue(a, vm, k, kinds[1], k.ACC[1], S_O + 1)
    def fix(acc, orient, slot):
        return ([lambda: lg.issue("c", f"ds_read_b128 v[{T4}:{T4+3}], v{V_T0} offset:{slot*2048}"), GAP, lambda: lg.wait("c")] +
                [I(a, s) for s in ce_build(CE, T4)] + [I(a, "s_nop 1"), I(a, mf(acc, CE, XE, orient))])
    ev = {}
    fl = []
    NPT = len(PFL)
    def touch(i):
        def f():
            if PFROW:
                vm.issue("pf", f"buffer_load_dword v{V_DUM}, v{V_PF}, s[{S_X}:{S_X+3}], s{S_PFO} offen{NTP}")
                a(f"s_add_u32 s{S_PFO}, s{S_PFO}, {512 * 4096 // NPT}")
            else:
                vm.issue("pf", f"buffer_load_dword v{V_DUM}, v{V_PF}, s[{S_X}:{S_X+3}], s{S_PFO} offen offset:{i * 2048 // NPT}{NTP}")
        return f
    def wtouch():
        a(f"""s_mul_i32 s{S_T0}, s2, {8*224}
s_mul_i32 s{S_T1}, s{S_WAVE}, 224
s_add_u32 s{S_T0}, s{S_T0}, s{S_T1}
s_lshl_b32 s{S_T1}, s{S_T0}, 1""")
        vm.issue("pf", f"buffer_load_dword v{V_DUM}, v{V_L8}, s[{S_WA}:{S_WA+3}], s{S_T0} offen{NTO}")
        vm.issue("pf", f"buffer_load_dword v{V_DUM}, v{V_L8}, s[{S_WB}:{S_WB+3}], s{S_T1} offen{NTO}")
    def flag_check():
        vm.wait("cnt")
        a(f"""{lab}_CR:
v_cmp_eq_u32 vcc, 0, v{V_X0}
s_and_b64 vcc, vcc, s[{S_L+1}:{S_L+2}]
s_cbranch_vccnz {lab}_CW
{lab}_CX:""")
    def cnt_load(f):
        a(f"v_lshrrev_b32 v{V_X0}, 1, v{V_L8}")
        f(f"buffer_load_dword v{V_X0}, v{V_X0}, {dbg}, 0 offen sc1")
    ool = [f"""{lab}_CW:
s_addk_i32 s{S_SPIN}, -1
s_cmp_lt_i32 s{S_SPIN}, 0
s_cbranch_scc1 {lab}_CX""", lambda: cnt_load(a), f"""s_waitcnt vmcnt(0)
s_branch {lab}_CR"""]
    lateL = nA + 1
    dm = [line_dma(a, vm, lateL, b, RING, "wc") for b in range(7)]
    XA = XR + 2
    if G:
        F0 += [I(a, f"v_mov_b32 v{T}, v{V_S}"), I(a, f"v_mov_b32 v{T+1}, v{V_Q}"),
               I(a, f"s_lshl_b32 s{S_T0}, s{S_WAVE}, 9\ns_add_u32 s{S_T0}, s{S_T0}, {SCR + 4096}\nv_add_u32 v{XA}, s{S_T0}, v{V_L8}"),
               I(a, f"v_mov_b32 v{V_C0}, 1"),
               I(a, f"v_permlane32_swap_b32 v{T}, v{V_S}"), I(a, f"v_permlane32_swap_b32 v{T+1}, v{V_Q}"),
               I(a, f"v_add_f32 v{V_S}, v{V_S}, v{T}"), I(a, f"v_add_f32 v{V_Q}, v{V_Q}, v{T+1}"),
               lambda: lg.issue("w", f"ds_write_b64 v{XA}, v[{V_S}:{V_Q}]"),
               I(a, f"v_xor_b32 v{XA}, 2048, v{XA}")]
        def rec_store():
            a(f"""s_lshl_b32 s{S_T0}, s{S_CH}, 4
s_lshl_b32 exec_lo, 0xffff, s{S_T0}
s_mov_b32 exec_hi, 0""")
            vm.issue("rec", f"buffer_store_dwordx2 v[{V_S}:{V_Q}], v{V_L8}, {ws}, s{S_REC} offen sc1")
            a(f"s_mov_b64 exec, -1\ns_and_b32 s{S_REC}, s{S_REC}, 0xfffff000")
        FR_ = [lambda: lg.issue("x", f"ds_read_b64 v[{T}:{T+1}], v{XA}"), flag_check, GAP, lambda: lg.wait("x"),
               I(a, f"v_add_f32 v{V_S}, v{V_S}, v{T}"), I(a, f"v_add_f32 v{V_Q}, v{V_Q}, v{T+1}"), rec_store]
    else:
        F0.append(I(a, f"v_mov_b32 v{V_C0}, 1"))
    dm = [lambda: cnt_load(lambda t: vm.issue("cnt", t))] + dm
    def srdfix():
        if G:
            srd(a, S_X, P_SP, 2048 * 4096)
            srd(a, S_WA, P_WO, 448 * 896)
            srd(a, S_WB, P_WOUT, 896 * 896)
        a(f"""s_mov_b32 s{S_L+1}, 0x33333333
s_mov_b32 s{S_L+2}, 0x33333333""")
    ev[1] = pre
    ev[3] = [bar()]
    fl.append((0, 8, dm + [srdfix]))
    if G:
        for i, p in enumerate(PFL):
            if p >= 0:
                fl.append((p, p, [touch(i)]))
        if WPF >= 0:
            fl.append((WPF, WPF, [wtouch]))
    ev[12 - D] = [bar("wb")]
    PL = [V_X0, V_DA, XR, XR + 2, CE + 4, CE + 6, V_C1]
    def poll_issue(v):
        for i in range(7):
            t = f"buffer_load_dwordx2 v[{PL[i]}:{PL[i]+1}], v{V_L8}, {ws}, s{S_REC} offen offset:{i*512} sc1"
            if v: v.issue("pl", t)
            else: a(t)
    if nl == 2:
        fl.append((3, F0_END, F0))
        assert F0_END < 28 - D
        ev[28 - D] = [bar("wc")]
        fl.append((28 - D, 28 - D + 1, FR_))
        ev[28] = [lambda: lg.issue("w", f"ds_write_b32 v{V_CSA}, v{k.CSA} offset:2048")]
        ev[30] = [bar()]
        F1 = fix(k.ACC[1], ori[1], 1)
        if not ori[1]:
            rr = r16(V_X0)
            F1 = rr[:4] + F1 + [("min", 33)] + rr[4:]
        F1 += [GAP, GAP, GAP]
        if not ori[1]:
            F1.append(lambda: lg.wait("q"))
        F1 += epilogue(a, vm, k, kinds[1], k.ACC[1], S_O + 1)
        fl.append((30, F1_END, F1))
        assert POLL_AT >= 36
        ev[POLL_AT] = [lambda: poll_issue(vm)]
        def poll_check():
            vm.wait("pl")
            a(f"""{lab}_PR:
v_max3_u32 v{V_S}, v{PL[0]+1}, v{PL[1]+1}, v{PL[2]+1}
v_max3_u32 v{V_Q}, v{PL[3]+1}, v{PL[4]+1}, v{PL[5]+1}
v_max3_u32 v{V_S}, v{V_S}, v{V_Q}, v{PL[6]+1}
v_cmp_eq_u32 vcc, -1, v{V_S}
s_cbranch_vccnz {lab}_PW
{lab}_PX:""")
        ool += [f"""{lab}_PW:
s_addk_i32 s{S_SPIN}, -1
s_cmp_lt_i32 s{S_SPIN}, 0
s_cbranch_scc1 {lab}_PX""", lambda: poll_issue(None), f"s_waitcnt vmcnt(0)\ns_branch {lab}_PR"]
        ZF = [poll_check]
        for x, y in ((0, 1), (2, 3), (4, 5), (0, 2), (4, 6), (0, 4)):
            for h in range(2):
                ZF.append(I(a, f"v_add_f32 v{PL[x]+h}, v{PL[x]+h}, v{PL[y]+h}"))
        p0, p1 = PL[0], PL[1]
        z = k.ACC[0]
        ZF += [I(a, t) for t in f"""v_mov_b32 v{p1}, v{p0}
v_mov_b32 v{p1+1}, v{p0+1}
s_nop 0
v_permlane32_swap_b32 v{p1}, v{p0}
v_permlane32_swap_b32 v{p1+1}, v{p0+1}
v_add_f32 v{p0}, v{p0}, v{p1}
v_add_f32 v{p0+1}, v{p0+1}, v{p1+1}
v_mul_f32 v{p0}, {f32(-1/896)}, v{p0}
v_mul_f32 v{p0+1}, {f32(1/896)}, v{p0+1}
v_fma_f32 v{p0+1}, -v{p0}, v{p0}, v{p0+1}
v_max_f32 v{p0+1}, 0, v{p0+1}
v_add_f32 v{p0+1}, {f32(1e-5)}, v{p0+1}
v_rsq_f32 v{p0+1}, v{p0+1}
s_nop 0
v_mul_f32 v{p0}, v{p0}, v{p0+1}""".split("\n")]
        stz = store_tile(a, vm, "G", z, S_O)
        for hf in range(2):
            ZF += [I(a, f"v_fma_f32 v{z+r}, v{z+r}, v{p0+1}, v{p0}") for r in range(8 * hf, 8 * hf + 8)]
            ZF += [I(a, f"v_cvt_pk_bf16_f32 v{z+r}, v{z+2*r}, v{z+2*r+1}") for r in range(4 * hf, 4 * hf + 4)]
            ZF.append(stz[hf])
        fl.append((ZF0, ZF1, ZF))
    else:
        fl.append((3, 27, F0))
    pos = [0] * len(fl)
    for p in range(NS):
        for f in ev.get(p, []):
            f()
        if p in (14, 28, 42):
            st.mark(7 + (p - 14) // 14)
        lg.wait(f"r{p}")
        L = nA + p // 28
        b = k.BR + 4 * (p % NBR)
        a(mf(k.ACC[L], b, A0 + 4 * (p % 28), ori[L], p % 28 == 0))
        if p + D < NS:
            for f in rd(p + D):
                f()
        for n, (s0, s1, lst) in enumerate(fl):
            if p < s0:
                continue
            left = len(lst) - pos[n]
            cnt = left if p >= s1 else (left + (s1 - p)) // (s1 - p + 1)
            while cnt > 0 and pos[n] < len(lst):
                f = lst[pos[n]]
                if isinstance(f, tuple):
                    if p < f[1]:
                        break
                    pos[n] += 1
                    continue
                pos[n] += 1
                if f is GAP:
                    break
                f()
                cnt -= 1
            if p + 1 == 28 - D and lst is F0 and nl == 2:
                assert pos[n] == len(lst)
        if (p & 3) == 0:
            a(mf16(k.CSA, b, p % 28 == 0))
    for n, (s0, s1, lst) in enumerate(fl):
        assert pos[n] == len(lst), (n, pos[n], len(lst))
    st.fold()
    st.mark(10)
    def run(lst):
        for f in lst:
            if f is not GAP:
                f()
    LL = nA + nl - 1
    a(f"ds_write_b32 v{V_CSA}, v{k.CSA}")
    if G:
        vm.wait("stG")
        vm.q = ["st1"]
        if lab == "P1_A":
            a("P1_GT:")
            def last(mid):
                a("s_waitcnt lgkmcnt(0)\ns_barrier")
                lg.q = []
                st.mark(11)
                if mid:
                    mid()
                run(fix(k.ACC[LL], ori[LL], 0))
                a("s_nop 11")
                run(epilogue(a, vm, k, kinds[LL], k.ACC[LL], S_O + LL))
            hook_main(a, vm, st, last)
        else:
            st.pend = []
            a("s_branch P1_GT")
    else:
        vm.wait("wc")
        a("s_waitcnt lgkmcnt(0)\ns_barrier")
        lg.q = []
        st.mark(11)
        a(f"s_cmp_eq_u32 s{S_CH}, 0\ns_cbranch_scc0 {lab}_CH1")
        v0, l0 = vm.q[:], lg.q[:]
        run(fix(k.ACC[2], ori[2], 0))
        a("s_nop 11")
        run(epilogue(a, vm, k, kinds[2], k.ACC[2], S_O + 2))
        a(f"s_barrier\ns_branch {lab}_J")
        a(f"{lab}_CH1:")
        vm.q, lg.q = v0, l0
        for i in range(4):
            a(f"v_add_u32 v{WR+i}, {RING}, v{WR+i}")
            a(f"v_xor_b32 v{WR+i}, s{S_T3}, v{WR+i}")
        for p in range(D):
            run(rd(p))
        F = fix(k.ACC[2], ori[2], 0) + [GAP, GAP, GAP] + epilogue(a, vm, k, kinds[2], k.ACC[2], S_O + 2)
        q = 0
        for p in range(28):
            lg.wait(f"r{p}")
            b = k.BR + 4 * (p % NBR)
            a(mf(k.ACC[3], b, A0 + 4 * p, ori[3], p == 0))
            if p + D < 28:
                run(rd(p + D))
            for c in range(3):
                if q < len(F):
                    f = F[q]; q += 1
                    if f is GAP: break
                    f()
            if (p & 3) == 0:
                a(mf16(k.CSA, b, p == 0))
        assert q == len(F)
        a(f"ds_write_b32 v{V_CSA}, v{k.CSA} offset:2048\ns_waitcnt lgkmcnt(0)\ns_barrier")
        lg.q = []
        run(fix(k.ACC[3], ori[3], 1))
        a("s_nop 11")
        run(epilogue(a, vm, k, kinds[3], k.ACC[3], S_O + 3))
        a(f"{lab}_J:")
        vm.q = ["stV"]
        flag_check()
        hook_att(a, vm, st)
    for o in ool:
        if callable(o):
            o()
        else:
            a(o)

TAILQ = []
GAP = object()

def kind_start(a, vm, k, st):
    nA = k.nA
    a(f"""s_mul_i32 s{S_MR}, s{S_WAVE}, {k.WST}
v_add_u32 v{V_X1}, {8*896 - (1+nA)*1024}, v{V_X1}""")
    if nA == 1:
        a(f"""s_mul_i32 s{S_T2}, s{S_WAVE}, {8*3584}
s_lshl_b32 s{S_T3}, s{S_G}, 7
s_add_u32 s{S_L+2}, s{S_T2}, s{S_T3}
s_add_u32 s{S_L}, s{S_L+2}, {1792 - 1024}
s_add_u32 s{S_L+1}, s{S_T1}, s{S_T3}
s_mov_b32 s{S_A64}, {64*3584}
v_mul_u32_u24 v{V_DA}, 3584, v{T4}
v_add_u32 v{V_DA}, v{V_DA}, v{T4+2}
s_waitcnt lgkmcnt(0)""")
        srd(a, S_WA, P_WIN, 448 * 3584)
    else:
        a(f"""s_and_b32 s{S_T3}, s{S_G}, 1
s_lshl_b32 s{S_T3}, s{S_T3}, 9
s_add_u32 s{S_T3}, s{S_T3}, s{S_T1}
s_add_u32 s{S_L}, s{S_T3}, {1792 - 1024}
s_add_u32 s{S_L+1}, s{S_T3}, {1792 + 256 - 2048}
s_add_u32 s{S_L+2}, s{S_T3}, {1792 + 128}
s_add_u32 s{S_L+3}, s{S_T1}, {1792 + 384}
s_mov_b32 s{S_A64}, {B64}
v_mov_b32 v{V_DA}, v{V_DB}
s_waitcnt lgkmcnt(0)""")
        srd(a, S_WA, P_QKV, 448 * 2688)
        srd(a, S_WB, P_QKV, 448 * 2688)
    srd(a, S_X, P_X, 2048 * 896)
    st.mark(2)
    for j in range(k.DEPTH):
        for f in piece_dma(a, vm, k, j):
            f()
        if j == 0:
            lab = a.label("P1_T")
            strd = 3584 if nA == 1 else 2688
            if TOUCH:
                a(f"""s_and_b32 s{S_T2}, s{S_RB}, 3
s_mul_i32 s{S_T2}, s{S_T2}, 112
s_and_b32 s{S_T3}, s{S_WAVE}, 1
s_lshl_b32 s{S_T3}, s{S_T3}, 6
s_add_u32 s{S_T2}, s{S_T2}, s{S_T3}
s_lshl_b32 s{S_T3}, s{S_WAVE}, 3
s_sub_u32 s{S_T2}, s{S_T2}, s{S_T3}
s_mul_i32 s{S_T2}, s{S_T2}, {strd}
s_add_u32 s{S_T2}, s{S_T2}, s{S_L}
s_and_b32 s{S_T3}, s{S_WAVE}, {2 * (nA - 1)}
s_lshl_b32 s{S_T3}, s{S_T3}, 7
s_add_u32 s{S_T2}, s{S_T2}, s{S_T3}
s_add_u32 s{S_T2}, s{S_T2}, {(1024 - 64 * strd) & 0xffffffff}
v_mul_u32_u24 v{XR}, {strd}, v{V_LANE}
s_lshl_b32 s{S_T3}, s{S_RB}, 2
s_add_u32 s{S_T3}, s{S_T3}, s{S_PK}
s_mul_i32 s{S_T3}, s{S_T3}, {32*896}
s_lshl_b32 s{S_T1}, s{S_WAVE}, 13
s_add_u32 s{S_T3}, s{S_T3}, s{S_T1}
v_lshlrev_b32 v{XR+1}, 7, v{V_LANE}""")
            if PBAR:
                a("s_barrier")
            if TOUCH:
                a(f"""s_cmp_ge_u32 s{S_WAVE}, 4
s_cbranch_scc1 {lab}w
buffer_load_dword v{A0+96}, v{XR+1}, s[{S_X}:{S_X+3}], s{S_T3} offen
s_branch {lab}e
{lab}w:""")
                vm.issue("t0", f"""buffer_load_dword v{A0+96}, v{XR}, s[{S_WA}:{S_WA+3}], s{S_T2} offen
{lab}e:""")
    if nA == 1:
        srd(a, S_WB, P_QKV, 448 * 2688)
    if WSB:
        a(f"s_add_u32 s{P_WS}, s{P_WS}, {WSB}\ns_addc_u32 s{P_WS+1}, s{P_WS+1}, 0")
    srd(a, S_WS, P_WS, WS_SIZE)
    srd(a, S_SP, P_DBG, 256)
    a(f"""s_lshl_b32 s{S_T0}, s{S_CH}, 1
s_xor_b32 s{S_XO}, s{S_T0}, s{S_RW}
v_and_b32 v{T4}, 31, v{V_LANE}
v_lshrrev_b32 v{T4+1}, 5, v{V_LANE}
v_bfe_u32 v{T4+2}, v{V_LANE}, 1, 3
v_xor_b32 v{T4+2}, v{T4+2}, v{T4+1}
s_lshl_b32 s{S_T1}, s{S_XO}, 1
v_xor_b32 v{T4+2}, s{S_T1}, v{T4+2}
v_lshlrev_b32 v{T4+2}, 4, v{T4+2}
v_and_b32 v{T4+3}, 7, v{V_LANE}
v_lshl_add_u32 v{T4+2}, v{T4+3}, 7, v{T4+2}
v_bfe_u32 v{T4+3}, v{V_LANE}, 3, 1
v_mul_u32_u24 v{XR}, {(1+nA)*1024}, v{T4+3}
v_bfe_u32 v{T4+3}, v{V_LANE}, 4, 1
v_mul_u32_u24 v{T4+3}, {k.WST}, v{T4+3}
s_mul_i32 s{S_T1}, s{S_RW}, {2*k.WST}
s_add_u32 s{S_T1}, s{S_T1}, {RING}
v_add3_u32 v{T4+3}, v{T4+3}, v{XR}, s{S_T1}""")
    for i in range(4):
        a(f"v_xor_b32 v{XR+i}, {i << 5}, v{T4+2}")
        a(f"v_add_u32 v{XR+i}, v{T4+3}, v{XR+i}")
    a(f"""v_lshlrev_b32 v{V_KO}, 5, v{T4}
v_lshl_add_u32 v{V_KO}, v{T4+1}, 4, v{V_KO}
s_lshl_b32 s{S_T1}, s{S_CH}, 6
v_and_b32 v{T4}, 3, v{V_LANE}
v_lshlrev_b32 v{T4}, 3, v{T4}
v_and_b32 v{T4+2}, 16, v{V_LANE}
v_lshl_add_u32 v{T4}, v{T4+2}, 1, v{T4}
v_and_b32 v{T4+2}, 8, v{V_LANE}
v_lshlrev_b32 v{T4+2}, 3, v{T4+2}
v_xor_b32 v{T4+2}, s{S_T1}, v{T4+2}
v_or_b32 v{T4}, v{T4}, v{T4+2}
v_bfe_u32 v{T4+2}, v{V_LANE}, 2, 2
v_lshl_add_u32 v{T4}, v{T4+2}, 7, v{T4}
v_lshl_add_u32 v{V_T0}, v{T4+1}, 10, v{T4}
v_mul_u32_u24 v{T4+1}, {k.WST}, v{T4+1}
v_add_u32 v{T4}, v{T4}, v{T4+1}""")
    for i in range(4):
        a(f"""s_xor_b32 s{S_T2}, s{S_XO}, {i}
s_mul_i32 s{S_T2}, s{S_T2}, {2*k.WST}
s_add_u32 s{S_T2}, s{S_T2}, {RING + 1024}
v_add_u32 v{WR+i}, s{S_T2}, v{T4}""")
    a(f"""v_lshlrev_b32 v{V_L16}, 4, v{V_LANE}
v_lshlrev_b32 v{V_L8}, 3, v{V_LANE}
s_lshl_b32 s{S_T0}, s{S_CH}, 10
s_lshl_b32 s{S_T1}, s{S_RW}, 2
s_add_u32 s{S_T0}, s{S_T0}, s{S_T1}
s_add_u32 s{S_T0}, s{S_T0}, {SCR}
v_add_u32 v{V_CSA}, s{S_T0}, v{V_L16}
v_mov_b32 v{V_S}, 0
v_mov_b32 v{V_Q}, 0
v_mov_b32 v{V_R}, 0
v_mov_b32 v{V_C0}, 0
s_mov_b32 s{S_HI}, 0xf0f00f0f
s_mov_b32 s{S_HI+1}, 0xf0f00f0f
v_mov_b32 v{T4}, 0x3f803f80
v_cndmask_b32 v{SEL}, 0, v{T4}, s[{S_HI}:{S_HI+1}]
v_cndmask_b32 v{SEL+1}, 0, v{T4}, s[{S_HI}:{S_HI+1}]
v_cndmask_b32 v{SEL+2}, 0, v{T4}, s[{S_HI}:{S_HI+1}]
v_cndmask_b32 v{SEL+3}, 0, v{T4}, s[{S_HI}:{S_HI+1}]
s_mov_b32 s{S_HI}, 0
s_mov_b32 s{S_HI+1}, -1
v_mov_b32 v{XE+1}, 0
v_mov_b32 v{XE+2}, 0
v_mov_b32 v{XE+3}, 0
v_mov_b32 v{V_DUM}, 1
s_lshl_b32 s{S_MW}, s{S_WAVE}, 10
s_mov_b32 s{S_SPIN}, {E("SPIN", "0x8000")}
s_lshl_b32 s{S_T0}, s{S_RB}, 2
s_add_u32 s{S_T0}, s{S_T0}, s{S_RW}
s_mul_i32 s{S_T2}, s{S_T0}, 28672""")
    if nA == 1:
        nper = -(-8192 // len(PFL) // 224)
        lg2 = 4 if PFROW else {1: 4, 2: 3, 4: 2, 8: 1}[len(PFL)]
        a(f"""; w_sp touch: line L = (idx*8 + wave)*n + lane*n/64 ; base y*512*4096 + kh*2048
s_and_b32 s{S_T1}, s2, -8
s_add_u32 s{S_T1}, s{S_T1}, s{S_WAVE}
s_mul_i32 s{S_T1}, s{S_T1}, {nper}
v_mul_u32_u24 v{V_PF}, {nper}, v{V_LANE}
v_lshrrev_b32 v{V_PF}, 6, v{V_PF}
v_add_u32 v{V_PF}, s{S_T1}, v{V_PF}
v_lshrrev_b32 v{T4}, {lg2}, v{V_PF}
v_and_b32 v{V_PF}, {(1 << lg2) - 1}, v{V_PF}
v_lshlrev_b32 v{V_PF}, 7, v{V_PF}
v_lshl_add_u32 v{V_PF}, v{T4}, 12, v{V_PF}
s_and_b32 s{S_T1}, s2, 6
s_lshl_b32 s{S_PFO}, s{S_T1}, 20
s_and_b32 s{S_T1}, s2, 1
s_lshl_b32 s{S_T1}, s{S_T1}, 11
s_add_u32 s{S_PFO}, s{S_PFO}, s{S_T1}
v_mov_b32 v{V_L2E}, {f32(LOG2E)}
s_lshl_b32 s{S_T3}, s{S_G}, 1
s_add_u32 s{S_T3}, s{S_T3}, s{S_CH}
s_lshl_b32 s{S_O}, s{S_T3}, 17
s_lshl_b32 s{S_T1}, s{S_T0}, 11
s_add_u32 s{S_O}, s{S_O}, s{S_T1}
; z1
s_lshl_b32 s{S_T1}, s{S_T3}, 10
s_add_u32 s{S_T1}, s{S_T1}, s{S_T2}
s_lshl_b32 s{S_O+2}, s{S_T1}, 1
s_add_u32 s{S_O+2}, s{S_O+2}, {WS_Z1}""")
        assert WS_Z2 == 0
        if k.kinds[1] == "Q":
            a(f"""s_lshl_b32 s{S_T1}, s{S_T3}, 11
s_add_u32 s{S_T1}, s{S_T1}, s{S_T2}
s_add_u32 s{S_O+1}, s{S_T1}, {WS_Q}""")
        else:
            a(f"s_add_u32 s{S_O+1}, s{S_T1}, {WS_K - 14*1024}")
        a(f"""; record: ST + st*4096 + g*256
s_lshl_b32 s{S_T0}, s{S_T0}, 4
s_add_u32 s{S_T0}, s{S_T0}, s{S_G}
s_lshl_b32 s{S_T0}, s{S_T0}, 8
s_add_u32 s{S_REC}, s{S_T0}, {WS_ST}
s_and_b32 s{S_T0}, s{S_G}, 14
s_lshr_b32 s{S_T1}, s{S_RB}, 3
s_add_u32 s{S_T0}, s{S_T0}, s{S_T1}
s_lshl_b32 s{S_T0}, s{S_T0}, 4
s_and_b32 s{S_T1}, s{S_G}, 1
s_add_u32 s{S_T0}, s{S_T0}, s{S_T1}
s_lshl_b32 s{S_T0}, s{S_T0}, 3
s_and_b32 s{S_T1}, s{S_RB}, 7
s_add_u32 s{S_T0}, s{S_T0}, s{S_T1}
s_lshl_b32 s{S_T0}, s{S_T0}, 2
s_add_u32 s{S_CNT}, s{S_T0}, {WS_FZ}""")
    else:
        a(f"""; tiles 8(g-14) + ch + 0,4,2 ; extra tile 6 + (g-14)
s_and_b32 s{S_T0}, s{S_G}, 1
s_lshl_b32 s{S_T1}, s{S_T0}, 3
s_add_u32 s{S_T1}, s{S_T1}, s{S_CH}
s_lshl_b32 s{S_T1}, s{S_T1}, 10
s_add_u32 s{S_T2}, s{S_T2}, {WS_V}
s_add_u32 s{S_O}, s{S_T1}, s{S_T2}
s_add_u32 s{S_O+1}, s{S_O}, 4096
s_add_u32 s{S_O+2}, s{S_O}, 2048
s_lshl_b32 s{S_T1}, s{S_T0}, 10
s_add_u32 s{S_T1}, s{S_T1}, s{S_T2}
s_add_u32 s{S_O+3}, s{S_T1}, 6144
s_lshl_b32 s{S_CNT}, s{S_RB}, 2
s_add_u32 s{S_CNT}, s{S_CNT}, s{S_T0}
s_lshl_b32 s{S_CNT}, s{S_CNT}, 2
s_lshl_b32 s{S_T1}, s{S_RB}, 1
s_add_u32 s{S_T1}, s{S_T1}, s{S_T0}
s_lshl_b32 s{S_T1}, s{S_T1}, 3
s_add_u32 s{S_T1}, s{S_T1}, s{S_WAVE}
s_lshl_b32 s{S_T2}, s{S_T1}, 8
s_add_u32 s{S_T2}, s{S_T2}, {WS_FL}
s_lshl_b32 s{S_T1}, s{S_T1}, 10
s_add_u32 s{S_REC}, s{S_T1}, {WS_ST}
s_xor_b32 s{S_T0}, s{S_T0}, 1
s_lshl_b32 s{S_T3}, s{S_T0}, 6
v_mov_b32 v{T4}, -1
v_mov_b32 v{T4+1}, -1
v_mov_b32 v{T4+2}, -1
v_mov_b32 v{T4+3}, -1
v_lshlrev_b32 v{V_L2E}, 2, v{V_LANE}""")
        vm.issue("clr", f"buffer_store_dwordx4 v[{T4}:{T4+3}], v{V_L16}, s[{S_WS}:{S_WS+3}], s{S_REC} offen sc1")
        vm.issue("clr", f"buffer_store_dword v{XE+1}, v{V_L2E}, s[{S_WS}:{S_WS+3}], s{S_T2} offen sc1")
    a(f"""; own flags: FL + rb*2048 + g*4
s_lshl_b32 s{S_FL}, s{S_RB}, 9
s_add_u32 s{S_FL}, s{S_FL}, s{S_G}
s_lshl_b32 s{S_FL}, s{S_FL}, 2
s_add_u32 s{S_FL}, s{S_FL}, {WS_FL}""")

PBAR = int(E('P1_PBAR', '1'))
def gen_p1(a, name, st, hook_main, hook_att):
    kernel_begin(a, name)
    a(f"""s_cmp_ge_u32 s2, 256
s_cbranch_scc1 K_EXIT
s_load_dwordx16 s[64:79], s[0:1], 0
s_load_dwordx4 s[56:59], s[0:1], 72
s_load_dwordx2 s[60:61], s[0:1], 64""")
    st.mark(0, True)
    st.mark(1)
    st.init()
    a(f"""v_and_b32 v{V_LANE}, 63, v0
v_lshrrev_b32 v{V_T0}, 6, v0
s_bfe_u32 s{S_T0}, s2, 0x20001
v_readfirstlane_b32 s{S_WAVE}, v{V_T0}
s_lshr_b32 s{S_T1}, s2, 3
s_mul_i32 s{S_T2}, s{S_T0}, 28
s_add_u32 s{S_T2}, s{S_T2}, s{S_T1}
s_lshr_b32 s{S_G}, s{S_T2}, 3
s_and_b32 s{S_RB}, s{S_T2}, 7
s_and_b32 s{S_PK}, s{S_G}, 3
s_lshr_b32 s{S_T2}, s{S_T0}, 1
s_lshl_b32 s{S_T0}, s{S_T0}, 2
s_xor_b32 s{S_T0}, s{S_T0}, s{S_T1}
s_and_b32 s{S_T0}, s{S_T0}, 7
s_add_u32 s{S_T3}, s{S_T2}, 14
s_xor_b32 s{S_T2}, s{S_T2}, 3
s_cmp_ge_u32 s{S_T1}, 28
s_cselect_b32 s{S_G}, s{S_T3}, s{S_G}
s_cselect_b32 s{S_RB}, s{S_T0}, s{S_RB}
s_cselect_b32 s{S_PK}, s{S_T2}, s{S_PK}
s_and_b32 s{S_T0}, s2, 1
s_lshl_b32 s{S_T0}, s{S_T0}, 3
s_add_u32 s{S_RB}, s{S_RB}, s{S_T0}
s_and_b32 s{S_RW}, s{S_WAVE}, 3
s_lshr_b32 s{S_CH}, s{S_WAVE}, 2
s_lshl_b32 s{S_T0}, s{S_RB}, 3
s_add_u32 s{S_T0}, s{S_T0}, s{S_WAVE}
s_mul_i32 s{S_XB}, s{S_T0}, {16*896}
s_mul_i32 s{S_T1}, s{S_WAVE}, {8*2688}
v_lshrrev_b32 v{T4}, 3, v{V_LANE}
v_and_b32 v{T4+1}, 7, v{V_LANE}
v_lshrrev_b32 v{T4+2}, 4, v{V_LANE}
v_xor_b32 v{T4+2}, v{T4+2}, v{T4+1}
v_mul_u32_u24 v{V_X0}, 896, v{T4}
v_xor_b32 v{T4+3}, 4, v{T4+2}
v_lshl_add_u32 v{V_X1}, v{T4+3}, 4, v{V_X0}
v_lshl_add_u32 v{V_X0}, v{T4+2}, 4, v{V_X0}
v_lshlrev_b32 v{T4+2}, 1, v{T4}
v_and_b32 v{T4+2}, 4, v{T4+2}
v_xor_b32 v{T4+2}, v{T4+2}, v{T4+1}
v_lshlrev_b32 v{T4+2}, 4, v{T4+2}
v_mul_u32_u24 v{V_DB}, 2688, v{T4}
v_add_u32 v{V_DB}, v{V_DB}, v{T4+2}
s_cmp_ge_u32 s{S_G}, 14
s_cbranch_scc1 P1_KC
s_cmp_ge_u32 s{S_G}, 7
s_cbranch_scc1 P1_KB""")
    for lab, kinds in (("P1_A", "GQL"), ("P1_B", "GKL"), ("P1_C", "VVVV")):
        a(f"{lab.replace('_', '_K')}:")
        k = K(kinds)
        vm = VM(a)
        s2 = st.copy()
        kind_start(a, vm, k, s2)
        kind_body(a, vm, k, s2, lab, hook_main, hook_att)
```

```python
from common import *
import os
R1 = 0
RING = 57344
SCR = RING + 57344
DEAD = SCR + 8192
P1_LDS = 163840
P1_VGPR = 256
E = os.environ.get
ROTMODE = 1
STORE_FLAGS = E("SF", " sc1")
PFL = [int(x) for x in E("P1_PFL", "9,22").split(",")]
PFROW = int(E("P1_PFROW", "0"))
WPF = int(E("P1_WPF", "13"))
NTP, NTX, NTW, NTO = [" nt" if c == "1" else "" for c in E("P1_NT", "1000")]
NTQ = E("P1_NTQ", "0000")
WSB = int(E("WSB", "0"), 0)
CSTAT = E("P1_CSTAT", "valu")
SCH = {"E": [int(x) for x in E("P1_SE", "17,28,32,37,38,52,51").split(",")],
       "L": [int(x) for x in E("P1_SL", "22,46,50,55,30,43,-1").split(",")]}
LATEF = int(E("P1_LATEF", "2"))
PSL = int(E("P1_PSL", "3"))
RTL = [int(x) for x in E("P1_RTL", "-1,-1,-1,-1").split(",")]
TOUCH = int(E("P1_TOUCH", "0"))

P_X, P_QKV, P_WO, P_WIN, P_SP, P_BSP, P_WOUT, P_DBG, P_WS, P_OUT = 64, 66, 68, 72, 74, 76, 78, 56, 58, 60
X = E("P1_X", "")

V_LANE = 1
V_X0, V_X1, V_DA, V_DB = 2, 3, 4, 5
XR, WR = 6, 10
V_L16, V_T0 = 14, 15
A0 = 16
V_S, V_Q = 224, 225
V_R, V_C0, V_C1, V_RI, V_L2E = 226, 227, 228, 229, 230
V_PF = 0
SEL = 232
XE, CE = 236, 240
T4 = 248
V_KO, V_L8, V_CSA, V_DUM = 252, 253, 254, 255

S_SP = 4
S_PFO, S_CNT, S_REC, S_FL = 8, 9, 10, 11
S_X, S_WA, S_WB, S_WS = 12, 16, 20, 24
S_RB, S_G, S_WAVE, S_RW, S_CH = 28, 29, 30, 31, 32
S_T0, S_T1, S_T2, S_T3 = 33, 34, 35, 36
S_PK = 37
S_XB = 38
S_L = 39
S_A64 = 43
S_MR, S_MW = 44, 45
S_XO = 46
S_O = 47
S_SA = 52
S_SPIN = 53
S_HI = 54
B64 = 64 * 2688

class K:
    def __init__(s, kinds):
        s.kinds = kinds
        s.nA = 2 if kinds[0] == "V" else 1
        s.WST = (2 + s.nA) * 1024
        s.SLOT = 8 * s.WST
        s.NSL = 98304 // s.SLOT
        s.DEPTH = s.NSL - 1
        s.ori = [k in "GLQ" for k in kinds]
        s.WB, s.CV, s.CSA = 160, 212, 220
        if s.nA == 1:
            s.ACC = [128, 144, 160]
            s.BR, s.TMP, s.R16, s.XS = 176, 196, A0, CE + 4
            s.stat = E("P1_ASTAT", "mix")
        else:
            s.ACC = [128, 144, 160, 128]
            s.BR, s.TMP, s.R16, s.XS = 192, 176, 176, 228
            s.stat = CSTAT
NBR = 5

class LG:
    def __init__(self, a):
        self.a, self.q = a, []
    def issue(self, tag, text):
        self.a(text)
        self.q.append(tag)
    def wait(self, *tags):
        last = -1
        for i, t in enumerate(self.q):
            if t in tags:
                last = i
        if last < 0:
            return
        n = min(15, len(self.q) - 1 - last)
        self.a(f"s_waitcnt lgkmcnt({n})")
        self.q = self.q[len(self.q) - n:] if n else []
    def all(self):
        if self.q:
            self.a("s_waitcnt lgkmcnt(0)")
        self.q = []
    def copy(self):
        v = LG(self.a)
        v.q = list(self.q)
        return v

def mf(acc, w, x, orient, first=False):
    c = "0" if first else f"v[{acc}:{acc+15}]"
    if orient:
        return f"v_mfma_f32_32x32x16_bf16 v[{acc}:{acc+15}], v[{w}:{w+3}], v[{x}:{x+3}], {c}"
    return f"v_mfma_f32_32x32x16_bf16 v[{acc}:{acc+15}], v[{x}:{x+3}], v[{w}:{w+3}], {c}"

def mf16(c, b, first):
    return f"v_mfma_f32_16x16x32_bf16 v[{c}:{c+3}], v[{SEL}:{SEL+3}], v[{b}:{b+3}], " + ("0" if first else f"v[{c}:{c+3}]")

def adv_pk(a):
    if ROTMODE != 1:
        a(f"""s_add_u32 s{S_PK}, s{S_PK}, 1
s_cmp_eq_u32 s{S_PK}, 7
s_cselect_b32 s{S_PK}, 0, s{S_PK}""")

def line_src(L):
    if L == 1:
        return V_DB, S_WB, str(B64)
    return V_DA, S_WA, f"s{S_A64}"

def w_off(a, L, dst):
    v, s, st = line_src(L)
    if ROTMODE == 1:
        return S_L + L
    a(f"s_mul_i32 s{dst}, s{S_PK}, {st}\ns_add_u32 s{dst}, s{dst}, s{S_L+L}")
    return dst

def w_adv(a, L):
    if ROTMODE == 1:
        a(f"s_add_u32 s{S_L+L}, s{S_L+L}, {line_src(L)[2]}")

def piece_dma(a, vm, k, j):
    sl = RING + (j % k.NSL) * k.SLOT
    def x0():
        a(f"s_add_u32 m0, s{S_MR}, {sl}")
        if ROTMODE == 1:
            a(f"s_add_u32 s{S_T0}, s{S_XB}, {128 * j}")
        else:
            a(f"s_lshl_b32 s{S_T0}, s{S_PK}, 7\ns_add_u32 s{S_T0}, s{S_T0}, s{S_XB}")
        vm.issue(f"p{j}", f"buffer_load_dwordx4 v{V_X0}, s[{S_X}:{S_X+3}], s{S_T0} offen{NTX} lds")
    def x1():
        vm.issue(f"p{j}", f"buffer_load_dwordx4 v{V_X1}, s[{S_X}:{S_X+3}], s{S_T0} offen offset:{(1+k.nA)*1024}{NTX} lds")
    def w(L):
        def f():
            v, s, _ = line_src(L)
            o = w_off(a, L, S_T1)
            vm.issue(f"p{j}", f"buffer_load_dwordx4 v{v}, s[{s}:{s+3}], s{o} offen offset:{(1+L)*1024}{NTW} lds")
            w_adv(a, L)
            if L == k.nA - 1:
                adv_pk(a)
        return f
    return [x0, x1] + [w(L) for L in range(k.nA)]

def line_dma(a, vm, L, b, base, tag):
    def f():
        v, s, _ = line_src(L)
        a(f"s_add_u32 m0, s{S_MW}, {base + b * 8192}")
        o = w_off(a, L, S_T1)
        if ROTMODE == 1:
            a("s_nop 0")
        vm.issue(tag, f"buffer_load_dwordx4 v{v}, s[{s}:{s+3}], s{o} offen{NTW} lds")
        w_adv(a, L)
        adv_pk(a)
    return f

def I(a, s):
    return lambda: a(s)

def spread(n, lst):
    return [lst[len(lst) * i // n: len(lst) * (i + 1) // n] for i in range(n)]

def ce_build(ce, src):
    return [f"v_add_f32 v{src}, v{src}, v{src+1}",
            f"v_add_f32 v{src+2}, v{src+2}, v{src+3}",
            f"v_add_f32 v{src}, v{src}, v{src+2}",
            f"v_and_b32 v{src+1}, 0xffff0000, v{src}",
            f"v_sub_f32 v{src}, v{src}, v{src+1}",
            f"v_cvt_pk_bf16_f32 v{ce}, v{src+1}, v{src}"]

def store_tile(a, vm, kind, src, so):
    tg = "st" + kind
    ws = f"s[{S_WS}:{S_WS+3}]"
    l = []
    if kind in "GL":
        l.append(lambda: vm.issue(tg, f"buffer_store_dwordx4 v[{src}:{src+3}], v{V_L16}, {ws}, s{so} offen{STORE_FLAGS}"))
        l.append(lambda: vm.issue(tg, f"buffer_store_dwordx4 v[{src+4}:{src+7}], v{V_L16}, {ws}, s{so} offen offset:1024{STORE_FLAGS}"))
    elif kind == "Q":
        for i in range(4):
            l.append(lambda i=i: vm.issue(tg, f"buffer_store_dwordx2 v[{src+2*i}:{src+2*i+1}], v{V_L8}, {ws}, s{so} offen offset:{512*i}{STORE_FLAGS}"))
    else:
        l.append(lambda: vm.issue(tg, f"buffer_store_dwordx4 v[{src}:{src+3}], v{V_KO}, {ws}, s{so} offen{STORE_FLAGS}"))
        def second():
            a(f"s_add_u32 s{so}, s{so}, 14336")
            vm.issue(tg, f"buffer_store_dwordx4 v[{src+4}:{src+7}], v{V_KO}, {ws}, s{so} offen{STORE_FLAGS}")
        l.append(second)
    return l

def epilogue(a, vm, k, kind, acc, so):
    T = k.TMP
    R = (lambda r: V_R) if kind in "GLQ" else (lambda r: k.R16 + r)
    s = []
    for h in range(2):
        rs = range(8 * h, 8 * h + 8)
        if kind == "G":
            s += [f"v_mul_f32 v{T+r}, v{acc+r}, v{acc+r}" for r in rs]
            s += [f"v_fma_f32 v{T+r}, v{T+r}, v{V_C1}, v{V_C0}" for r in rs]
            s += [f"v_mul_f32 v{T+r}, v{T+r}, v{acc+r}" for r in rs]
            s += [f"v_exp_f32 v{T+r}, v{T+r}" for r in rs]
            s += [f"v_fma_f32 v{T+r}, v{T+r}, v{V_RI}, v{V_RI}" for r in rs]
            s += [f"v_rcp_f32 v{T+r}, v{T+r}" for r in rs]
            s += [f"v_mul_f32 v{acc+r}, v{T+r}, v{acc+r}" for r in rs]
            for r in rs:
                s.append(f"v_add_f32 v{V_S}, v{V_S}, v{acc+r}" if r else f"v_mov_b32 v{V_S}, v{acc}")
                s.append(f"v_fmac_f32 v{V_Q}, v{acc+r}, v{acc+r}" if r else f"v_mul_f32 v{V_Q}, v{acc}, v{acc}")
        elif kind in "QK":
            s += [f"v_fmaak_f32 v{acc+r}, v{acc+r}, v{R(r)}, {f32(1e-6)}" for r in rs]
            s += [f"v_fmaak_f32 v{T+r}, v{acc+r}, v{V_L2E}, {f32(-1e-6*LOG2E)}" for r in rs]
            s += [f"v_exp_f32_e64 v{T+r}, v{T+r} clamp" for r in rs]
            s += [f"v_max_f32 v{acc+r}, {f32(1e-6)}, v{acc+r}" for r in rs]
            s += [f"v_add_f32 v{acc+r}, v{acc+r}, v{T+r}" for r in rs]
        else:
            s += [f"v_mul_f32 v{acc+r}, v{acc+r}, v{R(r)}" for r in rs]
    l = [I(a, x) for x in s]
    if kind != "G":
        l += [I(a, f"v_cvt_pk_bf16_f32 v{k.CV+r}, v{acc+2*r}, v{acc+2*r+1}") for r in range(8)]
        l += store_tile(a, vm, kind, k.CV, so)
    return l

def phase_a(a, vm, lg, k, st, tail_fill):
    nA = k.nA
    late = [line_dma(a, vm, nA, b, R1, "wa" if b < 3 else "wb") for b in range(7)]
    lsp = spread(k.DEPTH, late) if k.DEPTH == 3 else [late[:4], late[4:]]
    if k.DEPTH == 3:
        lsp = [late[:3], late[3:5], late[5:]]
    XS = k.XS
    for j in range(8):
        main, reads, dots, dmas, extra = [], [], [], [], []
        if j < 7:
            vm.wait(f"p{j}")
            a("s_barrier")
            if j in (0, 3, 6):
                st.mark(3 + j // 3)
            so = (j % k.NSL) * k.SLOT
            for i in range(4):
                x = A0 + 16 * j + 4 * i
                xr, xo = (XR + i, so) if so < 65536 else (None, None)
                reads.append(("x", x, i, so))
                for L in range(nA):
                    b = k.WB + 16 * nA * (j & 1) + 16 * L + 4 * i
                    reads.append(("w", b, i, so + L * 1024))
                    reads.append(("w", b + 2, i, so + L * 1024 + 512))
            def rd(t, r, i, off):
                def f():
                    if t == "x":
                        lg.issue("a", f"ds_read_b128 v[{r}:{r+3}], v{XR+i} offset:{off - hi(off)}")
                    else:
                        lg.issue("a", f"ds_read_b64_tr_b16 v[{r}:{r+1}], v{WR+i} offset:{off - hi(off)}")
                return f
            hi = lambda off: 49152 if so >= 49152 else 0
            prev = ((j - 1) % k.NSL) * k.SLOT if j else 0
            if (prev >= 49152) != (so >= 49152):
                op = "v_add_u32" if so >= 49152 else "v_subrev_u32"
                for r in list(range(XR, XR + 4)) + list(range(WR, WR + 4)):
                    a(f"{op} v{r}, 49152, v{r}")
            reads = [rd(*r) for r in reads]
            if j + k.DEPTH < 7:
                dmas = piece_dma(a, vm, k, j + k.DEPTH)
            else:
                dmas = lsp[j + k.DEPTH - 7]
            if j == k.DEPTH and k.kinds[0] == "V":
                def flag():
                    a(f"s_cmp_eq_u32 s{S_WAVE}, 7\ns_cselect_b64 exec, 1, 0")
                    a(f"buffer_store_dword v{V_DUM}, v{XE+1}, s[{S_SP}:{S_SP+3}], s{S_CNT} offen sc1")
                    a(f"s_mov_b64 exec, -1")
                assert "clr" not in vm.q
                dmas = dmas + [flag]
        else:
            vm.wait("wa")
            a("s_barrier")
            reads = tail_fill
        if j > 0:
            p = j - 1
            for i in range(4):
                x = A0 + 16 * p + 4 * i
                for L in range(nA):
                    b = k.WB + 16 * nA * (p & 1) + 16 * L + 4 * i
                    main.append(I(a, mf(k.ACC[L], b, x, k.ori[L], p == 0 and i == 0)))
            for L in range(nA):
                extra.append(I(a, mf16(CE + 4 * L, k.WB + 16 * nA * (p & 1) + 16 * L, p == 0)))
            if k.stat == "mix":
                for i in range(2):
                    extra.append(I(a, mf16(XS, A0 + 16 * p + 4 * i, p == 0 and i == 0)))
            for d in range(8):
                x = A0 + 16 * p + d
                t = T4 + 2 * (d & 1)
                dots.append(I(a, f"v_lshlrev_b32 v{t}, 16, v{x}"))
                dots.append(I(a, f"v_and_b32 v{t+1}, 0xffff0000, v{x}"))
                if k.stat != "mix":
                    dots.append(I(a, f"v_add_f32 v{V_S}, v{V_S}, v{t}"))
                dots.append(I(a, f"v_fmac_f32 v{V_Q}, v{t}, v{t}"))
                if k.stat != "mix":
                    dots.append(I(a, f"v_add_f32 v{V_R}, v{V_R}, v{t+1}"))
                dots.append(I(a, f"v_fmac_f32 v{V_C0}, v{t+1}, v{t+1}"))
        if main:
            n = len(main)
            rs, ds, ms, es = spread(n, reads), spread(n, dots), spread(n, dmas), spread(n, extra)
            for g in range(n):
                main[g]()
                for f in rs[g] + ms[g] + ds[g] + es[g]:
                    f()
        else:
            for f in reads + dmas:
                f()
        if j < 7:
            lg.all()
    return XS

def kind_body(a, vm0, k, st, lab, hook_main, hook_att):
    vm = Vm = vm0.copy()
    lg = LG(a)
    kinds, ori, nA = k.kinds, k.ori, k.nA
    G = kinds[0] == "G"
    T = k.TMP
    D = 4
    dbg = f"s[{S_SP}:{S_SP+3}]"
    ws = f"s[{S_WS}:{S_WS+3}]"
    nl = 2 if nA == 1 else 1
    NS = 28 * nl
    def rd(p):
        b = k.BR + 4 * (p % NBR)
        off = ((p % 28) >> 2) * 8192
        def f0():
            if p == 28:
                for i in range(4):
                    a(f"v_add_u32 v{WR+i}, {RING}, v{WR+i}")
            lg.issue(f"r{p}", f"ds_read_b64_tr_b16 v[{b}:{b+1}], v{WR + (p & 3)} offset:{off}")
        return [f0, lambda: lg.issue(f"r{p}", f"ds_read_b64_tr_b16 v[{b+2}:{b+3}], v{WR + (p & 3)} offset:{off+512}")]
    def wr_fix():
        for i in range(4):
            a(f"s_xor_b32 s{S_T2}, s{S_XO}, {i}\ns_lshl_b32 s{S_T2}, s{S_T2}, 11")
            a(f"v_add_u32 v{WR+i}, s{S_T2}, v{V_T0}")
    tail = [wr_fix] + [f for p in range(D) for f in rd(p)]
    XS = phase_a(a, vm, lg, k, st, tail)
    st.mark(6)
    if not G:
        return kind_stream(a, vm, lg, k, st, lab, hook_main, hook_att, rd, XS, "E")
    a(f"""s_and_b32 s{S_T0}, s{S_RB}, 7
s_cmp_ge_u32 s{S_T0}, {LATEF}
s_cbranch_scc1 {lab}L""")
    sv = list(vm.q), list(lg.q), list(st.pend)
    kind_stream(a, vm, lg, k, st, lab, hook_main, hook_att, rd, XS, "E")
    a(f"{lab}L:")
    vm.q, lg.q, st.pend = sv
    kind_stream(a, vm, lg, k, st, lab + "L", hook_main, hook_att, rd, XS, "L")

def kind_stream(a, vm, lg, k, st, lab, hook_main, hook_att, rd, XS, cls):
    kinds, ori, nA = k.kinds, k.ori, k.nA
    G = kinds[0] == "G"
    T = k.TMP
    D = 4
    dbg = f"s[{S_SP}:{S_SP+3}]"
    ws = f"s[{S_WS}:{S_WS+3}]"
    nl = 2 if nA == 1 else 1
    NS = 28 * nl
    F0_END, POLL_AT, ZF0, ZF1, F1_BEG, F1_END, FB = SCH[cls]
    pre = []
    if k.stat == "mix":
        pre.append(I(a, f"v_add_f32 v{XS+1}, v{V_Q}, v{V_C0}"))
        xs = XS
    else:
        pre.append(I(a, f"v_add_f32 v{V_S}, v{V_S}, v{V_R}\nv_add_f32 v{V_Q}, v{V_Q}, v{V_C0}"))
        xs = V_S
    pre.append(I(a, f"""s_lshl_b32 s{S_T0}, s{S_WAVE}, 9
s_add_u32 s{S_T0}, s{S_T0}, {SCR + 4096}
v_add_u32 v{V_T0}, s{S_T0}, v{V_L8}"""))
    pre.append(lambda: lg.issue("w", f"ds_write_b64 v{V_T0}, v[{xs}:{xs+1}]"))
    for L in range(nA):
        pre.append(lambda L=L: lg.issue("w", f"ds_write_b32 v{V_CSA}, v{CE+4*L} offset:{L*2048}"))
    pre.append(I(a, f"v_xor_b32 v{V_T0}, 2048, v{V_T0}"))
    def bar(*vtags):
        def f():
            vm.wait(*vtags)
            lg.wait("w")
            a("s_barrier")
        return f
    F0 = [lambda: lg.issue("x", f"ds_read_b64 v[{T}:{T+1}], v{V_T0}"),
          I(a, f"v_and_b32 v{V_T0}, 0xfffffff0, v{V_CSA}")]
    for L in range(nA):
        F0.append(lambda L=L: lg.issue("c", f"ds_read_b128 v[{T+4+4*L}:{T+7+4*L}], v{V_T0} offset:{L*2048}"))
    F0.append(GAP)
    F0.append(lambda: lg.wait("x"))
    F0 += [I(a, s) for s in f"""v_add_f32 v{V_S}, v{xs}, v{T}
v_add_f32 v{V_Q}, v{xs+1}, v{T+1}
v_mov_b32 v{T}, v{V_S}
v_mov_b32 v{T+1}, v{V_Q}
v_mov_b32 v{CE+1}, 0
v_mov_b32 v{CE+2}, 0
v_permlane32_swap_b32 v{T+1}, v{V_Q}""".split("\n")]
    if k.stat != "mix":
        F0 += [I(a, f"v_permlane32_swap_b32 v{T}, v{V_S}"), I(a, f"v_add_f32 v{V_S}, v{V_S}, v{T}")]
    F0 += [I(a, s) for s in f"""v_add_f32 v{V_Q}, v{V_Q}, v{T+1}
v_mul_f32 v{V_S}, {f32(-1/448)}, v{V_S}
v_mul_f32 v{V_Q}, {f32(1/448)}, v{V_Q}
v_and_b32 v{T}, 0xffff0000, v{V_S}
v_fma_f32 v{V_Q}, -v{V_S}, v{V_S}, v{V_Q}
v_sub_f32 v{T+1}, v{V_S}, v{T}
v_max_f32 v{V_Q}, 0, v{V_Q}
v_cndmask_b32 v{T}, v{T}, v{T+1}, s[{S_HI}:{S_HI+1}]
v_add_f32 v{V_Q}, {f32(1e-5)}, v{V_Q}
v_cvt_pk_bf16_f32 v{XE}, v{T}, v{T}
v_rsq_f32 v{V_R}, v{V_Q}
v_mov_b32 v{CE+3}, 0""".split("\n")]
    if nA == 2:
        F0 += [I(a, f"v_mov_b32 v{CE+r}, 0") for r in (5, 6, 7)]
    F0.append(lambda: lg.wait("c"))
    for L in range(nA):
        F0 += [I(a, s) for s in ce_build(CE + 4 * L, T + 4 + 4 * L)]
    def r16(_=None):
        t0, t1 = XR, XR + 1
        l = [I(a, f"""s_lshl_b32 s{S_T2}, s{S_WAVE}, 8
s_add_u32 s{S_T2}, s{S_T2}, {DEAD}
v_lshl_add_u32 v{t0}, v{V_LANE}, 2, s{S_T2}"""),
             lambda: lg.issue("q", f"ds_write_b32 v{t0}, v{V_R}"),
             I(a, f"v_lshrrev_b32 v{t1}, 5, v{V_LANE}"),
             I(a, f"v_lshl_add_u32 v{t1}, v{t1}, 4, s{S_T2}")]
        for q in range(4):
            l.append(lambda q=q: lg.issue("q", f"ds_read_b128 v[{k.R16+4*q}:{k.R16+4*q+3}], v{t1} offset:{32*q}"))
        return l
    if G:
        F0 += [I(a, s) for s in f"""v_mul_f32 v{V_RI}, v{V_Q}, v{V_R}
v_mul_f32 v{V_C0}, {f32(GELU_C0)}, v{V_R}""".split("\n")]
    else:
        F0 += r16()[:2]
    for L in range(nA):
        F0.append(I(a, mf(k.ACC[L], CE + 4 * L, XE, ori[L])))
    if G:
        F0 += [I(a, s) for s in f"""v_mul_f32 v{V_C1}, v{V_R}, v{V_R}
v_mul_f32 v{V_C1}, v{V_C1}, v{V_R}
v_mul_f32 v{V_C1}, {f32(GELU_C1)}, v{V_C1}""".split("\n")]
    else:
        F0 += r16()[2:]
    F0 += [GAP, GAP, GAP]
    if not G:
        F0.append(lambda: lg.wait("q"))
    F0 += epilogue(a, vm, k, kinds[0], k.ACC[0], S_O)
    if nA == 2:
        F0 += epilogue(a, vm, k, kinds[1], k.ACC[1], S_O + 1)
    def fix(acc, orient, slot):
        return ([lambda: lg.issue("c", f"ds_read_b128 v[{T4}:{T4+3}], v{V_T0} offset:{slot*2048}"), GAP, lambda: lg.wait("c")] +
                [I(a, s) for s in ce_build(CE, T4)] + [I(a, "s_nop 1"), I(a, mf(acc, CE, XE, orient))])
    ev = {}
    fl = []
    NPT = len(PFL)
    def touch(i, NTP=NTP):
        def f():
            if PFROW:
                vm.issue("pf", f"buffer_load_dword v{V_DUM}, v{V_PF}, s[{S_X}:{S_X+3}], s{S_PFO} offen{NTP}")
                a(f"s_add_u32 s{S_PFO}, s{S_PFO}, {4 * 4096 // NPT}")
            else:
                vm.issue("pf", f"buffer_load_dword v{V_DUM}, v{V_PF}, s[{S_X}:{S_X+3}], s{S_PFO} offen offset:{i * 2048 // NPT}{NTP}")
        return f
    def wtouch():
        a(f"""s_mul_i32 s{S_T0}, s{S_PK}, 392
s_lshl_b32 s{S_T1}, s{S_T0}, 1""")
        vm.issue("pf", f"buffer_load_dword v{V_DUM}, v{V_L8}, s[{S_WA}:{S_WA+3}], s{S_T0} offen{NTO}")
        vm.issue("pf", f"buffer_load_dword v{V_DUM}, v{V_L16}, s[{S_WB}:{S_WB+3}], s{S_T1} offen{NTO}")
    def flag_check():
        vm.wait("cnt")
        a(f"""{lab}_CR:
v_cmp_eq_u32 vcc, 0, v{V_X0}
s_and_b64 vcc, vcc, s[{S_L+1}:{S_L+2}]
s_cbranch_vccnz {lab}_CW
{lab}_CX:""")
    def cnt_load(f):
        a(f"v_lshrrev_b32 v{V_X0}, 1, v{V_L8}")
        f(f"buffer_load_dword v{V_X0}, v{V_X0}, {dbg}, 0 offen sc1")
    ool = [f"""{lab}_CW:
s_addk_i32 s{S_SPIN}, -1
s_cmp_lt_i32 s{S_SPIN}, 0
s_cbranch_scc1 {lab}_CX""", lambda: cnt_load(a), f"""s_waitcnt vmcnt(0)
s_branch {lab}_CR"""]
    lateL = nA + 1
    dm = [line_dma(a, vm, lateL, b, RING, "wc") for b in range(7)]
    XA = XR + 2
    if G:
        F0 += [I(a, f"v_mov_b32 v{T}, v{V_S}"), I(a, f"v_mov_b32 v{T+1}, v{V_Q}"),
               I(a, f"s_lshl_b32 s{S_T0}, s{S_WAVE}, 9\ns_add_u32 s{S_T0}, s{S_T0}, {SCR + 4096}\nv_add_u32 v{XA}, s{S_T0}, v{V_L8}"),
               I(a, f"v_mov_b32 v{V_C0}, 1"),
               I(a, f"v_permlane32_swap_b32 v{T}, v{V_S}"), I(a, f"v_permlane32_swap_b32 v{T+1}, v{V_Q}"),
               I(a, f"v_add_f32 v{V_S}, v{V_S}, v{T}"), I(a, f"v_add_f32 v{V_Q}, v{V_Q}, v{T+1}"),
               lambda: lg.issue("w", f"ds_write_b64 v{XA}, v[{V_S}:{V_Q}]"),
               I(a, f"v_xor_b32 v{XA}, 2048, v{XA}")]
        def rec_store():
            a(f"""s_lshl_b32 s{S_T0}, s{S_CH}, 4
s_lshl_b32 exec_lo, 0xffff, s{S_T0}
s_mov_b32 exec_hi, 0""")
            vm.issue("rec", f"buffer_store_dwordx2 v[{V_S}:{V_Q}], v{V_L8}, {ws}, s{S_REC} offen sc1")
            a(f"s_mov_b64 exec, -1\ns_and_b32 s{S_REC}, s{S_REC}, 0xfffff000")
        FR_ = [lambda: lg.issue("x", f"ds_read_b64 v[{T}:{T+1}], v{XA}"), flag_check, GAP, lambda: lg.wait("x"),
               I(a, f"v_add_f32 v{V_S}, v{V_S}, v{T}"), I(a, f"v_add_f32 v{V_Q}, v{V_Q}, v{T+1}"), rec_store]
    else:
        F0.append(I(a, f"v_mov_b32 v{V_C0}, 1"))
    dm = [lambda: cnt_load(lambda t: vm.issue("cnt", t))] + dm
    def srdfix():
        if G:
            srd(a, S_X, P_SP, 2048 * 4096)
            srd(a, S_WA, P_WO, 448 * 896)
            srd(a, S_WB, P_WOUT, 896 * 896)
        a(f"""s_mov_b32 s{S_L+1}, 0x33333333
s_mov_b32 s{S_L+2}, 0x33333333""")
    ev[1] = pre
    ev[3] = [bar()]
    fl.append((0, 8, dm + [srdfix]))
    if cls == "L":
        for i, p in enumerate(PFL):
            if p >= 0:
                fl.append((p, p, [touch(i, " nt" if NTQ[i] == "1" else "")]))
            if RTL[i] >= 0:
                fl.append((RTL[i], RTL[i], [touch(i, " sc1")]))
        if WPF >= 0:
            fl.append((WPF, WPF, [wtouch]))
    ev[12 - D] = [bar("wb")]
    PL = [V_X0, V_DA, XR, XR + 2, CE + 4, CE + 6, V_C1]
    def poll_issue(v):
        for i in range(7):
            t = f"buffer_load_dwordx2 v[{PL[i]}:{PL[i]+1}], v{V_L8}, {ws}, s{S_REC} offen offset:{i*512} sc1"
            if v: v.issue("pl", t)
            else: a(t)
    if nl == 2:
        fl.append((3, F0_END, F0))
        assert F0_END < 28 - D
        FRB = F0_END + 1 if F0_END < 20 else 28 - D
        ev[FRB] = [bar()]
        ev[28 - D] = [bar("wc")]
        fl.append((FRB, FRB + 1, FR_))
        ev[28] = [lambda: lg.issue("w", f"ds_write_b32 v{V_CSA}, v{k.CSA} offset:2048")]
        ev[30] = [bar()]
        F1 = fix(k.ACC[1], ori[1], 1)
        if not ori[1]:
            rr = r16(V_X0)
            F1 = rr[:4] + F1 + [("min", 33)] + rr[4:]
        F1 += [GAP, GAP, GAP]
        if not ori[1]:
            F1.append(lambda: lg.wait("q"))
        F1 += epilogue(a, vm, k, kinds[1], k.ACC[1], S_O + 1)
        fl.append((F1_BEG, F1_END, F1))
        assert POLL_AT >= F1_BEG + 6 or F1_BEG > ZF1
        assert F1_BEG >= 30 and POLL_AT > F0_END + 2
        ev[POLL_AT] = ev.get(POLL_AT, []) + [lambda: poll_issue(vm)]
        def zflag():
            a(f"v_lshlrev_b32 v{V_S}, 7, v{V_LANE}")
            vm.wait("stG")
            a(f"""s_barrier
s_cmp_eq_u32 s{S_WAVE}, 0
s_cselect_b64 exec, 15, 0
buffer_store_dword v{V_C0}, v{V_S}, {ws}, s{S_CNT} offen sc1
s_mov_b64 exec, -1""")
        if FB >= 0:
            assert ZF1 < FB < 56
            ev[FB] = [zflag]
        def poll_check():
            vm.wait("pl")
            a(f"""{lab}_PR:
v_max3_u32 v{V_S}, v{PL[0]+1}, v{PL[1]+1}, v{PL[2]+1}
v_max3_u32 v{V_Q}, v{PL[3]+1}, v{PL[4]+1}, v{PL[5]+1}
v_max3_u32 v{V_S}, v{V_S}, v{V_Q}, v{PL[6]+1}
v_cmp_eq_u32 vcc, -1, v{V_S}
s_cbranch_vccnz {lab}_PW
{lab}_PX:""")
        ool += [f"""{lab}_PW:
s_sleep {PSL}
s_addk_i32 s{S_SPIN}, -1
s_cmp_lt_i32 s{S_SPIN}, 0
s_cbranch_scc1 {lab}_PX""", lambda: poll_issue(None), f"s_waitcnt vmcnt(0)\ns_branch {lab}_PR"]
        ZF = [poll_check]
        for x, y in ((0, 1), (2, 3), (4, 5), (0, 2), (4, 6), (0, 4)):
            for h in range(2):
                ZF.append(I(a, f"v_add_f32 v{PL[x]+h}, v{PL[x]+h}, v{PL[y]+h}"))
        p0, p1 = PL[0], PL[1]
        z = k.ACC[0]
        ZF += [I(a, t) for t in f"""v_mov_b32 v{p1}, v{p0}
v_mov_b32 v{p1+1}, v{p0+1}
s_nop 0
v_permlane32_swap_b32 v{p1}, v{p0}
v_permlane32_swap_b32 v{p1+1}, v{p0+1}
v_add_f32 v{p0}, v{p0}, v{p1}
v_add_f32 v{p0+1}, v{p0+1}, v{p1+1}
v_mul_f32 v{p0}, {f32(-1/896)}, v{p0}
v_mul_f32 v{p0+1}, {f32(1/896)}, v{p0+1}
v_fma_f32 v{p0+1}, -v{p0}, v{p0}, v{p0+1}
v_max_f32 v{p0+1}, 0, v{p0+1}
v_add_f32 v{p0+1}, {f32(1e-5)}, v{p0+1}
v_rsq_f32 v{p0+1}, v{p0+1}
s_nop 0
v_mul_f32 v{p0}, v{p0}, v{p0+1}""".split("\n")]
        stz = store_tile(a, vm, "G", z, S_O)
        for hf in range(2):
            ZF += [I(a, f"v_fma_f32 v{z+r}, v{z+r}, v{p0+1}, v{p0}") for r in range(8 * hf, 8 * hf + 8)]
            ZF += [I(a, f"v_cvt_pk_bf16_f32 v{z+r}, v{z+2*r}, v{z+2*r+1}") for r in range(4 * hf, 4 * hf + 4)]
            ZF.append(stz[hf])
        fl.append((ZF0, ZF1, ZF))
    else:
        fl.append((3, 27, F0))
    pos = [0] * len(fl)
    for p in range(NS):
        for f in ev.get(p, []):
            f()
        if p in (14, 28, 42):
            st.mark(7 + (p - 14) // 14)
        lg.wait(f"r{p}")
        L = nA + p // 28
        b = k.BR + 4 * (p % NBR)
        a(mf(k.ACC[L], b, A0 + 4 * (p % 28), ori[L], p % 28 == 0))
        if p + D < NS:
            for f in rd(p + D):
                f()
        for n, (s0, s1, lst) in enumerate(fl):
            if p < s0:
                continue
            left = len(lst) - pos[n]
            cnt = left if p >= s1 else (left + (s1 - p)) // (s1 - p + 1)
            while cnt > 0 and pos[n] < len(lst):
                f = lst[pos[n]]
                if isinstance(f, tuple):
                    if p < f[1]:
                        break
                    pos[n] += 1
                    continue
                pos[n] += 1
                if f is GAP:
                    break
                f()
                cnt -= 1
            if p == F0_END and lst is F0 and nl == 2:
                assert pos[n] == len(lst)
        if (p & 3) == 0:
            a(mf16(k.CSA, b, p % 28 == 0))
    for n, (s0, s1, lst) in enumerate(fl):
        assert pos[n] == len(lst), (n, pos[n], len(lst))
    st.fold()
    st.mark(10)
    def run(lst):
        for f in lst:
            if f is not GAP:
                f()
    LL = nA + nl - 1
    a(f"ds_write_b32 v{V_CSA}, v{k.CSA}")
    if G:
        vm.q = ["st1"]
        if lab == "P1_A":
            a("P1_GT:")
            def last(part, pre=""):
                if part == 0:
                    a("s_waitcnt lgkmcnt(0)\n" + pre + "\ns_barrier")
                    lg.q = []
                    st.mark(11)
                else:
                    run(fix(k.ACC[LL], ori[LL], 0))
                    a("s_nop 11")
                    run(epilogue(a, vm, k, kinds[LL], k.ACC[LL], S_O + LL))
            hook_main(a, vm, st, last)
        else:
            st.pend = []
            a("s_branch P1_GT")
    else:
        vm.wait("wc")
        a("s_waitcnt lgkmcnt(0)\ns_barrier")
        lg.q = []
        st.mark(11)
        a(f"s_cmp_eq_u32 s{S_CH}, 0\ns_cbranch_scc0 {lab}_CH1")
        v0, l0 = vm.q[:], lg.q[:]
        run(fix(k.ACC[2], ori[2], 0))
        a("s_nop 11")
        run(epilogue(a, vm, k, kinds[2], k.ACC[2], S_O + 2))
        a(f"s_barrier\ns_branch {lab}_J")
        a(f"{lab}_CH1:")
        vm.q, lg.q = v0, l0
        for i in range(4):
            a(f"v_add_u32 v{WR+i}, {RING}, v{WR+i}")
            a(f"v_xor_b32 v{WR+i}, s{S_T3}, v{WR+i}")
        for p in range(D):
            run(rd(p))
        F = fix(k.ACC[2], ori[2], 0) + [GAP, GAP, GAP] + epilogue(a, vm, k, kinds[2], k.ACC[2], S_O + 2)
        q = 0
        for p in range(28):
            lg.wait(f"r{p}")
            b = k.BR + 4 * (p % NBR)
            a(mf(k.ACC[3], b, A0 + 4 * p, ori[3], p == 0))
            if p + D < 28:
                run(rd(p + D))
            for c in range(3):
                if q < len(F):
                    f = F[q]; q += 1
                    if f is GAP: break
                    f()
            if (p & 3) == 0:
                a(mf16(k.CSA, b, p == 0))
        assert q == len(F)
        a(f"ds_write_b32 v{V_CSA}, v{k.CSA} offset:2048\ns_waitcnt lgkmcnt(0)\ns_barrier")
        lg.q = []
        run(fix(k.ACC[3], ori[3], 1))
        a("s_nop 11")
        run(epilogue(a, vm, k, kinds[3], k.ACC[3], S_O + 3))
        a(f"{lab}_J:")
        vm.q = ["stV"]
        flag_check()
        hook_att(a, vm, st)
    for o in ool:
        if callable(o):
            o()
        else:
            a(o)

TAILQ = []
GAP = object()

def kind_start(a, vm, k, st):
    nA = k.nA
    a(f"""s_mul_i32 s{S_MR}, s{S_WAVE}, {k.WST}
v_add_u32 v{V_X1}, {8*896 - (1+nA)*1024}, v{V_X1}""")
    if nA == 1:
        a(f"""s_mul_i32 s{S_T2}, s{S_WAVE}, {8*3584}
s_lshl_b32 s{S_T3}, s{S_G}, 7
s_add_u32 s{S_L+2}, s{S_T2}, s{S_T3}
s_add_u32 s{S_L}, s{S_L+2}, {1792 - 1024}
s_add_u32 s{S_L+1}, s{S_T1}, s{S_T3}
s_mov_b32 s{S_A64}, {64*3584}
v_mul_u32_u24 v{V_DA}, 3584, v{T4}
v_add_u32 v{V_DA}, v{V_DA}, v{T4+2}
s_waitcnt lgkmcnt(0)""")
        srd(a, S_WA, P_WIN, 448 * 3584)
    else:
        a(f"""s_and_b32 s{S_T3}, s{S_G}, 1
s_lshl_b32 s{S_T3}, s{S_T3}, 9
s_add_u32 s{S_T3}, s{S_T3}, s{S_T1}
s_add_u32 s{S_L}, s{S_T3}, {1792 - 1024}
s_add_u32 s{S_L+1}, s{S_T3}, {1792 + 256 - 2048}
s_add_u32 s{S_L+2}, s{S_T3}, {1792 + 128}
s_add_u32 s{S_L+3}, s{S_T1}, {1792 + 384}
s_mov_b32 s{S_A64}, {B64}
v_mov_b32 v{V_DA}, v{V_DB}
s_waitcnt lgkmcnt(0)""")
        srd(a, S_WA, P_QKV, 448 * 2688)
        srd(a, S_WB, P_QKV, 448 * 2688)
    srd(a, S_X, P_X, 2048 * 896)
    st.mark(2)
    for j in range(k.DEPTH):
        for f in piece_dma(a, vm, k, j):
            f()
        if j == 0:
            lab = a.label("P1_T")
            strd = 3584 if nA == 1 else 2688
            if TOUCH:
                a(f"""s_and_b32 s{S_T2}, s{S_RB}, 3
s_mul_i32 s{S_T2}, s{S_T2}, 112
s_and_b32 s{S_T3}, s{S_WAVE}, 1
s_lshl_b32 s{S_T3}, s{S_T3}, 6
s_add_u32 s{S_T2}, s{S_T2}, s{S_T3}
s_lshl_b32 s{S_T3}, s{S_WAVE}, 3
s_sub_u32 s{S_T2}, s{S_T2}, s{S_T3}
s_mul_i32 s{S_T2}, s{S_T2}, {strd}
s_add_u32 s{S_T2}, s{S_T2}, s{S_L}
s_and_b32 s{S_T3}, s{S_WAVE}, {2 * (nA - 1)}
s_lshl_b32 s{S_T3}, s{S_T3}, 7
s_add_u32 s{S_T2}, s{S_T2}, s{S_T3}
s_add_u32 s{S_T2}, s{S_T2}, {(1024 - 64 * strd) & 0xffffffff}
v_mul_u32_u24 v{XR}, {strd}, v{V_LANE}
s_lshl_b32 s{S_T3}, s{S_RB}, 2
s_add_u32 s{S_T3}, s{S_T3}, s{S_PK}
s_mul_i32 s{S_T3}, s{S_T3}, {32*896}
s_lshl_b32 s{S_T1}, s{S_WAVE}, 13
s_add_u32 s{S_T3}, s{S_T3}, s{S_T1}
v_lshlrev_b32 v{XR+1}, 7, v{V_LANE}""")
            if PBAR:
                a("s_barrier")
            if TOUCH:
                a(f"""s_cmp_ge_u32 s{S_WAVE}, 4
s_cbranch_scc1 {lab}w
buffer_load_dword v{A0+96}, v{XR+1}, s[{S_X}:{S_X+3}], s{S_T3} offen
s_branch {lab}e
{lab}w:""")
                vm.issue("t0", f"""buffer_load_dword v{A0+96}, v{XR}, s[{S_WA}:{S_WA+3}], s{S_T2} offen
{lab}e:""")
    if nA == 1:
        srd(a, S_WB, P_QKV, 448 * 2688)
    if WSB:
        a(f"s_add_u32 s{P_WS}, s{P_WS}, {WSB}\ns_addc_u32 s{P_WS+1}, s{P_WS+1}, 0")
    srd(a, S_WS, P_WS, WS_SIZE)
    srd(a, S_SP, P_DBG, 256)
    a(f"""s_lshl_b32 s{S_T0}, s{S_CH}, 1
s_xor_b32 s{S_XO}, s{S_T0}, s{S_RW}
v_and_b32 v{T4}, 31, v{V_LANE}
v_lshrrev_b32 v{T4+1}, 5, v{V_LANE}
v_bfe_u32 v{T4+2}, v{V_LANE}, 1, 3
v_xor_b32 v{T4+2}, v{T4+2}, v{T4+1}
s_lshl_b32 s{S_T1}, s{S_XO}, 1
v_xor_b32 v{T4+2}, s{S_T1}, v{T4+2}
v_lshlrev_b32 v{T4+2}, 4, v{T4+2}
v_and_b32 v{T4+3}, 7, v{V_LANE}
v_lshl_add_u32 v{T4+2}, v{T4+3}, 7, v{T4+2}
v_bfe_u32 v{T4+3}, v{V_LANE}, 3, 1
v_mul_u32_u24 v{XR}, {(1+nA)*1024}, v{T4+3}
v_bfe_u32 v{T4+3}, v{V_LANE}, 4, 1
v_mul_u32_u24 v{T4+3}, {k.WST}, v{T4+3}
s_mul_i32 s{S_T1}, s{S_RW}, {2*k.WST}
s_add_u32 s{S_T1}, s{S_T1}, {RING}
v_add3_u32 v{T4+3}, v{T4+3}, v{XR}, s{S_T1}""")
    for i in range(4):
        a(f"v_xor_b32 v{XR+i}, {i << 5}, v{T4+2}")
        a(f"v_add_u32 v{XR+i}, v{T4+3}, v{XR+i}")
    a(f"""v_lshlrev_b32 v{V_KO}, 5, v{T4}
v_lshl_add_u32 v{V_KO}, v{T4+1}, 4, v{V_KO}
s_lshl_b32 s{S_T1}, s{S_CH}, 6
v_and_b32 v{T4}, 3, v{V_LANE}
v_lshlrev_b32 v{T4}, 3, v{T4}
v_and_b32 v{T4+2}, 16, v{V_LANE}
v_lshl_add_u32 v{T4}, v{T4+2}, 1, v{T4}
v_and_b32 v{T4+2}, 8, v{V_LANE}
v_lshlrev_b32 v{T4+2}, 3, v{T4+2}
v_xor_b32 v{T4+2}, s{S_T1}, v{T4+2}
v_or_b32 v{T4}, v{T4}, v{T4+2}
v_bfe_u32 v{T4+2}, v{V_LANE}, 2, 2
v_lshl_add_u32 v{T4}, v{T4+2}, 7, v{T4}
v_lshl_add_u32 v{V_T0}, v{T4+1}, 10, v{T4}
v_mul_u32_u24 v{T4+1}, {k.WST}, v{T4+1}
v_add_u32 v{T4}, v{T4}, v{T4+1}""")
    for i in range(4):
        a(f"""s_xor_b32 s{S_T2}, s{S_XO}, {i}
s_mul_i32 s{S_T2}, s{S_T2}, {2*k.WST}
s_add_u32 s{S_T2}, s{S_T2}, {RING + 1024}
v_add_u32 v{WR+i}, s{S_T2}, v{T4}""")
    a(f"""v_lshlrev_b32 v{V_L16}, 4, v{V_LANE}
v_lshlrev_b32 v{V_L8}, 3, v{V_LANE}
s_lshl_b32 s{S_T0}, s{S_CH}, 10
s_lshl_b32 s{S_T1}, s{S_RW}, 2
s_add_u32 s{S_T0}, s{S_T0}, s{S_T1}
s_add_u32 s{S_T0}, s{S_T0}, {SCR}
v_add_u32 v{V_CSA}, s{S_T0}, v{V_L16}
v_mov_b32 v{V_S}, 0
v_mov_b32 v{V_Q}, 0
v_mov_b32 v{V_R}, 0
v_mov_b32 v{V_C0}, 0
s_mov_b32 s{S_HI}, 0xf0f00f0f
s_mov_b32 s{S_HI+1}, 0xf0f00f0f
v_mov_b32 v{T4}, 0x3f803f80
v_cndmask_b32 v{SEL}, 0, v{T4}, s[{S_HI}:{S_HI+1}]
v_cndmask_b32 v{SEL+1}, 0, v{T4}, s[{S_HI}:{S_HI+1}]
v_cndmask_b32 v{SEL+2}, 0, v{T4}, s[{S_HI}:{S_HI+1}]
v_cndmask_b32 v{SEL+3}, 0, v{T4}, s[{S_HI}:{S_HI+1}]
s_mov_b32 s{S_HI}, 0
s_mov_b32 s{S_HI+1}, -1
v_mov_b32 v{XE+1}, 0
v_mov_b32 v{XE+2}, 0
v_mov_b32 v{XE+3}, 0
v_mov_b32 v{V_DUM}, 1
s_lshl_b32 s{S_MW}, s{S_WAVE}, 10
s_mov_b32 s{S_SPIN}, {E("SPIN", "0x8000")}
s_lshl_b32 s{S_T0}, s{S_RB}, 2
s_add_u32 s{S_T0}, s{S_T0}, s{S_RW}
s_mul_i32 s{S_T2}, s{S_T0}, 28672""")
    if nA == 1:
        lg2 = {1: 0, 2: 1, 4: 2}[len(PFL)]
        a(f"""; touchers: 16 per XCD ; rank = (idx>>3)*4 + (idx&3) if rb&7 >= 4 ; 12 + (idx>>3) if rb&7 == 3 and y even
s_lshr_b32 s{S_T1}, s2, 6
s_add_u32 s{S_T3}, s{S_T1}, 12
s_lshl_b32 s{S_T1}, s{S_T1}, 2
s_bfe_u32 s{S_PK}, s2, 0x20003
s_add_u32 s{S_T1}, s{S_T1}, s{S_PK}
s_and_b32 s{S_PK}, s2, 0x3a
s_cmp_eq_u32 s{S_PK}, 0x18
s_cselect_b32 s{S_PK}, s{S_T3}, 0x20000
s_bitcmp1_b32 s{S_RB}, 2
s_cselect_b32 s{S_PK}, s{S_T1}, s{S_PK}
s_lshl_b32 s{S_PK}, s{S_PK}, 3
s_add_u32 s{S_PK}, s{S_PK}, s{S_WAVE}
s_min_u32 s{S_T1}, s{S_PK}, 0x10000
s_lshl_b32 s{S_T1}, s{S_T1}, 14
v_lshrrev_b32 v{T4}, {4 + lg2 if PFROW else 4}, v{V_LANE}
v_bfe_u32 v{V_PF}, v{V_LANE}, {lg2}, {4 if PFROW else 4 - lg2}
v_lshlrev_b32 v{V_PF}, 7, v{V_PF}
v_lshl_add_u32 v{V_PF}, v{T4}, 12, v{V_PF}
v_add_u32 v{V_PF}, s{S_T1}, v{V_PF}
s_and_b32 s{S_T1}, s2, 7
s_lshl_b32 s{S_T1}, s{S_T1}, 7
s_add_u32 s{S_PK}, s{S_PK}, s{S_T1}
s_and_b32 s{S_T1}, s2, 6
s_lshl_b32 s{S_PFO}, s{S_T1}, 20
s_and_b32 s{S_T1}, s2, 1
s_lshl_b32 s{S_T1}, s{S_T1}, 11
s_add_u32 s{S_PFO}, s{S_PFO}, s{S_T1}
v_mov_b32 v{V_L2E}, {f32(LOG2E)}
s_lshl_b32 s{S_T3}, s{S_G}, 1
s_add_u32 s{S_T3}, s{S_T3}, s{S_CH}
s_lshl_b32 s{S_O}, s{S_T3}, 17
s_lshl_b32 s{S_T1}, s{S_T0}, 11
s_add_u32 s{S_O}, s{S_O}, s{S_T1}
; z1
s_lshl_b32 s{S_T1}, s{S_T3}, 10
s_add_u32 s{S_T1}, s{S_T1}, s{S_T2}
s_lshl_b32 s{S_O+2}, s{S_T1}, 1
s_add_u32 s{S_O+2}, s{S_O+2}, {WS_Z1}""")
        assert WS_Z2 == 0
        if k.kinds[1] == "Q":
            a(f"""s_lshl_b32 s{S_T1}, s{S_T3}, 11
s_add_u32 s{S_T1}, s{S_T1}, s{S_T2}
s_add_u32 s{S_O+1}, s{S_T1}, {WS_Q}""")
        else:
            a(f"s_add_u32 s{S_O+1}, s{S_T1}, {WS_K - 14*1024}")
        a(f"""; record: ST + st*4096 + g*256
s_lshl_b32 s{S_T0}, s{S_T0}, 4
s_add_u32 s{S_T0}, s{S_T0}, s{S_G}
s_lshl_b32 s{S_T0}, s{S_T0}, 8
s_add_u32 s{S_REC}, s{S_T0}, {WS_ST}
s_and_b32 s{S_T0}, s{S_G}, 14
s_lshr_b32 s{S_T1}, s{S_RB}, 3
s_add_u32 s{S_T0}, s{S_T0}, s{S_T1}
s_lshl_b32 s{S_T0}, s{S_T0}, 4
s_and_b32 s{S_T1}, s{S_G}, 1
s_add_u32 s{S_T0}, s{S_T0}, s{S_T1}
s_lshl_b32 s{S_T0}, s{S_T0}, 3
s_and_b32 s{S_T1}, s{S_RB}, 7
s_add_u32 s{S_T0}, s{S_T0}, s{S_T1}
s_lshl_b32 s{S_T0}, s{S_T0}, 2
s_add_u32 s{S_CNT}, s{S_T0}, {WS_FZ}""")
    else:
        a(f"""; tiles 8(g-14) + ch + 0,4,2 ; extra tile 6 + (g-14)
s_and_b32 s{S_T0}, s{S_G}, 1
s_lshl_b32 s{S_T1}, s{S_T0}, 3
s_add_u32 s{S_T1}, s{S_T1}, s{S_CH}
s_lshl_b32 s{S_T1}, s{S_T1}, 10
s_add_u32 s{S_T2}, s{S_T2}, {WS_V}
s_add_u32 s{S_O}, s{S_T1}, s{S_T2}
s_add_u32 s{S_O+1}, s{S_O}, 4096
s_add_u32 s{S_O+2}, s{S_O}, 2048
s_lshl_b32 s{S_T1}, s{S_T0}, 10
s_add_u32 s{S_T1}, s{S_T1}, s{S_T2}
s_add_u32 s{S_O+3}, s{S_T1}, 6144
s_lshl_b32 s{S_CNT}, s{S_RB}, 2
s_add_u32 s{S_CNT}, s{S_CNT}, s{S_T0}
s_lshl_b32 s{S_CNT}, s{S_CNT}, 2
s_lshl_b32 s{S_T1}, s{S_RB}, 1
s_add_u32 s{S_T1}, s{S_T1}, s{S_T0}
s_lshl_b32 s{S_T1}, s{S_T1}, 3
s_add_u32 s{S_T1}, s{S_T1}, s{S_WAVE}
s_lshl_b32 s{S_T2}, s{S_T1}, 8
s_add_u32 s{S_T2}, s{S_T2}, {WS_FL}
s_lshl_b32 s{S_T1}, s{S_T1}, 10
s_add_u32 s{S_REC}, s{S_T1}, {WS_ST}
s_xor_b32 s{S_T0}, s{S_T0}, 1
s_lshl_b32 s{S_T3}, s{S_T0}, 6
v_mov_b32 v{T4}, -1
v_mov_b32 v{T4+1}, -1
v_mov_b32 v{T4+2}, -1
v_mov_b32 v{T4+3}, -1
v_lshlrev_b32 v{V_L2E}, 2, v{V_LANE}""")
        vm.issue("clr", f"buffer_store_dwordx4 v[{T4}:{T4+3}], v{V_L16}, s[{S_WS}:{S_WS+3}], s{S_REC} offen sc1")
        vm.issue("clr", f"buffer_store_dword v{XE+1}, v{V_L2E}, s[{S_WS}:{S_WS+3}], s{S_T2} offen sc1")
    a(f"""; own flags: FL + rb*2048 + g*4
s_lshl_b32 s{S_FL}, s{S_RB}, 9
s_add_u32 s{S_FL}, s{S_FL}, s{S_G}
s_lshl_b32 s{S_FL}, s{S_FL}, 2
s_add_u32 s{S_FL}, s{S_FL}, {WS_FL}""")

PBAR = int(E('P1_PBAR', '1'))
def gen_p1(a, name, st, hook_main, hook_att):
    kernel_begin(a, name)
    a(f"""s_cmp_ge_u32 s2, 256
s_cbranch_scc1 K_EXIT
s_load_dwordx16 s[64:79], s[0:1], 0
s_load_dwordx4 s[56:59], s[0:1], 72
s_load_dwordx2 s[60:61], s[0:1], 64""")
    st.mark(0, True)
    st.mark(1)
    st.init()
    a(f"""v_and_b32 v{V_LANE}, 63, v0
v_lshrrev_b32 v{V_T0}, 6, v0
s_bfe_u32 s{S_T0}, s2, 0x20001
v_readfirstlane_b32 s{S_WAVE}, v{V_T0}
s_lshr_b32 s{S_T1}, s2, 3
s_mul_i32 s{S_T2}, s{S_T0}, 28
s_add_u32 s{S_T2}, s{S_T2}, s{S_T1}
s_lshr_b32 s{S_G}, s{S_T2}, 3
s_and_b32 s{S_RB}, s{S_T2}, 7
s_and_b32 s{S_PK}, s{S_G}, 3
s_lshr_b32 s{S_T2}, s{S_T0}, 1
s_lshl_b32 s{S_T0}, s{S_T0}, 2
s_xor_b32 s{S_T0}, s{S_T0}, s{S_T1}
s_and_b32 s{S_T0}, s{S_T0}, 7
s_add_u32 s{S_T3}, s{S_T2}, 14
s_xor_b32 s{S_T2}, s{S_T2}, 3
s_cmp_ge_u32 s{S_T1}, 28
s_cselect_b32 s{S_G}, s{S_T3}, s{S_G}
s_cselect_b32 s{S_RB}, s{S_T0}, s{S_RB}
s_cselect_b32 s{S_PK}, s{S_T2}, s{S_PK}
s_and_b32 s{S_T0}, s2, 1
s_lshl_b32 s{S_T0}, s{S_T0}, 3
s_add_u32 s{S_RB}, s{S_RB}, s{S_T0}
s_and_b32 s{S_RW}, s{S_WAVE}, 3
s_lshr_b32 s{S_CH}, s{S_WAVE}, 2
s_lshl_b32 s{S_T0}, s{S_RB}, 3
s_add_u32 s{S_T0}, s{S_T0}, s{S_WAVE}
s_mul_i32 s{S_XB}, s{S_T0}, {16*896}
s_mul_i32 s{S_T1}, s{S_WAVE}, {8*2688}
v_lshrrev_b32 v{T4}, 3, v{V_LANE}
v_and_b32 v{T4+1}, 7, v{V_LANE}
v_lshrrev_b32 v{T4+2}, 4, v{V_LANE}
v_xor_b32 v{T4+2}, v{T4+2}, v{T4+1}
v_mul_u32_u24 v{V_X0}, 896, v{T4}
v_xor_b32 v{T4+3}, 4, v{T4+2}
v_lshl_add_u32 v{V_X1}, v{T4+3}, 4, v{V_X0}
v_lshl_add_u32 v{V_X0}, v{T4+2}, 4, v{V_X0}
v_lshlrev_b32 v{T4+2}, 1, v{T4}
v_and_b32 v{T4+2}, 4, v{T4+2}
v_xor_b32 v{T4+2}, v{T4+2}, v{T4+1}
v_lshlrev_b32 v{T4+2}, 4, v{T4+2}
v_mul_u32_u24 v{V_DB}, 2688, v{T4}
v_add_u32 v{V_DB}, v{V_DB}, v{T4+2}
s_cmp_ge_u32 s{S_G}, 14
s_cbranch_scc1 P1_KC
s_cmp_ge_u32 s{S_G}, 7
s_cbranch_scc1 P1_KB""")
    for lab, kinds in (("P1_A", "GQL"), ("P1_B", "GKL"), ("P1_C", "VVVV")):
        a(f"{lab.replace('_', '_K')}:")
        k = K(kinds)
        vm = VM(a)
        s2 = st.copy()
        kind_start(a, vm, k, s2)
        kind_body(a, vm, k, s2, lab, hook_main, hook_att)
```

```python
from common import *
import os
import f1
from f1 import LG, I, S_WS, S_WAVE, S_RW, S_CH, S_T0, S_T1, S_T2, S_T3, S_SPIN, S_FL, V_LANE, V_L16, V_L8, V_KO, XE
from f1 import P_X, P_WO, P_BSP, P_WOUT, P_OUT, S_CNT, V_S
E = os.environ.get
G0 = int(E("P2_G0", "6"))
Z1B = int(E("P2_Z1B", "2"))
N0 = int(E("P2_N0", "4"))
BST = int(E("P2_BST", "12"))
LEAD = int(E("P2_LEAD", "40"))
GTAIL = int(E("P2_GT", "8"))
AHEAD = int(E("P3_AHEAD", "8"))
EARLY = int(E("P2_EARLY", "-1"))
ATOUCH = int(E("A_TOUCH", "1"))
NT2 = [" nt" if c == "1" else "" for c in E("P2_NT", "000")]
SF = " sc1"
NST = 16
SLOT = [0, 131072, 65536, 98304]
HB = 57344
S_SP, S_X = 12, 12
S_OUT, S_WO, S_W2, S_B = 4, 16, 20, 20
S_TT, S_FQ, S_KH, S_ZB, S_AB, S_MW, S_O, S_C1, S_M = 28, 29, 37, 38, 39, 40, 41, 42, 43
S_M2 = 44
S_M64, S_A, S_XO = 46, 47, 48
ws = f"s[{S_WS}:{S_WS+3}]"
ACC3, AFR, BFR, EFR, XV, TR, V_XO, V_W = 16, 48, 192, 216, 224, 244, 250, 251

def spoll(a, lab, loads, regs, ool, sleep=0):
    a(f"{lab}_R:")
    a(loads)
    a("s_waitcnt lgkmcnt(0)")
    for r in regs[1:]:
        a(f"s_and_b64 s[{regs[0]}:{regs[0]+1}], s[{regs[0]}:{regs[0]+1}], s[{r}:{r+1}]")
    a(f"""s_and_b32 s{regs[0]}, s{regs[0]}, s{regs[0]+1}
s_cbranch_scc1 {lab}_X
{f"s_sleep {sleep}" if sleep else ""}
s_addk_i32 s{S_SPIN}, -1
s_cmp_lt_i32 s{S_SPIN}, 0
s_cbranch_scc0 {lab}_R
{lab}_X:""")

def p3_tr_setup(a, T):
    a(f"""v_bfe_u32 v{T}, v{V_LANE}, 2, 2
v_lshrrev_b32 v{T+1}, 5, v{V_LANE}
v_lshl_add_u32 v{T}, v{T+1}, 2, v{T}
v_lshlrev_b32 v{TR}, 7, v{T}
v_and_b32 v{T}, 3, v{V_LANE}
v_lshl_add_u32 v{TR}, v{T}, 3, v{TR}
v_and_b32 v{T}, 16, v{V_LANE}
v_lshl_add_u32 v{TR}, v{T}, 1, v{TR}
v_and_b32 v{T}, 8, v{V_LANE}
v_lshl_add_u32 v{TR}, v{T}, 3, v{TR}
s_lshl_b32 s{S_T0}, s{S_RW}, 5
v_xor_b32 v{TR}, s{S_T0}, v{TR}
s_lshl_b32 s{S_T0}, s{S_RW}, 11
s_add_u32 s{S_T0}, s{S_T0}, {HB}
v_add_u32 v{TR+2}, s{S_T0}, v{TR}
s_mul_i32 s{S_T0}, s{S_RW}, 14336
v_add_u32 v{TR}, s{S_T0}, v{TR}
v_xor_b32 v{TR+1}, 64, v{TR}
v_xor_b32 v{TR+3}, 64, v{TR+2}
v_add_u32 v{TR+4}, 0x10000, v{TR+2}
v_add_u32 v{TR+5}, 0x10000, v{TR+3}""")

def b_reads(kind, i, dst):
    if kind == "o":
        r, off = TR, (28 * (i >> 1) + 16 * (i & 1)) * 128
    else:
        r, off = (TR + 2, i * 8192) if i < 8 else (TR + 4, i * 8192 - 65536)
    return [f"ds_read_b64_tr_b16 v[{dst+4*ni+2*h}:{dst+4*ni+2*h+1}], v{r+ni} offset:{off + 1024*h}" for ni in range(2) for h in range(2)]

def p3_setup(a):
    srd(a, S_X, P_X, 2048 * 896)
    srd(a, S_OUT, P_OUT, 2048 * 896)
    a(f"""; tt32 = 2*m64 + ch
s_lshl_b32 s{S_T0}, s{S_M64}, 1
s_add_u32 s{S_T0}, s{S_T0}, s{S_CH}
s_mul_i32 s{S_XO}, s{S_T0}, {32*896}
s_lshl_b32 s{S_T1}, s{S_FQ}, 2
s_add_u32 s{S_T1}, s{S_T1}, s{S_RW}
s_lshl_b32 s{S_T1}, s{S_T1}, 5
s_add_u32 s{S_XO}, s{S_XO}, s{S_T1}
s_mul_i32 s{S_T0}, s{S_T0}, {144*1024}
s_add_u32 s{S_T0}, s{S_T0}, {WS_AF}
s_lshl_b32 s{S_T1}, s{S_RW}, 13
s_add_u32 s{S_A}, s{S_T0}, s{S_T1}
s_mul_i32 s{S_T1}, s{S_RW}, {14*1024}
s_add_u32 s{S_O}, s{S_T0}, s{S_T1}
s_add_u32 s{S_O}, s{S_O}, {32*1024}
v_and_b32 v{V_XO}, 31, v{V_LANE}
v_mul_u32_u24 v{V_XO}, 896, v{V_XO}
v_lshrrev_b32 v{V_W}, 5, v{V_LANE}
v_lshl_add_u32 v{V_XO}, v{V_W}, 4, v{V_XO}
v_add_u32 v{V_W}, {56*1024}, v{V_L16}""")

def loader(a, vm, st, last, ool):
    VD, VZ, VP, VB = 2, 6, 10, 11
    T0, T2 = 12, 13
    ids(a)
    a(f"""s_lshl_b32 s{S_T0}, s{S_FQ}, 1
s_add_u32 s{S_T0}, s{S_T0}, s{S_KH}
s_lshl_b32 s{S_T0}, s{S_T0}, 2
s_lshr_b32 s{S_T1}, s{S_TT}, 2
s_add_u32 s{S_T0}, s{S_T0}, s{S_T1}
s_lshl_b32 s{S_T0}, s{S_T0}, 2
s_and_b32 s{S_T1}, s{S_RW}, 1
s_add_u32 s{S_T0}, s{S_T0}, s{S_T1}
s_lshl_b32 s{S_T0}, s{S_T0}, 5
s_add_u32 s{S_O}, s{S_T0}, {WS_FZ}""")
    zpoll = f"s_buffer_load_dwordx8 s[72:79], {ws}, s{S_O} glc"
    last(0, zpoll)
    a(f"""; z2 base: (4fq + 2(lw&1)) << 17 + (kh*32 + (lw>>1)) << 11
s_lshr_b32 s{S_T1}, s{S_RW}, 1
s_lshl_b32 s{S_T3}, s{S_KH}, 5
s_add_u32 s{S_T3}, s{S_T3}, s{S_T1}
s_lshl_b32 s{S_ZB}, s{S_T3}, 11
s_lshl_b32 s{S_T3}, s{S_FQ}, 1
s_and_b32 s{S_T1}, s{S_RW}, 1
s_add_u32 s{S_T3}, s{S_T3}, s{S_T1}
s_lshl_b32 s{S_T3}, s{S_T3}, 18
s_add_u32 s{S_ZB}, s{S_ZB}, s{S_T3}
v_lshrrev_b32 v{T0}, 3, v{V_LANE}
v_and_b32 v{VD+1}, 7, v{V_LANE}
v_lshrrev_b32 v{T2}, 4, v{V_LANE}
v_xor_b32 v{T2}, v{T2}, v{VD+1}
v_lshlrev_b32 v{VZ}, 12, v{T0}
v_lshl_add_u32 v{VD}, v{T2}, 4, v{VZ}
v_lshlrev_b32 v{T2}, 1, v{T0}
v_and_b32 v{T2}, 4, v{T2}
v_xor_b32 v{T2}, v{T2}, v{VD+1}
v_xor_b32 v{VD+1}, 64, v{VD}
v_add_u32 v{VD+1}, {8*4096 - 1024}, v{VD+1}
v_add_u32 v{VD+2}, {16*4096 - 2048}, v{VD}
v_add_u32 v{VD+3}, {16*4096 - 2048}, v{VD+1}
s_lshl_b32 s{S_AB}, s{S_TT}, 2
s_add_u32 s{S_AB}, s{S_AB}, s{S_RW}
s_lshl_b32 s{S_AB}, s{S_AB}, 17
s_lshl_b32 s{S_T2}, s{S_KH}, 11
s_add_u32 s{S_AB}, s{S_AB}, s{S_T2}
s_lshl_b32 s{S_MW}, s{S_RW}, 12""")
    def zload(n):
        a(f"s_add_u32 m0, s{S_MW}, {SLOT[n & 3]}")
        a(f"s_add_u32 s{S_T2}, s{S_ZB}, {n << 12}")
        for q in range(4):
            vm.issue(f"s{n}", f"buffer_load_dwordx4 v{VZ+q}, {ws}, s{S_T2} offen offset:{q*1024}{NT2[1]} lds")
    def wload(n):
        a(f"s_add_u32 m0, s{S_MW}, {SLOT[n & 3] + 16384}")
        a(f"s_add_u32 s{S_T3}, s{S_AB}, {n << 7}")
        for q in range(4):
            vm.issue(f"s{n}", f"buffer_load_dwordx4 v{VD+q}, s[{S_SP}:{S_SP+3}], s{S_T3} offen offset:{q*1024}{NT2[0]} lds")
    def bdma(tag, sr, lds, mw, grow, gmul, n):
        a(f"""s_mul_i32 s{S_T2}, s{S_RW}, {gmul * 896}
s_lshl_b32 s{S_T3}, s{S_FQ}, 7
s_add_u32 s{S_T2}, s{S_T2}, s{S_T3}
s_add_u32 s{S_T2}, s{S_T2}, {grow * 896}
s_mul_i32 s{S_T3}, s{S_RW}, {mw}""")
        for k in range(n):
            if k % 4 == 0:
                a(f"s_add_u32 m0, s{S_T3}, {lds + k * 1024}")
            if k:
                a(f"s_add_u32 s{S_T2}, s{S_T2}, {7168 - 1024 if k % 4 else 7168 + 3072}")
            else:
                a("s_nop 0")
            vm.issue(tag, f"buffer_load_dwordx4 v{VB}, s[{sr}:{sr+3}], s{S_T2} offen offset:{(k % 4) * 1024}{NT2[2]} lds")
    def hblocks(tag, bs, at=None):
        a(f"""s_mul_i32 s{S_T2}, s{S_RW}, {224 * 896}
s_lshl_b32 s{S_T3}, s{S_FQ}, 7
s_add_u32 s{S_T2}, s{S_T2}, s{S_T3}
s_lshl_b32 s{S_T3}, s{S_RW}, 11""")
        for b in bs:
            a(f"s_add_u32 m0, s{S_T3}, {HB + (b if at is None else at) * 8192}")
            for k in range(2):
                a(f"s_add_u32 s{S_T1}, s{S_T2}, {(16 * b + 8 * k) * 896 - 1024 * k}")
                vm.issue(tag, f"buffer_load_dwordx4 v{VB}, s[{S_W2}:{S_W2+3}], s{S_T1} offen offset:{k * 1024}{NT2[2]} lds")
    wload(0)
    wload(1)
    a(f"""v_and_b32 v{VZ}, 4, v{T0}
v_xor_b32 v{VZ}, v{VZ}, v{V_LANE}
v_lshlrev_b32 v{VZ}, 4, v{VZ}
v_xor_b32 v{VZ+1}, 128, v{VZ}
v_add_u32 v{VZ+2}, {(1 << 17) - 2048}, v{VZ}
v_add_u32 v{VZ+3}, {(1 << 17) - 2048}, v{VZ+1}""")
    def zcheck(j):
        a(f"""s_waitcnt lgkmcnt(0)
s_cmp_eq_u32 s{72+j}, 0
s_cbranch_scc1 L_Z{j}_W
L_Z{j}_X:""")
        ool.append(f"""L_Z{j}_W:
{zpoll}
s_waitcnt lgkmcnt(0)
s_cmp_lg_u32 s{72+j}, 0
s_cbranch_scc1 L_Z{j}_X
s_addk_i32 s{S_SPIN}, -1
s_cmp_lt_i32 s{S_SPIN}, 0
s_cbranch_scc0 L_Z{j}_W
s_branch L_Z{j}_X""")
    zcheck(0)
    st.mark(12)
    zload(0)
    zload(1)
    last(1)
    st.mark(13)
    a(f"""v_mul_u32_u24 v{VB}, 896, v{T0}
v_lshl_add_u32 v{VB}, v{T2}, 4, v{VB}""")
    def early():
        hblocks("E", [13], 0)
        bdma("wo", S_WO, 32768, 6144, 256, 48, 6)
    if EARLY == -1:
        early()
    a(f"""; z1 flags: FL + tt*2048 + 1024 + fq*8
s_lshl_b32 s{S_C1}, s{S_TT}, 8
s_add_u32 s{S_C1}, s{S_C1}, s{S_FQ}
s_lshl_b32 s{S_C1}, s{S_C1}, 3
s_add_u32 s{S_C1}, s{S_C1}, {WS_FL + 1024}""")
    a(zpoll)
    p3_tr_setup(a, T0)
    for n in range(NST):
        if n == N0:
            a(f"s_cmp_lg_u32 s{S_RW}, 0\ns_cbranch_scc1 L_Y1_X")
            spoll(a, "L_Y1", f"s_buffer_load_dwordx2 s[70:71], {ws}, s{S_C1} glc", [70], ool)
        vm.wait(f"s{n}", *(["E"] if n == 15 else ["stL"] if n == Z1B else []))
        if n in (0, 4, 8, 12):
            st.mark(14 + n // 4)
        a("s_barrier")
        if n + 2 < NST:
            wload(n + 2)
            if n % 2 == 0:
                zcheck(n // 2 + 1)
            zload(n + 2)
            if n % 2 == 1 and n < 12:
                a(zpoll)
        if n == EARLY:
            early()
        if n == 14:
            bdma("wo", S_WO, 0, 8192, 0, 64, 8)
        if n == 15:
            for t in b_reads("h", 0, EFR):
                a(t)
            hblocks("hb", [9, 10, 11, 12])
    vm.wait("wo")
    st.fold()
    a("s_waitcnt lgkmcnt(0)")
    st.mark(18)
    a("s_barrier")
    hblocks("hb", range(9))
    p3_setup(a)
    st.mark(19)
    a(f"""s_cmp_lg_u32 s{S_RW}, 0
s_cbranch_scc1 P3_GO
s_lshl_b32 s{S_T0}, s{S_M64}, 7
s_add_u32 s{S_T0}, s{S_T0}, {WS_F3}""")
    spoll(a, "L_O", f"s_buffer_load_dwordx16 s[64:79], {ws}, s{S_T0} glc", list(range(64, 80, 2)), ool)
    a("s_branch P3_GO")

def compute(a, vm, st, last, ool):
    lg = LG(a)
    AD = [2, 224, 8, 8]
    AO = [0, 0, 0, 32768]
    V_C0 = 15
    ACC, FR, Z1, GZ, TP, BF, ONE = 16, 80, 128, 144, 208, 232, 240
    T1, T2 = TP, TP + 1
    def wflag(n, vo, so, off=0):
        a(f"""s_cmp_eq_u32 s{S_RW}, 0
s_cselect_b64 exec, {(1 << n) - 1}, 0
buffer_store_dword v0, v{vo}, {ws}, s{so} offen offset:{off} sc1
s_mov_b64 exec, -1""")
    a(f"v_mov_b32 v0, 1")
    last(0)
    last(1)
    st.mark(12)
    ids(a)
    AR, BRD = 2, 4
    a(f"""v_and_b32 v{T1}, 31, v{V_LANE}
v_lshrrev_b32 v{T2}, 5, v{V_LANE}
v_bfe_u32 v{AR}, v{V_LANE}, 1, 3
v_xor_b32 v{AR}, v{AR}, v{T2}
v_lshlrev_b32 v{AR}, 4, v{AR}
v_lshl_add_u32 v{AR}, v{T1}, 7, v{AR}
s_lshr_b32 s{S_T1}, s{S_RW}, 1
s_lshl_b32 s{S_T3}, s{S_T1}, 13
s_add_u32 s{S_T3}, s{S_T3}, 16384
v_add_u32 v{BRD}, s{S_T3}, v{AR}""")
    for k in range(1, 4):
        a(f"v_xor_b32 v{BRD+k}, {k << 5}, v{BRD}")
    a(f"""v_lshlrev_b32 v{BF+1}, 1, v{T1}
v_bfe_u32 v{AR}, v{V_LANE}, 4, 1
v_lshlrev_b32 v{AR}, 1, v{AR}
v_and_b32 v{T1}, 1, v{V_LANE}
v_add_u32 v{AR}, v{AR}, v{T1}
v_mul_u32_u24 v{AR}, 576, v{AR}
v_lshlrev_b32 v{T2}, 7, v{T2}
v_xor_b32 v{AR}, v{AR}, v{T2}
v_bfe_u32 v{T1}, v{V_LANE}, 2, 2
v_lshl_add_u32 v{AR}, v{T1}, 4, v{AR}
v_bfe_u32 v{T1}, v{V_LANE}, 1, 1
v_lshl_add_u32 v{AR}, v{T1}, 3, v{AR}
s_and_b32 s{S_T0}, s{S_RW}, 1
s_lshl_b32 s{S_T3}, s{S_T0}, 12
v_add_u32 v{AR}, s{S_T3}, v{AR}
v_xor_b32 v{AR+1}, 64, v{AR}
s_lshl_b32 s{S_T2}, s{S_TT}, 1
s_add_u32 s{S_T2}, s{S_T2}, s{S_T1}
s_lshl_b32 s{S_AB}, s{S_T2}, 7
s_lshl_b32 s{S_T3}, s{S_FQ}, 1
s_add_u32 s{S_T3}, s{S_T3}, s{S_T0}
s_lshl_b32 s{S_T3}, s{S_T3}, 12
s_mul_i32 s{S_ZB}, s{S_T2}, {2*28*2048}
s_add_u32 s{S_ZB}, s{S_ZB}, s{S_T3}
s_add_u32 s{S_ZB}, s{S_ZB}, {WS_Z1}
s_add_u32 s{S_C1}, s{S_ZB}, {28*2048}
s_mul_i32 s{S_O}, s{S_T2}, {2*144*1024}
s_add_u32 s{S_O}, s{S_O}, s{S_T3}
s_mul_i32 s{S_T3}, s{S_KH}, {56*1024}
s_add_u32 s{S_O}, s{S_O}, s{S_T3}
s_add_u32 s{S_O}, s{S_O}, {WS_AF + 32*1024}
s_lshl_b32 s{S_MW}, s{S_T2}, 2
s_lshr_b32 s{S_T3}, s{S_FQ}, 1
s_add_u32 s{S_MW}, s{S_MW}, s{S_T3}
s_lshl_b32 s{S_MW}, s{S_MW}, 3
s_and_b32 s{S_T3}, s{S_FQ}, 1
s_add_u32 s{S_MW}, s{S_MW}, s{S_T3}
s_lshl_b32 s{S_MW}, s{S_MW}, 1
s_add_u32 s{S_MW}, s{S_MW}, s{S_KH}
s_lshl_b32 s{S_MW}, s{S_MW}, 1
s_add_u32 s{S_MW}, s{S_MW}, s{S_T0}
s_lshl_b32 s{S_MW}, s{S_MW}, 2
s_add_u32 s{S_MW}, s{S_MW}, {WS_F2}
s_mov_b32 s{S_M}, {f32(GELU_C1)}
s_cmp_eq_u32 s{S_KH}, 0
s_cselect_b32 s{S_M2}, -1, 0
s_mov_b32 s{S_M2+1}, 0""")
    srd(a, S_B, P_BSP, 4096)
    pre = [f"v_add_u32 v{224+i}, 0x20000, v{2+i}" for i in range(6)] + [f"v_add_u32 v{8+i}, 0x10000, v{2+i}" for i in range(6)]
    pre += [f"v_mov_b32 v{V_C0}, {f32(GELU_C0)}"] + [f"v_mov_b32 v{BF+r}, 0" for r in (2, 3, 4)] + [f"v_mov_b32 v{ONE+r}, 0x3f803f80" for r in range(4)]
    for t in pre:
        a(t)
    p3_tr_setup(a, TP)
    a(f"v_lshlrev_b32 v{TP}, 7, v{V_LANE}")
    def bias_load():
        vm.issue("b", f"buffer_load_ushort v{BF}, v{BF+1}, s[{S_B}:{S_B+3}], s{S_AB} offen")
        vm.issue("b", f"buffer_load_ushort v{BF+5}, v{BF+1}, s[{S_B}:{S_B+3}], s{S_AB} offen offset:64")
    def bias_prep():
        vm.wait("b")
        a(f"""v_cndmask_b32 v{BF}, 0, v{BF}, s[{S_M2}:{S_M2+1}]
v_cndmask_b32 v{BF+5}, 0, v{BF+5}, s[{S_M2}:{S_M2+1}]
v_mov_b32 v{BF+1}, 0""")
    QD = ((0, 0), (1, 0), (0, 1), (1, 1))
    def bias_mf(k):
        fi, ti = QD[k]
        c = ACC + 32 * fi + 16 * ti
        a(f"v_mfma_f32_32x32x16_bf16 v[{c}:{c+15}], v[{ONE}:{ONE+3}], v[{BF+2*ti}:{BF+2*ti+3}], v[{c}:{c+15}]")
    gl = []
    for grp in range(16):
        e0 = 4 * grp
        t = TP + 4 * (grp & 1)
        for e in range(4):
            src = Z1 + ((e0 + e) // 2) % 16
            gl.append(f"v_lshlrev_b32 v{GZ+e0+e}, 16, v{src}" if e % 2 == 0 else f"v_and_b32 v{GZ+e0+e}, 0xffff0000, v{src}")
        gl += [f"v_mul_f32 v{t+e}, v{GZ+e0+e}, v{GZ+e0+e}" for e in range(4)]
        gl += [f"v_fma_f32 v{t+e}, v{t+e}, s{S_M}, v{V_C0}" for e in range(4)]
        gl += [f"v_mul_f32 v{t+e}, v{t+e}, v{GZ+e0+e}" for e in range(4)]
        gl += [f"v_exp_f32 v{t+e}, v{t+e}" for e in range(4)]
        gl += [f"v_add_f32 v{t+e}, 1.0, v{t+e}" for e in range(4)]
        gl += [f"v_rcp_f32 v{t+e}, v{t+e}" for e in range(4)]
        gl += [f"v_mul_f32 v{GZ+e0+e}, v{GZ+e0+e}, v{t+e}" for e in range(4)]
    G0G, GEND = G0 * 16, 256 - GTAIL
    ngap = GEND - G0G
    assert G0G - LEAD >= (4 * N0 - 2) * 4
    gi = [0, 0, 0]
    def zissue(li):
        fi, ti, q = li >> 2, (li >> 1) & 1, li & 1
        assert li < 4 or gi[0] >= 64 * (li - 4) + 36
        r = Z1 + 4 * (li & 3)
        vm.issue(f"z{li}", f"buffer_load_dwordx4 v[{r}:{r+3}], v{V_L16}, {ws}, s{S_ZB if ti == 0 else S_C1} offen offset:{fi*2048 + q*1024}")
    def fill():
        g = gi[1]
        gi[1] += 1
        while gi[2] < 8 and g >= G0G + ngap * gi[2] // 8 - LEAD:
            zissue(gi[2])
            gi[2] += 1
        if g < G0G:
            return
        tgt = min(len(gl), (len(gl) * (g - G0G + 1) + ngap - 1) // ngap)
        while gi[0] < tgt:
            if gi[0] % 64 == 0:
                vm.wait(f"z{gi[0] // 64}")
            a(gl[gi[0]])
            gi[0] += 1
    def reads(p):
        n, ks = p >> 2, p & 3
        f = FR + 16 * (p % 3)
        ad, ao = AD[n & 3], AO[n & 3]
        zo = ao + (ks >> 1) * 8192 + (ks & 1) * 256
        l = []
        for i in range(2):
            l.append(f"ds_read_b64_tr_b16 v[{f+4*i}:{f+4*i+1}], v{ad} offset:{zo + i*2048}")
            l.append(f"ds_read_b64_tr_b16 v[{f+4*i+2}:{f+4*i+3}], v{ad+1} offset:{zo + i*2048}")
            l.append(f"ds_read_b128 v[{f+8+4*i}:{f+8+4*i+3}], v{ad+2+ks} offset:{ao + i*4096}")
        return [(f"r{p}", t) for t in l]
    vm.wait("st1")
    st.mark(13)
    a("s_barrier")
    st.mark(14)
    for t in reads(0) + reads(1):
        lg.issue(*t)
    wflag(4, TP, S_CNT)
    wflag(8, TP, S_FL)
    for p in range(64):
        n, ks = p >> 2, p & 3
        if ks == 2 and n < 15:
            if n + 1 == Z1B:
                a("s_waitcnt vmcnt(0)")
                vm.q = []
            a("s_barrier")
            if n + 1 == Z1B:
                wflag(1, BF + 2, S_FL, 1024)
            if n + 1 in (4, 8, 12):
                st.mark(14 + (n + 1) // 4)
        lg.wait(f"r{p}")
        if p == 63:
            lg.all()
            st.fold()
            st.mark(18)
        rl = reads(p + 2) if p + 2 < 64 else []
        if p == 59:
            rl = rl + [("E", t) for t in b_reads("h", 0, EFR)]
        f = FR + 16 * (p % 3)
        for k, (fi, ti) in enumerate(QD):
            c = ACC + 32 * fi + 16 * ti
            a(f"v_mfma_f32_32x32x16_bf16 v[{c}:{c+15}], v[{f+4*fi}:{f+4*fi+3}], v[{f+8+4*ti}:{f+8+4*ti+3}], " + ("0" if p == 0 else f"v[{c}:{c+15}]"))
            for t in (rl[2 * k:2 * k + 2] if k < 3 else rl[6:]):
                lg.issue(*t)
            if ks == 1 and 0 <= n - BST < 4 and k == (n - BST + 2) % 4:
                bias_mf(n - BST)
            fill()
        if ks == 0 and n == BST - 4:
            bias_load()
        if ks == 0 and n == BST:
            bias_prep()
    assert gi[0] == len(gl)
    for k, (fi, ti) in enumerate(QD):
        if k == 0:
            a("s_nop 3")
        if k == 2:
            a(f"s_add_u32 s{S_O}, s{S_O}, {144*1024}")
        c = ACC + 32 * fi + 16 * ti
        g = GZ + 32 * fi + 16 * ti
        o = FR + 8 * (2 * ti + fi) + 16
        for q in range(2):
            for r in range(8 * q, 8 * q + 8, 2):
                a(f"v_pk_mul_f32 v[{c+r}:{c+r+1}], v[{c+r}:{c+r+1}], v[{g+r}:{g+r+1}]")
            for r in range(4 * q, 4 * q + 4):
                a(f"v_cvt_pk_bf16_f32 v{o+r}, v{c+2*r}, v{c+2*r+1}")
            vm.issue("st", f"buffer_store_dwordx4 v[{o+4*q}:{o+4*q+3}], v{V_L16}, {ws}, s{S_O} offen offset:{fi*2048 + q*1024}{SF}")
    a("s_barrier")
    p3_setup(a)
    a(f"""v_mov_b32 v{TP}, 1
s_mov_b64 exec, 1""")
    st.mark(19)
    a(f"""s_waitcnt vmcnt(0)
buffer_store_dword v{TP}, v{BF+2}, {ws}, s{S_MW} offen sc1
s_mov_b64 exec, -1""")

def phase3(a, st, ool):
    vm, lg = VM(a), LG(a)
    a("P3_GO:")
    st.mark(20)
    a("s_barrier")
    st.mark(21)
    horder = [9, 10, 11, 12, 0, 1, 2, 3, 4, 5, 6, 7, 8, 13]
    vm.q = ["hb"]
    for i in range(8):
        if i == 4:
            a(f"s_add_u32 s{S_A}, s{S_A}, 4096")
        vm.issue(f"a{i}", f"buffer_load_dwordx4 v[{AFR+4*i}:{AFR+4*i+3}], v{V_L16}, {ws}, s{S_A} offen offset:{(i & 3) * 1024}")
    vm.issue("x", f"buffer_load_dwordx4 v[{XV}:{XV+3}], v{V_XO}, s[{S_X}:{S_X+3}], s{S_XO} offen")
    steps = [("o", i) for i in range(8)] + [("h", b) for b in horder]
    def breads(si):
        ty, i = steps[si]
        if (ty, i) == ("h", 13):
            return []
        return [(f"b{si}", t) for t in b_reads(ty, i, BFR + 8 * (si % 3))]
    for t in breads(0) + breads(1):
        lg.issue(*t)
    vm.wait("hb")
    st.mark(22)
    a(f"""s_cmp_lg_u32 s{S_WAVE}, 0
s_cbranch_scc1 L_H_X
s_lshl_b32 s{S_T0}, s{S_M64}, 9
s_add_u32 s{S_T0}, s{S_T0}, {WS_F2}
s_add_u32 s{S_T1}, s{S_T0}, 128
s_add_u32 s{S_T2}, s{S_T0}, 256
s_add_u32 s{S_T3}, s{S_T0}, 384""")
    spoll(a, "L_H", f"""s_buffer_load_dwordx8 s[56:63], {ws}, s{S_T0} glc
s_buffer_load_dwordx8 s[64:71], {ws}, s{S_T1} glc
s_buffer_load_dwordx8 s[72:79], {ws}, s{S_T2} glc
s_buffer_load_dwordx4 s[8:11], {ws}, s{S_T3} glc""", list(range(56, 80, 2)) + [8, 10], ool)
    a("s_barrier")
    st.mark(23)
    hl = []
    for j, b in enumerate(horder):
        for h in range(2):
            r = AFR + 32 + 8 * j + 4 * h
            hl.append((f"a{8 + 2*j + h}", b, f"buffer_load_dwordx4 v[{r}:{r+3}], v{V_W if h else V_L16}, {ws}, s{S_T0} offen offset:{(b & 3) * 1024}"))
    nx = [0, -1]
    def pump(lim):
        while nx[0] < min(lim, len(hl)):
            tag, b, t = hl[nx[0]]
            if b >> 2 != nx[1]:
                nx[1] = b >> 2
                a(f"s_add_u32 s{S_T0}, s{S_O}, {(b >> 2) * 4096}")
            vm.issue(tag, t)
            nx[0] += 1
    cons = 0
    pump(AHEAD - 6)
    for si, (ty, i) in enumerate(steps):
        if si == 8: st.mark(24)
        if si == 15: st.mark(25)
        if si == 11:
            a("s_barrier")
        bf = EFR if (ty, i) == ("h", 13) else BFR + 8 * (si % 3)
        rl = breads(si + 2) if si + 2 < len(steps) else []
        lg.wait(f"b{si}")
        na = 1 if ty == "o" else 2
        for h in range(na):
            vm.wait(f"a{cons}")
            x = AFR + 4 * cons
            for ni in range(2):
                c = ACC3 + 16 * ni
                a(f"v_mfma_f32_32x32x16_bf16 v[{c}:{c+15}], v[{bf+4*ni}:{bf+4*ni+3}], v[{x}:{x+3}], " + ("0" if si == 0 else f"v[{c}:{c+15}]"))
                k = 2 * h + ni
                for t in (rl[2 * k:2 * k + 2] if na == 1 else rl[k:k + 1]):
                    lg.issue(*t)
                if ni == 0:
                    pump(cons + 1 - 8 + AHEAD + (2 if ty == "o" else 0))
            cons += 1
    st.mark(26)
    U = AFR
    for lp in (1, 2, 3):
        a(f"""s_xor_b32 s{S_T0}, s{S_WAVE}, {lp}
s_mul_i32 s{S_T0}, s{S_T0}, 6144
v_add_u32 v{BFR+lp}, s{S_T0}, v{V_L16}""")
    a(f"""s_mul_i32 s{S_T0}, s{S_WAVE}, 6144
v_add_u32 v{BFR}, s{S_T0}, v{V_L16}""")
    for d in range(4):
        a(f"v_lshlrev_b32 v{U+2*d}, 16, v{XV+d}")
        a(f"v_and_b32 v{U+2*d+1}, 0xffff0000, v{XV+d}")
    for lp in (1, 2, 3):
        for k in range(2):
            c = ACC3 + 8 * lp + 4 * k
            a(f"ds_write_b128 v{BFR+lp}, v[{c}:{c+3}] offset:{(lp-1)*2048 + k*1024}")
    a("s_waitcnt lgkmcnt(0)\ns_barrier")
    for k in range(6):
        c = ACC3 + 8 + 4 * k
        a(f"ds_read_b128 v[{c}:{c+3}], v{BFR} offset:{k*1024}")
    for lp in (1, 2, 3):
        a(f"s_waitcnt lgkmcnt({6 - 2*lp})")
        for r in range(0, 8, 2):
            a(f"v_pk_add_f32 v[{ACC3+r}:{ACC3+r+1}], v[{ACC3+r}:{ACC3+r+1}], v[{ACC3+8*lp+r}:{ACC3+8*lp+r+1}]")
    a("s_nop 1")
    for d in range(4):
        a(f"v_permlane32_swap_b32 v{ACC3+d}, v{ACC3+4+d}")
    for r in range(0, 8, 2):
        a(f"v_pk_add_f32 v[{ACC3+r}:{ACC3+r+1}], v[{ACC3+r}:{ACC3+r+1}], v[{U+r}:{U+r+1}]")
    for r in range(4):
        a(f"v_cvt_pk_bf16_f32 v{XV+r}, v{ACC3+2*r}, v{ACC3+2*r+1}")
    a(f"buffer_store_dwordx4 v[{XV}:{XV+3}], v{V_XO}, s[{S_OUT}:{S_OUT+3}], s{S_XO} offen")
    st.flush(S_WS, S_WAVE)
    a("s_endpgm")

def ids(a):
    a(f"""s_and_b32 s{S_KH}, s2, 1
s_bfe_u32 s{S_T0}, s2, 0x20001
s_bfe_u32 s{S_T1}, s2, 0x20003
s_lshl_b32 s{S_TT}, s{S_T0}, 2
s_add_u32 s{S_TT}, s{S_TT}, s{S_T1}
s_and_b32 s{S_T0}, s2, 7
s_lshl_b32 s{S_M64}, s{S_T0}, 2
s_add_u32 s{S_M64}, s{S_M64}, s{S_T1}
s_lshr_b32 s{S_FQ}, s2, 5""")

def hook_main(a, vm, st, last):
    ool = []
    a(f"""s_cmp_eq_u32 s{S_CH}, 0
s_cbranch_scc0 P2_CMP""")
    q0, p0 = list(vm.q), list(st.pend)
    loader(a, vm, st, last, ool)
    pl = list(st.pend)
    a("P2_CMP:")
    vm.q, st.pend = q0, p0
    compute(a, vm, st, last, ool)
    assert st.pend == pl
    phase3(a, st, ool)
    for o in ool:
        a(o)

def hook_att(a, vm, st):
    V_T0, V_T1, V_T2, V_L8B = 2, 3, 4, 5
    KF, QF, ACC, ZAC, ONE, KVB, TP = 16, 144, 176, 192, 208, 212, 220
    S_H, S_HF, S_MK = 28, 29, 42
    st.mark(12)
    a(f"""; head = 2x + (c&1) ; half = c>>1
s_and_b32 s{S_T0}, s2, 7
s_lshl_b32 s{S_H}, s{S_T0}, 1
s_bfe_u32 s{S_T0}, s2, 0x10003
s_add_u32 s{S_H}, s{S_H}, s{S_T0}
s_bfe_u32 s{S_HF}, s2, 0x10004
s_lshl_b32 s{S_T3}, s{S_HF}, 3
s_add_u32 s{S_O}, s{S_T3}, s{S_WAVE}
v_lshlrev_b32 v{V_T0}, 7, v{V_LANE}
v_mov_b32 v{V_T1}, 1
s_waitcnt vmcnt(0)
s_barrier
s_cmp_eq_u32 s{S_WAVE}, 0
s_cselect_b64 exec, 0xff, 0
buffer_store_dword v{V_T1}, v{V_T0}, {ws}, s{S_FL} offen sc1""")
    st.mark(13)
    if ATOUCH:
        srd(a, 20, P_BSP, 4096)
        a(f"s_cmp_eq_u32 s{S_WAVE}, 0\ns_cselect_b64 exec, -1, 0")
        a(f"buffer_load_dword v{TP}, v{V_T0}, s[20:23], 0 offen")
    a(f"""s_mov_b64 exec, -1
s_and_b32 s{S_T0}, s2, 7
s_lshl_b32 s{S_T0}, s{S_T0}, 7
s_add_u32 s{S_T0}, s{S_T0}, {WS_FL}
s_lshl_b32 s{S_T2}, s{S_WAVE}, 12
s_add_u32 s{S_T2}, s{S_T2}, s{S_T0}
s_add_u32 s{S_T3}, s{S_T2}, 2048
s_lshl_b32 s{S_M2}, s{S_O}, 11
s_add_u32 s{S_M2}, s{S_M2}, s{S_T0}""")
    spoll(a, "A_KV", f"s_buffer_load_dwordx16 s[56:71], {ws}, s{S_T2} glc\ns_buffer_load_dwordx16 s[8:23], {ws}, s{S_T3} glc", list(range(56, 72, 2)) + list(range(8, 24, 2)), None, 2)
    vm.q = []
    st.mark(14)
    a(f"""s_mul_i32 s{S_T1}, s{S_WAVE}, {8*28672}
s_mul_i32 s{S_T2}, s{S_H}, 896
s_add_u32 s{S_T1}, s{S_T1}, s{S_T2}
s_add_u32 s{S_T1}, s{S_T1}, {WS_K}
s_mul_i32 s{S_T0}, s{S_HF}, {8*14336}
s_add_u32 s{S_T1}, s{S_T1}, s{S_T0}
s_lshl_b32 s{S_T0}, s{S_T0}, 1
v_add_u32 v{V_T2}, {WS_V - WS_K}, v{V_KO}""")
    for i in range(16):
        vm.issue(f"k{i}", f"buffer_load_dwordx4 v[{KF+8*i}:{KF+8*i+3}], v{V_KO}, {ws}, s{S_T1} offen")
        vm.issue(f"k{i}", f"buffer_load_dwordx4 v[{KF+8*i+4}:{KF+8*i+7}], v{V_T2}, {ws}, s{S_T1} offen")
        a(f"s_add_u32 s{S_T1}, s{S_T1}, 14336")
        if i == 7:
            a(f"s_sub_u32 s{S_T1}, s{S_T1}, s{S_T0}")
    spoll(a, "A_Q", f"s_buffer_load_dwordx8 s[56:63], {ws}, s{S_M2} glc", list(range(56, 64, 2)), None, 2)
    a(f"""v_and_b32 v{V_L8B}, 0xff, v{V_L8}
s_mul_i32 s{S_T1}, s{S_O}, {4*28672}
s_lshl_b32 s{S_T2}, s{S_T2}, 1
s_add_u32 s{S_T1}, s{S_T1}, s{S_T2}
s_add_u32 s{S_T1}, s{S_T1}, {WS_Q}
s_lshl_b32 s{S_C1+1}, s{S_O}, 8
s_lshl_b32 s{S_T3}, s{S_H}, 2
s_add_u32 s{S_FL}, s{S_C1+1}, s{S_T3}
s_add_u32 s{S_FL}, s{S_FL}, {WS_F3}
s_mul_i32 s{S_O}, s{S_O}, {4*144*1024}
s_lshl_b32 s{S_T3}, s{S_H}, 11
s_add_u32 s{S_O}, s{S_O}, s{S_T3}
s_add_u32 s{S_O}, s{S_O}, {WS_AF}""")
    for u in range(4):
        for i in range(4):
            r = QF + 8 * u + 2 * i
            vm.issue("q", f"buffer_load_dwordx2 v[{r}:{r+1}], v{V_L8 if i < 3 else V_L8B}, {ws}, s{S_T1} offen offset:{512*i}")
        a(f"s_add_u32 s{S_T1}, s{S_T1}, 28672")
    for r in range(4):
        a(f"v_mov_b32 v{ONE+r}, 0x3f803f80")
    a(f"""s_mov_b32 s{S_MK}, 0x10000000
s_mov_b32 s{S_MK+1}, 0x10000000
s_mov_b32 s{S_M2}, -1
s_mov_b32 s{S_M2+1}, 0""")
    for i in range(16):
        vm.wait(f"k{i}")
        c0 = "0" if i == 0 else f"v[{ACC}:{ACC+15}]"
        c1 = "0" if i == 0 else f"v[{ZAC}:{ZAC+15}]"
        a(f"v_mfma_f32_32x32x16_bf16 v[{ACC}:{ACC+15}], v[{KF+8*i}:{KF+8*i+3}], v[{KF+8*i+4}:{KF+8*i+7}], {c0}")
        a(f"v_mfma_f32_32x32x16_bf16 v[{ZAC}:{ZAC+15}], v[{KF+8*i}:{KF+8*i+3}], v[{ONE}:{ONE+3}], {c1}")
    st.mark(15)
    a(f"""s_lshl_b32 s{S_T1}, s{S_WAVE}, 12
v_add_u32 v{V_T2}, s{S_T1}, v{V_L8}
s_nop 10""")
    for r in range(16):
        a(f"v_cndmask_b32 v{ACC+r}, v{ACC+r}, v{ZAC+r}, s[{S_MK}:{S_MK+1}]")
    for p in range(8):
        a(f"ds_write_b64 v{V_T2}, v[{ACC+2*p}:{ACC+2*p+1}] offset:{512*p}")
    a(f"""s_lshl_b32 s{S_T1}, s{S_WAVE}, 9
v_add_u32 v{V_T2}, s{S_T1}, v{V_L8}""")
    a("s_waitcnt lgkmcnt(0)\ns_barrier")
    for w in range(8):
        a(f"ds_read_b64 v[{ACC+2*w}:{ACC+2*w+1}], v{V_T2} offset:{4096*w}")
    a(f"""s_cmp_ge_u32 s{S_WAVE}, 6
s_cselect_b32 s{S_MK+1}, 0, -1
s_mov_b32 s{S_MK}, -1
s_lshl_b32 s{S_T1}, s{S_WAVE}, 2
s_add_u32 s{S_T1}, s{S_T1}, 32768
v_lshl_add_u32 v{V_T2}, v{V_LANE}, 5, s{S_T1}
s_waitcnt lgkmcnt(0)""")
    for w in (4, 2, 1):
        for k in range(w):
            a(f"v_pk_add_f32 v[{ACC+2*k}:{ACC+2*k+1}], v[{ACC+2*k}:{ACC+2*k+1}], v[{ACC+2*(k+w)}:{ACC+2*(k+w)+1}]")
    a(f"""v_cvt_pk_bf16_f32 v{ACC}, v{ACC}, v{ACC+1}
v_cndmask_b32 v{ACC}, 0, v{ACC}, s[{S_MK}:{S_MK+1}]
ds_write_b32 v{V_T2}, v{ACC}
v_lshlrev_b32 v{V_T2}, 5, v{V_LANE}
s_waitcnt lgkmcnt(0)
s_barrier
ds_read_b128 v[{KVB}:{KVB+3}], v{V_T2} offset:32768
ds_read_b128 v[{KVB+4}:{KVB+7}], v{V_T2} offset:32784
s_waitcnt lgkmcnt(0)""")
    vm.wait("q")
    st.mark(16)
    for u in range(4):
        c = KF + 16 * u
        a(f"v_mfma_f32_32x32x16_bf16 v[{c}:{c+15}], v[{KVB}:{KVB+3}], v[{QF+8*u}:{QF+8*u+3}], 0")
        a(f"v_mfma_f32_32x32x16_bf16 v[{c}:{c+15}], v[{KVB+4}:{KVB+7}], v[{QF+8*u+4}:{QF+8*u+7}], v[{c}:{c+15}]")
    a("s_nop 5")
    for u in range(4):
        c = KF + 16 * u
        o = KF + 64 + 8 * u
        a(f"""v_add_f32 v{TP}, {f32(1e-6)}, v{c+12}
v_mov_b32 v{TP+1}, v{TP}
s_nop 1
v_permlane32_swap_b32 v{TP+1}, v{TP}
v_rcp_f32 v{TP}, v{TP}
s_nop 0""")
        for r in range(16):
            a(f"v_mul_f32 v{c+r}, v{c+r}, v{TP}")
        for r in range(8):
            a(f"v_cvt_pk_bf16_f32 v{o+r}, v{c+2*r}, v{c+2*r+1}")
        a(f"v_cndmask_b32 v{o+6}, 0, v{o+6}, s[{S_M2}:{S_M2+1}]")
        a(f"v_cndmask_b32 v{o+7}, 0, v{o+7}, s[{S_M2}:{S_M2+1}]")
        vm.issue("st", f"buffer_store_dwordx4 v[{o}:{o+3}], v{V_L16}, {ws}, s{S_O} offen{SF}")
        vm.issue("st", f"buffer_store_dwordx4 v[{o+4}:{o+7}], v{V_L16}, {ws}, s{S_O} offen offset:1024{SF}")
        a(f"s_add_u32 s{S_O}, s{S_O}, {144*1024}")
    st.mark(17)
    a(f"""v_mov_b32 v{TP}, 1
v_lshlrev_b32 v{TP+1}, 7, v{V_LANE}
s_mov_b64 exec, 3
s_waitcnt vmcnt(0)
buffer_store_dword v{TP}, v{TP+1}, {ws}, s{S_FL} offen sc1""")
    st.flush(S_WS, S_WAVE)
    a("s_endpgm")
```

```python
from common import *
import os
R1 = 0
RING = 57344
SCR = RING + 57344
DEAD = SCR + 8192
P1_LDS = 163840
P1_VGPR = 256
E = os.environ.get
ROTMODE = 1
STORE_FLAGS = E("SF", " sc1")
PFL = [int(x) for x in E("P1_PFL", "9,16,23,30").split(",")]
PFROW = int(E("P1_PFROW", "0"))
WPF = int(E("P1_WPF", "13"))
NTP, NTX, NTW, NTO = [" nt" if c == "1" else "" for c in E("P1_NT", "1000")]
NTQ = E("P1_NTQ", "0000")
CPF = [int(x) for x in E("P1_CPF", "-1,-1,-1,-1").split(",")]
WSB = int(E("WSB", "0"), 0)
CSTAT = E("P1_CSTAT", "valu")
SCH = {"E": [int(x) for x in E("P1_SE", "17,28,32,37,38,52,51").split(",")],
       "L": [int(x) for x in E("P1_SL", "22,46,50,55,30,43,-1").split(",")]}
LATEF = int(E("P1_LATEF", "2"))
PSL = int(E("P1_PSL", "3"))
RTL = [int(x) for x in E("P1_RTL", "-1,-1,-1,-1").split(",")]
TOUCH = int(E("P1_TOUCH", "0"))

P_X, P_QKV, P_WO, P_WIN, P_SP, P_BSP, P_WOUT, P_DBG, P_WS, P_OUT = 64, 66, 68, 72, 74, 76, 78, 56, 58, 60
X = E("P1_X", "")

V_LANE = 1
V_X0, V_X1, V_DA, V_DB = 2, 3, 4, 5
XR, WR = 6, 10
V_L16, V_T0 = 14, 15
A0 = 16
V_S, V_Q = 224, 225
V_R, V_C0, V_C1, V_RI, V_L2E = 226, 227, 228, 229, 230
V_PF = 0
SEL = 232
XE, CE = 236, 240
T4 = 248
V_KO, V_L8, V_CSA, V_DUM = 252, 253, 254, 255

S_SP = 4
S_PFO, S_CNT, S_REC, S_FL = 8, 9, 10, 11
S_X, S_WA, S_WB, S_WS = 12, 16, 20, 24
S_RB, S_G, S_WAVE, S_RW, S_CH = 28, 29, 30, 31, 32
S_T0, S_T1, S_T2, S_T3 = 33, 34, 35, 36
S_PK = 37
S_XB = 38
S_L = 39
S_A64 = 43
S_MR, S_MW = 44, 45
S_XO = 46
S_O = 47
S_SA = 52
S_SPIN = 53
S_HI = 54
B64 = 64 * 2688

class K:
    def __init__(s, kinds):
        s.kinds = kinds
        s.nA = 2 if kinds[0] == "V" else 1
        s.WST = (2 + s.nA) * 1024
        s.SLOT = 8 * s.WST
        s.NSL = 98304 // s.SLOT
        s.DEPTH = s.NSL - 1
        s.ori = [k in "GLQ" for k in kinds]
        s.WB, s.CV, s.CSA = 160, 212, 220
        if s.nA == 1:
            s.ACC = [128, 144, 160]
            s.BR, s.TMP, s.R16, s.XS = 176, 196, A0, CE + 4
            s.stat = E("P1_ASTAT", "mix")
        else:
            s.ACC = [128, 144, 160, 128]
            s.BR, s.TMP, s.R16, s.XS = 192, 176, 176, 228
            s.stat = CSTAT
NBR = 5

class LG:
    def __init__(self, a):
        self.a, self.q = a, []
    def issue(self, tag, text):
        self.a(text)
        self.q.append(tag)
    def wait(self, *tags):
        last = -1
        for i, t in enumerate(self.q):
            if t in tags:
                last = i
        if last < 0:
            return
        n = min(15, len(self.q) - 1 - last)
        self.a(f"s_waitcnt lgkmcnt({n})")
        self.q = self.q[len(self.q) - n:] if n else []
    def all(self):
        if self.q:
            self.a("s_waitcnt lgkmcnt(0)")
        self.q = []
    def copy(self):
        v = LG(self.a)
        v.q = list(self.q)
        return v

def mf(acc, w, x, orient, first=False):
    c = "0" if first else f"v[{acc}:{acc+15}]"
    if orient:
        return f"v_mfma_f32_32x32x16_bf16 v[{acc}:{acc+15}], v[{w}:{w+3}], v[{x}:{x+3}], {c}"
    return f"v_mfma_f32_32x32x16_bf16 v[{acc}:{acc+15}], v[{x}:{x+3}], v[{w}:{w+3}], {c}"

def mf16(c, b, first):
    return f"v_mfma_f32_16x16x32_bf16 v[{c}:{c+3}], v[{SEL}:{SEL+3}], v[{b}:{b+3}], " + ("0" if first else f"v[{c}:{c+3}]")

def adv_pk(a):
    if ROTMODE != 1:
        a(f"""s_add_u32 s{S_PK}, s{S_PK}, 1
s_cmp_eq_u32 s{S_PK}, 7
s_cselect_b32 s{S_PK}, 0, s{S_PK}""")

def line_src(L):
    if L == 1:
        return V_DB, S_WB, str(B64)
    return V_DA, S_WA, f"s{S_A64}"

def w_off(a, L, dst):
    v, s, st = line_src(L)
    if ROTMODE == 1:
        return S_L + L
    a(f"s_mul_i32 s{dst}, s{S_PK}, {st}\ns_add_u32 s{dst}, s{dst}, s{S_L+L}")
    return dst

def w_adv(a, L):
    if ROTMODE == 1:
        a(f"s_add_u32 s{S_L+L}, s{S_L+L}, {line_src(L)[2]}")

def piece_dma(a, vm, k, j):
    sl = RING + (j % k.NSL) * k.SLOT
    def x0():
        a(f"s_add_u32 m0, s{S_MR}, {sl}")
        if ROTMODE == 1:
            a(f"s_add_u32 s{S_T0}, s{S_XB}, {128 * j}")
        else:
            a(f"s_lshl_b32 s{S_T0}, s{S_PK}, 7\ns_add_u32 s{S_T0}, s{S_T0}, s{S_XB}")
        vm.issue(f"p{j}", f"buffer_load_dwordx4 v{V_X0}, s[{S_X}:{S_X+3}], s{S_T0} offen{NTX} lds")
    def x1():
        vm.issue(f"p{j}", f"buffer_load_dwordx4 v{V_X1}, s[{S_X}:{S_X+3}], s{S_T0} offen offset:{(1+k.nA)*1024}{NTX} lds")
    def w(L):
        def f():
            v, s, _ = line_src(L)
            o = w_off(a, L, S_T1)
            vm.issue(f"p{j}", f"buffer_load_dwordx4 v{v}, s[{s}:{s+3}], s{o} offen offset:{(1+L)*1024}{NTW} lds")
            w_adv(a, L)
            if L == k.nA - 1:
                adv_pk(a)
        return f
    return [x0, x1] + [w(L) for L in range(k.nA)]

def line_dma(a, vm, L, b, base, tag):
    def f():
        v, s, _ = line_src(L)
        a(f"s_add_u32 m0, s{S_MW}, {base + b * 8192}")
        o = w_off(a, L, S_T1)
        if ROTMODE == 1:
            a("s_nop 0")
        vm.issue(tag, f"buffer_load_dwordx4 v{v}, s[{s}:{s+3}], s{o} offen{NTW} lds")
        w_adv(a, L)
        adv_pk(a)
    return f

def I(a, s):
    return lambda: a(s)

def spread(n, lst):
    return [lst[len(lst) * i // n: len(lst) * (i + 1) // n] for i in range(n)]

def ce_build(ce, src):
    return [f"v_add_f32 v{src}, v{src}, v{src+1}",
            f"v_add_f32 v{src+2}, v{src+2}, v{src+3}",
            f"v_add_f32 v{src}, v{src}, v{src+2}",
            f"v_and_b32 v{src+1}, 0xffff0000, v{src}",
            f"v_sub_f32 v{src}, v{src}, v{src+1}",
            f"v_cvt_pk_bf16_f32 v{ce}, v{src+1}, v{src}"]

def store_tile(a, vm, kind, src, so):
    tg = "st" + kind
    ws = f"s[{S_WS}:{S_WS+3}]"
    l = []
    if kind in "GL":
        l.append(lambda: vm.issue(tg, f"buffer_store_dwordx4 v[{src}:{src+3}], v{V_L16}, {ws}, s{so} offen{STORE_FLAGS}"))
        l.append(lambda: vm.issue(tg, f"buffer_store_dwordx4 v[{src+4}:{src+7}], v{V_L16}, {ws}, s{so} offen offset:1024{STORE_FLAGS}"))
    elif kind == "Q":
        for i in range(4):
            l.append(lambda i=i: vm.issue(tg, f"buffer_store_dwordx2 v[{src+2*i}:{src+2*i+1}], v{V_L8}, {ws}, s{so} offen offset:{512*i}{STORE_FLAGS}"))
    else:
        l.append(lambda: vm.issue(tg, f"buffer_store_dwordx4 v[{src}:{src+3}], v{V_KO}, {ws}, s{so} offen{STORE_FLAGS}"))
        def second():
            a(f"s_add_u32 s{so}, s{so}, 14336")
            vm.issue(tg, f"buffer_store_dwordx4 v[{src+4}:{src+7}], v{V_KO}, {ws}, s{so} offen{STORE_FLAGS}")
        l.append(second)
    return l

def epilogue(a, vm, k, kind, acc, so):
    T = k.TMP
    R = (lambda r: V_R) if kind in "GLQ" else (lambda r: k.R16 + r)
    s = []
    for h in range(2):
        rs = range(8 * h, 8 * h + 8)
        if kind == "G":
            s += [f"v_mul_f32 v{T+r}, v{acc+r}, v{acc+r}" for r in rs]
            s += [f"v_fma_f32 v{T+r}, v{T+r}, v{V_C1}, v{V_C0}" for r in rs]
            s += [f"v_mul_f32 v{T+r}, v{T+r}, v{acc+r}" for r in rs]
            s += [f"v_exp_f32 v{T+r}, v{T+r}" for r in rs]
            s += [f"v_fma_f32 v{T+r}, v{T+r}, v{V_RI}, v{V_RI}" for r in rs]
            s += [f"v_rcp_f32 v{T+r}, v{T+r}" for r in rs]
            s += [f"v_mul_f32 v{acc+r}, v{T+r}, v{acc+r}" for r in rs]
            for r in rs:
                s.append(f"v_add_f32 v{V_S}, v{V_S}, v{acc+r}" if r else f"v_mov_b32 v{V_S}, v{acc}")
                s.append(f"v_fmac_f32 v{V_Q}, v{acc+r}, v{acc+r}" if r else f"v_mul_f32 v{V_Q}, v{acc}, v{acc}")
        elif kind in "QK":
            s += [f"v_fmaak_f32 v{acc+r}, v{acc+r}, v{R(r)}, {f32(1e-6)}" for r in rs]
            s += [f"v_fmaak_f32 v{T+r}, v{acc+r}, v{V_L2E}, {f32(-1e-6*LOG2E)}" for r in rs]
            s += [f"v_exp_f32_e64 v{T+r}, v{T+r} clamp" for r in rs]
            s += [f"v_max_f32 v{acc+r}, {f32(1e-6)}, v{acc+r}" for r in rs]
            s += [f"v_add_f32 v{acc+r}, v{acc+r}, v{T+r}" for r in rs]
        else:
            s += [f"v_mul_f32 v{acc+r}, v{acc+r}, v{R(r)}" for r in rs]
    l = [I(a, x) for x in s]
    if kind != "G":
        l += [I(a, f"v_cvt_pk_bf16_f32 v{k.CV+r}, v{acc+2*r}, v{acc+2*r+1}") for r in range(8)]
        l += store_tile(a, vm, kind, k.CV, so)
    return l

def phase_a(a, vm, lg, k, st, tail_fill):
    nA = k.nA
    late = [line_dma(a, vm, nA, b, R1, "wa" if b < 3 else "wb") for b in range(7)]
    lsp = spread(k.DEPTH, late) if k.DEPTH == 3 else [late[:4], late[4:]]
    if k.DEPTH == 3:
        lsp = [late[:3], late[3:5], late[5:]]
    XS = k.XS
    for j in range(8):
        main, reads, dots, dmas, extra = [], [], [], [], []
        if j < 7:
            vm.wait(f"p{j}")
            a("s_barrier")
            if j in (0, 3, 6):
                st.mark(3 + j // 3)
            so = (j % k.NSL) * k.SLOT
            for i in range(4):
                x = A0 + 16 * j + 4 * i
                xr, xo = (XR + i, so) if so < 65536 else (None, None)
                reads.append(("x", x, i, so))
                for L in range(nA):
                    b = k.WB + 16 * nA * (j & 1) + 16 * L + 4 * i
                    reads.append(("w", b, i, so + L * 1024))
                    reads.append(("w", b + 2, i, so + L * 1024 + 512))
            def rd(t, r, i, off):
                def f():
                    if t == "x":
                        lg.issue("a", f"ds_read_b128 v[{r}:{r+3}], v{XR+i} offset:{off - hi(off)}")
                    else:
                        lg.issue("a", f"ds_read_b64_tr_b16 v[{r}:{r+1}], v{WR+i} offset:{off - hi(off)}")
                return f
            hi = lambda off: 49152 if so >= 49152 else 0
            prev = ((j - 1) % k.NSL) * k.SLOT if j else 0
            if (prev >= 49152) != (so >= 49152):
                op = "v_add_u32" if so >= 49152 else "v_subrev_u32"
                for r in list(range(XR, XR + 4)) + list(range(WR, WR + 4)):
                    a(f"{op} v{r}, 49152, v{r}")
            reads = [rd(*r) for r in reads]
            if j + k.DEPTH < 7:
                dmas = piece_dma(a, vm, k, j + k.DEPTH)
            else:
                dmas = lsp[j + k.DEPTH - 7]
            if j == k.DEPTH and k.kinds[0] == "V":
                def flag():
                    a(f"s_cmp_eq_u32 s{S_WAVE}, 7\ns_cselect_b64 exec, 1, 0")
                    a(f"buffer_store_dword v{V_DUM}, v{XE+1}, s[{S_SP}:{S_SP+3}], s{S_CNT} offen sc1")
                    a(f"s_mov_b64 exec, -1")
                assert "clr" not in vm.q
                dmas = dmas + [flag]
        else:
            vm.wait("wa")
            a("s_barrier")
            reads = tail_fill
        if j > 0:
            p = j - 1
            for i in range(4):
                x = A0 + 16 * p + 4 * i
                for L in range(nA):
                    b = k.WB + 16 * nA * (p & 1) + 16 * L + 4 * i
                    main.append(I(a, mf(k.ACC[L], b, x, k.ori[L], p == 0 and i == 0)))
            for L in range(nA):
                extra.append(I(a, mf16(CE + 4 * L, k.WB + 16 * nA * (p & 1) + 16 * L, p == 0)))
            if k.stat == "mix":
                for i in range(2):
                    extra.append(I(a, mf16(XS, A0 + 16 * p + 4 * i, p == 0 and i == 0)))
            for d in range(8):
                x = A0 + 16 * p + d
                t = T4 + 2 * (d & 1)
                dots.append(I(a, f"v_lshlrev_b32 v{t}, 16, v{x}"))
                dots.append(I(a, f"v_and_b32 v{t+1}, 0xffff0000, v{x}"))
                if k.stat != "mix":
                    dots.append(I(a, f"v_add_f32 v{V_S}, v{V_S}, v{t}"))
                dots.append(I(a, f"v_fmac_f32 v{V_Q}, v{t}, v{t}"))
                if k.stat != "mix":
                    dots.append(I(a, f"v_add_f32 v{V_R}, v{V_R}, v{t+1}"))
                dots.append(I(a, f"v_fmac_f32 v{V_C0}, v{t+1}, v{t+1}"))
        if main:
            n = len(main)
            rs, ds, ms, es = spread(n, reads), spread(n, dots), spread(n, dmas), spread(n, extra)
            for g in range(n):
                main[g]()
                for f in rs[g] + ms[g] + ds[g] + es[g]:
                    f()
        else:
            for f in reads + dmas:
                f()
        if j < 7:
            lg.all()
    return XS

def kind_body(a, vm0, k, st, lab, hook_main, hook_att):
    vm = Vm = vm0.copy()
    lg = LG(a)
    kinds, ori, nA = k.kinds, k.ori, k.nA
    G = kinds[0] == "G"
    T = k.TMP
    D = 4
    dbg = f"s[{S_SP}:{S_SP+3}]"
    ws = f"s[{S_WS}:{S_WS+3}]"
    nl = 2 if nA == 1 else 1
    NS = 28 * nl
    def rd(p):
        b = k.BR + 4 * (p % NBR)
        off = ((p % 28) >> 2) * 8192
        def f0():
            if p == 28:
                for i in range(4):
                    a(f"v_add_u32 v{WR+i}, {RING}, v{WR+i}")
            lg.issue(f"r{p}", f"ds_read_b64_tr_b16 v[{b}:{b+1}], v{WR + (p & 3)} offset:{off}")
        return [f0, lambda: lg.issue(f"r{p}", f"ds_read_b64_tr_b16 v[{b+2}:{b+3}], v{WR + (p & 3)} offset:{off+512}")]
    def wr_fix():
        for i in range(4):
            a(f"s_xor_b32 s{S_T2}, s{S_XO}, {i}\ns_lshl_b32 s{S_T2}, s{S_T2}, 11")
            a(f"v_add_u32 v{WR+i}, s{S_T2}, v{V_T0}")
    tail = [wr_fix] + [f for p in range(D) for f in rd(p)]
    XS = phase_a(a, vm, lg, k, st, tail)
    st.mark(6)
    if not G:
        return kind_stream(a, vm, lg, k, st, lab, hook_main, hook_att, rd, XS, "E")
    a(f"""s_and_b32 s{S_T0}, s{S_RB}, 7
s_cmp_ge_u32 s{S_T0}, {LATEF}
s_cbranch_scc1 {lab}L""")
    sv = list(vm.q), list(lg.q), list(st.pend)
    kind_stream(a, vm, lg, k, st, lab, hook_main, hook_att, rd, XS, "E")
    a(f"{lab}L:")
    vm.q, lg.q, st.pend = sv
    kind_stream(a, vm, lg, k, st, lab + "L", hook_main, hook_att, rd, XS, "L")

def kind_stream(a, vm, lg, k, st, lab, hook_main, hook_att, rd, XS, cls):
    kinds, ori, nA = k.kinds, k.ori, k.nA
    G = kinds[0] == "G"
    T = k.TMP
    D = 4
    dbg = f"s[{S_SP}:{S_SP+3}]"
    ws = f"s[{S_WS}:{S_WS+3}]"
    nl = 2 if nA == 1 else 1
    NS = 28 * nl
    F0_END, POLL_AT, ZF0, ZF1, F1_BEG, F1_END, FB = SCH[cls]
    pre = []
    if k.stat == "mix":
        pre.append(I(a, f"v_add_f32 v{XS+1}, v{V_Q}, v{V_C0}"))
        xs = XS
    else:
        pre.append(I(a, f"v_add_f32 v{V_S}, v{V_S}, v{V_R}\nv_add_f32 v{V_Q}, v{V_Q}, v{V_C0}"))
        xs = V_S
    pre.append(I(a, f"""s_lshl_b32 s{S_T0}, s{S_WAVE}, 9
s_add_u32 s{S_T0}, s{S_T0}, {SCR + 4096}
v_add_u32 v{V_T0}, s{S_T0}, v{V_L8}"""))
    pre.append(lambda: lg.issue("w", f"ds_write_b64 v{V_T0}, v[{xs}:{xs+1}]"))
    for L in range(nA):
        pre.append(lambda L=L: lg.issue("w", f"ds_write_b32 v{V_CSA}, v{CE+4*L} offset:{L*2048}"))
    pre.append(I(a, f"v_xor_b32 v{V_T0}, 2048, v{V_T0}"))
    def bar(*vtags):
        def f():
            vm.wait(*vtags)
            lg.wait("w")
            a("s_barrier")
        return f
    F0 = [lambda: lg.issue("x", f"ds_read_b64 v[{T}:{T+1}], v{V_T0}"),
          I(a, f"v_and_b32 v{V_T0}, 0xfffffff0, v{V_CSA}")]
    for L in range(nA):
        F0.append(lambda L=L: lg.issue("c", f"ds_read_b128 v[{T+4+4*L}:{T+7+4*L}], v{V_T0} offset:{L*2048}"))
    F0.append(GAP)
    F0.append(lambda: lg.wait("x"))
    F0 += [I(a, s) for s in f"""v_add_f32 v{V_S}, v{xs}, v{T}
v_add_f32 v{V_Q}, v{xs+1}, v{T+1}
v_mov_b32 v{T}, v{V_S}
v_mov_b32 v{T+1}, v{V_Q}
v_mov_b32 v{CE+1}, 0
v_mov_b32 v{CE+2}, 0
v_permlane32_swap_b32 v{T+1}, v{V_Q}""".split("\n")]
    if k.stat != "mix":
        F0 += [I(a, f"v_permlane32_swap_b32 v{T}, v{V_S}"), I(a, f"v_add_f32 v{V_S}, v{V_S}, v{T}")]
    F0 += [I(a, s) for s in f"""v_add_f32 v{V_Q}, v{V_Q}, v{T+1}
v_mul_f32 v{V_S}, {f32(-1/448)}, v{V_S}
v_mul_f32 v{V_Q}, {f32(1/448)}, v{V_Q}
v_and_b32 v{T}, 0xffff0000, v{V_S}
v_fma_f32 v{V_Q}, -v{V_S}, v{V_S}, v{V_Q}
v_sub_f32 v{T+1}, v{V_S}, v{T}
v_max_f32 v{V_Q}, 0, v{V_Q}
v_cndmask_b32 v{T}, v{T}, v{T+1}, s[{S_HI}:{S_HI+1}]
v_add_f32 v{V_Q}, {f32(1e-5)}, v{V_Q}
v_cvt_pk_bf16_f32 v{XE}, v{T}, v{T}
v_rsq_f32 v{V_R}, v{V_Q}
v_mov_b32 v{CE+3}, 0""".split("\n")]
    if nA == 2:
        F0 += [I(a, f"v_mov_b32 v{CE+r}, 0") for r in (5, 6, 7)]
    F0.append(lambda: lg.wait("c"))
    for L in range(nA):
        F0 += [I(a, s) for s in ce_build(CE + 4 * L, T + 4 + 4 * L)]
    def r16(_=None):
        t0, t1 = XR, XR + 1
        l = [I(a, f"""s_lshl_b32 s{S_T2}, s{S_WAVE}, 8
s_add_u32 s{S_T2}, s{S_T2}, {DEAD}
v_lshl_add_u32 v{t0}, v{V_LANE}, 2, s{S_T2}"""),
             lambda: lg.issue("q", f"ds_write_b32 v{t0}, v{V_R}"),
             I(a, f"v_lshrrev_b32 v{t1}, 5, v{V_LANE}"),
             I(a, f"v_lshl_add_u32 v{t1}, v{t1}, 4, s{S_T2}")]
        for q in range(4):
            l.append(lambda q=q: lg.issue("q", f"ds_read_b128 v[{k.R16+4*q}:{k.R16+4*q+3}], v{t1} offset:{32*q}"))
        return l
    if G:
        F0 += [I(a, s) for s in f"""v_mul_f32 v{V_RI}, v{V_Q}, v{V_R}
v_mul_f32 v{V_C0}, {f32(GELU_C0)}, v{V_R}""".split("\n")]
    else:
        F0 += r16()[:2]
    for L in range(nA):
        F0.append(I(a, mf(k.ACC[L], CE + 4 * L, XE, ori[L])))
    if G:
        F0 += [I(a, s) for s in f"""v_mul_f32 v{V_C1}, v{V_R}, v{V_R}
v_mul_f32 v{V_C1}, v{V_C1}, v{V_R}
v_mul_f32 v{V_C1}, {f32(GELU_C1)}, v{V_C1}""".split("\n")]
    else:
        F0 += r16()[2:]
    F0 += [GAP, GAP, GAP]
    if not G:
        F0.append(lambda: lg.wait("q"))
    F0 += epilogue(a, vm, k, kinds[0], k.ACC[0], S_O)
    if nA == 2:
        F0 += epilogue(a, vm, k, kinds[1], k.ACC[1], S_O + 1)
    def fix(acc, orient, slot):
        return ([lambda: lg.issue("c", f"ds_read_b128 v[{T4}:{T4+3}], v{V_T0} offset:{slot*2048}"), GAP, lambda: lg.wait("c")] +
                [I(a, s) for s in ce_build(CE, T4)] + [I(a, "s_nop 1"), I(a, mf(acc, CE, XE, orient))])
    ev = {}
    fl = []
    NPT = len(PFL)
    def touch(i, NTP=NTP):
        def f():
            if PFROW:
                vm.issue("pf", f"buffer_load_dword v{V_DUM}, v{V_PF}, s[{S_X}:{S_X+3}], s{S_PFO} offen{NTP}")
                a(f"s_add_u32 s{S_PFO}, s{S_PFO}, {4 * 4096 // NPT}")
            else:
                vm.issue("pf", f"buffer_load_dword v{V_DUM}, v{V_PF}, s[{S_X}:{S_X+3}], s{S_PFO} offen offset:{i * 2048 // NPT}{NTP}")
        return f
    def wtouch():
        a(f"""s_mul_i32 s{S_T0}, s{S_PK}, 392
s_lshl_b32 s{S_T1}, s{S_T0}, 1""")
        vm.issue("pf", f"buffer_load_dword v{V_DUM}, v{V_L8}, s[{S_WA}:{S_WA+3}], s{S_T0} offen{NTO}")
        vm.issue("pf", f"buffer_load_dword v{V_DUM}, v{V_L16}, s[{S_WB}:{S_WB+3}], s{S_T1} offen{NTO}")
    def flag_check():
        vm.wait("cnt")
        a(f"""{lab}_CR:
v_cmp_eq_u32 vcc, 0, v{V_X0}
s_and_b64 vcc, vcc, s[{S_L+1}:{S_L+2}]
s_cbranch_vccnz {lab}_CW
{lab}_CX:""")
    def cnt_load(f):
        a(f"v_lshrrev_b32 v{V_X0}, 1, v{V_L8}")
        f(f"buffer_load_dword v{V_X0}, v{V_X0}, {dbg}, 0 offen sc1")
    ool = [f"""{lab}_CW:
s_addk_i32 s{S_SPIN}, -1
s_cmp_lt_i32 s{S_SPIN}, 0
s_cbranch_scc1 {lab}_CX""", lambda: cnt_load(a), f"""s_waitcnt vmcnt(0)
s_branch {lab}_CR"""]
    lateL = nA + 1
    dm = [line_dma(a, vm, lateL, b, RING, "wc") for b in range(7)]
    XA = XR + 2
    if G:
        F0 += [I(a, f"v_mov_b32 v{T}, v{V_S}"), I(a, f"v_mov_b32 v{T+1}, v{V_Q}"),
               I(a, f"s_lshl_b32 s{S_T0}, s{S_WAVE}, 9\ns_add_u32 s{S_T0}, s{S_T0}, {SCR + 4096}\nv_add_u32 v{XA}, s{S_T0}, v{V_L8}"),
               I(a, f"v_mov_b32 v{V_C0}, 1"),
               I(a, f"v_permlane32_swap_b32 v{T}, v{V_S}"), I(a, f"v_permlane32_swap_b32 v{T+1}, v{V_Q}"),
               I(a, f"v_add_f32 v{V_S}, v{V_S}, v{T}"), I(a, f"v_add_f32 v{V_Q}, v{V_Q}, v{T+1}"),
               lambda: lg.issue("w", f"ds_write_b64 v{XA}, v[{V_S}:{V_Q}]"),
               I(a, f"v_xor_b32 v{XA}, 2048, v{XA}")]
        def rec_store():
            a(f"""s_lshl_b32 s{S_T0}, s{S_CH}, 4
s_lshl_b32 exec_lo, 0xffff, s{S_T0}
s_mov_b32 exec_hi, 0""")
            vm.issue("rec", f"buffer_store_dwordx2 v[{V_S}:{V_Q}], v{V_L8}, {ws}, s{S_REC} offen sc1")
            a(f"s_mov_b64 exec, -1\ns_and_b32 s{S_REC}, s{S_REC}, 0xfffff000")
        FR_ = [lambda: lg.issue("x", f"ds_read_b64 v[{T}:{T+1}], v{XA}"), flag_check, GAP, lambda: lg.wait("x"),
               I(a, f"v_add_f32 v{V_S}, v{V_S}, v{T}"), I(a, f"v_add_f32 v{V_Q}, v{V_Q}, v{T+1}"), rec_store]
    else:
        F0.append(I(a, f"v_mov_b32 v{V_C0}, 1"))
    dm = [lambda: cnt_load(lambda t: vm.issue("cnt", t))] + dm
    def srdfix():
        srd(a, S_X, P_SP, 2048 * 4096)
        if G:
            srd(a, S_WA, P_WO, 448 * 896)
            srd(a, S_WB, P_WOUT, 896 * 896)
        a(f"""s_mov_b32 s{S_L+1}, 0x33333333
s_mov_b32 s{S_L+2}, 0x33333333""")
    ev[1] = pre
    ev[3] = [bar()]
    fl.append((0, 8, dm + [srdfix]))
    if cls == "L":
        for i, p in enumerate(PFL):
            if p >= 0:
                fl.append((p, p, [touch(i, " nt" if NTQ[i] == "1" else "")]))
            if RTL[i] >= 0:
                fl.append((RTL[i], RTL[i], [touch(i, " sc1")]))
        if WPF >= 0:
            fl.append((WPF, WPF, [wtouch]))
    ctl = []
    if not G:
        for i, p in enumerate(CPF):
            t = lambda i=i: vm.issue("pf", f"buffer_load_dword v{V_DUM}, v{V_PF}, s[{S_X}:{S_X+3}], s{S_PFO} offen offset:{i * 512}")
            if 0 <= p < 28:
                fl.append((p, p, [t]))
            elif p >= 28:
                ctl.append(t)
    ev[12 - D] = [bar("wb")]
    PL = [V_X0, V_DA, XR, XR + 2, CE + 4, CE + 6, V_C1]
    def poll_issue(v):
        for i in range(7):
            t = f"buffer_load_dwordx2 v[{PL[i]}:{PL[i]+1}], v{V_L8}, {ws}, s{S_REC} offen offset:{i*512} sc1"
            if v: v.issue("pl", t)
            else: a(t)
    if nl == 2:
        fl.append((3, F0_END, F0))
        assert F0_END < 28 - D
        FRB = F0_END + 1 if F0_END < 20 else 28 - D
        ev[FRB] = [bar()]
        ev[28 - D] = [bar("wc")]
        fl.append((FRB, FRB + 1, FR_))
        ev[28] = [lambda: lg.issue("w", f"ds_write_b32 v{V_CSA}, v{k.CSA} offset:2048")]
        ev[30] = [bar()]
        F1 = fix(k.ACC[1], ori[1], 1)
        if not ori[1]:
            rr = r16(V_X0)
            F1 = rr[:4] + F1 + [("min", 33)] + rr[4:]
        F1 += [GAP, GAP, GAP]
        if not ori[1]:
            F1.append(lambda: lg.wait("q"))
        F1 += epilogue(a, vm, k, kinds[1], k.ACC[1], S_O + 1)
        fl.append((F1_BEG, F1_END, F1))
        assert POLL_AT >= F1_BEG + 6 or F1_BEG > ZF1
        assert F1_BEG >= 30 and POLL_AT > F0_END + 2
        ev[POLL_AT] = ev.get(POLL_AT, []) + [lambda: poll_issue(vm)]
        def zflag():
            a(f"v_lshlrev_b32 v{V_S}, 7, v{V_LANE}")
            vm.wait("stG")
            a(f"""s_barrier
s_cmp_eq_u32 s{S_WAVE}, 0
s_cselect_b64 exec, 15, 0
buffer_store_dword v{V_C0}, v{V_S}, {ws}, s{S_CNT} offen sc1
s_mov_b64 exec, -1""")
        if FB >= 0:
            assert ZF1 < FB < 56
            ev[FB] = [zflag]
        def poll_check():
            vm.wait("pl")
            a(f"""{lab}_PR:
v_max3_u32 v{V_S}, v{PL[0]+1}, v{PL[1]+1}, v{PL[2]+1}
v_max3_u32 v{V_Q}, v{PL[3]+1}, v{PL[4]+1}, v{PL[5]+1}
v_max3_u32 v{V_S}, v{V_S}, v{V_Q}, v{PL[6]+1}
v_cmp_eq_u32 vcc, -1, v{V_S}
s_cbranch_vccnz {lab}_PW
{lab}_PX:""")
        ool += [f"""{lab}_PW:
s_sleep {PSL}
s_addk_i32 s{S_SPIN}, -1
s_cmp_lt_i32 s{S_SPIN}, 0
s_cbranch_scc1 {lab}_PX""", lambda: poll_issue(None), f"s_waitcnt vmcnt(0)\ns_branch {lab}_PR"]
        ZF = [poll_check]
        for x, y in ((0, 1), (2, 3), (4, 5), (0, 2), (4, 6), (0, 4)):
            for h in range(2):
                ZF.append(I(a, f"v_add_f32 v{PL[x]+h}, v{PL[x]+h}, v{PL[y]+h}"))
        p0, p1 = PL[0], PL[1]
        z = k.ACC[0]
        ZF += [I(a, t) for t in f"""v_mov_b32 v{p1}, v{p0}
v_mov_b32 v{p1+1}, v{p0+1}
s_nop 0
v_permlane32_swap_b32 v{p1}, v{p0}
v_permlane32_swap_b32 v{p1+1}, v{p0+1}
v_add_f32 v{p0}, v{p0}, v{p1}
v_add_f32 v{p0+1}, v{p0+1}, v{p1+1}
v_mul_f32 v{p0}, {f32(-1/896)}, v{p0}
v_mul_f32 v{p0+1}, {f32(1/896)}, v{p0+1}
v_fma_f32 v{p0+1}, -v{p0}, v{p0}, v{p0+1}
v_max_f32 v{p0+1}, 0, v{p0+1}
v_add_f32 v{p0+1}, {f32(1e-5)}, v{p0+1}
v_rsq_f32 v{p0+1}, v{p0+1}
s_nop 0
v_mul_f32 v{p0}, v{p0}, v{p0+1}""".split("\n")]
        stz = store_tile(a, vm, "G", z, S_O)
        for hf in range(2):
            ZF += [I(a, f"v_fma_f32 v{z+r}, v{z+r}, v{p0+1}, v{p0}") for r in range(8 * hf, 8 * hf + 8)]
            ZF += [I(a, f"v_cvt_pk_bf16_f32 v{z+r}, v{z+2*r}, v{z+2*r+1}") for r in range(4 * hf, 4 * hf + 4)]
            ZF.append(stz[hf])
        fl.append((ZF0, ZF1, ZF))
    else:
        fl.append((3, 27, F0))
    pos = [0] * len(fl)
    for p in range(NS):
        for f in ev.get(p, []):
            f()
        if p in (14, 28, 42):
            st.mark(7 + (p - 14) // 14)
        lg.wait(f"r{p}")
        L = nA + p // 28
        b = k.BR + 4 * (p % NBR)
        a(mf(k.ACC[L], b, A0 + 4 * (p % 28), ori[L], p % 28 == 0))
        if p + D < NS:
            for f in rd(p + D):
                f()
        for n, (s0, s1, lst) in enumerate(fl):
            if p < s0:
                continue
            left = len(lst) - pos[n]
            cnt = left if p >= s1 else (left + (s1 - p)) // (s1 - p + 1)
            while cnt > 0 and pos[n] < len(lst):
                f = lst[pos[n]]
                if isinstance(f, tuple):
                    if p < f[1]:
                        break
                    pos[n] += 1
                    continue
                pos[n] += 1
                if f is GAP:
                    break
                f()
                cnt -= 1
            if p == F0_END and lst is F0 and nl == 2:
                assert pos[n] == len(lst)
        if (p & 3) == 0:
            a(mf16(k.CSA, b, p % 28 == 0))
    for n, (s0, s1, lst) in enumerate(fl):
        assert pos[n] == len(lst), (n, pos[n], len(lst))
    st.fold()
    st.mark(10)
    def run(lst):
        for f in lst:
            if f is not GAP:
                f()
    LL = nA + nl - 1
    a(f"ds_write_b32 v{V_CSA}, v{k.CSA}")
    if G:
        vm.q = ["st1"]
        if lab == "P1_A":
            a("P1_GT:")
            def last(part, pre=""):
                if part == 0:
                    a("s_waitcnt lgkmcnt(0)\n" + pre + "\ns_barrier")
                    lg.q = []
                    st.mark(11)
                else:
                    run(fix(k.ACC[LL], ori[LL], 0))
                    a("s_nop 11")
                    run(epilogue(a, vm, k, kinds[LL], k.ACC[LL], S_O + LL))
            hook_main(a, vm, st, last)
        else:
            st.pend = []
            a("s_branch P1_GT")
    else:
        vm.wait("wc")
        a("s_waitcnt lgkmcnt(0)\ns_barrier")
        lg.q = []
        st.mark(11)
        a(f"s_cmp_eq_u32 s{S_CH}, 0\ns_cbranch_scc0 {lab}_CH1")
        v0, l0 = vm.q[:], lg.q[:]
        run(fix(k.ACC[2], ori[2], 0))
        a("s_nop 11")
        run(epilogue(a, vm, k, kinds[2], k.ACC[2], S_O + 2))
        a(f"s_barrier\ns_branch {lab}_J")
        a(f"{lab}_CH1:")
        vm.q, lg.q = v0, l0
        for i in range(4):
            a(f"v_add_u32 v{WR+i}, {RING}, v{WR+i}")
            a(f"v_xor_b32 v{WR+i}, s{S_T3}, v{WR+i}")
        for p in range(D):
            run(rd(p))
        F = fix(k.ACC[2], ori[2], 0) + [GAP, GAP, GAP] + epilogue(a, vm, k, kinds[2], k.ACC[2], S_O + 2)
        q = 0
        for p in range(28):
            lg.wait(f"r{p}")
            b = k.BR + 4 * (p % NBR)
            a(mf(k.ACC[3], b, A0 + 4 * p, ori[3], p == 0))
            if p + D < 28:
                run(rd(p + D))
            for c in range(3):
                if q < len(F):
                    f = F[q]; q += 1
                    if f is GAP: break
                    f()
            if (p & 3) == 0:
                a(mf16(k.CSA, b, p == 0))
        assert q == len(F)
        a(f"ds_write_b32 v{V_CSA}, v{k.CSA} offset:2048\ns_waitcnt lgkmcnt(0)\ns_barrier")
        lg.q = []
        run(fix(k.ACC[3], ori[3], 1))
        a("s_nop 11")
        run(epilogue(a, vm, k, kinds[3], k.ACC[3], S_O + 3))
        a(f"{lab}_J:")
        vm.q = ["stV"]
        flag_check()
        hook_att(a, vm, st, ctl)
    for o in ool:
        if callable(o):
            o()
        else:
            a(o)

TAILQ = []
GAP = object()

def kind_start(a, vm, k, st):
    nA = k.nA
    a(f"""s_mul_i32 s{S_MR}, s{S_WAVE}, {k.WST}
v_add_u32 v{V_X1}, {8*896 - (1+nA)*1024}, v{V_X1}""")
    if nA == 1:
        a(f"""s_mul_i32 s{S_T2}, s{S_WAVE}, {8*3584}
s_lshl_b32 s{S_T3}, s{S_G}, 7
s_add_u32 s{S_L+2}, s{S_T2}, s{S_T3}
s_add_u32 s{S_L}, s{S_L+2}, {1792 - 1024}
s_add_u32 s{S_L+1}, s{S_T1}, s{S_T3}
s_mov_b32 s{S_A64}, {64*3584}
v_mul_u32_u24 v{V_DA}, 3584, v{T4}
v_add_u32 v{V_DA}, v{V_DA}, v{T4+2}
s_waitcnt lgkmcnt(0)""")
        srd(a, S_WA, P_WIN, 448 * 3584)
    else:
        a(f"""s_and_b32 s{S_T3}, s{S_G}, 1
s_lshl_b32 s{S_T3}, s{S_T3}, 9
s_add_u32 s{S_T3}, s{S_T3}, s{S_T1}
s_add_u32 s{S_L}, s{S_T3}, {1792 - 1024}
s_add_u32 s{S_L+1}, s{S_T3}, {1792 + 256 - 2048}
s_add_u32 s{S_L+2}, s{S_T3}, {1792 + 128}
s_add_u32 s{S_L+3}, s{S_T1}, {1792 + 384}
s_mov_b32 s{S_A64}, {B64}
v_mov_b32 v{V_DA}, v{V_DB}
s_waitcnt lgkmcnt(0)""")
        srd(a, S_WA, P_QKV, 448 * 2688)
        srd(a, S_WB, P_QKV, 448 * 2688)
    srd(a, S_X, P_X, 2048 * 896)
    st.mark(2)
    for j in range(k.DEPTH):
        for f in piece_dma(a, vm, k, j):
            f()
        if j == 0:
            lab = a.label("P1_T")
            strd = 3584 if nA == 1 else 2688
            if TOUCH:
                a(f"""s_and_b32 s{S_T2}, s{S_RB}, 3
s_mul_i32 s{S_T2}, s{S_T2}, 112
s_and_b32 s{S_T3}, s{S_WAVE}, 1
s_lshl_b32 s{S_T3}, s{S_T3}, 6
s_add_u32 s{S_T2}, s{S_T2}, s{S_T3}
s_lshl_b32 s{S_T3}, s{S_WAVE}, 3
s_sub_u32 s{S_T2}, s{S_T2}, s{S_T3}
s_mul_i32 s{S_T2}, s{S_T2}, {strd}
s_add_u32 s{S_T2}, s{S_T2}, s{S_L}
s_and_b32 s{S_T3}, s{S_WAVE}, {2 * (nA - 1)}
s_lshl_b32 s{S_T3}, s{S_T3}, 7
s_add_u32 s{S_T2}, s{S_T2}, s{S_T3}
s_add_u32 s{S_T2}, s{S_T2}, {(1024 - 64 * strd) & 0xffffffff}
v_mul_u32_u24 v{XR}, {strd}, v{V_LANE}
s_lshl_b32 s{S_T3}, s{S_RB}, 2
s_add_u32 s{S_T3}, s{S_T3}, s{S_PK}
s_mul_i32 s{S_T3}, s{S_T3}, {32*896}
s_lshl_b32 s{S_T1}, s{S_WAVE}, 13
s_add_u32 s{S_T3}, s{S_T3}, s{S_T1}
v_lshlrev_b32 v{XR+1}, 7, v{V_LANE}""")
            if PBAR:
                a("s_barrier")
            if TOUCH:
                a(f"""s_cmp_ge_u32 s{S_WAVE}, 4
s_cbranch_scc1 {lab}w
buffer_load_dword v{A0+96}, v{XR+1}, s[{S_X}:{S_X+3}], s{S_T3} offen
s_branch {lab}e
{lab}w:""")
                vm.issue("t0", f"""buffer_load_dword v{A0+96}, v{XR}, s[{S_WA}:{S_WA+3}], s{S_T2} offen
{lab}e:""")
    if nA == 1:
        srd(a, S_WB, P_QKV, 448 * 2688)
    if WSB:
        a(f"s_add_u32 s{P_WS}, s{P_WS}, {WSB}\ns_addc_u32 s{P_WS+1}, s{P_WS+1}, 0")
    srd(a, S_WS, P_WS, WS_SIZE)
    srd(a, S_SP, P_DBG, 256)
    a(f"""s_lshl_b32 s{S_T0}, s{S_CH}, 1
s_xor_b32 s{S_XO}, s{S_T0}, s{S_RW}
v_and_b32 v{T4}, 31, v{V_LANE}
v_lshrrev_b32 v{T4+1}, 5, v{V_LANE}
v_bfe_u32 v{T4+2}, v{V_LANE}, 1, 3
v_xor_b32 v{T4+2}, v{T4+2}, v{T4+1}
s_lshl_b32 s{S_T1}, s{S_XO}, 1
v_xor_b32 v{T4+2}, s{S_T1}, v{T4+2}
v_lshlrev_b32 v{T4+2}, 4, v{T4+2}
v_and_b32 v{T4+3}, 7, v{V_LANE}
v_lshl_add_u32 v{T4+2}, v{T4+3}, 7, v{T4+2}
v_bfe_u32 v{T4+3}, v{V_LANE}, 3, 1
v_mul_u32_u24 v{XR}, {(1+nA)*1024}, v{T4+3}
v_bfe_u32 v{T4+3}, v{V_LANE}, 4, 1
v_mul_u32_u24 v{T4+3}, {k.WST}, v{T4+3}
s_mul_i32 s{S_T1}, s{S_RW}, {2*k.WST}
s_add_u32 s{S_T1}, s{S_T1}, {RING}
v_add3_u32 v{T4+3}, v{T4+3}, v{XR}, s{S_T1}""")
    for i in range(4):
        a(f"v_xor_b32 v{XR+i}, {i << 5}, v{T4+2}")
        a(f"v_add_u32 v{XR+i}, v{T4+3}, v{XR+i}")
    a(f"""v_lshlrev_b32 v{V_KO}, 5, v{T4}
v_lshl_add_u32 v{V_KO}, v{T4+1}, 4, v{V_KO}
s_lshl_b32 s{S_T1}, s{S_CH}, 6
v_and_b32 v{T4}, 3, v{V_LANE}
v_lshlrev_b32 v{T4}, 3, v{T4}
v_and_b32 v{T4+2}, 16, v{V_LANE}
v_lshl_add_u32 v{T4}, v{T4+2}, 1, v{T4}
v_and_b32 v{T4+2}, 8, v{V_LANE}
v_lshlrev_b32 v{T4+2}, 3, v{T4+2}
v_xor_b32 v{T4+2}, s{S_T1}, v{T4+2}
v_or_b32 v{T4}, v{T4}, v{T4+2}
v_bfe_u32 v{T4+2}, v{V_LANE}, 2, 2
v_lshl_add_u32 v{T4}, v{T4+2}, 7, v{T4}
v_lshl_add_u32 v{V_T0}, v{T4+1}, 10, v{T4}
v_mul_u32_u24 v{T4+1}, {k.WST}, v{T4+1}
v_add_u32 v{T4}, v{T4}, v{T4+1}""")
    for i in range(4):
        a(f"""s_xor_b32 s{S_T2}, s{S_XO}, {i}
s_mul_i32 s{S_T2}, s{S_T2}, {2*k.WST}
s_add_u32 s{S_T2}, s{S_T2}, {RING + 1024}
v_add_u32 v{WR+i}, s{S_T2}, v{T4}""")
    a(f"""v_lshlrev_b32 v{V_L16}, 4, v{V_LANE}
v_lshlrev_b32 v{V_L8}, 3, v{V_LANE}
s_lshl_b32 s{S_T0}, s{S_CH}, 10
s_lshl_b32 s{S_T1}, s{S_RW}, 2
s_add_u32 s{S_T0}, s{S_T0}, s{S_T1}
s_add_u32 s{S_T0}, s{S_T0}, {SCR}
v_add_u32 v{V_CSA}, s{S_T0}, v{V_L16}
v_mov_b32 v{V_S}, 0
v_mov_b32 v{V_Q}, 0
v_mov_b32 v{V_R}, 0
v_mov_b32 v{V_C0}, 0
s_mov_b32 s{S_HI}, 0xf0f00f0f
s_mov_b32 s{S_HI+1}, 0xf0f00f0f
v_mov_b32 v{T4}, 0x3f803f80
v_cndmask_b32 v{SEL}, 0, v{T4}, s[{S_HI}:{S_HI+1}]
v_cndmask_b32 v{SEL+1}, 0, v{T4}, s[{S_HI}:{S_HI+1}]
v_cndmask_b32 v{SEL+2}, 0, v{T4}, s[{S_HI}:{S_HI+1}]
v_cndmask_b32 v{SEL+3}, 0, v{T4}, s[{S_HI}:{S_HI+1}]
s_mov_b32 s{S_HI}, 0
s_mov_b32 s{S_HI+1}, -1
v_mov_b32 v{XE+1}, 0
v_mov_b32 v{XE+2}, 0
v_mov_b32 v{XE+3}, 0
v_mov_b32 v{V_DUM}, 1
s_lshl_b32 s{S_MW}, s{S_WAVE}, 10
s_mov_b32 s{S_SPIN}, {E("SPIN", "0x8000")}
s_lshl_b32 s{S_T0}, s{S_RB}, 2
s_add_u32 s{S_T0}, s{S_T0}, s{S_RW}
s_mul_i32 s{S_T2}, s{S_T0}, 28672""")
    if nA == 1:
        lg2 = {1: 0, 2: 1, 4: 2}[len(PFL)]
        a(f"""; touchers: 16 per XCD ; rank = (idx>>3)*4 + (idx&3) if rb&7 >= 4 ; 12 + (idx>>3) if rb&7 == 3 and y even
s_lshr_b32 s{S_T1}, s2, 6
s_add_u32 s{S_T3}, s{S_T1}, 12
s_lshl_b32 s{S_T1}, s{S_T1}, 2
s_bfe_u32 s{S_PK}, s2, 0x20003
s_add_u32 s{S_T1}, s{S_T1}, s{S_PK}
s_and_b32 s{S_PK}, s2, 0x3a
s_cmp_eq_u32 s{S_PK}, 0x18
s_cselect_b32 s{S_PK}, s{S_T3}, 0x20000
s_bitcmp1_b32 s{S_RB}, 2
s_cselect_b32 s{S_PK}, s{S_T1}, s{S_PK}
s_lshl_b32 s{S_PK}, s{S_PK}, 3
s_add_u32 s{S_PK}, s{S_PK}, s{S_WAVE}
s_min_u32 s{S_T1}, s{S_PK}, 0x10000
s_lshl_b32 s{S_T1}, s{S_T1}, 14
v_lshrrev_b32 v{T4}, {4 + lg2 if PFROW else 4}, v{V_LANE}
v_bfe_u32 v{V_PF}, v{V_LANE}, {lg2}, {4 if PFROW else 4 - lg2}
v_lshlrev_b32 v{V_PF}, 7, v{V_PF}
v_lshl_add_u32 v{V_PF}, v{T4}, 12, v{V_PF}
v_add_u32 v{V_PF}, s{S_T1}, v{V_PF}
s_and_b32 s{S_T1}, s2, 7
s_lshl_b32 s{S_T1}, s{S_T1}, 7
s_add_u32 s{S_PK}, s{S_PK}, s{S_T1}
s_and_b32 s{S_T1}, s2, 6
s_lshl_b32 s{S_PFO}, s{S_T1}, 20
s_and_b32 s{S_T1}, s2, 1
s_lshl_b32 s{S_T1}, s{S_T1}, 11
s_add_u32 s{S_PFO}, s{S_PFO}, s{S_T1}
v_mov_b32 v{V_L2E}, {f32(LOG2E)}
s_lshl_b32 s{S_T3}, s{S_G}, 1
s_add_u32 s{S_T3}, s{S_T3}, s{S_CH}
s_lshl_b32 s{S_O}, s{S_T3}, 17
s_lshl_b32 s{S_T1}, s{S_T0}, 11
s_add_u32 s{S_O}, s{S_O}, s{S_T1}
; z1
s_lshl_b32 s{S_T1}, s{S_T3}, 10
s_add_u32 s{S_T1}, s{S_T1}, s{S_T2}
s_lshl_b32 s{S_O+2}, s{S_T1}, 1
s_add_u32 s{S_O+2}, s{S_O+2}, {WS_Z1}""")
        assert WS_Z2 == 0
        if k.kinds[1] == "Q":
            a(f"""s_lshl_b32 s{S_T1}, s{S_T3}, 11
s_add_u32 s{S_T1}, s{S_T1}, s{S_T2}
s_add_u32 s{S_O+1}, s{S_T1}, {WS_Q}""")
        else:
            a(f"s_add_u32 s{S_O+1}, s{S_T1}, {WS_K - 14*1024}")
        a(f"""; record: ST + st*4096 + g*256
s_lshl_b32 s{S_T0}, s{S_T0}, 4
s_add_u32 s{S_T0}, s{S_T0}, s{S_G}
s_lshl_b32 s{S_T0}, s{S_T0}, 8
s_add_u32 s{S_REC}, s{S_T0}, {WS_ST}
s_and_b32 s{S_T0}, s{S_G}, 14
s_lshr_b32 s{S_T1}, s{S_RB}, 3
s_add_u32 s{S_T0}, s{S_T0}, s{S_T1}
s_lshl_b32 s{S_T0}, s{S_T0}, 6
s_and_b32 s{S_T1}, s{S_RB}, 7
s_add_u32 s{S_T0}, s{S_T0}, s{S_T1}
s_lshl_b32 s{S_T0}, s{S_T0}, 1
s_and_b32 s{S_T1}, s{S_G}, 1
s_add_u32 s{S_T0}, s{S_T0}, s{S_T1}
s_lshl_b32 s{S_T0}, s{S_T0}, 2
s_add_u32 s{S_CNT}, s{S_T0}, {WS_FZ}""")
    else:
        a(f"""; tiles 8(g-14) + ch + 0,4,2 ; extra tile 6 + (g-14)
s_and_b32 s{S_T0}, s{S_G}, 1
s_lshl_b32 s{S_T1}, s{S_T0}, 3
s_add_u32 s{S_T1}, s{S_T1}, s{S_CH}
s_lshl_b32 s{S_T1}, s{S_T1}, 10
s_add_u32 s{S_T2}, s{S_T2}, {WS_V}
s_add_u32 s{S_O}, s{S_T1}, s{S_T2}
s_add_u32 s{S_O+1}, s{S_O}, 4096
s_add_u32 s{S_O+2}, s{S_O}, 2048
s_lshl_b32 s{S_T1}, s{S_T0}, 10
s_add_u32 s{S_T1}, s{S_T1}, s{S_T2}
s_add_u32 s{S_O+3}, s{S_T1}, 6144
s_lshl_b32 s{S_CNT}, s{S_RB}, 2
s_add_u32 s{S_CNT}, s{S_CNT}, s{S_T0}
s_lshl_b32 s{S_CNT}, s{S_CNT}, 2
s_lshl_b32 s{S_T1}, s{S_RB}, 1
s_add_u32 s{S_T1}, s{S_T1}, s{S_T0}
s_lshl_b32 s{S_T1}, s{S_T1}, 3
s_add_u32 s{S_T1}, s{S_T1}, s{S_WAVE}
s_lshl_b32 s{S_T2}, s{S_T1}, 8
s_add_u32 s{S_T2}, s{S_T2}, {WS_FL}
s_lshl_b32 s{S_T1}, s{S_T1}, 10
s_add_u32 s{S_REC}, s{S_T1}, {WS_ST}
s_xor_b32 s{S_T0}, s{S_T0}, 1
s_lshl_b32 s{S_T3}, s{S_T0}, 6
v_mov_b32 v{T4}, -1
v_mov_b32 v{T4+1}, -1
v_mov_b32 v{T4+2}, -1
v_mov_b32 v{T4+3}, -1
v_lshlrev_b32 v{V_L2E}, 2, v{V_LANE}
v_lshrrev_b32 v{V_PF}, 2, v{V_LANE}
v_lshlrev_b32 v{V_PF}, 5, v{V_PF}
v_and_or_b32 v{V_PF}, v{V_LANE}, 3, v{V_PF}
v_lshlrev_b32 v{V_PF}, 7, v{V_PF}
s_and_b32 s{S_T0}, s2, 6
s_lshl_b32 s{S_T0}, s{S_T0}, 4
s_and_b32 s{S_T1}, s2, 24
s_add_u32 s{S_T0}, s{S_T0}, s{S_T1}
s_add_u32 s{S_T0}, s{S_T0}, s{S_WAVE}
s_lshl_b32 s{S_T0}, s{S_T0}, 5
s_and_b32 s{S_T1}, s2, 1
s_add_u32 s{S_T0}, s{S_T0}, s{S_T1}
s_lshl_b32 s{S_PFO}, s{S_T0}, 11""")
        vm.issue("clr", f"buffer_store_dwordx4 v[{T4}:{T4+3}], v{V_L16}, s[{S_WS}:{S_WS+3}], s{S_REC} offen sc1")
        vm.issue("clr", f"buffer_store_dword v{XE+1}, v{V_L2E}, s[{S_WS}:{S_WS+3}], s{S_T2} offen sc1")
    a(f"""; own flags: FL + rb*2048 + g*4
s_lshl_b32 s{S_FL}, s{S_RB}, 9
s_add_u32 s{S_FL}, s{S_FL}, s{S_G}
s_lshl_b32 s{S_FL}, s{S_FL}, 2
s_add_u32 s{S_FL}, s{S_FL}, {WS_FL}""")

PBAR = int(E('P1_PBAR', '1'))
def gen_p1(a, name, st, hook_main, hook_att):
    kernel_begin(a, name)
    a(f"""s_cmp_ge_u32 s2, 256
s_cbranch_scc1 K_EXIT
s_load_dwordx16 s[64:79], s[0:1], 0
s_load_dwordx4 s[56:59], s[0:1], 72
s_load_dwordx2 s[60:61], s[0:1], 64""")
    st.mark(0, True)
    st.mark(1)
    st.init()
    a(f"""v_and_b32 v{V_LANE}, 63, v0
v_lshrrev_b32 v{V_T0}, 6, v0
s_bfe_u32 s{S_T0}, s2, 0x20001
v_readfirstlane_b32 s{S_WAVE}, v{V_T0}
s_lshr_b32 s{S_T1}, s2, 3
s_mul_i32 s{S_T2}, s{S_T0}, 28
s_add_u32 s{S_T2}, s{S_T2}, s{S_T1}
s_lshr_b32 s{S_G}, s{S_T2}, 3
s_and_b32 s{S_RB}, s{S_T2}, 7
s_and_b32 s{S_PK}, s{S_G}, 3
s_lshr_b32 s{S_T2}, s{S_T0}, 1
s_lshl_b32 s{S_T0}, s{S_T0}, 2
s_xor_b32 s{S_T0}, s{S_T0}, s{S_T1}
s_and_b32 s{S_T0}, s{S_T0}, 7
s_add_u32 s{S_T3}, s{S_T2}, 14
s_xor_b32 s{S_T2}, s{S_T2}, 3
s_cmp_ge_u32 s{S_T1}, 28
s_cselect_b32 s{S_G}, s{S_T3}, s{S_G}
s_cselect_b32 s{S_RB}, s{S_T0}, s{S_RB}
s_cselect_b32 s{S_PK}, s{S_T2}, s{S_PK}
s_and_b32 s{S_T0}, s2, 1
s_lshl_b32 s{S_T0}, s{S_T0}, 3
s_add_u32 s{S_RB}, s{S_RB}, s{S_T0}
s_and_b32 s{S_RW}, s{S_WAVE}, 3
s_lshr_b32 s{S_CH}, s{S_WAVE}, 2
s_lshl_b32 s{S_T0}, s{S_RB}, 3
s_add_u32 s{S_T0}, s{S_T0}, s{S_WAVE}
s_mul_i32 s{S_XB}, s{S_T0}, {16*896}
s_mul_i32 s{S_T1}, s{S_WAVE}, {8*2688}
v_lshrrev_b32 v{T4}, 3, v{V_LANE}
v_and_b32 v{T4+1}, 7, v{V_LANE}
v_lshrrev_b32 v{T4+2}, 4, v{V_LANE}
v_xor_b32 v{T4+2}, v{T4+2}, v{T4+1}
v_mul_u32_u24 v{V_X0}, 896, v{T4}
v_xor_b32 v{T4+3}, 4, v{T4+2}
v_lshl_add_u32 v{V_X1}, v{T4+3}, 4, v{V_X0}
v_lshl_add_u32 v{V_X0}, v{T4+2}, 4, v{V_X0}
v_lshlrev_b32 v{T4+2}, 1, v{T4}
v_and_b32 v{T4+2}, 4, v{T4+2}
v_xor_b32 v{T4+2}, v{T4+2}, v{T4+1}
v_lshlrev_b32 v{T4+2}, 4, v{T4+2}
v_mul_u32_u24 v{V_DB}, 2688, v{T4}
v_add_u32 v{V_DB}, v{V_DB}, v{T4+2}
s_cmp_ge_u32 s{S_G}, 14
s_cbranch_scc1 P1_KC
s_cmp_ge_u32 s{S_G}, 7
s_cbranch_scc1 P1_KB""")
    for lab, kinds in (("P1_A", "GQL"), ("P1_B", "GKL"), ("P1_C", "VVVV")):
        a(f"{lab.replace('_', '_K')}:")
        k = K(kinds)
        vm = VM(a)
        s2 = st.copy()
        kind_start(a, vm, k, s2)
        kind_body(a, vm, k, s2, lab, hook_main, hook_att)
```

```python
from common import *
import os
import f1
from f1 import LG, I, S_WS, S_WAVE, S_RW, S_CH, S_T0, S_T1, S_T2, S_T3, S_SPIN, S_FL, V_LANE, V_L16, V_L8, V_KO, XE
from f1 import P_X, P_WO, P_BSP, P_WOUT, P_OUT, S_CNT, V_S
E = os.environ.get
G0 = int(E("P2_G0", "6"))
Z1B = int(E("P2_Z1B", "2"))
N0 = int(E("P2_N0", "4"))
BST = int(E("P2_BST", "12"))
LEAD = int(E("P2_LEAD", "40"))
GTAIL = int(E("P2_GT", "8"))
AHEAD = int(E("P3_AHEAD", "8"))
EARLY = int(E("P2_EARLY", "-1"))
ATOUCH = int(E("A_TOUCH", "1"))
NT2 = [" nt" if c == "1" else "" for c in E("P2_NT", "0000")]
PT = [int(x) for x in E("P2_PT", "-9,-9,-9,-9").split(",")]
ZSL, ASL, HSL = [int(x) for x in E("SLP", "2,4,1").split(",")]
SF = " sc1"
NST = 16
SLOT = [0, 131072, 65536, 98304]
HB = 57344
S_SP, S_X = 12, 12
S_OUT, S_WO, S_W2, S_B = 4, 16, 20, 20
S_TT, S_FQ, S_KH, S_ZB, S_AB, S_MW, S_O, S_C1, S_M = 28, 29, 37, 38, 39, 40, 41, 42, 43
S_M2 = 44
S_M64, S_A, S_XO = 46, 47, 48
ws = f"s[{S_WS}:{S_WS+3}]"
ACC3, AFR, BFR, EFR, XV, TR, V_XO, V_W = 16, 48, 192, 216, 224, 244, 250, 251

def spoll(a, lab, loads, regs, ool, sleep=0):
    a(f"{lab}_R:")
    a(loads)
    a("s_waitcnt lgkmcnt(0)")
    for r in regs[1:]:
        a(f"s_and_b64 s[{regs[0]}:{regs[0]+1}], s[{regs[0]}:{regs[0]+1}], s[{r}:{r+1}]")
    a(f"""s_and_b32 s{regs[0]}, s{regs[0]}, s{regs[0]+1}
s_cbranch_scc1 {lab}_X
{f"s_sleep {sleep}" if sleep else ""}
s_addk_i32 s{S_SPIN}, -1
s_cmp_lt_i32 s{S_SPIN}, 0
s_cbranch_scc0 {lab}_R
{lab}_X:""")

def p3_tr_setup(a, T):
    a(f"""v_bfe_u32 v{T}, v{V_LANE}, 2, 2
v_lshrrev_b32 v{T+1}, 5, v{V_LANE}
v_lshl_add_u32 v{T}, v{T+1}, 2, v{T}
v_lshlrev_b32 v{TR}, 7, v{T}
v_and_b32 v{T}, 3, v{V_LANE}
v_lshl_add_u32 v{TR}, v{T}, 3, v{TR}
v_and_b32 v{T}, 16, v{V_LANE}
v_lshl_add_u32 v{TR}, v{T}, 1, v{TR}
v_and_b32 v{T}, 8, v{V_LANE}
v_lshl_add_u32 v{TR}, v{T}, 3, v{TR}
s_lshl_b32 s{S_T0}, s{S_RW}, 5
v_xor_b32 v{TR}, s{S_T0}, v{TR}
s_lshl_b32 s{S_T0}, s{S_RW}, 11
s_add_u32 s{S_T0}, s{S_T0}, {HB}
v_add_u32 v{TR+2}, s{S_T0}, v{TR}
s_mul_i32 s{S_T0}, s{S_RW}, 14336
v_add_u32 v{TR}, s{S_T0}, v{TR}
v_xor_b32 v{TR+1}, 64, v{TR}
v_xor_b32 v{TR+3}, 64, v{TR+2}
v_add_u32 v{TR+4}, 0x10000, v{TR+2}
v_add_u32 v{TR+5}, 0x10000, v{TR+3}""")

def b_reads(kind, i, dst):
    if kind == "o":
        r, off = TR, (28 * (i >> 1) + 16 * (i & 1)) * 128
    else:
        r, off = (TR + 2, i * 8192) if i < 8 else (TR + 4, i * 8192 - 65536)
    return [f"ds_read_b64_tr_b16 v[{dst+4*ni+2*h}:{dst+4*ni+2*h+1}], v{r+ni} offset:{off + 1024*h}" for ni in range(2) for h in range(2)]

def p3_setup(a):
    srd(a, S_X, P_X, 2048 * 896)
    srd(a, S_OUT, P_OUT, 2048 * 896)
    a(f"""; tt32 = 2*m64 + ch
s_lshl_b32 s{S_T0}, s{S_M64}, 1
s_add_u32 s{S_T0}, s{S_T0}, s{S_CH}
s_mul_i32 s{S_XO}, s{S_T0}, {32*896}
s_lshl_b32 s{S_T1}, s{S_FQ}, 2
s_add_u32 s{S_T1}, s{S_T1}, s{S_RW}
s_lshl_b32 s{S_T1}, s{S_T1}, 5
s_add_u32 s{S_XO}, s{S_XO}, s{S_T1}
s_mul_i32 s{S_T0}, s{S_T0}, {144*1024}
s_add_u32 s{S_T0}, s{S_T0}, {WS_AF}
s_lshl_b32 s{S_T1}, s{S_RW}, 13
s_add_u32 s{S_A}, s{S_T0}, s{S_T1}
s_mul_i32 s{S_T1}, s{S_RW}, {14*1024}
s_add_u32 s{S_O}, s{S_T0}, s{S_T1}
s_add_u32 s{S_O}, s{S_O}, {32*1024}
v_and_b32 v{V_XO}, 31, v{V_LANE}
v_mul_u32_u24 v{V_XO}, 896, v{V_XO}
v_lshrrev_b32 v{V_W}, 5, v{V_LANE}
v_lshl_add_u32 v{V_XO}, v{V_W}, 4, v{V_XO}
v_add_u32 v{V_W}, {56*1024}, v{V_L16}""")

def loader(a, vm, st, last, ool):
    VD, VZ, VP, VB = 2, 6, 10, 11
    T0, T2 = 12, 13
    ids(a)
    a(f"""s_lshl_b32 s{S_T0}, s{S_FQ}, 1
s_add_u32 s{S_T0}, s{S_T0}, s{S_KH}
s_lshl_b32 s{S_T0}, s{S_T0}, 2
s_lshr_b32 s{S_T1}, s{S_TT}, 2
s_add_u32 s{S_T0}, s{S_T0}, s{S_T1}
s_lshl_b32 s{S_T0}, s{S_T0}, 7
s_add_u32 s{S_O}, s{S_T0}, {WS_FZ}
s_mov_b64 s[72:73], -1""")
    zpoll = f"s_buffer_load_dwordx2 s[72:73], {ws}, s{S_O} glc"
    def zask(j):
        a(f"""s_cmp_lg_u32 s{S_RW}, 0
s_cbranch_scc1 L_Z{j}_A
{zpoll}
L_Z{j}_A:""")
    zask(0)
    a(f"""; z2 base: (4fq + 2(lw&1)) << 17 + (kh*32 + (lw>>1)) << 11
s_lshr_b32 s{S_T1}, s{S_RW}, 1
s_lshl_b32 s{S_T3}, s{S_KH}, 5
s_add_u32 s{S_T3}, s{S_T3}, s{S_T1}
s_lshl_b32 s{S_ZB}, s{S_T3}, 11
s_lshl_b32 s{S_T3}, s{S_FQ}, 1
s_and_b32 s{S_T1}, s{S_RW}, 1
s_add_u32 s{S_T3}, s{S_T3}, s{S_T1}
s_lshl_b32 s{S_T3}, s{S_T3}, 18
s_add_u32 s{S_ZB}, s{S_ZB}, s{S_T3}
v_lshrrev_b32 v{T0}, 3, v{V_LANE}
v_and_b32 v{VD+1}, 7, v{V_LANE}
v_lshrrev_b32 v{T2}, 4, v{V_LANE}
v_xor_b32 v{T2}, v{T2}, v{VD+1}
v_lshlrev_b32 v{VZ}, 12, v{T0}
v_lshl_add_u32 v{VD}, v{T2}, 4, v{VZ}
v_lshlrev_b32 v{T2}, 1, v{T0}
v_and_b32 v{T2}, 4, v{T2}
v_xor_b32 v{T2}, v{T2}, v{VD+1}
v_xor_b32 v{VD+1}, 64, v{VD}
v_add_u32 v{VD+1}, {8*4096 - 1024}, v{VD+1}
v_add_u32 v{VD+2}, {16*4096 - 2048}, v{VD}
v_add_u32 v{VD+3}, {16*4096 - 2048}, v{VD+1}
s_lshl_b32 s{S_AB}, s{S_TT}, 2
s_add_u32 s{S_AB}, s{S_AB}, s{S_RW}
s_lshl_b32 s{S_AB}, s{S_AB}, 17
s_lshl_b32 s{S_T2}, s{S_KH}, 11
s_add_u32 s{S_AB}, s{S_AB}, s{S_T2}
s_lshl_b32 s{S_MW}, s{S_RW}, 12""")
    def zload(n):
        a(f"s_add_u32 m0, s{S_MW}, {SLOT[n & 3]}")
        a(f"s_add_u32 s{S_T2}, s{S_ZB}, {n << 12}")
        for q in range(4):
            vm.issue(f"s{n}", f"buffer_load_dwordx4 v{VZ+q}, {ws}, s{S_T2} offen offset:{q*1024}{NT2[1]} lds")
    def wload(n):
        a(f"s_add_u32 m0, s{S_MW}, {SLOT[n & 3] + 16384}")
        a(f"s_add_u32 s{S_T3}, s{S_AB}, {n << 7}")
        for q in range(4):
            vm.issue(f"s{n}", f"buffer_load_dwordx4 v{VD+q}, s[{S_SP}:{S_SP+3}], s{S_T3} offen offset:{q*1024}{NT2[0]} lds")
    def bdma(tag, sr, lds, mw, grow, gmul, n):
        a(f"""s_mul_i32 s{S_T2}, s{S_RW}, {gmul * 896}
s_lshl_b32 s{S_T3}, s{S_FQ}, 7
s_add_u32 s{S_T2}, s{S_T2}, s{S_T3}
s_add_u32 s{S_T2}, s{S_T2}, {grow * 896}
s_mul_i32 s{S_T3}, s{S_RW}, {mw}""")
        for k in range(n):
            if k % 4 == 0:
                a(f"s_add_u32 m0, s{S_T3}, {lds + k * 1024}")
            if k:
                a(f"s_add_u32 s{S_T2}, s{S_T2}, {7168 - 1024 if k % 4 else 7168 + 3072}")
            else:
                a("s_nop 0")
            vm.issue(tag, f"buffer_load_dwordx4 v{VB}, s[{sr}:{sr+3}], s{S_T2} offen offset:{(k % 4) * 1024}{NT2[2]} lds")
    def hblocks(tag, bs, at=None):
        a(f"""s_mul_i32 s{S_T2}, s{S_RW}, {224 * 896}
s_lshl_b32 s{S_T3}, s{S_FQ}, 7
s_add_u32 s{S_T2}, s{S_T2}, s{S_T3}
s_lshl_b32 s{S_T3}, s{S_RW}, 11""")
        for b in bs:
            a(f"s_add_u32 m0, s{S_T3}, {HB + (b if at is None else at) * 8192}")
            for k in range(2):
                a(f"s_add_u32 s{S_T1}, s{S_T2}, {(16 * b + 8 * k) * 896 - 1024 * k}")
                vm.issue(tag, f"buffer_load_dwordx4 v{VB}, s[{S_W2}:{S_W2+3}], s{S_T1} offen offset:{k * 1024}{NT2[2]} lds")
    wload(0)
    wload(1)
    a(f"""v_and_b32 v{VZ}, 4, v{T0}
v_xor_b32 v{VZ}, v{VZ}, v{V_LANE}
v_lshlrev_b32 v{VZ}, 4, v{VZ}
v_xor_b32 v{VZ+1}, 128, v{VZ}
v_add_u32 v{VZ+2}, {(1 << 17) - 2048}, v{VZ}
v_add_u32 v{VZ+3}, {(1 << 17) - 2048}, v{VZ+1}""")
    def zcheck(j):
        a(f"""s_waitcnt lgkmcnt(0)
s_and_b32 s72, s72, s73
s_cbranch_scc0 L_Z{j}_W
L_Z{j}_X:
s_add_u32 s{S_O}, s{S_O}, 8""")
        ool.append(f"""L_Z{j}_W:
s_sleep {ZSL}
{zpoll}
s_waitcnt lgkmcnt(0)
s_and_b32 s72, s72, s73
s_cbranch_scc1 L_Z{j}_X
s_addk_i32 s{S_SPIN}, -1
s_cmp_lt_i32 s{S_SPIN}, 0
s_cbranch_scc0 L_Z{j}_W
s_branch L_Z{j}_X""")
    zcheck(0)
    last(0)
    st.mark(12)
    zload(0)
    zload(1)
    last(1)
    st.mark(13)
    a(f"""v_mul_u32_u24 v{VB}, 896, v{T0}
v_lshl_add_u32 v{VB}, v{T2}, 4, v{VB}""")
    def early():
        hblocks("E", [13], 0)
        bdma("wo", S_WO, 32768, 6144, 256, 48, 6)
    if EARLY == -1:
        early()
    a(f"""; z1 flags: FL + tt*2048 + 1024 + fq*8
s_lshl_b32 s{S_C1}, s{S_TT}, 8
s_add_u32 s{S_C1}, s{S_C1}, s{S_FQ}
s_lshl_b32 s{S_C1}, s{S_C1}, 3
s_add_u32 s{S_C1}, s{S_C1}, {WS_FL + 1024}""")
    zask(1)
    a(f"""v_mul_u32_u24 v{VP}, 5, v{V_LANE}
v_lshrrev_b32 v{VP}, 6, v{VP}
s_mul_i32 s{S_T0}, s{S_FQ}, 20
v_add_u32 v{VP}, s{S_T0}, v{VP}
v_lshlrev_b32 v{VP}, 12, v{VP}
s_mul_i32 s{S_M}, s{S_RW}, {(128 - 32 * 4096) & 0xffffffff}
s_add_u32 s{S_M}, s{S_M}, s{S_AB}""")
    def ptouch(q, it):
        a(f"s_add_u32 s{S_T0}, s{S_M}, {it * 5 * 4096}")
        vm.issue("pt", f"buffer_load_dword v0, v{VP}, s[{S_SP}:{S_SP+3}], s{S_T0} offen offset:{q * 512}{NT2[3]}")
    for q, n0 in enumerate(PT):
        for it in range(4):
            if -4 <= n0 and n0 + it < 0:
                ptouch(q, it)
    p3_tr_setup(a, T0)
    for n in range(NST):
        if n == N0:
            a(f"s_cmp_lg_u32 s{S_RW}, 0\ns_cbranch_scc1 L_Y1_X")
            spoll(a, "L_Y1", f"s_buffer_load_dwordx2 s[70:71], {ws}, s{S_C1} glc", [70], ool, HSL)
        if n % 2 == 0 and n < 14:
            zcheck(n // 2 + 1)
        vm.wait(f"s{n}", *(["E"] if n == 15 else ["stL"] if n == Z1B else []))
        if n in (0, 4, 8, 12):
            st.mark(14 + n // 4)
        a("s_barrier")
        if n + 2 < NST:
            zload(n + 2)
            wload(n + 2)
            if n % 2 == 1 and n < 12:
                zask((n + 3) // 2)
        for q, n0 in enumerate(PT):
            if 0 <= n - n0 < 4:
                ptouch(q, n - n0)
        if n == EARLY:
            early()
        if n == 14:
            bdma("wo", S_WO, 0, 8192, 0, 64, 8)
        if n == 15:
            for t in b_reads("h", 0, EFR):
                a(t)
            hblocks("hb", [9, 10, 11, 12])
    vm.wait("wo")
    st.fold()
    a("s_waitcnt lgkmcnt(0)")
    st.mark(18)
    a("s_barrier")
    hblocks("hb", range(9))
    p3_setup(a)
    st.mark(19)
    a(f"""s_cmp_lg_u32 s{S_RW}, 0
s_cbranch_scc1 P3_GO
s_lshl_b32 s{S_T0}, s{S_M64}, 7
s_add_u32 s{S_T0}, s{S_T0}, {WS_F3}""")
    spoll(a, "L_O", f"s_buffer_load_dwordx16 s[64:79], {ws}, s{S_T0} glc", list(range(64, 80, 2)), ool, HSL)
    a("s_branch P3_GO")

def compute(a, vm, st, last, ool):
    lg = LG(a)
    AD = [2, 224, 8, 8]
    AO = [0, 0, 0, 32768]
    V_C0 = 15
    ACC, FR, Z1, GZ, TP, BF, ONE = 16, 80, 128, 144, 208, 232, 240
    T1, T2 = TP, TP + 1
    def wflag(n, vo, so, off=0):
        a(f"""s_cmp_eq_u32 s{S_RW}, 0
s_cselect_b64 exec, {(1 << n) - 1}, 0
buffer_store_dword v0, v{vo}, {ws}, s{so} offen offset:{off} sc1
s_mov_b64 exec, -1""")
    a(f"v_mov_b32 v0, 1")
    last(0)
    last(1)
    st.mark(12)
    ids(a)
    AR, BRD = 2, 4
    a(f"""v_and_b32 v{T1}, 31, v{V_LANE}
v_lshrrev_b32 v{T2}, 5, v{V_LANE}
v_bfe_u32 v{AR}, v{V_LANE}, 1, 3
v_xor_b32 v{AR}, v{AR}, v{T2}
v_lshlrev_b32 v{AR}, 4, v{AR}
v_lshl_add_u32 v{AR}, v{T1}, 7, v{AR}
s_lshr_b32 s{S_T1}, s{S_RW}, 1
s_lshl_b32 s{S_T3}, s{S_T1}, 13
s_add_u32 s{S_T3}, s{S_T3}, 16384
v_add_u32 v{BRD}, s{S_T3}, v{AR}""")
    for k in range(1, 4):
        a(f"v_xor_b32 v{BRD+k}, {k << 5}, v{BRD}")
    a(f"""v_lshlrev_b32 v{BF+1}, 1, v{T1}
v_bfe_u32 v{AR}, v{V_LANE}, 4, 1
v_lshlrev_b32 v{AR}, 1, v{AR}
v_and_b32 v{T1}, 1, v{V_LANE}
v_add_u32 v{AR}, v{AR}, v{T1}
v_mul_u32_u24 v{AR}, 576, v{AR}
v_lshlrev_b32 v{T2}, 7, v{T2}
v_xor_b32 v{AR}, v{AR}, v{T2}
v_bfe_u32 v{T1}, v{V_LANE}, 2, 2
v_lshl_add_u32 v{AR}, v{T1}, 4, v{AR}
v_bfe_u32 v{T1}, v{V_LANE}, 1, 1
v_lshl_add_u32 v{AR}, v{T1}, 3, v{AR}
s_and_b32 s{S_T0}, s{S_RW}, 1
s_lshl_b32 s{S_T3}, s{S_T0}, 12
v_add_u32 v{AR}, s{S_T3}, v{AR}
v_xor_b32 v{AR+1}, 64, v{AR}
s_lshl_b32 s{S_T2}, s{S_TT}, 1
s_add_u32 s{S_T2}, s{S_T2}, s{S_T1}
s_lshl_b32 s{S_AB}, s{S_T2}, 7
s_lshl_b32 s{S_T3}, s{S_FQ}, 1
s_add_u32 s{S_T3}, s{S_T3}, s{S_T0}
s_lshl_b32 s{S_T3}, s{S_T3}, 12
s_mul_i32 s{S_ZB}, s{S_T2}, {2*28*2048}
s_add_u32 s{S_ZB}, s{S_ZB}, s{S_T3}
s_add_u32 s{S_ZB}, s{S_ZB}, {WS_Z1}
s_add_u32 s{S_C1}, s{S_ZB}, {28*2048}
s_mul_i32 s{S_O}, s{S_T2}, {2*144*1024}
s_add_u32 s{S_O}, s{S_O}, s{S_T3}
s_mul_i32 s{S_T3}, s{S_KH}, {56*1024}
s_add_u32 s{S_O}, s{S_O}, s{S_T3}
s_add_u32 s{S_O}, s{S_O}, {WS_AF + 32*1024}
s_lshl_b32 s{S_MW}, s{S_T2}, 2
s_lshr_b32 s{S_T3}, s{S_FQ}, 1
s_add_u32 s{S_MW}, s{S_MW}, s{S_T3}
s_lshl_b32 s{S_MW}, s{S_MW}, 3
s_and_b32 s{S_T3}, s{S_FQ}, 1
s_add_u32 s{S_MW}, s{S_MW}, s{S_T3}
s_lshl_b32 s{S_MW}, s{S_MW}, 1
s_add_u32 s{S_MW}, s{S_MW}, s{S_KH}
s_lshl_b32 s{S_MW}, s{S_MW}, 1
s_add_u32 s{S_MW}, s{S_MW}, s{S_T0}
s_lshl_b32 s{S_MW}, s{S_MW}, 2
s_add_u32 s{S_MW}, s{S_MW}, {WS_F2}
s_mov_b32 s{S_M}, {f32(GELU_C1)}
s_cmp_eq_u32 s{S_KH}, 0
s_cselect_b32 s{S_M2}, -1, 0
s_mov_b32 s{S_M2+1}, 0""")
    srd(a, S_B, P_BSP, 4096)
    pre = [f"v_add_u32 v{224+i}, 0x20000, v{2+i}" for i in range(6)] + [f"v_add_u32 v{8+i}, 0x10000, v{2+i}" for i in range(6)]
    pre += [f"v_mov_b32 v{V_C0}, {f32(GELU_C0)}"] + [f"v_mov_b32 v{BF+r}, 0" for r in (2, 3, 4)] + [f"v_mov_b32 v{ONE+r}, 0x3f803f80" for r in range(4)]
    for t in pre:
        a(t)
    p3_tr_setup(a, TP)
    a(f"v_lshlrev_b32 v{TP}, 7, v{V_LANE}")
    def bias_load():
        vm.issue("b", f"buffer_load_ushort v{BF}, v{BF+1}, s[{S_B}:{S_B+3}], s{S_AB} offen")
        vm.issue("b", f"buffer_load_ushort v{BF+5}, v{BF+1}, s[{S_B}:{S_B+3}], s{S_AB} offen offset:64")
    def bias_prep():
        vm.wait("b")
        a(f"""v_cndmask_b32 v{BF}, 0, v{BF}, s[{S_M2}:{S_M2+1}]
v_cndmask_b32 v{BF+5}, 0, v{BF+5}, s[{S_M2}:{S_M2+1}]
v_mov_b32 v{BF+1}, 0""")
    QD = ((0, 0), (1, 0), (0, 1), (1, 1))
    def bias_mf(k):
        fi, ti = QD[k]
        c = ACC + 32 * fi + 16 * ti
        a(f"v_mfma_f32_32x32x16_bf16 v[{c}:{c+15}], v[{ONE}:{ONE+3}], v[{BF+2*ti}:{BF+2*ti+3}], v[{c}:{c+15}]")
    gl = []
    for grp in range(16):
        e0 = 4 * grp
        t = TP + 4 * (grp & 1)
        for e in range(4):
            src = Z1 + ((e0 + e) // 2) % 16
            gl.append(f"v_lshlrev_b32 v{GZ+e0+e}, 16, v{src}" if e % 2 == 0 else f"v_and_b32 v{GZ+e0+e}, 0xffff0000, v{src}")
        gl += [f"v_mul_f32 v{t+e}, v{GZ+e0+e}, v{GZ+e0+e}" for e in range(4)]
        gl += [f"v_fma_f32 v{t+e}, v{t+e}, s{S_M}, v{V_C0}" for e in range(4)]
        gl += [f"v_mul_f32 v{t+e}, v{t+e}, v{GZ+e0+e}" for e in range(4)]
        gl += [f"v_exp_f32 v{t+e}, v{t+e}" for e in range(4)]
        gl += [f"v_add_f32 v{t+e}, 1.0, v{t+e}" for e in range(4)]
        gl += [f"v_rcp_f32 v{t+e}, v{t+e}" for e in range(4)]
        gl += [f"v_mul_f32 v{GZ+e0+e}, v{GZ+e0+e}, v{t+e}" for e in range(4)]
    G0G, GEND = G0 * 16, 256 - GTAIL
    ngap = GEND - G0G
    assert G0G - LEAD >= (4 * N0 - 2) * 4
    gi = [0, 0, 0]
    def zissue(li):
        fi, ti, q = li >> 2, (li >> 1) & 1, li & 1
        assert li < 4 or gi[0] >= 64 * (li - 4) + 36
        r = Z1 + 4 * (li & 3)
        vm.issue(f"z{li}", f"buffer_load_dwordx4 v[{r}:{r+3}], v{V_L16}, {ws}, s{S_ZB if ti == 0 else S_C1} offen offset:{fi*2048 + q*1024}")
    def fill():
        g = gi[1]
        gi[1] += 1
        while gi[2] < 8 and g >= G0G + ngap * gi[2] // 8 - LEAD:
            zissue(gi[2])
            gi[2] += 1
        if g < G0G:
            return
        tgt = min(len(gl), (len(gl) * (g - G0G + 1) + ngap - 1) // ngap)
        while gi[0] < tgt:
            if gi[0] % 64 == 0:
                vm.wait(f"z{gi[0] // 64}")
            a(gl[gi[0]])
            gi[0] += 1
    def reads(p):
        n, ks = p >> 2, p & 3
        f = FR + 16 * (p % 3)
        ad, ao = AD[n & 3], AO[n & 3]
        zo = ao + (ks >> 1) * 8192 + (ks & 1) * 256
        l = []
        for i in range(2):
            l.append(f"ds_read_b64_tr_b16 v[{f+4*i}:{f+4*i+1}], v{ad} offset:{zo + i*2048}")
            l.append(f"ds_read_b64_tr_b16 v[{f+4*i+2}:{f+4*i+3}], v{ad+1} offset:{zo + i*2048}")
            l.append(f"ds_read_b128 v[{f+8+4*i}:{f+8+4*i+3}], v{ad+2+ks} offset:{ao + i*4096}")
        return [(f"r{p}", t) for t in l]
    vm.wait("st1")
    st.mark(13)
    a("s_barrier")
    st.mark(14)
    for t in reads(0) + reads(1):
        lg.issue(*t)
    wflag(4, TP, S_CNT)
    wflag(8, TP, S_FL)
    for p in range(64):
        n, ks = p >> 2, p & 3
        if ks == 2 and n < 15:
            if n + 1 == Z1B:
                a("s_waitcnt vmcnt(0)")
                vm.q = []
            a("s_barrier")
            if n + 1 == Z1B:
                wflag(1, BF + 2, S_FL, 1024)
            if n + 1 in (4, 8, 12):
                st.mark(14 + (n + 1) // 4)
        lg.wait(f"r{p}")
        if p == 63:
            lg.all()
            st.fold()
            st.mark(18)
        rl = reads(p + 2) if p + 2 < 64 else []
        if p == 59:
            rl = rl + [("E", t) for t in b_reads("h", 0, EFR)]
        f = FR + 16 * (p % 3)
        for k, (fi, ti) in enumerate(QD):
            c = ACC + 32 * fi + 16 * ti
            a(f"v_mfma_f32_32x32x16_bf16 v[{c}:{c+15}], v[{f+4*fi}:{f+4*fi+3}], v[{f+8+4*ti}:{f+8+4*ti+3}], " + ("0" if p == 0 else f"v[{c}:{c+15}]"))
            for t in (rl[2 * k:2 * k + 2] if k < 3 else rl[6:]):
                lg.issue(*t)
            if ks == 1 and 0 <= n - BST < 4 and k == (n - BST + 2) % 4:
                bias_mf(n - BST)
            fill()
        if ks == 0 and n == BST - 4:
            bias_load()
        if ks == 0 and n == BST:
            bias_prep()
    assert gi[0] == len(gl)
    for k, (fi, ti) in enumerate(QD):
        if k == 0:
            a("s_nop 3")
        if k == 2:
            a(f"s_add_u32 s{S_O}, s{S_O}, {144*1024}")
        c = ACC + 32 * fi + 16 * ti
        g = GZ + 32 * fi + 16 * ti
        o = FR + 8 * (2 * ti + fi) + 16
        for q in range(2):
            for r in range(8 * q, 8 * q + 8, 2):
                a(f"v_pk_mul_f32 v[{c+r}:{c+r+1}], v[{c+r}:{c+r+1}], v[{g+r}:{g+r+1}]")
            for r in range(4 * q, 4 * q + 4):
                a(f"v_cvt_pk_bf16_f32 v{o+r}, v{c+2*r}, v{c+2*r+1}")
            vm.issue("st", f"buffer_store_dwordx4 v[{o+4*q}:{o+4*q+3}], v{V_L16}, {ws}, s{S_O} offen offset:{fi*2048 + q*1024}{SF}")
    a("s_barrier")
    p3_setup(a)
    a(f"""v_mov_b32 v{TP}, 1
s_mov_b64 exec, 1""")
    st.mark(19)
    a(f"""s_waitcnt vmcnt(0)
buffer_store_dword v{TP}, v{BF+2}, {ws}, s{S_MW} offen sc1
s_mov_b64 exec, -1""")

def phase3(a, st, ool):
    vm, lg = VM(a), LG(a)
    a("P3_GO:")
    st.mark(20)
    a("s_barrier")
    st.mark(21)
    horder = [9, 10, 11, 12, 0, 1, 2, 3, 4, 5, 6, 7, 8, 13]
    vm.q = ["hb"]
    for i in range(8):
        if i == 4:
            a(f"s_add_u32 s{S_A}, s{S_A}, 4096")
        vm.issue(f"a{i}", f"buffer_load_dwordx4 v[{AFR+4*i}:{AFR+4*i+3}], v{V_L16}, {ws}, s{S_A} offen offset:{(i & 3) * 1024}")
    vm.issue("x", f"buffer_load_dwordx4 v[{XV}:{XV+3}], v{V_XO}, s[{S_X}:{S_X+3}], s{S_XO} offen")
    steps = [("o", i) for i in range(8)] + [("h", b) for b in horder]
    def breads(si):
        ty, i = steps[si]
        if (ty, i) == ("h", 13):
            return []
        return [(f"b{si}", t) for t in b_reads(ty, i, BFR + 8 * (si % 3))]
    for t in breads(0) + breads(1):
        lg.issue(*t)
    vm.wait("hb")
    st.mark(22)
    a(f"""s_cmp_lg_u32 s{S_WAVE}, 0
s_cbranch_scc1 L_H_X
s_lshl_b32 s{S_T0}, s{S_M64}, 9
s_add_u32 s{S_T0}, s{S_T0}, {WS_F2}
s_add_u32 s{S_T1}, s{S_T0}, 128
s_add_u32 s{S_T2}, s{S_T0}, 256
s_add_u32 s{S_T3}, s{S_T0}, 384""")
    spoll(a, "L_H", f"""s_buffer_load_dwordx8 s[56:63], {ws}, s{S_T0} glc
s_buffer_load_dwordx8 s[64:71], {ws}, s{S_T1} glc
s_buffer_load_dwordx8 s[72:79], {ws}, s{S_T2} glc
s_buffer_load_dwordx4 s[8:11], {ws}, s{S_T3} glc""", list(range(56, 80, 2)) + [8, 10], ool, HSL)
    a("s_barrier")
    st.mark(23)
    hl = []
    for j, b in enumerate(horder):
        for h in range(2):
            r = AFR + 32 + 8 * j + 4 * h
            hl.append((f"a{8 + 2*j + h}", b, f"buffer_load_dwordx4 v[{r}:{r+3}], v{V_W if h else V_L16}, {ws}, s{S_T0} offen offset:{(b & 3) * 1024}"))
    nx = [0, -1]
    def pump(lim):
        while nx[0] < min(lim, len(hl)):
            tag, b, t = hl[nx[0]]
            if b >> 2 != nx[1]:
                nx[1] = b >> 2
                a(f"s_add_u32 s{S_T0}, s{S_O}, {(b >> 2) * 4096}")
            vm.issue(tag, t)
            nx[0] += 1
    cons = 0
    pump(AHEAD - 6)
    for si, (ty, i) in enumerate(steps):
        if si == 8: st.mark(24)
        if si == 15: st.mark(25)
        if si == 11:
            a("s_barrier")
        bf = EFR if (ty, i) == ("h", 13) else BFR + 8 * (si % 3)
        rl = breads(si + 2) if si + 2 < len(steps) else []
        lg.wait(f"b{si}")
        na = 1 if ty == "o" else 2
        for h in range(na):
            vm.wait(f"a{cons}")
            x = AFR + 4 * cons
            for ni in range(2):
                c = ACC3 + 16 * ni
                a(f"v_mfma_f32_32x32x16_bf16 v[{c}:{c+15}], v[{bf+4*ni}:{bf+4*ni+3}], v[{x}:{x+3}], " + ("0" if si == 0 else f"v[{c}:{c+15}]"))
                k = 2 * h + ni
                for t in (rl[2 * k:2 * k + 2] if na == 1 else rl[k:k + 1]):
                    lg.issue(*t)
                if ni == 0:
                    pump(cons + 1 - 8 + AHEAD + (2 if ty == "o" else 0))
            cons += 1
    st.mark(26)
    U = AFR
    for lp in (1, 2, 3):
        a(f"""s_xor_b32 s{S_T0}, s{S_WAVE}, {lp}
s_mul_i32 s{S_T0}, s{S_T0}, 6144
v_add_u32 v{BFR+lp}, s{S_T0}, v{V_L16}""")
    a(f"""s_mul_i32 s{S_T0}, s{S_WAVE}, 6144
v_add_u32 v{BFR}, s{S_T0}, v{V_L16}""")
    for d in range(4):
        a(f"v_lshlrev_b32 v{U+2*d}, 16, v{XV+d}")
        a(f"v_and_b32 v{U+2*d+1}, 0xffff0000, v{XV+d}")
    for lp in (1, 2, 3):
        for k in range(2):
            c = ACC3 + 8 * lp + 4 * k
            a(f"ds_write_b128 v{BFR+lp}, v[{c}:{c+3}] offset:{(lp-1)*2048 + k*1024}")
    a("s_waitcnt lgkmcnt(0)\ns_barrier")
    for k in range(6):
        c = ACC3 + 8 + 4 * k
        a(f"ds_read_b128 v[{c}:{c+3}], v{BFR} offset:{k*1024}")
    for lp in (1, 2, 3):
        a(f"s_waitcnt lgkmcnt({6 - 2*lp})")
        for r in range(0, 8, 2):
            a(f"v_pk_add_f32 v[{ACC3+r}:{ACC3+r+1}], v[{ACC3+r}:{ACC3+r+1}], v[{ACC3+8*lp+r}:{ACC3+8*lp+r+1}]")
    a("s_nop 1")
    for d in range(4):
        a(f"v_permlane32_swap_b32 v{ACC3+d}, v{ACC3+4+d}")
    for r in range(0, 8, 2):
        a(f"v_pk_add_f32 v[{ACC3+r}:{ACC3+r+1}], v[{ACC3+r}:{ACC3+r+1}], v[{U+r}:{U+r+1}]")
    for r in range(4):
        a(f"v_cvt_pk_bf16_f32 v{XV+r}, v{ACC3+2*r}, v{ACC3+2*r+1}")
    a(f"buffer_store_dwordx4 v[{XV}:{XV+3}], v{V_XO}, s[{S_OUT}:{S_OUT+3}], s{S_XO} offen")
    st.flush(S_WS, S_WAVE)
    a("s_endpgm")

def ids(a):
    a(f"""s_and_b32 s{S_KH}, s2, 1
s_bfe_u32 s{S_T0}, s2, 0x20001
s_bfe_u32 s{S_T1}, s2, 0x20003
s_lshl_b32 s{S_TT}, s{S_T0}, 2
s_add_u32 s{S_TT}, s{S_TT}, s{S_T1}
s_and_b32 s{S_T0}, s2, 7
s_lshl_b32 s{S_M64}, s{S_T0}, 2
s_add_u32 s{S_M64}, s{S_M64}, s{S_T1}
s_lshr_b32 s{S_FQ}, s2, 5""")

def hook_main(a, vm, st, last):
    ool = []
    a(f"""s_cmp_eq_u32 s{S_CH}, 0
s_cbranch_scc0 P2_CMP""")
    q0, p0 = list(vm.q), list(st.pend)
    loader(a, vm, st, last, ool)
    pl = list(st.pend)
    a("P2_CMP:")
    vm.q, st.pend = q0, p0
    compute(a, vm, st, last, ool)
    assert st.pend == pl
    phase3(a, st, ool)
    for o in ool:
        a(o)

def hook_att(a, vm, st, ctl):
    V_T0, V_T1, V_T2, V_L8B = 2, 3, 4, 5
    KF, QF, ACC, ZAC, ONE, KVB, TP = 16, 144, 176, 192, 208, 212, 220
    S_H, S_HF, S_MK = 28, 29, 42
    st.mark(12)
    a(f"""; head = 2x + (c&1) ; half = c>>1
s_and_b32 s{S_T0}, s2, 7
s_lshl_b32 s{S_H}, s{S_T0}, 1
s_bfe_u32 s{S_T0}, s2, 0x10003
s_add_u32 s{S_H}, s{S_H}, s{S_T0}
s_bfe_u32 s{S_HF}, s2, 0x10004
s_lshl_b32 s{S_T3}, s{S_HF}, 3
s_add_u32 s{S_O}, s{S_T3}, s{S_WAVE}
v_lshlrev_b32 v{V_T0}, 7, v{V_LANE}
v_mov_b32 v{V_T1}, 1
s_waitcnt vmcnt(0)
s_barrier
s_cmp_eq_u32 s{S_WAVE}, 0
s_cselect_b64 exec, 0xff, 0
buffer_store_dword v{V_T1}, v{V_T0}, {ws}, s{S_FL} offen sc1""")
    st.mark(13)
    if ATOUCH:
        srd(a, 20, P_BSP, 4096)
        a(f"s_cmp_eq_u32 s{S_WAVE}, 0\ns_cselect_b64 exec, -1, 0")
        a(f"buffer_load_dword v{TP}, v{V_T0}, s[20:23], 0 offen")
    a("s_mov_b64 exec, -1")
    for t in ctl:
        t()
    a(f"""s_and_b32 s{S_T0}, s2, 7
s_lshl_b32 s{S_T0}, s{S_T0}, 7
s_add_u32 s{S_T0}, s{S_T0}, {WS_FL}
s_lshl_b32 s{S_T2}, s{S_WAVE}, 12
s_add_u32 s{S_T2}, s{S_T2}, s{S_T0}
s_add_u32 s{S_T3}, s{S_T2}, 2048
s_lshl_b32 s{S_M2}, s{S_O}, 11
s_add_u32 s{S_M2}, s{S_M2}, s{S_T0}""")
    spoll(a, "A_KV", f"s_buffer_load_dwordx16 s[56:71], {ws}, s{S_T2} glc\ns_buffer_load_dwordx16 s[8:23], {ws}, s{S_T3} glc", list(range(56, 72, 2)) + list(range(8, 24, 2)), None, ASL)
    vm.q = []
    st.mark(14)
    a(f"""s_mul_i32 s{S_T1}, s{S_WAVE}, {8*28672}
s_mul_i32 s{S_T2}, s{S_H}, 896
s_add_u32 s{S_T1}, s{S_T1}, s{S_T2}
s_add_u32 s{S_T1}, s{S_T1}, {WS_K}
s_mul_i32 s{S_T0}, s{S_HF}, {8*14336}
s_add_u32 s{S_T1}, s{S_T1}, s{S_T0}
s_lshl_b32 s{S_T0}, s{S_T0}, 1
v_add_u32 v{V_T2}, {WS_V - WS_K}, v{V_KO}""")
    for i in range(16):
        vm.issue(f"k{i}", f"buffer_load_dwordx4 v[{KF+8*i}:{KF+8*i+3}], v{V_KO}, {ws}, s{S_T1} offen")
        vm.issue(f"k{i}", f"buffer_load_dwordx4 v[{KF+8*i+4}:{KF+8*i+7}], v{V_T2}, {ws}, s{S_T1} offen")
        a(f"s_add_u32 s{S_T1}, s{S_T1}, 14336")
        if i == 7:
            a(f"s_sub_u32 s{S_T1}, s{S_T1}, s{S_T0}")
    spoll(a, "A_Q", f"s_buffer_load_dwordx8 s[56:63], {ws}, s{S_M2} glc", list(range(56, 64, 2)), None, ASL)
    a(f"""v_and_b32 v{V_L8B}, 0xff, v{V_L8}
s_mul_i32 s{S_T1}, s{S_O}, {4*28672}
s_lshl_b32 s{S_T2}, s{S_T2}, 1
s_add_u32 s{S_T1}, s{S_T1}, s{S_T2}
s_add_u32 s{S_T1}, s{S_T1}, {WS_Q}
s_lshl_b32 s{S_C1+1}, s{S_O}, 8
s_lshl_b32 s{S_T3}, s{S_H}, 2
s_add_u32 s{S_FL}, s{S_C1+1}, s{S_T3}
s_add_u32 s{S_FL}, s{S_FL}, {WS_F3}
s_mul_i32 s{S_O}, s{S_O}, {4*144*1024}
s_lshl_b32 s{S_T3}, s{S_H}, 11
s_add_u32 s{S_O}, s{S_O}, s{S_T3}
s_add_u32 s{S_O}, s{S_O}, {WS_AF}""")
    for u in range(4):
        for i in range(4):
            r = QF + 8 * u + 2 * i
            vm.issue("q", f"buffer_load_dwordx2 v[{r}:{r+1}], v{V_L8 if i < 3 else V_L8B}, {ws}, s{S_T1} offen offset:{512*i}")
        a(f"s_add_u32 s{S_T1}, s{S_T1}, 28672")
    for r in range(4):
        a(f"v_mov_b32 v{ONE+r}, 0x3f803f80")
    a(f"""s_mov_b32 s{S_MK}, 0x10000000
s_mov_b32 s{S_MK+1}, 0x10000000
s_mov_b32 s{S_M2}, -1
s_mov_b32 s{S_M2+1}, 0""")
    for i in range(16):
        vm.wait(f"k{i}")
        c0 = "0" if i == 0 else f"v[{ACC}:{ACC+15}]"
        c1 = "0" if i == 0 else f"v[{ZAC}:{ZAC+15}]"
        a(f"v_mfma_f32_32x32x16_bf16 v[{ACC}:{ACC+15}], v[{KF+8*i}:{KF+8*i+3}], v[{KF+8*i+4}:{KF+8*i+7}], {c0}")
        a(f"v_mfma_f32_32x32x16_bf16 v[{ZAC}:{ZAC+15}], v[{KF+8*i}:{KF+8*i+3}], v[{ONE}:{ONE+3}], {c1}")
    st.mark(15)
    a(f"""s_lshl_b32 s{S_T1}, s{S_WAVE}, 12
v_add_u32 v{V_T2}, s{S_T1}, v{V_L8}
s_nop 10""")
    for r in range(16):
        a(f"v_cndmask_b32 v{ACC+r}, v{ACC+r}, v{ZAC+r}, s[{S_MK}:{S_MK+1}]")
    for p in range(8):
        a(f"ds_write_b64 v{V_T2}, v[{ACC+2*p}:{ACC+2*p+1}] offset:{512*p}")
    a(f"""s_lshl_b32 s{S_T1}, s{S_WAVE}, 9
v_add_u32 v{V_T2}, s{S_T1}, v{V_L8}""")
    a("s_waitcnt lgkmcnt(0)\ns_barrier")
    for w in range(8):
        a(f"ds_read_b64 v[{ACC+2*w}:{ACC+2*w+1}], v{V_T2} offset:{4096*w}")
    a(f"""s_cmp_ge_u32 s{S_WAVE}, 6
s_cselect_b32 s{S_MK+1}, 0, -1
s_mov_b32 s{S_MK}, -1
s_lshl_b32 s{S_T1}, s{S_WAVE}, 2
s_add_u32 s{S_T1}, s{S_T1}, 32768
v_lshl_add_u32 v{V_T2}, v{V_LANE}, 5, s{S_T1}
s_waitcnt lgkmcnt(0)""")
    for w in (4, 2, 1):
        for k in range(w):
            a(f"v_pk_add_f32 v[{ACC+2*k}:{ACC+2*k+1}], v[{ACC+2*k}:{ACC+2*k+1}], v[{ACC+2*(k+w)}:{ACC+2*(k+w)+1}]")
    a(f"""v_cvt_pk_bf16_f32 v{ACC}, v{ACC}, v{ACC+1}
v_cndmask_b32 v{ACC}, 0, v{ACC}, s[{S_MK}:{S_MK+1}]
ds_write_b32 v{V_T2}, v{ACC}
v_lshlrev_b32 v{V_T2}, 5, v{V_LANE}
s_waitcnt lgkmcnt(0)
s_barrier
ds_read_b128 v[{KVB}:{KVB+3}], v{V_T2} offset:32768
ds_read_b128 v[{KVB+4}:{KVB+7}], v{V_T2} offset:32784
s_waitcnt lgkmcnt(0)""")
    vm.wait("q")
    st.mark(16)
    for u in range(4):
        c = KF + 16 * u
        a(f"v_mfma_f32_32x32x16_bf16 v[{c}:{c+15}], v[{KVB}:{KVB+3}], v[{QF+8*u}:{QF+8*u+3}], 0")
        a(f"v_mfma_f32_32x32x16_bf16 v[{c}:{c+15}], v[{KVB+4}:{KVB+7}], v[{QF+8*u+4}:{QF+8*u+7}], v[{c}:{c+15}]")
    a("s_nop 5")
    for u in range(4):
        c = KF + 16 * u
        o = KF + 64 + 8 * u
        a(f"""v_add_f32 v{TP}, {f32(1e-6)}, v{c+12}
v_mov_b32 v{TP+1}, v{TP}
s_nop 1
v_permlane32_swap_b32 v{TP+1}, v{TP}
v_rcp_f32 v{TP}, v{TP}
s_nop 0""")
        for r in range(16):
            a(f"v_mul_f32 v{c+r}, v{c+r}, v{TP}")
        for r in range(8):
            a(f"v_cvt_pk_bf16_f32 v{o+r}, v{c+2*r}, v{c+2*r+1}")
        a(f"v_cndmask_b32 v{o+6}, 0, v{o+6}, s[{S_M2}:{S_M2+1}]")
        a(f"v_cndmask_b32 v{o+7}, 0, v{o+7}, s[{S_M2}:{S_M2+1}]")
        vm.issue("st", f"buffer_store_dwordx4 v[{o}:{o+3}], v{V_L16}, {ws}, s{S_O} offen{SF}")
        vm.issue("st", f"buffer_store_dwordx4 v[{o+4}:{o+7}], v{V_L16}, {ws}, s{S_O} offen offset:1024{SF}")
        a(f"s_add_u32 s{S_O}, s{S_O}, {144*1024}")
    st.mark(17)
    a(f"""v_mov_b32 v{TP}, 1
v_lshlrev_b32 v{TP+1}, 7, v{V_LANE}
s_mov_b64 exec, 3
s_waitcnt vmcnt(0)
buffer_store_dword v{TP}, v{TP+1}, {ws}, s{S_FL} offen sc1""")
    st.flush(S_WS, S_WAVE)
    a("s_endpgm")
```

```python
from common import *
import os
R1 = 0
RING = 57344
SCR = RING + 57344
DEAD = SCR + 8192
P1_LDS = 163840
P1_VGPR = 256
E = os.environ.get
ROTMODE = 1
STORE_FLAGS = E("SF", " sc1")
PFL = [int(x) for x in E("P1_PFL", "9,16,23,30").split(",")]
PFROW = int(E("P1_PFROW", "0"))
WPF = int(E("P1_WPF", "13"))
NTP, NTX, NTW, NTO = [" nt" if c == "1" else "" for c in E("P1_NT", "1000")]
NTQ = E("P1_NTQ", "0000")
CPF = [int(x) for x in E("P1_CPF", "-1,-1,-1,-1").split(",")]
WSB = int(E("WSB", "0"), 0)
CSTAT = E("P1_CSTAT", "valu")
SCH = {"E": [int(x) for x in E("P1_SE", "17,28,32,37,38,52,46").split(",")],
       "L": [int(x) for x in E("P1_SL", "22,46,50,55,30,43,-1").split(",")]}
LATEF = int(E("P1_LATEF", "2"))
PSL = int(E("P1_PSL", "3"))
RTL = [int(x) for x in E("P1_RTL", "-1,-1,-1,-1").split(",")]
TOUCH = 0
assert max(CPF) < 0
WPX = [int(x) for x in E("P1_WPX", "-1,-1").split(",")]
FAE = int(E("P1_FAE", "0"))

P_X, P_QKV, P_WO, P_WIN, P_SP, P_BSP, P_WOUT, P_DBG, P_WS, P_OUT = 64, 66, 68, 72, 74, 76, 78, 56, 58, 60
X = E("P1_X", "")

V_LANE = 1
V_X0, V_X1, V_DA, V_DB = 2, 3, 4, 5
XR, WR = 6, 10
V_L16, V_T0 = 14, 15
A0 = 16
V_S, V_Q = 224, 225
V_R, V_C0, V_C1, V_RI, V_L2E = 226, 227, 228, 229, 230
V_PF = 0
SEL = 232
XE, CE = 236, 240
T4 = 248
V_KO, V_L8, V_CSA, V_DUM = 252, 253, 254, 255

S_SP = 4
S_PFO, S_CNT, S_REC, S_FL = 8, 9, 10, 11
S_X, S_WA, S_WB, S_WS = 12, 16, 20, 24
S_RB, S_G, S_WAVE, S_RW, S_CH = 28, 29, 30, 31, 32
S_T0, S_T1, S_T2, S_T3 = 33, 34, 35, 36
S_PK = 37
S_XB = 38
S_L = 39
S_A64 = 43
S_MR, S_MW = 44, 45
S_XO = 46
S_O = 47
S_SA = 52
S_SPIN = 53
S_HI = 54
B64 = 64 * 2688

class K:
    def __init__(s, kinds):
        s.kinds = kinds
        s.nA = 2 if kinds[0] == "V" else 1
        s.WST = (2 + s.nA) * 1024
        s.SLOT = 8 * s.WST
        s.NSL = 98304 // s.SLOT
        s.DEPTH = s.NSL - 1
        s.ori = [k in "GLQ" for k in kinds]
        s.WB, s.CV, s.CSA = 160, 212, 220
        if s.nA == 1:
            s.ACC = [128, 144, 160]
            s.BR, s.TMP, s.R16, s.XS = 176, 196, A0, CE + 4
            s.stat = E("P1_ASTAT", "mix")
        else:
            s.ACC = [128, 144, 160, 128]
            s.BR, s.TMP, s.R16, s.XS = 192, 176, 176, 228
            s.stat = CSTAT
NBR = 5

class LG:
    def __init__(self, a):
        self.a, self.q = a, []
    def issue(self, tag, text):
        self.a(text)
        self.q.append(tag)
    def wait(self, *tags):
        last = -1
        for i, t in enumerate(self.q):
            if t in tags:
                last = i
        if last < 0:
            return
        n = min(15, len(self.q) - 1 - last)
        self.a(f"s_waitcnt lgkmcnt({n})")
        self.q = self.q[len(self.q) - n:] if n else []
    def all(self):
        if self.q:
            self.a("s_waitcnt lgkmcnt(0)")
        self.q = []
    def copy(self):
        v = LG(self.a)
        v.q = list(self.q)
        return v

def mf(acc, w, x, orient, first=False):
    c = "0" if first else f"v[{acc}:{acc+15}]"
    if orient:
        return f"v_mfma_f32_32x32x16_bf16 v[{acc}:{acc+15}], v[{w}:{w+3}], v[{x}:{x+3}], {c}"
    return f"v_mfma_f32_32x32x16_bf16 v[{acc}:{acc+15}], v[{x}:{x+3}], v[{w}:{w+3}], {c}"

def mf16(c, b, first):
    return f"v_mfma_f32_16x16x32_bf16 v[{c}:{c+3}], v[{SEL}:{SEL+3}], v[{b}:{b+3}], " + ("0" if first else f"v[{c}:{c+3}]")

def adv_pk(a):
    if ROTMODE != 1:
        a(f"""s_add_u32 s{S_PK}, s{S_PK}, 1
s_cmp_eq_u32 s{S_PK}, 7
s_cselect_b32 s{S_PK}, 0, s{S_PK}""")

def line_src(L):
    if L == 1:
        return V_DB, S_WB, str(B64)
    return V_DA, S_WA, f"s{S_A64}"

def w_off(a, L, dst):
    v, s, st = line_src(L)
    if ROTMODE == 1:
        return S_L + L
    a(f"s_mul_i32 s{dst}, s{S_PK}, {st}\ns_add_u32 s{dst}, s{dst}, s{S_L+L}")
    return dst

def w_adv(a, L):
    if ROTMODE == 1:
        a(f"s_add_u32 s{S_L+L}, s{S_L+L}, {line_src(L)[2]}")

def piece_dma(a, vm, k, j):
    sl = RING + (j % k.NSL) * k.SLOT
    def x0():
        a(f"s_add_u32 m0, s{S_MR}, {sl}")
        if ROTMODE == 1:
            a(f"s_add_u32 s{S_T0}, s{S_XB}, {128 * j}")
        else:
            a(f"s_lshl_b32 s{S_T0}, s{S_PK}, 7\ns_add_u32 s{S_T0}, s{S_T0}, s{S_XB}")
        vm.issue(f"p{j}", f"buffer_load_dwordx4 v{V_X0}, s[{S_X}:{S_X+3}], s{S_T0} offen{NTX} lds")
    def x1():
        vm.issue(f"p{j}", f"buffer_load_dwordx4 v{V_X1}, s[{S_X}:{S_X+3}], s{S_T0} offen offset:{(1+k.nA)*1024}{NTX} lds")
    def w(L):
        def f():
            v, s, _ = line_src(L)
            o = w_off(a, L, S_T1)
            vm.issue(f"p{j}", f"buffer_load_dwordx4 v{v}, s[{s}:{s+3}], s{o} offen offset:{(1+L)*1024}{NTW} lds")
            w_adv(a, L)
            if L == k.nA - 1:
                adv_pk(a)
        return f
    return [x0, x1] + [w(L) for L in range(k.nA)]

def line_dma(a, vm, L, b, base, tag):
    def f():
        v, s, _ = line_src(L)
        a(f"s_add_u32 m0, s{S_MW}, {base + b * 8192}")
        o = w_off(a, L, S_T1)
        if ROTMODE == 1:
            a("s_nop 0")
        vm.issue(tag, f"buffer_load_dwordx4 v{v}, s[{s}:{s+3}], s{o} offen{NTW} lds")
        w_adv(a, L)
        adv_pk(a)
    return f

def I(a, s):
    return lambda: a(s)

def spread(n, lst):
    return [lst[len(lst) * i // n: len(lst) * (i + 1) // n] for i in range(n)]

def ce_build(ce, src):
    return [f"v_add_f32 v{src}, v{src}, v{src+1}",
            f"v_add_f32 v{src+2}, v{src+2}, v{src+3}",
            f"v_add_f32 v{src}, v{src}, v{src+2}",
            f"v_and_b32 v{src+1}, 0xffff0000, v{src}",
            f"v_sub_f32 v{src}, v{src}, v{src+1}",
            f"v_cvt_pk_bf16_f32 v{ce}, v{src+1}, v{src}"]

def store_tile(a, vm, kind, src, so):
    tg = "st" + kind
    ws = f"s[{S_WS}:{S_WS+3}]"
    l = []
    if kind in "GL":
        l.append(lambda: vm.issue(tg, f"buffer_store_dwordx4 v[{src}:{src+3}], v{V_L16}, {ws}, s{so} offen{STORE_FLAGS}"))
        l.append(lambda: vm.issue(tg, f"buffer_store_dwordx4 v[{src+4}:{src+7}], v{V_L16}, {ws}, s{so} offen offset:1024{STORE_FLAGS}"))
    elif kind == "Q":
        for i in range(4):
            l.append(lambda i=i: vm.issue(tg, f"buffer_store_dwordx2 v[{src+2*i}:{src+2*i+1}], v{V_L8}, {ws}, s{so} offen offset:{512*i}{STORE_FLAGS}"))
    else:
        l.append(lambda: vm.issue(tg, f"buffer_store_dwordx4 v[{src}:{src+3}], v{V_KO}, {ws}, s{so} offen{STORE_FLAGS}"))
        def second():
            a(f"s_add_u32 s{so}, s{so}, 14336")
            vm.issue(tg, f"buffer_store_dwordx4 v[{src+4}:{src+7}], v{V_KO}, {ws}, s{so} offen{STORE_FLAGS}")
        l.append(second)
    return l

def epilogue(a, vm, k, kind, acc, so):
    T = k.TMP
    R = (lambda r: V_R) if kind in "GLQ" else (lambda r: k.R16 + r)
    s = []
    for h in range(2):
        rs = range(8 * h, 8 * h + 8)
        if kind in "GL":
            s += [f"v_mul_f32 v{T+r}, v{acc+r}, v{acc+r}" for r in rs]
            s += [f"v_fma_f32 v{T+r}, v{T+r}, v{V_C1}, v{V_C0}" for r in rs]
            s += [f"v_mul_f32 v{T+r}, v{T+r}, v{acc+r}" for r in rs]
            s += [f"v_exp_f32 v{T+r}, v{T+r}" for r in rs]
            s += [f"v_fma_f32 v{T+r}, v{T+r}, v{V_RI}, v{V_RI}" for r in rs]
            s += [f"v_rcp_f32 v{T+r}, v{T+r}" for r in rs]
            s += [f"v_mul_f32 v{acc+r}, v{T+r}, v{acc+r}" for r in rs]
            for r in (rs if kind == "G" else []):
                s.append(f"v_add_f32 v{V_S}, v{V_S}, v{acc+r}" if r else f"v_mov_b32 v{V_S}, v{acc}")
                s.append(f"v_fmac_f32 v{V_Q}, v{acc+r}, v{acc+r}" if r else f"v_mul_f32 v{V_Q}, v{acc}, v{acc}")
        elif kind in "QK":
            s += [f"v_fmaak_f32 v{acc+r}, v{acc+r}, v{R(r)}, {f32(1e-6)}" for r in rs]
            s += [f"v_fmaak_f32 v{T+r}, v{acc+r}, v{V_L2E}, {f32(-1e-6*LOG2E)}" for r in rs]
            s += [f"v_exp_f32_e64 v{T+r}, v{T+r} clamp" for r in rs]
            s += [f"v_max_f32 v{acc+r}, {f32(1e-6)}, v{acc+r}" for r in rs]
            s += [f"v_add_f32 v{acc+r}, v{acc+r}, v{T+r}" for r in rs]
        else:
            s += [f"v_mul_f32 v{acc+r}, v{acc+r}, v{R(r)}" for r in rs]
    l = [I(a, x) for x in s]
    if kind != "G":
        l += [I(a, f"v_cvt_pk_bf16_f32 v{k.CV+r}, v{acc+2*r}, v{acc+2*r+1}") for r in range(8)]
        if kind != "L":
            l += store_tile(a, vm, kind, k.CV, so)
    return l

def phase_a(a, vm, lg, k, st, tail_fill):
    nA = k.nA
    late = [line_dma(a, vm, nA, b, R1, "wa" if b < 3 else "wb") for b in range(7)]
    lsp = spread(k.DEPTH, late) if k.DEPTH == 3 else [late[:4], late[4:]]
    if k.DEPTH == 3:
        lsp = [late[:3], late[3:5], late[5:]]
    XS = k.XS
    for j in range(8):
        main, reads, dots, dmas, extra = [], [], [], [], []
        if j < 7:
            vm.wait(f"p{j}")
            a("s_barrier")
            if j in (0, 3, 6):
                st.mark(3 + j // 3)
            so = (j % k.NSL) * k.SLOT
            for i in range(4):
                x = A0 + 16 * j + 4 * i
                xr, xo = (XR + i, so) if so < 65536 else (None, None)
                reads.append(("x", x, i, so))
                for L in range(nA):
                    b = k.WB + 16 * nA * (j & 1) + 16 * L + 4 * i
                    reads.append(("w", b, i, so + L * 1024))
                    reads.append(("w", b + 2, i, so + L * 1024 + 512))
            def rd(t, r, i, off):
                def f():
                    if t == "x":
                        lg.issue("a", f"ds_read_b128 v[{r}:{r+3}], v{XR+i} offset:{off - hi(off)}")
                    else:
                        lg.issue("a", f"ds_read_b64_tr_b16 v[{r}:{r+1}], v{WR+i} offset:{off - hi(off)}")
                return f
            hi = lambda off: 49152 if so >= 49152 else 0
            prev = ((j - 1) % k.NSL) * k.SLOT if j else 0
            if (prev >= 49152) != (so >= 49152):
                op = "v_add_u32" if so >= 49152 else "v_subrev_u32"
                for r in list(range(XR, XR + 4)) + list(range(WR, WR + 4)):
                    a(f"{op} v{r}, 49152, v{r}")
            reads = [rd(*r) for r in reads]
            if j + k.DEPTH < 7:
                dmas = piece_dma(a, vm, k, j + k.DEPTH)
            else:
                dmas = lsp[j + k.DEPTH - 7]
            if j == k.DEPTH and k.kinds[0] == "V":
                def flag():
                    a(f"s_cmp_eq_u32 s{S_WAVE}, 7\ns_cselect_b64 exec, 1, 0")
                    a(f"buffer_store_dword v{V_DUM}, v{XE+1}, s[{S_SP}:{S_SP+3}], s{S_CNT} offen sc1")
                    a(f"s_mov_b64 exec, -1")
                assert "clr" not in vm.q
                dmas = dmas + [flag]
        else:
            vm.wait("wa")
            a("s_barrier")
            reads = tail_fill
        if j > 0:
            p = j - 1
            for i in range(4):
                x = A0 + 16 * p + 4 * i
                for L in range(nA):
                    b = k.WB + 16 * nA * (p & 1) + 16 * L + 4 * i
                    main.append(I(a, mf(k.ACC[L], b, x, k.ori[L], p == 0 and i == 0)))
            for L in range(nA):
                extra.append(I(a, mf16(CE + 4 * L, k.WB + 16 * nA * (p & 1) + 16 * L, p == 0)))
            if k.stat == "mix":
                for i in range(2):
                    extra.append(I(a, mf16(XS, A0 + 16 * p + 4 * i, p == 0 and i == 0)))
            for d in range(8):
                x = A0 + 16 * p + d
                t = T4 + 2 * (d & 1)
                dots.append(I(a, f"v_lshlrev_b32 v{t}, 16, v{x}"))
                dots.append(I(a, f"v_and_b32 v{t+1}, 0xffff0000, v{x}"))
                if k.stat != "mix":
                    dots.append(I(a, f"v_add_f32 v{V_S}, v{V_S}, v{t}"))
                dots.append(I(a, f"v_fmac_f32 v{V_Q}, v{t}, v{t}"))
                if k.stat != "mix":
                    dots.append(I(a, f"v_add_f32 v{V_R}, v{V_R}, v{t+1}"))
                dots.append(I(a, f"v_fmac_f32 v{V_C0}, v{t+1}, v{t+1}"))
        if main:
            n = len(main)
            rs, ds, ms, es = spread(n, reads), spread(n, dots), spread(n, dmas), spread(n, extra)
            for g in range(n):
                main[g]()
                for f in rs[g] + ms[g] + ds[g] + es[g]:
                    f()
        else:
            for f in reads + dmas:
                f()
        if j < 7:
            lg.all()
    return XS

def kind_body(a, vm0, k, st, lab, hook_main, hook_att):
    vm = Vm = vm0.copy()
    lg = LG(a)
    kinds, ori, nA = k.kinds, k.ori, k.nA
    G = kinds[0] == "G"
    T = k.TMP
    D = 4
    dbg = f"s[{S_SP}:{S_SP+3}]"
    ws = f"s[{S_WS}:{S_WS+3}]"
    nl = 2 if nA == 1 else 1
    NS = 28 * nl
    def rd(p):
        b = k.BR + 4 * (p % NBR)
        off = ((p % 28) >> 2) * 8192
        def f0():
            if p == 28:
                for i in range(4):
                    a(f"v_add_u32 v{WR+i}, {RING}, v{WR+i}")
            lg.issue(f"r{p}", f"ds_read_b64_tr_b16 v[{b}:{b+1}], v{WR + (p & 3)} offset:{off}")
        return [f0, lambda: lg.issue(f"r{p}", f"ds_read_b64_tr_b16 v[{b+2}:{b+3}], v{WR + (p & 3)} offset:{off+512}")]
    def wr_fix():
        for i in range(4):
            a(f"s_xor_b32 s{S_T2}, s{S_XO}, {i}\ns_lshl_b32 s{S_T2}, s{S_T2}, 11")
            a(f"v_add_u32 v{WR+i}, s{S_T2}, v{V_T0}")
    tail = [wr_fix] + [f for p in range(D) for f in rd(p)]
    XS = phase_a(a, vm, lg, k, st, tail)
    st.mark(6)
    if not G:
        return kind_stream(a, vm, lg, k, st, lab, hook_main, hook_att, rd, XS, "E")
    a(f"""s_and_b32 s{S_T0}, s{S_RB}, 7
s_cmp_ge_u32 s{S_T0}, {LATEF}
s_cbranch_scc1 {lab}L""")
    sv = list(vm.q), list(lg.q), list(st.pend)
    kind_stream(a, vm, lg, k, st, lab, hook_main, hook_att, rd, XS, "E")
    a(f"{lab}L:")
    vm.q, lg.q, st.pend = sv
    kind_stream(a, vm, lg, k, st, lab + "L", hook_main, hook_att, rd, XS, "L")

def kind_stream(a, vm, lg, k, st, lab, hook_main, hook_att, rd, XS, cls):
    kinds, ori, nA = k.kinds, k.ori, k.nA
    G = kinds[0] == "G"
    T = k.TMP
    D = 4
    dbg = f"s[{S_SP}:{S_SP+3}]"
    ws = f"s[{S_WS}:{S_WS+3}]"
    nl = 2 if nA == 1 else 1
    NS = 28 * nl
    F0_END, POLL_AT, ZF0, ZF1, F1_BEG, F1_END, FB = SCH[cls]
    pre = []
    if k.stat == "mix":
        pre.append(I(a, f"v_add_f32 v{XS+1}, v{V_Q}, v{V_C0}"))
        xs = XS
    else:
        pre.append(I(a, f"v_add_f32 v{V_S}, v{V_S}, v{V_R}\nv_add_f32 v{V_Q}, v{V_Q}, v{V_C0}"))
        xs = V_S
    pre.append(I(a, f"""s_lshl_b32 s{S_T0}, s{S_WAVE}, 9
s_add_u32 s{S_T0}, s{S_T0}, {SCR + 4096}
v_add_u32 v{V_T0}, s{S_T0}, v{V_L8}"""))
    pre.append(lambda: lg.issue("w", f"ds_write_b64 v{V_T0}, v[{xs}:{xs+1}]"))
    for L in range(nA):
        pre.append(lambda L=L: lg.issue("w", f"ds_write_b32 v{V_CSA}, v{CE+4*L} offset:{L*2048}"))
    pre.append(I(a, f"v_xor_b32 v{V_T0}, 2048, v{V_T0}"))
    def bar(*vtags):
        def f():
            vm.wait(*vtags)
            lg.wait("w")
            a("s_barrier")
        return f
    F0 = [lambda: lg.issue("x", f"ds_read_b64 v[{T}:{T+1}], v{V_T0}"),
          I(a, f"v_and_b32 v{V_T0}, 0xfffffff0, v{V_CSA}")]
    for L in range(nA):
        F0.append(lambda L=L: lg.issue("c", f"ds_read_b128 v[{T+4+4*L}:{T+7+4*L}], v{V_T0} offset:{L*2048}"))
    F0.append(GAP)
    F0.append(lambda: lg.wait("x"))
    F0 += [I(a, s) for s in f"""v_add_f32 v{V_S}, v{xs}, v{T}
v_add_f32 v{V_Q}, v{xs+1}, v{T+1}
v_mov_b32 v{T}, v{V_S}
v_mov_b32 v{T+1}, v{V_Q}
v_mov_b32 v{CE+1}, 0
v_mov_b32 v{CE+2}, 0
v_permlane32_swap_b32 v{T+1}, v{V_Q}""".split("\n")]
    if k.stat != "mix":
        F0 += [I(a, f"v_permlane32_swap_b32 v{T}, v{V_S}"), I(a, f"v_add_f32 v{V_S}, v{V_S}, v{T}")]
    F0 += [I(a, s) for s in f"""v_add_f32 v{V_Q}, v{V_Q}, v{T+1}
v_mul_f32 v{V_S}, {f32(-1/448)}, v{V_S}
v_mul_f32 v{V_Q}, {f32(1/448)}, v{V_Q}
v_and_b32 v{T}, 0xffff0000, v{V_S}
v_fma_f32 v{V_Q}, -v{V_S}, v{V_S}, v{V_Q}
v_sub_f32 v{T+1}, v{V_S}, v{T}
v_max_f32 v{V_Q}, 0, v{V_Q}
v_cndmask_b32 v{T}, v{T}, v{T+1}, s[{S_HI}:{S_HI+1}]
v_add_f32 v{V_Q}, {f32(1e-5)}, v{V_Q}
v_cvt_pk_bf16_f32 v{XE}, v{T}, v{T}
v_rsq_f32 v{V_R}, v{V_Q}
v_mov_b32 v{CE+3}, 0""".split("\n")]
    if nA == 2:
        F0 += [I(a, f"v_mov_b32 v{CE+r}, 0") for r in (5, 6, 7)]
    F0.append(lambda: lg.wait("c"))
    for L in range(nA):
        F0 += [I(a, s) for s in ce_build(CE + 4 * L, T + 4 + 4 * L)]
    def r16(_=None):
        t0, t1 = XR, XR + 1
        l = [I(a, f"""s_lshl_b32 s{S_T2}, s{S_WAVE}, 8
s_add_u32 s{S_T2}, s{S_T2}, {DEAD}
v_lshl_add_u32 v{t0}, v{V_LANE}, 2, s{S_T2}"""),
             lambda: lg.issue("q", f"ds_write_b32 v{t0}, v{V_R}"),
             I(a, f"v_lshrrev_b32 v{t1}, 5, v{V_LANE}"),
             I(a, f"v_lshl_add_u32 v{t1}, v{t1}, 4, s{S_T2}")]
        for q in range(4):
            l.append(lambda q=q: lg.issue("q", f"ds_read_b128 v[{k.R16+4*q}:{k.R16+4*q+3}], v{t1} offset:{32*q}"))
        return l
    if G:
        F0 += [I(a, s) for s in f"""v_mul_f32 v{V_RI}, v{V_Q}, v{V_R}
v_mul_f32 v{V_C0}, {f32(GELU_C0)}, v{V_R}""".split("\n")]
    else:
        F0 += r16()[:2]
    for L in range(nA):
        F0.append(I(a, mf(k.ACC[L], CE + 4 * L, XE, ori[L])))
    if G:
        F0 += [I(a, s) for s in f"""v_mul_f32 v{V_C1}, v{V_R}, v{V_R}
v_mul_f32 v{V_C1}, v{V_C1}, v{V_R}
v_mul_f32 v{V_C1}, {f32(GELU_C1)}, v{V_C1}""".split("\n")]
    else:
        F0 += r16()[2:]
    F0 += [GAP, GAP, GAP]
    if not G:
        F0.append(lambda: lg.wait("q"))
    F0 += epilogue(a, vm, k, kinds[0], k.ACC[0], S_O)
    if nA == 2:
        F0 += epilogue(a, vm, k, kinds[1], k.ACC[1], S_O + 1)
    def fix(acc, orient, slot):
        return ([lambda: lg.issue("c", f"ds_read_b128 v[{T4}:{T4+3}], v{V_T0} offset:{slot*2048}"), GAP, lambda: lg.wait("c")] +
                [I(a, s) for s in ce_build(CE, T4)] + [I(a, "s_nop 1"), I(a, mf(acc, CE, XE, orient))])
    ev = {}
    fl = []
    NPT = len(PFL)
    def touch(i, NTP=NTP):
        def f():
            if PFROW:
                vm.issue("pf", f"buffer_load_dword v{V_DUM}, v{V_PF}, s[{S_X}:{S_X+3}], s{S_PFO} offen{NTP}")
                a(f"s_add_u32 s{S_PFO}, s{S_PFO}, {4 * 4096 // NPT}")
            else:
                vm.issue("pf", f"buffer_load_dword v{V_DUM}, v{V_PF}, s[{S_X}:{S_X+3}], s{S_PFO} offen offset:{i * 2048 // NPT}{NTP}")
        return f
    def wtouch():
        a(f"""s_mul_i32 s{S_T0}, s{S_PK}, 392
s_lshl_b32 s{S_T1}, s{S_T0}, 1""")
        vm.issue("pf", f"buffer_load_dword v{V_DUM}, v{V_L8}, s[{S_WA}:{S_WA+3}], s{S_T0} offen{NTO}")
        vm.issue("pf", f"buffer_load_dword v{V_DUM}, v{V_L16}, s[{S_WB}:{S_WB+3}], s{S_T1} offen{NTO}")
    def xtouch(which):
        def f():
            a(f"""s_and_b32 s{S_T0}, s{S_PK}, 0xfffffc7f
s_min_u32 s{S_T0}, s{S_T0}, 0x1000
s_mul_i32 s{S_T0}, s{S_T0}, {3136 << which}
v_lshlrev_b32 v{V_PF}, {6 + which}, v{V_LANE}""")
            assert min(WPX) > max(PFL + RTL)
            vm.issue("pf", f"buffer_load_dword v{V_DUM}, v{V_PF}, s[{(S_WA, S_WB)[which]}:{(S_WA, S_WB)[which]+3}], s{S_T0} offen")
        return f
    def flag_check():
        vm.wait("cnt")
        a(f"""{lab}_CR:
v_cmp_eq_u32 vcc, 0, v{V_X0}
s_and_b64 vcc, vcc, s[{S_L+1}:{S_L+2}]
s_cbranch_vccnz {lab}_CW
{lab}_CX:""")
    def cnt_load(f):
        a(f"v_lshrrev_b32 v{V_X0}, 1, v{V_L8}")
        f(f"buffer_load_dword v{V_X0}, v{V_X0}, {dbg}, 0 offen sc1")
    ool = [f"""{lab}_CW:
s_addk_i32 s{S_SPIN}, -1
s_cmp_lt_i32 s{S_SPIN}, 0
s_cbranch_scc1 {lab}_CX""", lambda: cnt_load(a), f"""s_waitcnt vmcnt(0)
s_branch {lab}_CR"""]
    lateL = nA + 1
    dm = [line_dma(a, vm, lateL, b, RING, "wc") for b in range(7)]
    XA = XR + 2
    if G:
        F0 += [I(a, f"v_mov_b32 v{T}, v{V_S}"), I(a, f"v_mov_b32 v{T+1}, v{V_Q}"),
               I(a, f"s_lshl_b32 s{S_T0}, s{S_WAVE}, 9\ns_add_u32 s{S_T0}, s{S_T0}, {SCR + 4096}\nv_add_u32 v{XA}, s{S_T0}, v{V_L8}"),
               I(a, f"v_mov_b32 v{V_C0}, 1"),
               I(a, f"v_permlane32_swap_b32 v{T}, v{V_S}"), I(a, f"v_permlane32_swap_b32 v{T+1}, v{V_Q}"),
               I(a, f"v_add_f32 v{V_S}, v{V_S}, v{T}"), I(a, f"v_add_f32 v{V_Q}, v{V_Q}, v{T+1}"),
               lambda: lg.issue("w", f"ds_write_b64 v{XA}, v[{V_S}:{V_Q}]"),
               I(a, f"v_xor_b32 v{XA}, 2048, v{XA}")]
        def rec_store():
            a(f"""s_lshl_b32 s{S_T0}, s{S_CH}, 4
s_lshl_b32 exec_lo, 0xffff, s{S_T0}
s_mov_b32 exec_hi, 0""")
            vm.issue("rec", f"buffer_store_dwordx2 v[{V_S}:{V_Q}], v{V_L8}, {ws}, s{S_REC} offen sc1")
            a(f"s_mov_b64 exec, -1\ns_and_b32 s{S_REC}, s{S_REC}, 0xfffff000")
        FR_ = [lambda: lg.issue("x", f"ds_read_b64 v[{T}:{T+1}], v{XA}"), flag_check, GAP, lambda: lg.wait("x"),
               I(a, f"v_add_f32 v{V_S}, v{V_S}, v{T}"), I(a, f"v_add_f32 v{V_Q}, v{V_Q}, v{T+1}"), rec_store]
    else:
        F0.append(I(a, f"v_mov_b32 v{V_C0}, 1"))
    dm = [lambda: cnt_load(lambda t: vm.issue("cnt", t))] + dm
    def srdfix():
        srd(a, S_X, P_SP, 2048 * 4096)
        if G:
            srd(a, S_WA, P_WO, 448 * 896)
            srd(a, S_WB, P_WOUT, 896 * 896)
        a(f"""s_mov_b32 s{S_L+1}, 0x33333333
s_mov_b32 s{S_L+2}, 0x33333333""")
    ev[1] = pre
    ev[3] = [bar()]
    fl.append((0, 8, dm + [srdfix]))
    if cls == "L":
        for i, p in enumerate(PFL):
            if p >= 0:
                fl.append((p, p, [touch(i, " nt" if NTQ[i] == "1" else "")]))
            if RTL[i] >= 0:
                fl.append((RTL[i], RTL[i], [touch(i, " sc1")]))
        if WPF >= 0:
            fl.append((WPF, WPF, [wtouch]))
        for w in range(2):
            if WPX[w] >= 0:
                fl.append((WPX[w], WPX[w], [xtouch(w)]))
    ctl = []
    if not G:
        for i, p in enumerate(CPF):
            t = lambda i=i: vm.issue("pf", f"buffer_load_dword v{V_DUM}, v{V_PF}, s[{S_X}:{S_X+3}], s{S_PFO} offen offset:{i * 512}")
            if 0 <= p < 28:
                fl.append((p, p, [t]))
            elif p >= 28:
                ctl.append(t)
    ev[12 - D] = [bar("wb")]
    PL = [V_X0, V_DA, XR, XR + 2, CE + 4, CE + 6, V_C1]
    def poll_issue(v):
        for i in range(7):
            t = f"buffer_load_dwordx2 v[{PL[i]}:{PL[i]+1}], v{V_L8}, {ws}, s{S_REC} offen offset:{i*512} sc1"
            if v: v.issue("pl", t)
            else: a(t)
    if nl == 2:
        fl.append((3, F0_END, F0))
        assert F0_END < 28 - D
        FRB = F0_END + 1 if F0_END < 20 else 28 - D
        ev[FRB] = [bar()]
        ev[28 - D] = [bar("wc")]
        fl.append((FRB, FRB + 1, FR_))
        ev[28] = [lambda: lg.issue("w", f"ds_write_b32 v{V_CSA}, v{k.CSA} offset:2048")]
        ev[30] = [bar()]
        F1 = fix(k.ACC[1], ori[1], 1)
        if not ori[1]:
            rr = r16(V_X0)
            F1 = rr[:4] + F1 + [("min", 33)] + rr[4:]
        F1 += [GAP, GAP, GAP]
        if not ori[1]:
            F1.append(lambda: lg.wait("q"))
        F1 += epilogue(a, vm, k, kinds[1], k.ACC[1], S_O + 1)
        fl.append((F1_BEG, F1_END, F1))
        assert POLL_AT >= F1_BEG + 6 or F1_BEG > ZF1
        assert F1_BEG >= 30 and POLL_AT > F0_END + 2
        ev[POLL_AT] = ev.get(POLL_AT, []) + [lambda: poll_issue(vm)]
        def zflag():
            a(f"v_lshlrev_b32 v{V_S}, 7, v{V_LANE}")
            vm.wait("stG")
            a(f"""s_barrier
s_cmp_eq_u32 s{S_WAVE}, 0
s_cselect_b64 exec, 15, 0
buffer_store_dword v{V_C0}, v{V_S}, {ws}, s{S_CNT} offen sc1
s_mov_b64 exec, -1""")
        if FB >= 0:
            assert ZF1 < FB < 56
            ev[FB] = [zflag]
        def poll_check():
            vm.wait("pl")
            a(f"""{lab}_PR:
v_max3_u32 v{V_S}, v{PL[0]+1}, v{PL[1]+1}, v{PL[2]+1}
v_max3_u32 v{V_Q}, v{PL[3]+1}, v{PL[4]+1}, v{PL[5]+1}
v_max3_u32 v{V_S}, v{V_S}, v{V_Q}, v{PL[6]+1}
v_cmp_eq_u32 vcc, -1, v{V_S}
s_cbranch_vccnz {lab}_PW
{lab}_PX:""")
        ool += [f"""{lab}_PW:
s_sleep {PSL}
s_addk_i32 s{S_SPIN}, -1
s_cmp_lt_i32 s{S_SPIN}, 0
s_cbranch_scc1 {lab}_PX""", lambda: poll_issue(None), f"s_waitcnt vmcnt(0)\ns_branch {lab}_PR"]
        ZF = [poll_check]
        for x, y in ((0, 1), (2, 3), (4, 5), (0, 2), (4, 6), (0, 4)):
            for h in range(2):
                ZF.append(I(a, f"v_add_f32 v{PL[x]+h}, v{PL[x]+h}, v{PL[y]+h}"))
        p0, p1 = PL[0], PL[1]
        z = k.ACC[0]
        ZF += [I(a, t) for t in f"""v_mov_b32 v{p1}, v{p0}
v_mov_b32 v{p1+1}, v{p0+1}
s_nop 0
v_permlane32_swap_b32 v{p1}, v{p0}
v_permlane32_swap_b32 v{p1+1}, v{p0+1}
v_add_f32 v{p0}, v{p0}, v{p1}
v_add_f32 v{p0+1}, v{p0+1}, v{p1+1}
v_mul_f32 v{p0}, {f32(-1/896)}, v{p0}
v_mul_f32 v{p0+1}, {f32(1/896)}, v{p0+1}
v_fma_f32 v{p0+1}, -v{p0}, v{p0}, v{p0+1}
v_max_f32 v{p0+1}, 0, v{p0+1}
v_add_f32 v{p0+1}, {f32(1e-5)}, v{p0+1}
v_rsq_f32 v{p0+1}, v{p0+1}
s_nop 0
v_mul_f32 v{p0}, v{p0}, v{p0+1}""".split("\n")]
        stz = store_tile(a, vm, "G", z, S_O)
        for hf in range(2):
            ZF += [I(a, f"v_fma_f32 v{z+r}, v{z+r}, v{p0+1}, v{p0}") for r in range(8 * hf, 8 * hf + 8)]
            ZF += [I(a, f"v_cvt_pk_bf16_f32 v{z+r}, v{z+2*r}, v{z+2*r+1}") for r in range(4 * hf, 4 * hf + 4)]
            ZF.append(stz[hf])
        fl.append((ZF0, ZF1, ZF))
    else:
        fl.append((3, 27, F0))
    pos = [0] * len(fl)
    for p in range(NS):
        for f in ev.get(p, []):
            f()
        if p in (14, 28, 42):
            st.mark(7 + (p - 14) // 14)
        lg.wait(f"r{p}")
        L = nA + p // 28
        b = k.BR + 4 * (p % NBR)
        a(mf(k.ACC[L], b, A0 + 4 * (p % 28), ori[L], p % 28 == 0))
        if p + D < NS:
            for f in rd(p + D):
                f()
        for n, (s0, s1, lst) in enumerate(fl):
            if p < s0:
                continue
            left = len(lst) - pos[n]
            cnt = left if p >= s1 else (left + (s1 - p)) // (s1 - p + 1)
            while cnt > 0 and pos[n] < len(lst):
                f = lst[pos[n]]
                if isinstance(f, tuple):
                    if p < f[1]:
                        break
                    pos[n] += 1
                    continue
                pos[n] += 1
                if f is GAP:
                    break
                f()
                cnt -= 1
            if p == F0_END and lst is F0 and nl == 2:
                assert pos[n] == len(lst)
        if (p & 3) == 0:
            a(mf16(k.CSA, b, p % 28 == 0))
    for n, (s0, s1, lst) in enumerate(fl):
        assert pos[n] == len(lst), (n, pos[n], len(lst))
    st.fold()
    st.mark(10)
    def run(lst):
        for f in lst:
            if f is not GAP:
                f()
    LL = nA + nl - 1
    a(f"ds_write_b32 v{V_CSA}, v{k.CSA}")
    if G:
        if FAE:
            vm.wait("stQ", "stK", *(["stG"] if FAE > 1 else []))
        vm.q = ["st1"]
        if lab == "P1_A":
            a("P1_GT:")
            def last(part, pre=""):
                if part == 0:
                    a("s_waitcnt lgkmcnt(0)\n" + pre + "\ns_barrier")
                    lg.q = []
                    st.mark(11)
                else:
                    run(fix(k.ACC[LL], ori[LL], 0))
                    a(f"""v_rcp_f32 v{V_RI}, v{V_R}
v_mul_f32 v{V_C1}, v{V_R}, v{V_R}
v_mul_f32 v{V_C0}, {f32(GELU_C0)}, v{V_R}
v_mul_f32 v{V_C1}, v{V_C1}, v{V_R}
v_mul_f32 v{V_C1}, {f32(GELU_C1)}, v{V_C1}""")
                    return epilogue(a, vm, k, kinds[LL], k.ACC[LL], S_O + LL)
            last.store = lambda v: store_tile(a, v, "L", k.CV, S_O + LL)
            last.cv = k.CV
            hook_main(a, vm, st, last)
        else:
            st.pend = []
            a("s_branch P1_GT")
    else:
        vm.wait("wc")
        a("s_waitcnt lgkmcnt(0)\ns_barrier")
        lg.q = []
        st.mark(11)
        a(f"s_cmp_eq_u32 s{S_CH}, 0\ns_cbranch_scc0 {lab}_CH1")
        v0, l0 = vm.q[:], lg.q[:]
        run(fix(k.ACC[2], ori[2], 0))
        a("s_nop 11")
        run(epilogue(a, vm, k, kinds[2], k.ACC[2], S_O + 2))
        a(f"s_barrier\ns_branch {lab}_J")
        a(f"{lab}_CH1:")
        vm.q, lg.q = v0, l0
        for i in range(4):
            a(f"v_add_u32 v{WR+i}, {RING}, v{WR+i}")
            a(f"v_xor_b32 v{WR+i}, s{S_T3}, v{WR+i}")
        for p in range(D):
            run(rd(p))
        F = fix(k.ACC[2], ori[2], 0) + [GAP, GAP, GAP] + epilogue(a, vm, k, kinds[2], k.ACC[2], S_O + 2)
        q = 0
        for p in range(28):
            lg.wait(f"r{p}")
            b = k.BR + 4 * (p % NBR)
            a(mf(k.ACC[3], b, A0 + 4 * p, ori[3], p == 0))
            if p + D < 28:
                run(rd(p + D))
            for c in range(3):
                if q < len(F):
                    f = F[q]; q += 1
                    if f is GAP: break
                    f()
            if (p & 3) == 0:
                a(mf16(k.CSA, b, p == 0))
        assert q == len(F)
        a(f"ds_write_b32 v{V_CSA}, v{k.CSA} offset:2048\ns_waitcnt lgkmcnt(0)\ns_barrier")
        lg.q = []
        run(fix(k.ACC[3], ori[3], 1))
        a("s_nop 11")
        run(epilogue(a, vm, k, kinds[3], k.ACC[3], S_O + 3))
        a(f"{lab}_J:")
        vm.q = ["stV"]
        flag_check()
        hook_att(a, vm, st, ctl)
    for o in ool:
        if callable(o):
            o()
        else:
            a(o)

TAILQ = []
GAP = object()

def kind_start(a, vm, k, st):
    nA = k.nA
    a(f"""s_mul_i32 s{S_MR}, s{S_WAVE}, {k.WST}
v_add_u32 v{V_X1}, {8*896 - (1+nA)*1024}, v{V_X1}""")
    if nA == 1:
        a(f"""s_mul_i32 s{S_T2}, s{S_WAVE}, {8*3584}
s_lshl_b32 s{S_T3}, s{S_G}, 7
s_add_u32 s{S_L+2}, s{S_T2}, s{S_T3}
s_add_u32 s{S_L}, s{S_L+2}, {1792 - 1024}
s_add_u32 s{S_L+1}, s{S_T1}, s{S_T3}
s_mov_b32 s{S_A64}, {64*3584}
v_mul_u32_u24 v{V_DA}, 3584, v{T4}
v_add_u32 v{V_DA}, v{V_DA}, v{T4+2}
s_waitcnt lgkmcnt(0)""")
        srd(a, S_WA, P_WIN, 448 * 3584)
    else:
        a(f"""s_and_b32 s{S_T3}, s{S_G}, 1
s_lshl_b32 s{S_T3}, s{S_T3}, 9
s_add_u32 s{S_T3}, s{S_T3}, s{S_T1}
s_add_u32 s{S_L}, s{S_T3}, {1792 - 1024}
s_add_u32 s{S_L+1}, s{S_T3}, {1792 + 256 - 2048}
s_add_u32 s{S_L+2}, s{S_T3}, {1792 + 128}
s_add_u32 s{S_L+3}, s{S_T1}, {1792 + 384}
s_mov_b32 s{S_A64}, {B64}
v_mov_b32 v{V_DA}, v{V_DB}
s_waitcnt lgkmcnt(0)""")
        srd(a, S_WA, P_QKV, 448 * 2688)
        srd(a, S_WB, P_QKV, 448 * 2688)
    srd(a, S_X, P_X, 2048 * 896)
    st.mark(2)
    for j in range(k.DEPTH):
        for f in piece_dma(a, vm, k, j):
            f()
        if j == 0:
            lab = a.label("P1_T")
            strd = 3584 if nA == 1 else 2688
            if TOUCH:
                a(f"""s_and_b32 s{S_T2}, s{S_RB}, 3
s_mul_i32 s{S_T2}, s{S_T2}, 112
s_and_b32 s{S_T3}, s{S_WAVE}, 1
s_lshl_b32 s{S_T3}, s{S_T3}, 6
s_add_u32 s{S_T2}, s{S_T2}, s{S_T3}
s_lshl_b32 s{S_T3}, s{S_WAVE}, 3
s_sub_u32 s{S_T2}, s{S_T2}, s{S_T3}
s_mul_i32 s{S_T2}, s{S_T2}, {strd}
s_add_u32 s{S_T2}, s{S_T2}, s{S_L}
s_and_b32 s{S_T3}, s{S_WAVE}, {2 * (nA - 1)}
s_lshl_b32 s{S_T3}, s{S_T3}, 7
s_add_u32 s{S_T2}, s{S_T2}, s{S_T3}
s_add_u32 s{S_T2}, s{S_T2}, {(1024 - 64 * strd) & 0xffffffff}
v_mul_u32_u24 v{XR}, {strd}, v{V_LANE}
s_lshl_b32 s{S_T3}, s{S_RB}, 2
s_add_u32 s{S_T3}, s{S_T3}, s{S_PK}
s_mul_i32 s{S_T3}, s{S_T3}, {32*896}
s_lshl_b32 s{S_T1}, s{S_WAVE}, 13
s_add_u32 s{S_T3}, s{S_T3}, s{S_T1}
v_lshlrev_b32 v{XR+1}, 7, v{V_LANE}""")
            if PBAR:
                a("s_barrier")
            if TOUCH:
                a(f"""s_cmp_ge_u32 s{S_WAVE}, 4
s_cbranch_scc1 {lab}w
buffer_load_dword v{A0+96}, v{XR+1}, s[{S_X}:{S_X+3}], s{S_T3} offen
s_branch {lab}e
{lab}w:""")
                vm.issue("t0", f"""buffer_load_dword v{A0+96}, v{XR}, s[{S_WA}:{S_WA+3}], s{S_T2} offen
{lab}e:""")
    if nA == 1:
        srd(a, S_WB, P_QKV, 448 * 2688)
    if WSB:
        a(f"s_add_u32 s{P_WS}, s{P_WS}, {WSB}\ns_addc_u32 s{P_WS+1}, s{P_WS+1}, 0")
    srd(a, S_WS, P_WS, WS_SIZE)
    srd(a, S_SP, P_DBG, 256)
    a(f"""s_lshl_b32 s{S_T0}, s{S_CH}, 1
s_xor_b32 s{S_XO}, s{S_T0}, s{S_RW}
v_and_b32 v{T4}, 31, v{V_LANE}
v_lshrrev_b32 v{T4+1}, 5, v{V_LANE}
v_bfe_u32 v{T4+2}, v{V_LANE}, 1, 3
v_xor_b32 v{T4+2}, v{T4+2}, v{T4+1}
s_lshl_b32 s{S_T1}, s{S_XO}, 1
v_xor_b32 v{T4+2}, s{S_T1}, v{T4+2}
v_lshlrev_b32 v{T4+2}, 4, v{T4+2}
v_and_b32 v{T4+3}, 7, v{V_LANE}
v_lshl_add_u32 v{T4+2}, v{T4+3}, 7, v{T4+2}
v_bfe_u32 v{T4+3}, v{V_LANE}, 3, 1
v_mul_u32_u24 v{XR}, {(1+nA)*1024}, v{T4+3}
v_bfe_u32 v{T4+3}, v{V_LANE}, 4, 1
v_mul_u32_u24 v{T4+3}, {k.WST}, v{T4+3}
s_mul_i32 s{S_T1}, s{S_RW}, {2*k.WST}
s_add_u32 s{S_T1}, s{S_T1}, {RING}
v_add3_u32 v{T4+3}, v{T4+3}, v{XR}, s{S_T1}""")
    for i in range(4):
        a(f"v_xor_b32 v{XR+i}, {i << 5}, v{T4+2}")
        a(f"v_add_u32 v{XR+i}, v{T4+3}, v{XR+i}")
    a(f"""v_lshlrev_b32 v{V_KO}, 5, v{T4}
v_lshl_add_u32 v{V_KO}, v{T4+1}, 4, v{V_KO}
s_lshl_b32 s{S_T1}, s{S_CH}, 6
v_and_b32 v{T4}, 3, v{V_LANE}
v_lshlrev_b32 v{T4}, 3, v{T4}
v_and_b32 v{T4+2}, 16, v{V_LANE}
v_lshl_add_u32 v{T4}, v{T4+2}, 1, v{T4}
v_and_b32 v{T4+2}, 8, v{V_LANE}
v_lshlrev_b32 v{T4+2}, 3, v{T4+2}
v_xor_b32 v{T4+2}, s{S_T1}, v{T4+2}
v_or_b32 v{T4}, v{T4}, v{T4+2}
v_bfe_u32 v{T4+2}, v{V_LANE}, 2, 2
v_lshl_add_u32 v{T4}, v{T4+2}, 7, v{T4}
v_lshl_add_u32 v{V_T0}, v{T4+1}, 10, v{T4}
v_mul_u32_u24 v{T4+1}, {k.WST}, v{T4+1}
v_add_u32 v{T4}, v{T4}, v{T4+1}""")
    for i in range(4):
        a(f"""s_xor_b32 s{S_T2}, s{S_XO}, {i}
s_mul_i32 s{S_T2}, s{S_T2}, {2*k.WST}
s_add_u32 s{S_T2}, s{S_T2}, {RING + 1024}
v_add_u32 v{WR+i}, s{S_T2}, v{T4}""")
    a(f"""v_lshlrev_b32 v{V_L16}, 4, v{V_LANE}
v_lshlrev_b32 v{V_L8}, 3, v{V_LANE}
s_lshl_b32 s{S_T0}, s{S_CH}, 10
s_lshl_b32 s{S_T1}, s{S_RW}, 2
s_add_u32 s{S_T0}, s{S_T0}, s{S_T1}
s_add_u32 s{S_T0}, s{S_T0}, {SCR}
v_add_u32 v{V_CSA}, s{S_T0}, v{V_L16}
v_mov_b32 v{V_S}, 0
v_mov_b32 v{V_Q}, 0
v_mov_b32 v{V_R}, 0
v_mov_b32 v{V_C0}, 0
s_mov_b32 s{S_HI}, 0xf0f00f0f
s_mov_b32 s{S_HI+1}, 0xf0f00f0f
v_mov_b32 v{T4}, 0x3f803f80
v_cndmask_b32 v{SEL}, 0, v{T4}, s[{S_HI}:{S_HI+1}]
v_cndmask_b32 v{SEL+1}, 0, v{T4}, s[{S_HI}:{S_HI+1}]
v_cndmask_b32 v{SEL+2}, 0, v{T4}, s[{S_HI}:{S_HI+1}]
v_cndmask_b32 v{SEL+3}, 0, v{T4}, s[{S_HI}:{S_HI+1}]
s_mov_b32 s{S_HI}, 0
s_mov_b32 s{S_HI+1}, -1
v_mov_b32 v{XE+1}, 0
v_mov_b32 v{XE+2}, 0
v_mov_b32 v{XE+3}, 0
v_mov_b32 v{V_DUM}, 1
s_lshl_b32 s{S_MW}, s{S_WAVE}, 10
s_mov_b32 s{S_SPIN}, {E("SPIN", "0x8000")}
s_lshl_b32 s{S_T0}, s{S_RB}, 2
s_add_u32 s{S_T0}, s{S_T0}, s{S_RW}
s_mul_i32 s{S_T2}, s{S_T0}, 28672""")
    if nA == 1:
        lg2 = {1: 0, 2: 1, 4: 2}[len(PFL)]
        a(f"""; touchers: 16 per XCD ; rank = fq*2 + (i&1) if i >= 2 ; 14 + fq if i == 1 and fq < 2
s_lshr_b32 s{S_T1}, s2, 5
s_add_u32 s{S_T3}, s{S_T1}, 14
s_lshl_b32 s{S_T1}, s{S_T1}, 1
s_bfe_u32 s{S_PK}, s2, 0x10003
s_add_u32 s{S_T1}, s{S_T1}, s{S_PK}
s_and_b32 s{S_PK}, s2, 0xd8
s_cmp_eq_u32 s{S_PK}, 0x8
s_cselect_b32 s{S_PK}, s{S_T3}, 0x20000
s_bitcmp1_b32 s2, 4
s_cselect_b32 s{S_PK}, s{S_T1}, s{S_PK}
s_lshl_b32 s{S_PK}, s{S_PK}, 3
s_add_u32 s{S_PK}, s{S_PK}, s{S_WAVE}
s_min_u32 s{S_T1}, s{S_PK}, 0x8000
s_and_b32 s{S_T3}, s{S_T1}, 0xffe0
s_add_u32 s{S_T1}, s{S_T1}, s{S_T3}
s_lshl_b32 s{S_T1}, s{S_T1}, 14
v_lshrrev_b32 v{T4}, {4 + lg2 if PFROW else 4}, v{V_LANE}
v_bfe_u32 v{V_PF}, v{V_LANE}, {lg2}, {4 if PFROW else 4 - lg2}
v_lshlrev_b32 v{V_PF}, 7, v{V_PF}
v_lshl_add_u32 v{V_PF}, v{T4}, 12, v{V_PF}
v_add_u32 v{V_PF}, s{S_T1}, v{V_PF}
s_and_b32 s{S_T1}, s2, 7
s_lshl_b32 s{S_T1}, s{S_T1}, 7
s_add_u32 s{S_PK}, s{S_PK}, s{S_T1}
s_and_b32 s{S_T1}, s2, 4
s_lshl_b32 s{S_PFO}, s{S_T1}, 20
s_and_b32 s{S_T1}, s2, 2
s_lshl_b32 s{S_T1}, s{S_T1}, 18
s_add_u32 s{S_PFO}, s{S_PFO}, s{S_T1}
s_and_b32 s{S_T1}, s2, 1
s_lshl_b32 s{S_T1}, s{S_T1}, 11
s_add_u32 s{S_PFO}, s{S_PFO}, s{S_T1}
v_mov_b32 v{V_L2E}, {f32(LOG2E)}
s_lshl_b32 s{S_T3}, s{S_G}, 1
s_add_u32 s{S_T3}, s{S_T3}, s{S_CH}
s_lshl_b32 s{S_O}, s{S_T3}, 17
s_lshl_b32 s{S_T1}, s{S_T0}, 11
s_add_u32 s{S_O}, s{S_O}, s{S_T1}
; z1
s_lshl_b32 s{S_T1}, s{S_T3}, 10
s_add_u32 s{S_T1}, s{S_T1}, s{S_T2}
s_lshl_b32 s{S_O+2}, s{S_T1}, 1
s_add_u32 s{S_O+2}, s{S_O+2}, {WS_Z1}""")
        assert WS_Z2 == 0
        if k.kinds[1] == "Q":
            a(f"""s_lshl_b32 s{S_T1}, s{S_T3}, 11
s_add_u32 s{S_T1}, s{S_T1}, s{S_T2}
s_add_u32 s{S_O+1}, s{S_T1}, {WS_Q}""")
        else:
            a(f"s_add_u32 s{S_O+1}, s{S_T1}, {WS_K - 14*1024}")
        a(f"""; record: ST + st*4096 + g*256
s_lshl_b32 s{S_T0}, s{S_T0}, 4
s_add_u32 s{S_T0}, s{S_T0}, s{S_G}
s_lshl_b32 s{S_T0}, s{S_T0}, 8
s_add_u32 s{S_REC}, s{S_T0}, {WS_ST}
s_and_b32 s{S_T0}, s{S_G}, 14
s_lshr_b32 s{S_T1}, s{S_RB}, 3
s_add_u32 s{S_T0}, s{S_T0}, s{S_T1}
s_lshl_b32 s{S_T0}, s{S_T0}, 6
s_and_b32 s{S_T1}, s{S_RB}, 7
s_add_u32 s{S_T0}, s{S_T0}, s{S_T1}
s_lshl_b32 s{S_T0}, s{S_T0}, 1
s_and_b32 s{S_T1}, s{S_G}, 1
s_add_u32 s{S_T0}, s{S_T0}, s{S_T1}
s_lshl_b32 s{S_T0}, s{S_T0}, 2
s_add_u32 s{S_CNT}, s{S_T0}, {WS_FZ}""")
    else:
        a(f"""; tiles 8(g-14) + ch + 0,4,2 ; extra tile 6 + (g-14)
s_and_b32 s{S_T0}, s{S_G}, 1
s_lshl_b32 s{S_T1}, s{S_T0}, 3
s_add_u32 s{S_T1}, s{S_T1}, s{S_CH}
s_lshl_b32 s{S_T1}, s{S_T1}, 10
s_add_u32 s{S_T2}, s{S_T2}, {WS_V}
s_add_u32 s{S_O}, s{S_T1}, s{S_T2}
s_add_u32 s{S_O+1}, s{S_O}, 4096
s_add_u32 s{S_O+2}, s{S_O}, 2048
s_lshl_b32 s{S_T1}, s{S_T0}, 10
s_add_u32 s{S_T1}, s{S_T1}, s{S_T2}
s_add_u32 s{S_O+3}, s{S_T1}, 6144
s_lshl_b32 s{S_CNT}, s{S_RB}, 2
s_add_u32 s{S_CNT}, s{S_CNT}, s{S_T0}
s_lshl_b32 s{S_CNT}, s{S_CNT}, 2
s_lshl_b32 s{S_T1}, s{S_RB}, 1
s_add_u32 s{S_T1}, s{S_T1}, s{S_T0}
s_lshl_b32 s{S_T1}, s{S_T1}, 3
s_add_u32 s{S_T1}, s{S_T1}, s{S_WAVE}
s_lshl_b32 s{S_T2}, s{S_T1}, 8
s_add_u32 s{S_T2}, s{S_T2}, {WS_FL}
s_lshl_b32 s{S_T1}, s{S_T1}, 10
s_add_u32 s{S_REC}, s{S_T1}, {WS_ST}
s_xor_b32 s{S_T0}, s{S_T0}, 1
s_lshl_b32 s{S_T3}, s{S_T0}, 6
v_mov_b32 v{T4}, -1
v_mov_b32 v{T4+1}, -1
v_mov_b32 v{T4+2}, -1
v_mov_b32 v{T4+3}, -1
v_lshlrev_b32 v{V_L2E}, 2, v{V_LANE}
v_lshrrev_b32 v{V_PF}, 2, v{V_LANE}
v_lshlrev_b32 v{V_PF}, 5, v{V_PF}
v_and_or_b32 v{V_PF}, v{V_LANE}, 3, v{V_PF}
v_lshlrev_b32 v{V_PF}, 7, v{V_PF}
s_and_b32 s{S_T0}, s2, 6
s_lshl_b32 s{S_T0}, s{S_T0}, 4
s_and_b32 s{S_T1}, s2, 24
s_add_u32 s{S_T0}, s{S_T0}, s{S_T1}
s_add_u32 s{S_T0}, s{S_T0}, s{S_WAVE}
s_lshl_b32 s{S_T0}, s{S_T0}, 5
s_and_b32 s{S_T1}, s2, 1
s_add_u32 s{S_T0}, s{S_T0}, s{S_T1}
s_lshl_b32 s{S_PFO}, s{S_T0}, 11""")
        vm.issue("clr", f"buffer_store_dwordx4 v[{T4}:{T4+3}], v{V_L16}, s[{S_WS}:{S_WS+3}], s{S_REC} offen sc1")
        vm.issue("clr", f"buffer_store_dword v{XE+1}, v{V_L2E}, s[{S_WS}:{S_WS+3}], s{S_T2} offen sc1")
        a(f"s_lshl_b32 s{S_T2}, s{S_T2}, 1\ns_add_u32 s{S_T2}, s{S_T2}, {(WS_XB - 2 * WS_FL) & 0xffffffff}")
        vm.issue("clr", f"buffer_store_dwordx2 v[{T4}:{T4+1}], v{V_L8}, s[{S_WS}:{S_WS+3}], s{S_T2} offen sc1")
    a(f"""; own flags: FL + rb*2048 + g*4
s_lshl_b32 s{S_FL}, s{S_RB}, 9
s_add_u32 s{S_FL}, s{S_FL}, s{S_G}
s_lshl_b32 s{S_FL}, s{S_FL}, 2
s_add_u32 s{S_FL}, s{S_FL}, {WS_FL}""")

PBAR = int(E('P1_PBAR', '1'))
def gen_p1(a, name, st, hook_main, hook_att):
    kernel_begin(a, name)
    a(f"""s_cmp_ge_u32 s2, 256
s_cbranch_scc1 K_EXIT
s_load_dwordx16 s[64:79], s[0:1], 0
s_load_dwordx4 s[56:59], s[0:1], 72
s_load_dwordx2 s[60:61], s[0:1], 64""")
    st.mark(0, True)
    st.mark(1)
    st.init()
    a(f"""v_and_b32 v{V_LANE}, 63, v0
v_lshrrev_b32 v{V_T0}, 6, v0
s_lshr_b32 s{S_G}, s2, 5
v_readfirstlane_b32 s{S_WAVE}, v{V_T0}
s_lshl_b32 s{S_G}, s{S_G}, 1
s_and_b32 s{S_T0}, s2, 1
s_add_u32 s{S_G}, s{S_G}, s{S_T0}
s_and_b32 s{S_T0}, s2, 4
s_bfe_u32 s{S_T1}, s2, 0x20003
s_add_u32 s{S_RB}, s{S_T0}, s{S_T1}
s_lshl_b32 s{S_RB}, s{S_RB}, 1
s_bfe_u32 s{S_T0}, s2, 0x10001
s_add_u32 s{S_RB}, s{S_RB}, s{S_T0}
s_and_b32 s{S_RW}, s{S_WAVE}, 3
s_lshr_b32 s{S_CH}, s{S_WAVE}, 2
s_lshl_b32 s{S_T0}, s{S_RB}, 3
s_add_u32 s{S_T0}, s{S_T0}, s{S_WAVE}
s_mul_i32 s{S_XB}, s{S_T0}, {16*896}
s_mul_i32 s{S_T1}, s{S_WAVE}, {8*2688}
v_lshrrev_b32 v{T4}, 3, v{V_LANE}
v_and_b32 v{T4+1}, 7, v{V_LANE}
v_lshrrev_b32 v{T4+2}, 4, v{V_LANE}
v_xor_b32 v{T4+2}, v{T4+2}, v{T4+1}
v_mul_u32_u24 v{V_X0}, 896, v{T4}
v_xor_b32 v{T4+3}, 4, v{T4+2}
v_lshl_add_u32 v{V_X1}, v{T4+3}, 4, v{V_X0}
v_lshl_add_u32 v{V_X0}, v{T4+2}, 4, v{V_X0}
v_lshlrev_b32 v{T4+2}, 1, v{T4}
v_and_b32 v{T4+2}, 4, v{T4+2}
v_xor_b32 v{T4+2}, v{T4+2}, v{T4+1}
v_lshlrev_b32 v{T4+2}, 4, v{T4+2}
v_mul_u32_u24 v{V_DB}, 2688, v{T4}
v_add_u32 v{V_DB}, v{V_DB}, v{T4+2}
s_cmp_ge_u32 s{S_G}, 14
s_cbranch_scc1 P1_KC
s_cmp_ge_u32 s{S_G}, 7
s_cbranch_scc1 P1_KB""")
    for lab, kinds in (("P1_A", "GQL"), ("P1_B", "GKL"), ("P1_C", "VVVV")):
        a(f"{lab.replace('_', '_K')}:")
        k = K(kinds)
        vm = VM(a)
        s2 = st.copy()
        kind_start(a, vm, k, s2)
        kind_body(a, vm, k, s2, lab, hook_main, hook_att)
```

```python
from common import *
import os
import f1
from f1 import LG, I, S_WS, S_WAVE, S_RW, S_CH, S_T0, S_T1, S_T2, S_T3, S_SPIN, S_FL, V_LANE, V_L16, V_L8, V_KO, XE
from f1 import P_X, P_WO, P_BSP, P_WOUT, P_OUT, S_CNT, V_S
E = os.environ.get
Z1S = int(E("P2_Z1S", "1"))
Z1D = int(E("P2_Z1D", "1"))
Z1B = int(E("P2_Z1B", "6"))
N0 = int(E("P2_N0", "8"))
LA = int(E("P2_LA", "3"))
NC = int(E("P2_NC", "2"))
LEP = int(E("P2_LEP", "1"))
CEP = int(E("P2_CEP", "24"))
TB = int(E("P2_TB", "0"))
ZP0 = int(E("P2_ZP0", "57"))
BST = int(E("P2_BST", "7"))
LEAD = int(E("P2_LEAD", "12"))
GTAIL = int(E("P2_GT", "2"))
AHEAD = int(E("P3_AHEAD", "6"))
BS = [int(x) for x in E("P2_BS", "13,13,14,15,16,17,17").split(",")]
EB = int(E("P2_EB", "15"))
ATOUCH = int(E("A_TOUCH", "1"))
NT2 = [" nt" if c == "1" else "" for c in E("P2_NT", "0000")]
PT = [int(x) for x in E("P2_PT", "-9,-9,-9,-9").split(",")]
ZSL, ASL, HSL = [int(x) for x in E("SLP", "2,4,1").split(",")]
SF = " sc1"
AH0 = int(E("P3_AH0", "2"))
XAT = int(E("P3_XAT", "10"))
NTA = " nt" if int(E("A_NT", "0")) else ""
OPOLL = int(E("P3_OPOLL", "4"))
PRIO = int(E("P2_PRIO", "2"))
STM = int(E("STM", "0"))
ROT2 = int(E("P2_ROT", "0"))
ROT3 = int(E("P3_ROT", "0"))
S_U, S_UZ, S_UW, S_FZB, S_BR = 62, 63, 45, 52, 51
SEQ = [13, 9, 10, 11, 12, 1, 2, 3, 4, 5, 6, 7, 8, 0]
NST = 16
SLOT = [0, 131072, 65536, 98304]
HB = 57344
S_SP, S_X = 12, 12
S_OUT, S_WO, S_W2, S_B = 4, 16, 20, 20
S_TT, S_FQ, S_KH, S_ZB, S_AB, S_MW, S_O, S_C1, S_M = 28, 29, 37, 38, 39, 40, 41, 42, 43
assert S_TT == f1.S_RB
S_M2 = 44
ZL = 32768
S_M64, S_A, S_XO = 46, 47, 48
ws = f"s[{S_WS}:{S_WS+3}]"
ACC3, AFR, BFR, EFR, XV, TR, V_XO, V_W = 16, 48, 192, 216, 224, 244, 250, 251

def spoll(a, lab, loads, regs, ool, sleep=0):
    a(f"{lab}_R:")
    a(loads)
    a("s_waitcnt lgkmcnt(0)")
    for r in regs[1:]:
        a(f"s_and_b64 s[{regs[0]}:{regs[0]+1}], s[{regs[0]}:{regs[0]+1}], s[{r}:{r+1}]")
    a(f"""s_and_b32 s{regs[0]}, s{regs[0]}, s{regs[0]+1}
s_cbranch_scc1 {lab}_X
{f"s_sleep {sleep}" if sleep else ""}
s_addk_i32 s{S_SPIN}, -1
s_cmp_lt_i32 s{S_SPIN}, 0
s_cbranch_scc0 {lab}_R
{lab}_X:""")

def p3_tr_setup(a, T):
    a(f"""v_bfe_u32 v{T}, v{V_LANE}, 2, 2
v_lshrrev_b32 v{T+1}, 5, v{V_LANE}
v_lshl_add_u32 v{T}, v{T+1}, 2, v{T}
v_lshlrev_b32 v{TR}, 7, v{T}
v_and_b32 v{T}, 3, v{V_LANE}
v_lshl_add_u32 v{TR}, v{T}, 3, v{TR}
v_and_b32 v{T}, 16, v{V_LANE}
v_lshl_add_u32 v{TR}, v{T}, 1, v{TR}
v_and_b32 v{T}, 8, v{V_LANE}
v_lshl_add_u32 v{TR}, v{T}, 3, v{TR}
s_lshl_b32 s{S_T0}, s{S_RW}, 5
v_xor_b32 v{TR}, s{S_T0}, v{TR}
s_lshl_b32 s{S_T0}, s{S_RW}, 11
s_add_u32 s{S_T0}, s{S_T0}, {HB}
v_add_u32 v{TR+2}, s{S_T0}, v{TR}
s_mul_i32 s{S_T0}, s{S_RW}, 14336
v_add_u32 v{TR}, s{S_T0}, v{TR}
v_xor_b32 v{TR+1}, 64, v{TR}
v_xor_b32 v{TR+3}, 64, v{TR+2}
v_add_u32 v{TR+4}, 0x10000, v{TR+2}
v_add_u32 v{TR+5}, 0x10000, v{TR+3}""")

def b_reads(kind, i, dst):
    if kind == "o":
        r, off = TR, (28 * (i >> 1) + 16 * (i & 1)) * 128
    else:
        r, off = (TR + 2, i * 8192) if i < 8 else (TR + 4, i * 8192 - 65536)
    return [f"ds_read_b64_tr_b16 v[{dst+4*ni+2*h}:{dst+4*ni+2*h+1}], v{r+ni} offset:{off + 1024*h}" for ni in range(2) for h in range(2)]

def p3_setup(a):
    srd(a, S_X, P_X, 2048 * 896)
    srd(a, S_OUT, P_OUT, 2048 * 896)
    a(f"""; tt32 = 2*m64 + ch
s_lshl_b32 s{S_T0}, s{S_M64}, 1
s_add_u32 s{S_T0}, s{S_T0}, s{S_CH}
s_mul_i32 s{S_XO}, s{S_T0}, {32*896}
s_lshl_b32 s{S_T1}, s{S_FQ}, 2
s_add_u32 s{S_T1}, s{S_T1}, s{S_RW}
s_lshl_b32 s{S_T1}, s{S_T1}, 5
s_add_u32 s{S_XO}, s{S_XO}, s{S_T1}
s_mul_i32 s{S_T0}, s{S_T0}, {144*1024}
s_add_u32 s{S_T0}, s{S_T0}, {WS_AF}
s_and_b32 s{S_T1}, s{S_M64}, {3 if ROT3 else 0}
s_add_u32 s{S_T1}, s{S_T1}, s{S_RW}
s_and_b32 s{S_T1}, s{S_T1}, 3
s_lshl_b32 s{S_T1}, s{S_T1}, 13
s_add_u32 s{S_A}, s{S_T0}, s{S_T1}
s_mul_i32 s{S_T1}, s{S_RW}, {14*1024}
s_add_u32 s{S_O}, s{S_T0}, s{S_T1}
s_add_u32 s{S_O}, s{S_O}, {32*1024}
v_and_b32 v{V_XO}, 31, v{V_LANE}
v_mul_u32_u24 v{V_XO}, 896, v{V_XO}
v_lshrrev_b32 v{V_W}, 5, v{V_LANE}
v_lshl_add_u32 v{V_XO}, v{V_W}, 4, v{V_XO}
v_add_u32 v{V_W}, {56*1024}, v{V_L16}""")

def loader(a, vm, st, last, ool):
    VD, VZ, VP, VB = 2, 6, 10, 11
    T0, T2 = 12, 13
    zok = set()
    ids(a)
    a(f"""s_lshl_b32 s{S_T0}, s{S_FQ}, 1
s_add_u32 s{S_T0}, s{S_T0}, s{S_KH}
s_lshl_b32 s{S_T0}, s{S_T0}, 2
s_bfe_u32 s{S_T1}, s2, 0x20001
s_add_u32 s{S_T0}, s{S_T0}, s{S_T1}
s_lshl_b32 s{S_T0}, s{S_T0}, 7
s_add_u32 s{S_FZB}, s{S_T0}, {WS_FZ}
s_xor_b32 s{S_U}, s{S_M64}, s{S_FQ}
s_and_b32 s{S_U}, s{S_U}, {ROT2 & 1}
s_lshl_b32 s{S_T0}, s{S_U}, 3
s_add_u32 s{S_O}, s{S_T0}, s{S_FZB}
s_mov_b64 s[72:73], -1""")
    a(f"s_mov_b32 s{S_UW}, s{S_U}")
    def unit(j, r):
        if j == 1:
            a(f"s_xor_b32 s{r}, s{r}, 1")
        elif j == 2:
            if ROT2:
                a(f"""s_and_b32 s{S_T0}, s{S_M64}, 1
s_mul_i32 s{r}, s{S_T0}, 3
s_and_b32 s{S_T0}, s{S_M64}, 2
s_add_u32 s{r}, s{r}, s{S_T0}
s_add_u32 s{r}, s{r}, s{S_FQ}
s_add_u32 s{r}, s{r}, 2
s_cmp_ge_u32 s{r}, 8
s_cselect_b32 s{S_T0}, 6, 0
s_sub_u32 s{r}, s{r}, s{S_T0}""")
            else:
                a(f"s_mov_b32 s{r}, 2")
        else:
            a(f"""s_add_u32 s{r}, s{r}, 1
s_cmp_eq_u32 s{r}, 8
s_cselect_b32 s{r}, 2, s{r}""")
    zpoll = f"s_buffer_load_dwordx2 s[72:73], {ws}, s{S_O} glc"
    def zask(j):
        if j:
            unit(j, S_U)
            a(f"s_lshl_b32 s{S_T0}, s{S_U}, 3\ns_add_u32 s{S_O}, s{S_T0}, s{S_FZB}")
        a(f"""s_cmp_lg_u32 s{S_RW}, 0
s_cbranch_scc1 L_Z{j}_A
{zpoll}
L_Z{j}_A:""")
    zp0 = f"s_buffer_load_dwordx4 s[72:75], {ws}, s{S_FZB} glc"
    a(zp0)
    a(f"""; z2 base: (4fq + 2(lw&1)) << 17 + (kh*32 + (lw>>1)) << 11
s_lshr_b32 s{S_T1}, s{S_RW}, 1
s_lshl_b32 s{S_T3}, s{S_KH}, 5
s_add_u32 s{S_T3}, s{S_T3}, s{S_T1}
s_lshl_b32 s{S_ZB}, s{S_T3}, 11
s_lshl_b32 s{S_T3}, s{S_FQ}, 1
s_and_b32 s{S_T1}, s{S_RW}, 1
s_add_u32 s{S_T3}, s{S_T3}, s{S_T1}
s_lshl_b32 s{S_T3}, s{S_T3}, 18
s_add_u32 s{S_ZB}, s{S_ZB}, s{S_T3}
v_lshrrev_b32 v{T0}, 3, v{V_LANE}
v_and_b32 v{VD+1}, 7, v{V_LANE}
v_lshrrev_b32 v{T2}, 4, v{V_LANE}
v_xor_b32 v{T2}, v{T2}, v{VD+1}
v_lshlrev_b32 v{VZ}, 12, v{T0}
v_lshl_add_u32 v{VD}, v{T2}, 4, v{VZ}
v_lshlrev_b32 v{T2}, 1, v{T0}
v_and_b32 v{T2}, 4, v{T2}
v_xor_b32 v{T2}, v{T2}, v{VD+1}
v_xor_b32 v{VD+1}, 64, v{VD}
v_add_u32 v{VD+1}, {8*4096 - 1024}, v{VD+1}
v_add_u32 v{VD+2}, {16*4096 - 2048}, v{VD}
v_add_u32 v{VD+3}, {16*4096 - 2048}, v{VD+1}
s_lshl_b32 s{S_AB}, s{S_TT}, 2
s_add_u32 s{S_AB}, s{S_AB}, s{S_RW}
s_lshl_b32 s{S_AB}, s{S_AB}, 17
s_lshl_b32 s{S_T2}, s{S_KH}, 11
s_add_u32 s{S_AB}, s{S_AB}, s{S_T2}
s_lshl_b32 s{S_MW}, s{S_RW}, 12""")
    a(f"s_mov_b32 s{S_UZ}, s{S_UW}")
    def zload(n):
        assert n // 2 in zok
        if n and n % 2 == 0:
            unit(n // 2, S_UZ)
        a(f"s_add_u32 m0, s{S_MW}, {SLOT[n & 3]}")
        a(f"s_lshl_b32 s{S_T2}, s{S_UZ}, 13\ns_add_u32 s{S_T2}, s{S_T2}, s{S_ZB}")
        if n & 1:
            a(f"s_add_u32 s{S_T2}, s{S_T2}, 4096")
        for q in range(4):
            vm.issue(f"s{n}", f"buffer_load_dwordx4 v{VZ+q}, {ws}, s{S_T2} offen offset:{q*1024}{NT2[1]} lds")
    def wload(n):
        if n and n % 2 == 0:
            unit(n // 2, S_UW)
        a(f"s_add_u32 m0, s{S_MW}, {SLOT[n & 3] + 16384}")
        a(f"s_lshl_b32 s{S_T3}, s{S_UW}, 8\ns_add_u32 s{S_T3}, s{S_T3}, s{S_AB}")
        if n & 1:
            a(f"s_add_u32 s{S_T3}, s{S_T3}, 128")
        for q in range(4):
            vm.issue(f"s{n}", f"buffer_load_dwordx4 v{VD+q}, s[{S_SP}:{S_SP+3}], s{S_T3} offen offset:{q*1024}{NT2[0]} lds")
    def bdma(tag, sr, lds, mw, grow, gmul, n):
        a(f"""s_mul_i32 s{S_T2}, s{S_RW}, {gmul // 8}
s_and_b32 s{S_T3}, s{S_M64}, {3 if ROT3 else 0}
s_mul_i32 s{S_T3}, s{S_T3}, 14
s_add_u32 s{S_T2}, s{S_T2}, s{S_T3}
s_add_u32 s{S_T2}, s{S_T2}, {grow // 8}
s_cmp_ge_u32 s{S_T2}, 56
s_cselect_b32 s{S_T3}, 56, 0
s_sub_u32 s{S_T2}, s{S_T2}, s{S_T3}
s_mul_i32 s{S_T3}, s{S_RW}, {mw}""")
        for k in range(n):
            if k:
                a(f"""s_add_u32 s{S_T2}, s{S_T2}, 1
s_cmp_eq_u32 s{S_T2}, 56
s_cselect_b32 s{S_T2}, 0, s{S_T2}""")
            a(f"s_add_u32 m0, s{S_T3}, {lds + k * 1024}")
            a(f"s_mul_i32 s{S_T1}, s{S_T2}, 7168")
            vm.issue(tag, f"buffer_load_dwordx4 v{VB}, s[{sr}:{sr+3}], s{S_T1} offen{NT2[2]} lds")
    def hblocks(tag, bs, at=None):
        a(f"""s_mul_i32 s{S_T2}, s{S_RW}, {224 * 896}
s_lshl_b32 s{S_T3}, s{S_RW}, 11""")
        for b in bs:
            a(f"""s_add_u32 s{S_T1}, s{S_BR}, {SEQ.index(b)}
s_cmp_ge_u32 s{S_T1}, 14
s_cselect_b32 s{S_T0}, 14, 0
s_sub_u32 s{S_T1}, s{S_T1}, s{S_T0}
s_mul_i32 s{S_T1}, s{S_T1}, {16 * 896}
s_add_u32 m0, s{S_T3}, {HB + (b if at is None else at) * 8192}
s_add_u32 s{S_T1}, s{S_T1}, s{S_T2}""")
            for k in range(2):
                if k:
                    a(f"s_add_u32 s{S_T1}, s{S_T1}, {8 * 896 - 1024}")
                vm.issue(tag, f"buffer_load_dwordx4 v{VB}, s[{S_W2}:{S_W2+3}], s{S_T1} offen offset:{k * 1024}{NT2[2]} lds")
    wload(0)
    wload(1)
    a(f"""v_and_b32 v{VZ}, 4, v{T0}
v_xor_b32 v{VZ}, v{VZ}, v{V_LANE}
v_lshlrev_b32 v{VZ}, 4, v{VZ}
v_xor_b32 v{VZ+1}, 128, v{VZ}
v_add_u32 v{VZ+2}, {(1 << 17) - 2048}, v{VZ}
v_add_u32 v{VZ+3}, {(1 << 17) - 2048}, v{VZ+1}""")
    def pcheck(lab, r, poll, sl):
        a(f"""s_waitcnt lgkmcnt(0)
s_and_b32 s{r}, s{r}, s{r+1}
s_cbranch_scc0 {lab}_W
{lab}_X:""")
        ool.append(f"""{lab}_W:
s_sleep {sl}
{poll}
s_waitcnt lgkmcnt(0)
s_and_b32 s{r}, s{r}, s{r+1}
s_cbranch_scc1 {lab}_X
s_addk_i32 s{S_SPIN}, -1
s_cmp_lt_i32 s{S_SPIN}, 0
s_cbranch_scc0 {lab}_W
s_branch {lab}_X""")
    def zcheck(j):
        pcheck(f"L_Z{j}", 72, zpoll, ZSL)
    S_DN = 54
    a(f"s_mov_b32 s{S_DN}, 0")
    last(0)
    zok.update((0, 1))
    st.mark(12)
    q0 = list(vm.q)
    def ztry(i, fin=False):
        vm.q = list(q0)
        if i:
            a(f"s_cmp_lg_u32 s{S_DN}, 0\ns_cbranch_scc1 L_T{i}_X")
        a(f"""L_T{i}_R:
s_waitcnt lgkmcnt(0)
s_and_b64 s[72:73], s[72:73], s[74:75]
s_and_b32 s{S_DN}, s72, s73
s_cbranch_scc0 L_T{i}_{"W" if fin else "X"}
L_T{i}_G:""")
        zload(0)
        zload(1)
        wload(2)
        if NC < 0:
            zload(2)
        a(f"L_T{i}_X:")
        if fin:
            ool.append(f"""L_T{i}_W:
s_sleep {ZSL}
{zp0}
s_addk_i32 s{S_SPIN}, -1
s_cmp_lt_i32 s{S_SPIN}, 0
s_cbranch_scc0 L_T{i}_R
s_waitcnt lgkmcnt(0)
s_branch L_T{i}_G""")
    def reask(i):
        a(f"s_cmp_lg_u32 s{S_DN}, 0\ns_cbranch_scc1 L_T{i}_A\n{zp0}\nL_T{i}_A:")
    assert LA == 3
    ztry(0)
    ep = last(1)
    reask(1)
    ep = f1.spread(LEP + 1, ep)
    a("s_nop 7")
    for f in ep[0]:
        f()
    ztry(1, True)
    a(f"s_mov_b64 s[72:73], -1\ns_xor_b32 s{S_U}, s{S_U}, 1")
    st.mark(13)
    a(f"""v_mul_u32_u24 v{VB}, 896, v{T0}
v_lshl_add_u32 v{VB}, v{T2}, 4, v{VB}
s_lshl_b32 s{S_T0}, s{S_FQ}, 7
v_add_u32 v{VB}, s{S_T0}, v{VB}""")
    a(f"""; z1 flags: FL + tt*2048 + 1024 + fq*8
s_lshl_b32 s{S_C1}, s{S_TT}, 8
s_add_u32 s{S_C1}, s{S_C1}, s{S_FQ}
s_lshl_b32 s{S_C1}, s{S_C1}, 3
s_add_u32 s{S_C1}, s{S_C1}, {WS_FL + 1024}
s_mov_b64 s[70:71], -1""")
    p3_tr_setup(a, T0)
    ypoll = f"s_buffer_load_dwordx2 s[70:71], {ws}, s{S_C1} glc"
    zs = [[n + 2] if (n < NC or LA == 2) else [n + 2, n + 3] if n == NC else [n + 3] for n in range(NST)]
    zs = [[x for x in l if x < NST] for l in zs]
    need = [max([x // 2 for x in l], default=0) for l in zs]
    asked = 1
    post = []
    def bact(n):
        for nm, (lo, at, f) in BA.items():
            assert at >= lo, nm
            if at == n:
                f()
    BA = {"E": (-1, BS[0], lambda: hblocks("E", [13], 0)),
          "b9": (14, BS[3], lambda: hblocks("hb", [9, 10, 11, 12])),
          "b1": (15, BS[4], lambda: hblocks("hb", [1, 2, 3, 4])),
          "b5": (16, BS[6], lambda: hblocks("hb", [5, 6, 7, 8])),
          "b0": (EB + 1, BS[5], lambda: hblocks("hb", [0])),
          "woH": (-1, BS[1], lambda: bdma("wo", S_WO, 32768, 6144, 256, 48, 6)),
          "woL": (13, BS[2], lambda: bdma("wo", S_WO, 0, 8192, 0, 64, 8))}
    assert BS[0] < EB and max(BS[1:3]) < 16 and BS[1] > Z1B
    bact(-1)
    for n in range(NST):
        if STM and n < 9:
            st.mark(27 + 3 * n)
        if need[n] not in zok:
            assert asked == need[n]
            zcheck(need[n])
            zok.add(need[n])
        if n == N0:
            pcheck("L_Y1", 70, ypoll, HSL)
        if STM and n < 9:
            st.fold()
            st.mark(28 + 3 * n)
        vm.wait(f"s{n}", *(["E"] if n == EB else ["stL"] if n == Z1B else []))
        if STM and n < 9:
            st.mark(29 + 3 * n)
        if n in (0, 4, 8, 12):
            st.mark(14 + n // 4)
        if n in (EB + 1, Z1B):
            a("s_waitcnt lgkmcnt(0)")
        a("s_barrier")
        if n + 1 < NST and need[n + 1] not in zok:
            asked = need[n + 1]
            zask(asked)
        if n + 1 == N0:
            a(f"s_cmp_lg_u32 s{S_RW}, 0\ns_cbranch_scc1 L_Y1_A\n{ypoll}\nL_Y1_A:")
        for x in zs[n]:
            zload(x)
        if n + LA < NST:
            wload(n + LA)
        if n in (Z1S, Z1S + 2 * Z1D):
            for f in last.store(vm)[(n - Z1S) // max(1, 2 * Z1D):][:2 - min(1, Z1D)]:
                f()
        if n < LEP:
            assert n < Z1S
            for f in ep[n + 1]:
                f()
        if n == Z1S:
            a(f"v_add_u32 v{T0}, s{S_MW}, v{V_L16}")
            for q in range(2):
                a(f"ds_write_b128 v{T0}, v[{last.cv+4*q}:{last.cv+4*q+3}] offset:{ZL + q*1024}")
        if n == EB:
            for t in b_reads("h", 0, EFR):
                a(t)
        bact(n)
    st.fold()
    p3_setup(a)
    vm.wait("wo")
    a(f"""s_cmp_lg_u32 s{S_RW}, 0
s_cbranch_scc1 L_O_X
s_lshl_b32 s{S_T0}, s{S_M64}, 7
s_add_u32 s{S_T0}, s{S_T0}, {WS_F3}""")
    spoll(a, "L_O", f"s_buffer_load_dwordx16 s[64:79], {ws}, s{S_T0} glc", list(range(64, 80, 2)), ool, HSL)
    a("s_waitcnt lgkmcnt(0)")
    st.mark(18)
    a("s_barrier")
    o_loads(a)
    o_reads(a)
    n0 = len(vm.q)
    bact(16)
    st.mark(19)
    o_part(a, len(vm.q) - n0)
    st.mark(20)
    bact(17)
    st.mark(21)
    a("s_branch P3_GO")

OB = AFR + 32
def o_reads(a):
    for i in range(8):
        for t in b_reads("o", i, OB + 8 * i):
            a(t)
def o_part(a, after):
    a("s_waitcnt lgkmcnt(0)")
    for i in range(8):
        a(f"s_waitcnt vmcnt({7 - i + after})")
        for ni in range(2):
            c, bf, x = ACC3 + 16 * ni, OB + 8 * i, AFR + 4 * i
            a(f"v_mfma_f32_32x32x16_bf16 v[{c}:{c+15}], v[{bf+4*ni}:{bf+4*ni+3}], v[{x}:{x+3}], " + ("0" if i == 0 else f"v[{c}:{c+15}]"))
def o_loads(a):
    for i in range(8):
        if i == 4:
            a(f"s_add_u32 s{S_A}, s{S_A}, 4096")
        a(f"buffer_load_dwordx4 v[{AFR+4*i}:{AFR+4*i+3}], v{V_L16}, {ws}, s{S_A} offen offset:{(i & 3) * 1024}")

def compute(a, vm, st, last, ool):
    lg = LG(a)
    AD = [2, 128, 8, 8]
    AO = [0, 0, 0, 32768]
    V_C0 = 15
    ACC, FR, GZ, TP, BF, ONE = 16, 80, 144, 136, 232, 240
    T1, T2 = TP, TP + 1
    def wflag(n, vo, so, off=0):
        a(f"""s_cmp_eq_u32 s{S_RW}, 0
s_cselect_b64 exec, {(1 << n) - 1}, 0
buffer_store_dword v0, v{vo}, {ws}, s{so} offen offset:{off} sc1
s_mov_b64 exec, -1""")
    a(f"v_mov_b32 v0, 1")
    a(f"v_lshlrev_b32 v2, 7, v{V_LANE}")
    last(0)
    if f1.FAE > 1:
        wflag(4, 2, S_CNT)
    if f1.FAE:
        wflag(8, 2, S_FL)
    ep = last(1)
    st.mark(12)
    ids(a)
    AR, BRD = 2, 4
    a(f"""v_and_b32 v{T1}, 31, v{V_LANE}
v_lshrrev_b32 v{T2}, 5, v{V_LANE}
v_bfe_u32 v{AR}, v{V_LANE}, 1, 3
v_xor_b32 v{AR}, v{AR}, v{T2}
v_lshlrev_b32 v{AR}, 4, v{AR}
v_lshl_add_u32 v{AR}, v{T1}, 7, v{AR}
s_lshr_b32 s{S_T1}, s{S_RW}, 1
s_lshl_b32 s{S_T3}, s{S_T1}, 13
s_add_u32 s{S_T3}, s{S_T3}, 16384
v_add_u32 v{BRD}, s{S_T3}, v{AR}""")
    for k in range(1, 4):
        a(f"v_xor_b32 v{BRD+k}, {k << 5}, v{BRD}")
    a(f"""v_lshlrev_b32 v{BF+1}, 1, v{T1}
v_bfe_u32 v{AR}, v{V_LANE}, 4, 1
v_lshlrev_b32 v{AR}, 1, v{AR}
v_and_b32 v{T1}, 1, v{V_LANE}
v_add_u32 v{AR}, v{AR}, v{T1}
v_mul_u32_u24 v{AR}, 576, v{AR}
v_lshlrev_b32 v{T2}, 7, v{T2}
v_xor_b32 v{AR}, v{AR}, v{T2}
v_bfe_u32 v{T1}, v{V_LANE}, 2, 2
v_lshl_add_u32 v{AR}, v{T1}, 4, v{AR}
v_bfe_u32 v{T1}, v{V_LANE}, 1, 1
v_lshl_add_u32 v{AR}, v{T1}, 3, v{AR}
s_and_b32 s{S_T0}, s{S_RW}, 1
s_lshl_b32 s{S_T3}, s{S_T0}, 12
v_add_u32 v{AR}, s{S_T3}, v{AR}
v_xor_b32 v{AR+1}, 64, v{AR}
s_lshl_b32 s{S_T2}, s{S_TT}, 1
s_add_u32 s{S_T2}, s{S_T2}, s{S_T1}
s_lshl_b32 s{S_AB}, s{S_T2}, 7
s_lshl_b32 s{S_T3}, s{S_FQ}, 1
s_add_u32 s{S_T3}, s{S_T3}, s{S_T0}
s_lshl_b32 s{S_T3}, s{S_T3}, 12
s_mul_i32 s{S_ZB}, s{S_T2}, {2*28*2048}
s_add_u32 s{S_ZB}, s{S_ZB}, s{S_T3}
s_add_u32 s{S_ZB}, s{S_ZB}, {WS_Z1}
s_add_u32 s{S_C1}, s{S_ZB}, {28*2048}
s_mul_i32 s{S_O}, s{S_T2}, {2*144*1024}
s_add_u32 s{S_O}, s{S_O}, s{S_T3}
s_mul_i32 s{S_T3}, s{S_KH}, {56*1024}
s_add_u32 s{S_O}, s{S_O}, s{S_T3}
s_add_u32 s{S_O}, s{S_O}, {WS_AF + 32*1024}
s_lshl_b32 s{S_MW}, s{S_T2}, 2
s_lshr_b32 s{S_T3}, s{S_FQ}, 1
s_add_u32 s{S_MW}, s{S_MW}, s{S_T3}
s_lshl_b32 s{S_MW}, s{S_MW}, 3
s_and_b32 s{S_T3}, s{S_FQ}, 1
s_add_u32 s{S_MW}, s{S_MW}, s{S_T3}
s_lshl_b32 s{S_MW}, s{S_MW}, 1
s_add_u32 s{S_MW}, s{S_MW}, s{S_KH}
s_lshl_b32 s{S_MW}, s{S_MW}, 1
s_add_u32 s{S_MW}, s{S_MW}, s{S_T0}
s_lshl_b32 s{S_MW}, s{S_MW}, 2
s_add_u32 s{S_MW}, s{S_MW}, {WS_F2}
s_cmp_eq_u32 s{S_KH}, 0
s_cselect_b32 s{S_M2}, -1, 0
s_mov_b32 s{S_M2+1}, 0
s_cmp_lg_u32 s{S_KH}, s{S_T0}
s_cselect_b64 vcc, -1, 0""")
    srd(a, S_B, P_BSP, 4096)
    pre = [f"v_add_u32 v{AD[1]+i}, 0x20000, v{2+i}" for i in range(6)] + [f"v_add_u32 v{8+i}, 0x10000, v{2+i}" for i in range(6)]
    pre += [f"v_mov_b32 v{BF+r}, 0" for r in (2, 3, 4)] + [f"v_mov_b32 v{ONE+r}, 0x3f803f80" for r in range(4)]
    for t in pre:
        a(t)
    p3_tr_setup(a, TP)
    a(f"v_lshlrev_b32 v{TP}, 7, v{V_LANE}")
    def bias_load():
        vm.issue("b", f"buffer_load_ushort v{BF}, v{BF+1}, s[{S_B}:{S_B+3}], s{S_AB} offen")
        vm.issue("b", f"buffer_load_ushort v{BF+5}, v{BF+1}, s[{S_B}:{S_B+3}], s{S_AB} offen offset:64")
    def bias_prep():
        vm.wait("b")
        a(f"""v_cndmask_b32 v{BF}, 0, v{BF}, s[{S_M2}:{S_M2+1}]
v_cndmask_b32 v{BF+5}, 0, v{BF+5}, s[{S_M2}:{S_M2+1}]
v_mov_b32 v{BF+1}, 0""")
    QD = ((0, 0), (1, 0), (0, 1), (1, 1))
    def bias_mf(k):
        fi, ti = QD[k]
        c = ACC + 32 * fi + 16 * ti
        a(f"v_mfma_f32_32x32x16_bf16 v[{c}:{c+15}], v[{ONE}:{ONE+3}], v[{BF+2*ti}:{BF+2*ti+3}], v[{c}:{c+15}]")
    gl = []
    for e in range(64):
        src = GZ + 8 * (e >> 3) + 4 + ((e & 7) >> 1)
        gl.append(f"v_lshlrev_b32 v{GZ+e}, 16, v{src}" if e % 2 == 0 else f"v_and_b32 v{GZ+e}, 0xffff0000, v{src}")
    G0G, GEND = ZP0 * 4, 256 - GTAIL
    ngap = GEND - G0G
    ZL0 = (4 * N0 - 2) * 4
    assert G0G - ZL0 >= 24
    gi = [0, 0, 0]
    def zissue(li):
        fi, ti, q = li >> 2, (li >> 1) & 1, li & 1
        r = GZ + 8 * li + 4
        assert "b" not in vm.q
        a(f"s_cbranch_vccz C_Z{li}")
        vm.issue(f"z{li}", f"buffer_load_dwordx4 v[{r}:{r+3}], v{V_L16}, {ws}, s{S_ZB if ti == 0 else S_C1} offen offset:{fi*2048 + q*1024}{NT2[3]}")
        a(f"C_Z{li}:")
    def fill():
        g = gi[1]
        gi[1] += 1
        if g < CEP:
            assert CEP <= (4 * (Z1S + Z1D) - 2) * 4
            for f in ep[len(ep) * g // CEP:len(ep) * (g + 1) // CEP]:
                f()
        while gi[2] < 8 and g >= ZL0 + LEAD * gi[2]:
            zissue(gi[2])
            gi[2] += 1
        if g < G0G:
            return
        tgt = min(len(gl), (len(gl) * (g - G0G + 1) + ngap - 1) // ngap)
        while gi[0] < tgt:
            if gi[0] % 8 == 0:
                assert gi[2] > gi[0] // 8
                vm.wait(f"z{gi[0] // 8}")
            a(gl[gi[0]])
            gi[0] += 1
    def reads(p):
        n, ks = p >> 2, p & 3
        f = FR + 16 * (p % 3)
        ad, ao = AD[n & 3], AO[n & 3]
        zo = ao + (ks >> 1) * 8192 + (ks & 1) * 256
        l = []
        for i in range(2):
            l.append(f"ds_read_b64_tr_b16 v[{f+4*i}:{f+4*i+1}], v{ad} offset:{zo + i*2048}")
            l.append(f"ds_read_b64_tr_b16 v[{f+4*i+2}:{f+4*i+3}], v{ad+1} offset:{zo + i*2048}")
            l.append(f"ds_read_b128 v[{f+8+4*i}:{f+8+4*i+3}], v{ad+2+ks} offset:{ao + i*4096}")
        return [(f"r{p}", t) for t in l]
    if PRIO & 1:
        a("s_setprio 3")
    vm.wait("st1")
    st.mark(13)
    a("s_barrier")
    st.mark(14)
    for t in reads(0) + reads(1):
        lg.issue(*t)
    if f1.FAE < 2:
        wflag(4, TP, S_CNT)
    if not f1.FAE:
        wflag(8, TP, S_FL)
    for p in range(64):
        n, ks = p >> 2, p & 3
        if ks == 2 and n < 15:
            if n + 1 == Z1B:
                a("s_waitcnt vmcnt(0)")
                vm.q = []
            if LA == 3:
                lg.all()
            a("s_barrier")
            if n + 1 == Z1B:
                wflag(1, BF + 2, S_FL, 1024)
                a(f"""s_and_b32 s{S_T0}, s{S_RW}, 2
s_lshl_b32 s{S_T0}, s{S_T0}, 12
v_add_u32 v{TP+1}, s{S_T0}, v{V_L16}
s_cbranch_vccnz C_ZO""")
                for li in range(8):
                    fi, ti, q = li >> 2, (li >> 1) & 1, li & 1
                    a(f"ds_read_b128 v[{GZ+8*li+4}:{GZ+8*li+7}], v{TP+1} offset:{ZL + ti*4096 + fi*2048 + q*1024}")
                a("C_ZO:")
            if n + 1 == Z1S + Z1D:
                a(f"s_lshl_b32 s{S_T0}, s{S_RW}, 12\nv_add_u32 v{TP+1}, s{S_T0}, v{V_L16}")
                for q in range(2):
                    lg.issue("w", f"ds_write_b128 v{TP+1}, v[{last.cv+4*q}:{last.cv+4*q+3}] offset:{ZL + 2048 + q*1024}")
            if n + 1 in (Z1S + Z1D, Z1S + 3 * Z1D):
                for f in last.store(vm)[(n + 1 - Z1S) // max(1, 2 * Z1D):][:2 - min(1, Z1D)]:
                    f()
            if n + 1 in (4, 8, 12):
                st.mark(14 + (n + 1) // 4)
        lg.wait(f"r{p}")
        if p == 63:
            lg.all()
            st.fold()
            st.mark(18)
            if TB:
                a("s_barrier")
        rl = reads(p + 2) if p + 2 < 64 else []
        if p == 4 * EB - 1:
            rl = rl + [("E", t) for t in b_reads("h", 0, EFR)]
        f = FR + 16 * (p % 3)
        for k, (fi, ti) in enumerate(QD):
            c = ACC + 32 * fi + 16 * ti
            a(f"v_mfma_f32_32x32x16_bf16 v[{c}:{c+15}], v[{f+4*fi}:{f+4*fi+3}], v[{f+8+4*ti}:{f+8+4*ti+3}], " + ("0" if p == 0 else f"v[{c}:{c+15}]"))
            for t in (rl[2 * k:2 * k + 2] if k < 3 else rl[6:]):
                lg.issue(*t)
            if ks == 1 and 0 <= n - BST < 4 and k == (n - BST + 2) % 4:
                bias_mf(n - BST)
            fill()
        if ks == 0 and n == BST - 4:
            bias_load()
        if ks == 0 and n == BST:
            bias_prep()
    assert gi[0] == len(gl)
    for k, (fi, ti) in enumerate(QD):
        if k == 0:
            a("s_setprio 3\ns_nop 2" if PRIO & 2 else "s_nop 3")
        if k == 2:
            a(f"s_add_u32 s{S_O}, s{S_O}, {144*1024}")
        c = ACC + 32 * fi + 16 * ti
        g = GZ + 32 * fi + 16 * ti
        o = FR + 8 * (2 * ti + fi) + 16
        for q in range(2):
            for r in range(8 * q, 8 * q + 8, 2):
                a(f"v_pk_mul_f32 v[{c+r}:{c+r+1}], v[{c+r}:{c+r+1}], v[{g+r}:{g+r+1}]")
            for r in range(4 * q, 4 * q + 4):
                a(f"v_cvt_pk_bf16_f32 v{o+r}, v{c+2*r}, v{c+2*r+1}")
            vm.issue("st", f"buffer_store_dwordx4 v[{o+4*q}:{o+4*q+3}], v{V_L16}, {ws}, s{S_O} offen offset:{fi*2048 + q*1024}{SF}")
    p3_setup(a)
    if not TB:
        a("s_barrier")
    st.mark(19)
    o_loads(a)
    a(f"""v_mov_b32 v{TP}, 1
s_mov_b64 exec, 1
s_waitcnt vmcnt(8)
buffer_store_dword v{TP}, v{BF+2}, {ws}, s{S_MW} offen sc1
s_mov_b64 exec, -1""")
    if PRIO:
        a("s_setprio 0")
    st.mark(20)
    o_reads(a)
    o_part(a, 1)
    st.mark(21)
    a(f"""s_cmp_lg_u32 s{S_RW}, 0
s_cbranch_scc1 L_H_X
s_lshl_b32 s{S_T0}, s{S_M64}, 9
s_add_u32 s{S_T0}, s{S_T0}, {WS_F2}
s_add_u32 s{S_T1}, s{S_T0}, 128
s_add_u32 s{S_T2}, s{S_T0}, 256
s_add_u32 s{S_T3}, s{S_T0}, 384""")
    spoll(a, "L_H", f"""s_buffer_load_dwordx8 s[56:63], {ws}, s{S_T0} glc
s_buffer_load_dwordx8 s[64:71], {ws}, s{S_T1} glc
s_buffer_load_dwordx8 s[72:79], {ws}, s{S_T2} glc
s_buffer_load_dwordx4 s[8:11], {ws}, s{S_T3} glc""", list(range(56, 80, 2)) + [8, 10], ool, HSL)

def phase3(a, st, ool):
    vm, lg = VM(a), LG(a)
    a("P3_GO:")
    horder = SEQ[1:] + SEQ[:1]
    a("s_barrier")
    st.mark(22)
    def breads(si):
        if horder[si] == 13:
            return []
        return [(f"b{si}", t) for t in b_reads("h", horder[si], BFR + 8 * (si % 3))]
    nx = [0]
    def pump(lim):
        while nx[0] < min(lim, 28):
            j, h = nx[0] >> 1, nx[0] & 1
            if h == 0:
                a(f"""s_add_u32 s{S_BR}, s{S_BR}, 1
s_cmp_eq_u32 s{S_BR}, 14
s_cselect_b32 s{S_BR}, 0, s{S_BR}
s_lshl_b32 s{S_T0}, s{S_BR}, 10
s_add_u32 s{S_T0}, s{S_T0}, s{S_O}""")
            r = AFR + 32 + 4 * nx[0]
            vm.issue(f"h{nx[0]}", f"buffer_load_dwordx4 v[{r}:{r+3}], v{V_W if h else V_L16}, {ws}, s{S_T0} offen")
            nx[0] += 1
    pump(AH0)
    a(f"s_waitcnt vmcnt({AH0})\ns_barrier")
    st.mark(23)
    for t in breads(0) + breads(1):
        lg.issue(*t)
    pump(AHEAD)
    for si in range(14):
        if si == 4: st.mark(24)
        if si == 9: st.mark(25)
        if si == XAT:
            vm.issue("x", f"buffer_load_dwordx4 v[{XV}:{XV+3}], v{V_XO}, s[{S_X}:{S_X+3}], s{S_XO} offen")
        bf = EFR if horder[si] == 13 else BFR + 8 * (si % 3)
        rl = breads(si + 2) if si + 2 < 14 else []
        lg.wait(f"b{si}")
        for h in range(2):
            cons = 2 * si + h
            vm.wait(f"h{cons}")
            x = AFR + 32 + 4 * cons
            for ni in range(2):
                c = ACC3 + 16 * ni
                a(f"v_mfma_f32_32x32x16_bf16 v[{c}:{c+15}], v[{bf+4*ni}:{bf+4*ni+3}], v[{x}:{x+3}], v[{c}:{c+15}]")
                k = 2 * h + ni
                for t in rl[k:k + 1]:
                    lg.issue(*t)
                if ni == 0:
                    pump(cons + 1 + AHEAD)
    st.mark(26)
    vm.wait("x")
    U = AFR
    for lp in (1, 2, 3):
        a(f"""s_xor_b32 s{S_T0}, s{S_WAVE}, {lp}
s_mul_i32 s{S_T0}, s{S_T0}, 6144
v_add_u32 v{BFR+lp}, s{S_T0}, v{V_L16}""")
    a(f"""s_mul_i32 s{S_T0}, s{S_WAVE}, 6144
v_add_u32 v{BFR}, s{S_T0}, v{V_L16}""")
    for d in range(4):
        a(f"v_lshlrev_b32 v{U+2*d}, 16, v{XV+d}")
        a(f"v_and_b32 v{U+2*d+1}, 0xffff0000, v{XV+d}")
    for lp in (1, 2, 3):
        for k in range(2):
            c = ACC3 + 8 * lp + 4 * k
            a(f"ds_write_b128 v{BFR+lp}, v[{c}:{c+3}] offset:{(lp-1)*2048 + k*1024}")
    a("s_waitcnt lgkmcnt(0)\ns_barrier")
    for k in range(6):
        c = ACC3 + 8 + 4 * k
        a(f"ds_read_b128 v[{c}:{c+3}], v{BFR} offset:{k*1024}")
    for lp in (1, 2, 3):
        a(f"s_waitcnt lgkmcnt({6 - 2*lp})")
        for r in range(0, 8, 2):
            a(f"v_pk_add_f32 v[{ACC3+r}:{ACC3+r+1}], v[{ACC3+r}:{ACC3+r+1}], v[{ACC3+8*lp+r}:{ACC3+8*lp+r+1}]")
    a("s_nop 1")
    for d in range(4):
        a(f"v_permlane32_swap_b32 v{ACC3+d}, v{ACC3+4+d}")
    for r in range(0, 8, 2):
        a(f"v_pk_add_f32 v[{ACC3+r}:{ACC3+r+1}], v[{ACC3+r}:{ACC3+r+1}], v[{U+r}:{U+r+1}]")
    for r in range(4):
        a(f"v_cvt_pk_bf16_f32 v{XV+r}, v{ACC3+2*r}, v{ACC3+2*r+1}")
    a(f"buffer_store_dwordx4 v[{XV}:{XV+3}], v{V_XO}, s[{S_OUT}:{S_OUT+3}], s{S_XO} offen")
    st.flush(S_WS, S_WAVE)
    a("s_endpgm")

def ids(a):
    a(f"""s_and_b32 s{S_KH}, s2, 1
s_bfe_u32 s{S_T1}, s2, 0x20003
s_and_b32 s{S_T0}, s2, 7
s_lshl_b32 s{S_M64}, s{S_T0}, 2
s_add_u32 s{S_M64}, s{S_M64}, s{S_T1}
s_lshr_b32 s{S_FQ}, s2, 5
s_mul_i32 s{S_BR}, s{S_T1}, {7 if ROT3 else 0}
s_lshr_b32 s{S_BR}, s{S_BR}, 1
s_mul_i32 s{S_T0}, s{S_FQ}, {ROT3 & 2}
s_add_u32 s{S_BR}, s{S_BR}, s{S_T0}
s_cmp_ge_u32 s{S_BR}, 14
s_cselect_b32 s{S_T0}, 14, 0
s_sub_u32 s{S_BR}, s{S_BR}, s{S_T0}""")

def hook_main(a, vm, st, last):
    ool = []
    a(f"""s_cmp_eq_u32 s{S_CH}, 0
s_cbranch_scc0 P2_CMP""")
    q0, p0 = list(vm.q), list(st.pend)
    loader(a, vm, st, last, ool)
    pl = list(st.pend)
    a("P2_CMP:")
    vm.q, st.pend = q0, p0
    compute(a, vm, st, last, ool)
    assert st.pend == pl
    phase3(a, st, ool)
    for o in ool:
        a(o)

def hook_att(a, vm, st, ctl):
    V_T0, V_T1, V_T2, V_L8B = 2, 3, 4, 5
    KF, QF, ACC, ZAC, ONE, KVB, TP = 16, 144, 176, 192, 208, 212, 220
    S_H, S_HF, S_MK = 28, 29, 42
    st.mark(12)
    a(f"""; head = 2x + (c&1) ; half = c>>1
s_and_b32 s{S_T0}, s2, 7
s_lshl_b32 s{S_H}, s{S_T0}, 1
s_bfe_u32 s{S_T0}, s2, 0x10003
s_add_u32 s{S_H}, s{S_H}, s{S_T0}
s_bfe_u32 s{S_HF}, s2, 0x10004
s_lshl_b32 s{S_T3}, s{S_HF}, 3
s_add_u32 s{S_O}, s{S_T3}, s{S_WAVE}
v_lshlrev_b32 v{V_T0}, 7, v{V_LANE}
v_mov_b32 v{V_T1}, 1
s_waitcnt vmcnt(0)
s_barrier
s_cmp_eq_u32 s{S_WAVE}, 0
s_cselect_b64 exec, 0xff, 0
buffer_store_dword v{V_T1}, v{V_T0}, {ws}, s{S_FL} offen sc1""")
    st.mark(13)
    if ATOUCH:
        srd(a, 20, P_BSP, 4096)
        a(f"s_cmp_eq_u32 s{S_WAVE}, 0\ns_cselect_b64 exec, -1, 0")
        a(f"buffer_load_dword v{TP}, v{V_T0}, s[20:23], 0 offen")
    a("s_mov_b64 exec, -1")
    for t in ctl:
        t()
    a(f"""s_and_b32 s{S_T0}, s2, 7
s_lshl_b32 s{S_T0}, s{S_T0}, 7
s_lshl_b32 s{S_M2}, s{S_O}, 11
s_add_u32 s{S_M2}, s{S_M2}, s{S_T0}
s_add_u32 s{S_T3}, s{S_M2}, {WS_FL + 56}
s_mul_i32 s{S_T0}, s{S_H}, 7
s_lshr_b32 s{S_T0}, s{S_T0}, 4
s_lshl_b32 s{S_T0}, s{S_T0}, 2
s_add_u32 s{S_M2}, s{S_M2}, s{S_T0}
s_add_u32 s{S_M2}, s{S_M2}, {WS_FL}
s_add_u32 s{S_T2}, s{S_M2}, 28""")
    spoll(a, "A_KV", f"s_buffer_load_dwordx2 s[56:57], {ws}, s{S_T2} glc\ns_buffer_load_dwordx2 s[58:59], {ws}, s{S_T3} glc", [56, 58], None, ASL)
    vm.q = []
    st.mark(14)
    a(f"""s_mul_i32 s{S_T1}, s{S_O}, {4*28672}
s_mul_i32 s{S_T2}, s{S_H}, 896
s_add_u32 s{S_T1}, s{S_T1}, s{S_T2}
s_add_u32 s{S_T1}, s{S_T1}, {WS_K}
v_add_u32 v{V_T2}, {WS_V - WS_K}, v{V_KO}""")
    NK = 8
    for i in range(NK):
        vm.issue(f"k{i}", f"buffer_load_dwordx4 v[{KF+8*i}:{KF+8*i+3}], v{V_KO}, {ws}, s{S_T1} offen{NTA}")
        vm.issue(f"k{i}", f"buffer_load_dwordx4 v[{KF+8*i+4}:{KF+8*i+7}], v{V_T2}, {ws}, s{S_T1} offen{NTA}")
        a(f"s_add_u32 s{S_T1}, s{S_T1}, 14336")
    spoll(a, "A_Q", f"s_buffer_load_dwordx2 s[56:57], {ws}, s{S_M2} glc", [56], None, ASL)
    a(f"""v_and_b32 v{V_L8B}, 0xff, v{V_L8}
s_mul_i32 s{S_T1}, s{S_O}, {4*28672}
s_lshl_b32 s{S_T2}, s{S_T2}, 1
s_add_u32 s{S_T1}, s{S_T1}, s{S_T2}
s_add_u32 s{S_T1}, s{S_T1}, {WS_Q}
s_lshl_b32 s{S_C1+1}, s{S_O}, 8
s_lshl_b32 s{S_T3}, s{S_H}, 2
s_add_u32 s{S_FL}, s{S_C1+1}, s{S_T3}
s_add_u32 s{S_FL}, s{S_FL}, {WS_F3}
s_mul_i32 s{S_O}, s{S_O}, {4*144*1024}
s_lshl_b32 s{S_T3}, s{S_H}, 11
s_add_u32 s{S_O}, s{S_O}, s{S_T3}
s_add_u32 s{S_O}, s{S_O}, {WS_AF}""")
    for u in range(4):
        for i in range(4):
            r = QF + 8 * u + 2 * i
            vm.issue("q", f"buffer_load_dwordx2 v[{r}:{r+1}], v{V_L8 if i < 3 else V_L8B}, {ws}, s{S_T1} offen offset:{512*i}{NTA}")
        a(f"s_add_u32 s{S_T1}, s{S_T1}, 28672")
    for r in range(4):
        a(f"v_mov_b32 v{ONE+r}, 0x3f803f80")
    a(f"""s_mov_b32 s{S_MK}, 0x10000000
s_mov_b32 s{S_MK+1}, 0x10000000
s_mov_b32 s{S_M2}, -1
s_mov_b32 s{S_M2+1}, 0""")
    for i in range(NK):
        vm.wait(f"k{i}")
        c0 = "0" if i == 0 else f"v[{ACC}:{ACC+15}]"
        c1 = "0" if i == 0 else f"v[{ZAC}:{ZAC+15}]"
        a(f"v_mfma_f32_32x32x16_bf16 v[{ACC}:{ACC+15}], v[{KF+8*i}:{KF+8*i+3}], v[{KF+8*i+4}:{KF+8*i+7}], {c0}")
        a(f"v_mfma_f32_32x32x16_bf16 v[{ZAC}:{ZAC+15}], v[{KF+8*i}:{KF+8*i+3}], v[{ONE}:{ONE+3}], {c1}")
    st.mark(15)
    a(f"""s_lshl_b32 s{S_T1}, s{S_WAVE}, 12
v_add_u32 v{V_T2}, s{S_T1}, v{V_L8}
s_nop 10""")
    for r in range(16):
        a(f"v_cndmask_b32 v{ACC+r}, v{ACC+r}, v{ZAC+r}, s[{S_MK}:{S_MK+1}]")
    for p in range(8):
        a(f"ds_write_b64 v{V_T2}, v[{ACC+2*p}:{ACC+2*p+1}] offset:{512*p}")
    a(f"""s_lshl_b32 s{S_T1}, s{S_WAVE}, 9
v_add_u32 v{V_T2}, s{S_T1}, v{V_L8}""")
    a("s_waitcnt lgkmcnt(0)\ns_barrier")
    for w in range(8):
        a(f"ds_read_b64 v[{ACC+2*w}:{ACC+2*w+1}], v{V_T2} offset:{4096*w}")
    a(f"""s_cmp_ge_u32 s{S_WAVE}, 6
s_mov_b32 s{S_MK}, 0x1fffffff
s_cselect_b32 s{S_MK+1}, 0, s{S_MK}
s_lshl_b32 s{S_T2}, s{S_H}, 1
s_add_u32 s{S_T2}, s{S_T2}, s{S_HF}
s_lshl_b32 s{S_T2}, s{S_T2}, 3
s_add_u32 s{S_T2}, s{S_T2}, s{S_WAVE}
s_lshl_b32 s{S_T2}, s{S_T2}, 9
s_add_u32 s{S_T2}, s{S_T2}, {WS_XB}
s_xor_b32 s{S_T3}, s{S_T2}, 4096
s_lshl_b32 s{S_T1}, s{S_WAVE}, 2
s_add_u32 s{S_T1}, s{S_T1}, 32768
v_lshl_add_u32 v{V_T2}, v{V_LANE}, 5, s{S_T1}
s_waitcnt lgkmcnt(0)""")
    for w in (4, 2, 1):
        for k in range(w):
            a(f"v_pk_add_f32 v[{ACC+2*k}:{ACC+2*k+1}], v[{ACC+2*k}:{ACC+2*k+1}], v[{ACC+2*(k+w)}:{ACC+2*(k+w)+1}]")
    a(f"""v_cndmask_b32 v{ACC}, 0, v{ACC}, s[{S_MK}:{S_MK+1}]
v_cndmask_b32 v{ACC+1}, 0, v{ACC+1}, s[{S_MK}:{S_MK+1}]
buffer_store_dwordx2 v[{ACC}:{ACC+1}], v{V_L8}, {ws}, s{S_T2} offen sc1
A_X_R:
buffer_load_dwordx2 v[{ACC+2}:{ACC+3}], v{V_L8}, {ws}, s{S_T3} offen sc1
s_waitcnt vmcnt(0)
v_max_u32 v{ACC+4}, v{ACC+2}, v{ACC+3}
v_cmp_eq_u32 vcc, -1, v{ACC+4}
s_cbranch_vccz A_X_X
s_sleep {ASL}
s_addk_i32 s{S_SPIN}, -1
s_cmp_lt_i32 s{S_SPIN}, 0
s_cbranch_scc0 A_X_R
A_X_X:
v_pk_add_f32 v[{ACC}:{ACC+1}], v[{ACC}:{ACC+1}], v[{ACC+2}:{ACC+3}]""")
    vm.q = []
    a(f"""v_cvt_pk_bf16_f32 v{ACC}, v{ACC}, v{ACC+1}
ds_write_b32 v{V_T2}, v{ACC}
v_lshlrev_b32 v{V_T2}, 5, v{V_LANE}
s_waitcnt lgkmcnt(0)
s_barrier
ds_read_b128 v[{KVB}:{KVB+3}], v{V_T2} offset:32768
ds_read_b128 v[{KVB+4}:{KVB+7}], v{V_T2} offset:32784
s_waitcnt lgkmcnt(0)""")
    vm.wait("q")
    st.mark(16)
    for u in range(4):
        c = KF + 16 * u
        a(f"v_mfma_f32_32x32x16_bf16 v[{c}:{c+15}], v[{KVB}:{KVB+3}], v[{QF+8*u}:{QF+8*u+3}], 0")
        a(f"v_mfma_f32_32x32x16_bf16 v[{c}:{c+15}], v[{KVB+4}:{KVB+7}], v[{QF+8*u+4}:{QF+8*u+7}], v[{c}:{c+15}]")
    a("s_nop 5")
    for u in range(4):
        c = KF + 16 * u
        o = KF + 64 + 8 * u
        a(f"""v_add_f32 v{TP}, {f32(1e-6)}, v{c+12}
v_mov_b32 v{TP+1}, v{TP}
s_nop 1
v_permlane32_swap_b32 v{TP+1}, v{TP}
v_rcp_f32 v{TP}, v{TP}
s_nop 0""")
        for r in range(16):
            a(f"v_mul_f32 v{c+r}, v{c+r}, v{TP}")
        for r in range(8):
            a(f"v_cvt_pk_bf16_f32 v{o+r}, v{c+2*r}, v{c+2*r+1}")
        a(f"v_cndmask_b32 v{o+6}, 0, v{o+6}, s[{S_M2}:{S_M2+1}]")
        a(f"v_cndmask_b32 v{o+7}, 0, v{o+7}, s[{S_M2}:{S_M2+1}]")
        vm.issue("st", f"buffer_store_dwordx4 v[{o}:{o+3}], v{V_L16}, {ws}, s{S_O} offen{SF}")
        vm.issue("st", f"buffer_store_dwordx4 v[{o+4}:{o+7}], v{V_L16}, {ws}, s{S_O} offen offset:1024{SF}")
        a(f"s_add_u32 s{S_O}, s{S_O}, {144*1024}")
    st.mark(17)
    a(f"""v_mov_b32 v{TP}, 1
v_lshlrev_b32 v{TP+1}, 7, v{V_LANE}
s_mov_b64 exec, 3
s_waitcnt vmcnt(0)
buffer_store_dword v{TP}, v{TP+1}, {ws}, s{S_FL} offen sc1""")
    st.flush(S_WS, S_WAVE)
    a("s_endpgm")
```

```python
from common import *
import os
R1 = 0
RING = 57344
SCR = RING + 57344
DEAD = SCR + 8192
P1_LDS = 163840
P1_VGPR = 256
E = os.environ.get
ROTMODE = 1
STORE_FLAGS = E("SF", " sc1")
PFL = [int(x) for x in E("P1_PFL", "9,16,23,30").split(",")]
PFROW = int(E("P1_PFROW", "0"))
WPF = int(E("P1_WPF", "13"))
NTP, NTX, NTW, NTO = [" nt" if c == "1" else "" for c in E("P1_NT", "1000")]
NTQ = E("P1_NTQ", "0000")
CPF = [int(x) for x in E("P1_CPF", "-1,-1,-1,-1").split(",")]
WSB = int(E("WSB", "0"), 0)
CSTAT = E("P1_CSTAT", "valu")
SCH = {"E": [int(x) for x in E("P1_SE", "17,28,32,37,38,52,46").split(",")],
       "L": [int(x) for x in E("P1_SL", "22,46,50,55,30,43,-1").split(",")]}
LATEF = int(E("P1_LATEF", "2"))
PSL = int(E("P1_PSL", "3"))
RTL = [int(x) for x in E("P1_RTL", "-1,-1,-1,-1").split(",")]
TOUCH = 0
assert max(CPF) < 0
WPX = [int(x) for x in E("P1_WPX", "-1,-1").split(",")]
FAE = int(E("P1_FAE", "0"))
STP = int(E("STP", "0"))
PS1 = dict(zip("EL", E("P1_PS1", "11")))
PMASK = int(E("P1_PMASK", "1"))

P_X, P_QKV, P_WO, P_WIN, P_SP, P_BSP, P_WOUT, P_DBG, P_WS, P_OUT = 64, 66, 68, 72, 74, 76, 78, 56, 58, 60
X = E("P1_X", "")

V_LANE = 1
V_X0, V_X1, V_DA, V_DB = 2, 3, 4, 5
XR, WR = 6, 10
V_L16, V_T0 = 14, 15
A0 = 16
V_S, V_Q = 224, 225
V_R, V_C0, V_C1, V_RI, V_L2E = 226, 227, 228, 229, 230
V_PF = 0
SEL = 232
XE, CE = 236, 240
T4 = 248
V_KO, V_L8, V_CSA, V_DUM = 252, 253, 254, 255

S_SP = 4
S_PFO, S_CNT, S_REC, S_FL = 8, 9, 10, 11
S_X, S_WA, S_WB, S_WS = 12, 16, 20, 24
S_RB, S_G, S_WAVE, S_RW, S_CH = 28, 29, 30, 31, 32
S_T0, S_T1, S_T2, S_T3 = 33, 34, 35, 36
S_PK = 37
S_XB = 38
S_L = 39
S_A64 = 43
S_MR, S_MW = 44, 45
S_XO = 46
S_O = 47
S_SA = 52
S_SPIN = 53
S_HI = 54
B64 = 64 * 2688

class K:
    def __init__(s, kinds):
        s.kinds = kinds
        s.nA = 2 if kinds[0] == "V" else 1
        s.WST = (2 + s.nA) * 1024
        s.SLOT = 8 * s.WST
        s.NSL = 98304 // s.SLOT
        s.DEPTH = s.NSL - 1
        s.ori = [k in "GLQ" for k in kinds]
        s.WB, s.CV, s.CSA = 160, 212, 220
        if s.nA == 1:
            s.ACC = [128, 144, 160]
            s.BR, s.TMP, s.R16, s.XS = 176, 196, A0, CE + 4
            s.stat = E("P1_ASTAT", "mix")
        else:
            s.ACC = [128, 144, 160, 128]
            s.BR, s.TMP, s.R16, s.XS = 192, 176, 176, 228
            s.stat = CSTAT
NBR = 5

class LG:
    def __init__(self, a):
        self.a, self.q = a, []
    def issue(self, tag, text):
        self.a(text)
        self.q.append(tag)
    def wait(self, *tags):
        last = -1
        for i, t in enumerate(self.q):
            if t in tags:
                last = i
        if last < 0:
            return
        n = min(15, len(self.q) - 1 - last)
        self.a(f"s_waitcnt lgkmcnt({n})")
        self.q = self.q[len(self.q) - n:] if n else []
    def all(self):
        if self.q:
            self.a("s_waitcnt lgkmcnt(0)")
        self.q = []
    def copy(self):
        v = LG(self.a)
        v.q = list(self.q)
        return v

def mf(acc, w, x, orient, first=False):
    c = "0" if first else f"v[{acc}:{acc+15}]"
    if orient:
        return f"v_mfma_f32_32x32x16_bf16 v[{acc}:{acc+15}], v[{w}:{w+3}], v[{x}:{x+3}], {c}"
    return f"v_mfma_f32_32x32x16_bf16 v[{acc}:{acc+15}], v[{x}:{x+3}], v[{w}:{w+3}], {c}"

def mf16(c, b, first):
    return f"v_mfma_f32_16x16x32_bf16 v[{c}:{c+3}], v[{SEL}:{SEL+3}], v[{b}:{b+3}], " + ("0" if first else f"v[{c}:{c+3}]")

def adv_pk(a):
    if ROTMODE != 1:
        a(f"""s_add_u32 s{S_PK}, s{S_PK}, 1
s_cmp_eq_u32 s{S_PK}, 7
s_cselect_b32 s{S_PK}, 0, s{S_PK}""")

def line_src(L):
    if L == 1:
        return V_DB, S_WB, str(B64)
    return V_DA, S_WA, f"s{S_A64}"

def w_off(a, L, dst):
    v, s, st = line_src(L)
    if ROTMODE == 1:
        return S_L + L
    a(f"s_mul_i32 s{dst}, s{S_PK}, {st}\ns_add_u32 s{dst}, s{dst}, s{S_L+L}")
    return dst

def w_adv(a, L):
    if ROTMODE == 1:
        a(f"s_add_u32 s{S_L+L}, s{S_L+L}, {line_src(L)[2]}")

def piece_dma(a, vm, k, j):
    sl = RING + (j % k.NSL) * k.SLOT
    def x0():
        a(f"s_add_u32 m0, s{S_MR}, {sl}")
        if ROTMODE == 1:
            a(f"s_add_u32 s{S_T0}, s{S_XB}, {128 * j}")
        else:
            a(f"s_lshl_b32 s{S_T0}, s{S_PK}, 7\ns_add_u32 s{S_T0}, s{S_T0}, s{S_XB}")
        vm.issue(f"p{j}", f"buffer_load_dwordx4 v{V_X0}, s[{S_X}:{S_X+3}], s{S_T0} offen{NTX} lds")
    def x1():
        vm.issue(f"p{j}", f"buffer_load_dwordx4 v{V_X1}, s[{S_X}:{S_X+3}], s{S_T0} offen offset:{(1+k.nA)*1024}{NTX} lds")
    def w(L):
        def f():
            v, s, _ = line_src(L)
            o = w_off(a, L, S_T1)
            vm.issue(f"p{j}", f"buffer_load_dwordx4 v{v}, s[{s}:{s+3}], s{o} offen offset:{(1+L)*1024}{NTW} lds")
            w_adv(a, L)
            if L == k.nA - 1:
                adv_pk(a)
        return f
    return [x0, x1] + [w(L) for L in range(k.nA)]

def line_dma(a, vm, L, b, base, tag):
    def f():
        v, s, _ = line_src(L)
        a(f"s_add_u32 m0, s{S_MW}, {base + b * 8192}")
        o = w_off(a, L, S_T1)
        if ROTMODE == 1:
            a("s_nop 0")
        vm.issue(tag, f"buffer_load_dwordx4 v{v}, s[{s}:{s+3}], s{o} offen{NTW} lds")
        w_adv(a, L)
        adv_pk(a)
    return f

def I(a, s):
    return lambda: a(s)

def spread(n, lst):
    return [lst[len(lst) * i // n: len(lst) * (i + 1) // n] for i in range(n)]

def ce_build(ce, src):
    return [f"v_add_f32 v{src}, v{src}, v{src+1}",
            f"v_add_f32 v{src+2}, v{src+2}, v{src+3}",
            f"v_add_f32 v{src}, v{src}, v{src+2}",
            f"v_and_b32 v{src+1}, 0xffff0000, v{src}",
            f"v_sub_f32 v{src}, v{src}, v{src+1}",
            f"v_cvt_pk_bf16_f32 v{ce}, v{src+1}, v{src}"]

def store_tile(a, vm, kind, src, so):
    tg = "st" + kind
    ws = f"s[{S_WS}:{S_WS+3}]"
    l = []
    if kind in "GL":
        l.append(lambda: vm.issue(tg, f"buffer_store_dwordx4 v[{src}:{src+3}], v{V_L16}, {ws}, s{so} offen{STORE_FLAGS}"))
        l.append(lambda: vm.issue(tg, f"buffer_store_dwordx4 v[{src+4}:{src+7}], v{V_L16}, {ws}, s{so} offen offset:1024{STORE_FLAGS}"))
    elif kind == "Q":
        for i in range(4):
            l.append(lambda i=i: vm.issue(tg, f"buffer_store_dwordx2 v[{src+2*i}:{src+2*i+1}], v{V_L8}, {ws}, s{so} offen offset:{512*i}{STORE_FLAGS}"))
    else:
        l.append(lambda: vm.issue(tg, f"buffer_store_dwordx4 v[{src}:{src+3}], v{V_KO}, {ws}, s{so} offen{STORE_FLAGS}"))
        def second():
            a(f"s_add_u32 s{so}, s{so}, 14336")
            vm.issue(tg, f"buffer_store_dwordx4 v[{src+4}:{src+7}], v{V_KO}, {ws}, s{so} offen{STORE_FLAGS}")
        l.append(second)
    return l

def epilogue(a, vm, k, kind, acc, so):
    T = k.TMP
    R = (lambda r: V_R) if kind in "GLQ" else (lambda r: k.R16 + r)
    s = []
    for h in range(2):
        rs = range(8 * h, 8 * h + 8)
        if kind in "GL":
            s += [f"v_mul_f32 v{T+r}, v{acc+r}, v{acc+r}" for r in rs]
            s += [f"v_fma_f32 v{T+r}, v{T+r}, v{V_C1}, v{V_C0}" for r in rs]
            s += [f"v_mul_f32 v{T+r}, v{T+r}, v{acc+r}" for r in rs]
            s += [f"v_exp_f32 v{T+r}, v{T+r}" for r in rs]
            s += [f"v_fma_f32 v{T+r}, v{T+r}, v{V_RI}, v{V_RI}" for r in rs]
            s += [f"v_rcp_f32 v{T+r}, v{T+r}" for r in rs]
            s += [f"v_mul_f32 v{acc+r}, v{T+r}, v{acc+r}" for r in rs]
            for r in (rs if kind == "G" else []):
                s.append(f"v_add_f32 v{V_S}, v{V_S}, v{acc+r}" if r else f"v_mov_b32 v{V_S}, v{acc}")
                s.append(f"v_fmac_f32 v{V_Q}, v{acc+r}, v{acc+r}" if r else f"v_mul_f32 v{V_Q}, v{acc}, v{acc}")
        elif kind in "QK":
            s += [f"v_fmaak_f32 v{acc+r}, v{acc+r}, v{R(r)}, {f32(1e-6)}" for r in rs]
            s += [f"v_fmaak_f32 v{T+r}, v{acc+r}, v{V_L2E}, {f32(-1e-6*LOG2E)}" for r in rs]
            s += [f"v_exp_f32_e64 v{T+r}, v{T+r} clamp" for r in rs]
            s += [f"v_max_f32 v{acc+r}, {f32(1e-6)}, v{acc+r}" for r in rs]
            s += [f"v_add_f32 v{acc+r}, v{acc+r}, v{T+r}" for r in rs]
        else:
            s += [f"v_mul_f32 v{acc+r}, v{acc+r}, v{R(r)}" for r in rs]
    l = [I(a, x) for x in s]
    if kind != "G":
        l += [I(a, f"v_cvt_pk_bf16_f32 v{k.CV+r}, v{acc+2*r}, v{acc+2*r+1}") for r in range(8)]
        if kind != "L":
            l += store_tile(a, vm, kind, k.CV, so)
    return l

def phase_a(a, vm, lg, k, st, tail_fill):
    nA = k.nA
    late = [line_dma(a, vm, nA, b, R1, "wa" if b < 3 else "wb") for b in range(7)]
    lsp = spread(k.DEPTH, late) if k.DEPTH == 3 else [late[:4], late[4:]]
    if k.DEPTH == 3:
        lsp = [late[:3], late[3:5], late[5:]]
    XS = k.XS
    for j in range(8):
        main, reads, dots, dmas, extra = [], [], [], [], []
        if j < 7:
            vm.wait(f"p{j}")
            a("s_barrier")
            if j in (0, 3, 6):
                st.mark(3 + j // 3)
            so = (j % k.NSL) * k.SLOT
            for i in range(4):
                x = A0 + 16 * j + 4 * i
                xr, xo = (XR + i, so) if so < 65536 else (None, None)
                reads.append(("x", x, i, so))
                for L in range(nA):
                    b = k.WB + 16 * nA * (j & 1) + 16 * L + 4 * i
                    reads.append(("w", b, i, so + L * 1024))
                    reads.append(("w", b + 2, i, so + L * 1024 + 512))
            def rd(t, r, i, off):
                def f():
                    if t == "x":
                        lg.issue("a", f"ds_read_b128 v[{r}:{r+3}], v{XR+i} offset:{off - hi(off)}")
                    else:
                        lg.issue("a", f"ds_read_b64_tr_b16 v[{r}:{r+1}], v{WR+i} offset:{off - hi(off)}")
                return f
            hi = lambda off: 49152 if so >= 49152 else 0
            prev = ((j - 1) % k.NSL) * k.SLOT if j else 0
            if (prev >= 49152) != (so >= 49152):
                op = "v_add_u32" if so >= 49152 else "v_subrev_u32"
                for r in list(range(XR, XR + 4)) + list(range(WR, WR + 4)):
                    a(f"{op} v{r}, 49152, v{r}")
            reads = [rd(*r) for r in reads]
            if j + k.DEPTH < 7:
                dmas = piece_dma(a, vm, k, j + k.DEPTH)
            else:
                dmas = lsp[j + k.DEPTH - 7]
            if j == k.DEPTH and k.kinds[0] == "V":
                def flag():
                    a(f"s_cmp_eq_u32 s{S_WAVE}, 7\ns_cselect_b64 exec, 1, 0")
                    a(f"buffer_store_dword v{V_DUM}, v{XE+1}, s[{S_SP}:{S_SP+3}], s{S_CNT} offen sc1")
                    a(f"s_mov_b64 exec, -1")
                assert "clr" not in vm.q
                dmas = dmas + [flag]
        else:
            vm.wait("wa")
            a("s_barrier")
            reads = tail_fill
        if j > 0:
            p = j - 1
            for i in range(4):
                x = A0 + 16 * p + 4 * i
                for L in range(nA):
                    b = k.WB + 16 * nA * (p & 1) + 16 * L + 4 * i
                    main.append(I(a, mf(k.ACC[L], b, x, k.ori[L], p == 0 and i == 0)))
            for L in range(nA):
                extra.append(I(a, mf16(CE + 4 * L, k.WB + 16 * nA * (p & 1) + 16 * L, p == 0)))
            if k.stat == "mix":
                for i in range(2):
                    extra.append(I(a, mf16(XS, A0 + 16 * p + 4 * i, p == 0 and i == 0)))
            for d in range(8):
                x = A0 + 16 * p + d
                t = T4 + 2 * (d & 1)
                dots.append(I(a, f"v_lshlrev_b32 v{t}, 16, v{x}"))
                dots.append(I(a, f"v_and_b32 v{t+1}, 0xffff0000, v{x}"))
                if k.stat != "mix":
                    dots.append(I(a, f"v_add_f32 v{V_S}, v{V_S}, v{t}"))
                dots.append(I(a, f"v_fmac_f32 v{V_Q}, v{t}, v{t}"))
                if k.stat != "mix":
                    dots.append(I(a, f"v_add_f32 v{V_R}, v{V_R}, v{t+1}"))
                dots.append(I(a, f"v_fmac_f32 v{V_C0}, v{t+1}, v{t+1}"))
        if main:
            n = len(main)
            rs, ds, ms, es = spread(n, reads), spread(n, dots), spread(n, dmas), spread(n, extra)
            for g in range(n):
                main[g]()
                for f in rs[g] + ms[g] + ds[g] + es[g]:
                    f()
        else:
            for f in reads + dmas:
                f()
        if j < 7:
            lg.all()
    return XS

def kind_body(a, vm0, k, st, lab, hook_main, hook_att):
    vm = Vm = vm0.copy()
    lg = LG(a)
    kinds, ori, nA = k.kinds, k.ori, k.nA
    G = kinds[0] == "G"
    T = k.TMP
    D = 4
    dbg = f"s[{S_SP}:{S_SP+3}]"
    ws = f"s[{S_WS}:{S_WS+3}]"
    nl = 2 if nA == 1 else 1
    NS = 28 * nl
    def rd(p):
        b = k.BR + 4 * (p % NBR)
        off = ((p % 28) >> 2) * 8192
        def f0():
            if p == 28:
                for i in range(4):
                    a(f"v_add_u32 v{WR+i}, {RING}, v{WR+i}")
            lg.issue(f"r{p}", f"ds_read_b64_tr_b16 v[{b}:{b+1}], v{WR + (p & 3)} offset:{off}")
        return [f0, lambda: lg.issue(f"r{p}", f"ds_read_b64_tr_b16 v[{b+2}:{b+3}], v{WR + (p & 3)} offset:{off+512}")]
    def wr_fix():
        for i in range(4):
            a(f"s_xor_b32 s{S_T2}, s{S_XO}, {i}\ns_lshl_b32 s{S_T2}, s{S_T2}, 11")
            a(f"v_add_u32 v{WR+i}, s{S_T2}, v{V_T0}")
    tail = [wr_fix] + [f for p in range(D) for f in rd(p)]
    XS = phase_a(a, vm, lg, k, st, tail)
    st.mark(6)
    if not G:
        return kind_stream(a, vm, lg, k, st, lab, hook_main, hook_att, rd, XS, "E")
    a(f"""s_and_b32 s{S_T0}, s{S_RB}, 7
s_cmp_ge_u32 s{S_T0}, {LATEF}
s_cbranch_scc1 {lab}L""")
    sv = list(vm.q), list(lg.q), list(st.pend)
    kind_stream(a, vm, lg, k, st, lab, hook_main, hook_att, rd, XS, "E")
    a(f"{lab}L:")
    vm.q, lg.q, st.pend = sv
    kind_stream(a, vm, lg, k, st, lab + "L", hook_main, hook_att, rd, XS, "L")

def kind_stream(a, vm, lg, k, st, lab, hook_main, hook_att, rd, XS, cls):
    kinds, ori, nA = k.kinds, k.ori, k.nA
    G = kinds[0] == "G"
    T = k.TMP
    D = 4
    dbg = f"s[{S_SP}:{S_SP+3}]"
    ws = f"s[{S_WS}:{S_WS+3}]"
    nl = 2 if nA == 1 else 1
    NS = 28 * nl
    F0_END, POLL_AT, ZF0, ZF1, F1_BEG, F1_END, FB = SCH[cls]
    pre = []
    if k.stat == "mix":
        pre.append(I(a, f"v_add_f32 v{XS+1}, v{V_Q}, v{V_C0}"))
        xs = XS
    else:
        pre.append(I(a, f"v_add_f32 v{V_S}, v{V_S}, v{V_R}\nv_add_f32 v{V_Q}, v{V_Q}, v{V_C0}"))
        xs = V_S
    pre.append(I(a, f"""s_lshl_b32 s{S_T0}, s{S_WAVE}, 9
s_add_u32 s{S_T0}, s{S_T0}, {SCR + 4096}
v_add_u32 v{V_T0}, s{S_T0}, v{V_L8}"""))
    pre.append(lambda: lg.issue("w", f"ds_write_b64 v{V_T0}, v[{xs}:{xs+1}]"))
    for L in range(nA):
        pre.append(lambda L=L: lg.issue("w", f"ds_write_b32 v{V_CSA}, v{CE+4*L} offset:{L*2048}"))
    pre.append(I(a, f"v_xor_b32 v{V_T0}, 2048, v{V_T0}"))
    def bar(*vtags):
        def f():
            vm.wait(*vtags)
            lg.wait("w")
            a("s_barrier")
        return f
    F0 = [lambda: lg.issue("x", f"ds_read_b64 v[{T}:{T+1}], v{V_T0}"),
          I(a, f"v_and_b32 v{V_T0}, 0xfffffff0, v{V_CSA}")]
    for L in range(nA):
        F0.append(lambda L=L: lg.issue("c", f"ds_read_b128 v[{T+4+4*L}:{T+7+4*L}], v{V_T0} offset:{L*2048}"))
    F0.append(GAP)
    F0.append(lambda: lg.wait("x"))
    F0 += [I(a, s) for s in f"""v_add_f32 v{V_S}, v{xs}, v{T}
v_add_f32 v{V_Q}, v{xs+1}, v{T+1}
v_mov_b32 v{T}, v{V_S}
v_mov_b32 v{T+1}, v{V_Q}
v_mov_b32 v{CE+1}, 0
v_mov_b32 v{CE+2}, 0
v_permlane32_swap_b32 v{T+1}, v{V_Q}""".split("\n")]
    if k.stat != "mix":
        F0 += [I(a, f"v_permlane32_swap_b32 v{T}, v{V_S}"), I(a, f"v_add_f32 v{V_S}, v{V_S}, v{T}")]
    F0 += [I(a, s) for s in f"""v_add_f32 v{V_Q}, v{V_Q}, v{T+1}
v_mul_f32 v{V_S}, {f32(-1/448)}, v{V_S}
v_mul_f32 v{V_Q}, {f32(1/448)}, v{V_Q}
v_and_b32 v{T}, 0xffff0000, v{V_S}
v_fma_f32 v{V_Q}, -v{V_S}, v{V_S}, v{V_Q}
v_sub_f32 v{T+1}, v{V_S}, v{T}
v_max_f32 v{V_Q}, 0, v{V_Q}
v_cndmask_b32 v{T}, v{T}, v{T+1}, s[{S_HI}:{S_HI+1}]
v_add_f32 v{V_Q}, {f32(1e-5)}, v{V_Q}
v_cvt_pk_bf16_f32 v{XE}, v{T}, v{T}
v_rsq_f32 v{V_R}, v{V_Q}
v_mov_b32 v{CE+3}, 0""".split("\n")]
    if nA == 2:
        F0 += [I(a, f"v_mov_b32 v{CE+r}, 0") for r in (5, 6, 7)]
    F0.append(lambda: lg.wait("c"))
    for L in range(nA):
        F0 += [I(a, s) for s in ce_build(CE + 4 * L, T + 4 + 4 * L)]
    def r16(_=None):
        t0, t1 = XR, XR + 1
        l = [I(a, f"""s_lshl_b32 s{S_T2}, s{S_WAVE}, 8
s_add_u32 s{S_T2}, s{S_T2}, {DEAD}
v_lshl_add_u32 v{t0}, v{V_LANE}, 2, s{S_T2}"""),
             lambda: lg.issue("q", f"ds_write_b32 v{t0}, v{V_R}"),
             I(a, f"v_lshrrev_b32 v{t1}, 5, v{V_LANE}"),
             I(a, f"v_lshl_add_u32 v{t1}, v{t1}, 4, s{S_T2}")]
        for q in range(4):
            l.append(lambda q=q: lg.issue("q", f"ds_read_b128 v[{k.R16+4*q}:{k.R16+4*q+3}], v{t1} offset:{32*q}"))
        return l
    if G:
        F0 += [I(a, s) for s in f"""v_mul_f32 v{V_RI}, v{V_Q}, v{V_R}
v_mul_f32 v{V_C0}, {f32(GELU_C0)}, v{V_R}""".split("\n")]
    else:
        F0 += r16()[:2]
    for L in range(nA):
        F0.append(I(a, mf(k.ACC[L], CE + 4 * L, XE, ori[L])))
    if G:
        F0 += [I(a, s) for s in f"""v_mul_f32 v{V_C1}, v{V_R}, v{V_R}
v_mul_f32 v{V_C1}, v{V_C1}, v{V_R}
v_mul_f32 v{V_C1}, {f32(GELU_C1)}, v{V_C1}""".split("\n")]
    else:
        F0 += r16()[2:]
    F0 += [GAP, GAP, GAP]
    if not G:
        F0.append(lambda: lg.wait("q"))
    F0 += epilogue(a, vm, k, kinds[0], k.ACC[0], S_O)
    if nA == 2:
        F0 += epilogue(a, vm, k, kinds[1], k.ACC[1], S_O + 1)
    def fix(acc, orient, slot):
        return ([lambda: lg.issue("c", f"ds_read_b128 v[{T4}:{T4+3}], v{V_T0} offset:{slot*2048}"), GAP, lambda: lg.wait("c")] +
                [I(a, s) for s in ce_build(CE, T4)] + [I(a, "s_nop 1"), I(a, mf(acc, CE, XE, orient))])
    ev = {}
    fl = []
    NPT = len(PFL)
    def touch(i, NTP=NTP):
        def f():
            if PFROW:
                vm.issue("pf", f"buffer_load_dword v{V_DUM}, v{V_PF}, s[{S_X}:{S_X+3}], s{S_PFO} offen{NTP}")
                a(f"s_add_u32 s{S_PFO}, s{S_PFO}, {4 * 4096 // NPT}")
            else:
                vm.issue("pf", f"buffer_load_dword v{V_DUM}, v{V_PF}, s[{S_X}:{S_X+3}], s{S_PFO} offen offset:{i * 2048 // NPT}{NTP}")
        return f
    def wtouch():
        a(f"""s_mul_i32 s{S_T0}, s{S_PK}, 392
s_lshl_b32 s{S_T1}, s{S_T0}, 1""")
        vm.issue("pf", f"buffer_load_dword v{V_DUM}, v{V_L8}, s[{S_WA}:{S_WA+3}], s{S_T0} offen{NTO}")
        vm.issue("pf", f"buffer_load_dword v{V_DUM}, v{V_L16}, s[{S_WB}:{S_WB+3}], s{S_T1} offen{NTO}")
    def xtouch(which):
        def f():
            a(f"""s_and_b32 s{S_T0}, s{S_PK}, 0xfffffc7f
s_min_u32 s{S_T0}, s{S_T0}, 0x1000
s_mul_i32 s{S_T0}, s{S_T0}, {3136 << which}
v_lshlrev_b32 v{V_PF}, {6 + which}, v{V_LANE}""")
            assert min(WPX) > max(PFL + RTL)
            vm.issue("pf", f"buffer_load_dword v{V_DUM}, v{V_PF}, s[{(S_WA, S_WB)[which]}:{(S_WA, S_WB)[which]+3}], s{S_T0} offen")
        return f
    def flag_check():
        vm.wait("cnt")
        a(f"""{lab}_CR:
v_cmp_eq_u32 vcc, 0, v{V_X0}
s_and_b64 vcc, vcc, s[{S_L+1}:{S_L+2}]
s_cbranch_vccnz {lab}_CW
{lab}_CX:""")
    def cnt_load(f):
        a(f"v_lshrrev_b32 v{V_X0}, 1, v{V_L8}")
        f(f"buffer_load_dword v{V_X0}, v{V_X0}, {dbg}, 0 offen sc1")
    ool = [f"""{lab}_CW:
s_addk_i32 s{S_SPIN}, -1
s_cmp_lt_i32 s{S_SPIN}, 0
s_cbranch_scc1 {lab}_CX""", lambda: cnt_load(a), f"""s_waitcnt vmcnt(0)
s_branch {lab}_CR"""]
    lateL = nA + 1
    dm = [line_dma(a, vm, lateL, b, RING, "wc") for b in range(7)]
    XA = XR + 2
    if G:
        F0 += [I(a, f"v_mov_b32 v{T}, v{V_S}"), I(a, f"v_mov_b32 v{T+1}, v{V_Q}"),
               I(a, f"s_lshl_b32 s{S_T0}, s{S_WAVE}, 9\ns_add_u32 s{S_T0}, s{S_T0}, {SCR + 4096}\nv_add_u32 v{XA}, s{S_T0}, v{V_L8}"),
               I(a, f"v_mov_b32 v{V_C0}, 1"),
               I(a, f"v_permlane32_swap_b32 v{T}, v{V_S}"), I(a, f"v_permlane32_swap_b32 v{T+1}, v{V_Q}"),
               I(a, f"v_add_f32 v{V_S}, v{V_S}, v{T}"), I(a, f"v_add_f32 v{V_Q}, v{V_Q}, v{T+1}"),
               lambda: lg.issue("w", f"ds_write_b64 v{XA}, v[{V_S}:{V_Q}]"),
               I(a, f"v_xor_b32 v{XA}, 2048, v{XA}")]
        def rec_store():
            a(f"""s_lshl_b32 s{S_T0}, s{S_CH}, 4
s_lshl_b32 exec_lo, 0xffff, s{S_T0}
s_mov_b32 exec_hi, 0""")
            vm.issue("rec", f"buffer_store_dwordx2 v[{V_S}:{V_Q}], v{V_L8}, {ws}, s{S_REC} offen sc1")
            a(f"s_mov_b64 exec, -1\ns_and_b32 s{S_REC}, s{S_REC}, 0xfffff000")
        FR_ = [lambda: lg.issue("x", f"ds_read_b64 v[{T}:{T+1}], v{XA}"), flag_check, GAP, lambda: lg.wait("x"),
               I(a, f"v_add_f32 v{V_S}, v{V_S}, v{T}"), I(a, f"v_add_f32 v{V_Q}, v{V_Q}, v{T+1}"), rec_store]
    else:
        F0.append(I(a, f"v_mov_b32 v{V_C0}, 1"))
    dm = [lambda: cnt_load(lambda t: vm.issue("cnt", t))] + dm
    def srdfix():
        srd(a, S_X, P_SP, 2048 * 4096)
        if G:
            srd(a, S_WA, P_WO, 448 * 896)
            srd(a, S_WB, P_WOUT, 896 * 896)
        a(f"""s_mov_b32 s{S_L+1}, 0x33333333
s_mov_b32 s{S_L+2}, 0x33333333""")
    ev[1] = pre
    ev[3] = [bar()]
    fl.append((0, 8, dm + [srdfix]))
    if cls == "L":
        for i, p in enumerate(PFL):
            if p >= 0:
                fl.append((p, p, [touch(i, " nt" if NTQ[i] == "1" else "")]))
            if RTL[i] >= 0:
                fl.append((RTL[i], RTL[i], [touch(i, " sc1")]))
        if WPF >= 0:
            fl.append((WPF, WPF, [wtouch]))
        for w in range(2):
            if WPX[w] >= 0:
                fl.append((WPX[w], WPX[w], [xtouch(w)]))
    ctl = []
    if not G:
        for i, p in enumerate(CPF):
            t = lambda i=i: vm.issue("pf", f"buffer_load_dword v{V_DUM}, v{V_PF}, s[{S_X}:{S_X+3}], s{S_PFO} offen offset:{i * 512}")
            if 0 <= p < 28:
                fl.append((p, p, [t]))
            elif p >= 28:
                ctl.append(t)
    ev[12 - D] = [bar("wb")]
    PL = [V_X0, V_DA, XR, XR + 2, CE + 4, CE + 6, V_C1]
    def poll_issue(v):
        for i in range(7):
            t = f"buffer_load_dwordx2 v[{PL[i]}:{PL[i]+1}], v{V_L8}, {ws}, s{S_REC} offen offset:{i*512}"
            if v:
                v.issue("pl", t + (" sc1" if PS1[cls] == "1" else ""))
            elif PMASK:
                a(f"""v_cmp_eq_u32 vcc, -1, v{PL[i]+1}
s_cbranch_vccz {lab}_PS{i}
s_mov_b64 exec, vcc
{t} sc1
s_mov_b64 exec, -1
{lab}_PS{i}:""")
            else:
                a(t + " sc1")
    if nl == 2:
        fl.append((3, F0_END, F0))
        assert F0_END < 28 - D
        FRB = F0_END + 1 if F0_END < 20 else 28 - D
        ev[FRB] = [bar()]
        ev[28 - D] = [bar("wc")]
        fl.append((FRB, FRB + 1, FR_))
        ev[28] = [lambda: lg.issue("w", f"ds_write_b32 v{V_CSA}, v{k.CSA} offset:2048")]
        ev[30] = [bar()]
        F1 = fix(k.ACC[1], ori[1], 1)
        if not ori[1]:
            rr = r16(V_X0)
            F1 = rr[:4] + F1 + [("min", 33)] + rr[4:]
        F1 += [GAP, GAP, GAP]
        if not ori[1]:
            F1.append(lambda: lg.wait("q"))
        F1 += epilogue(a, vm, k, kinds[1], k.ACC[1], S_O + 1)
        fl.append((F1_BEG, F1_END, F1))
        assert POLL_AT >= F1_BEG + 6 or F1_BEG > ZF1
        assert F1_BEG >= 30 and POLL_AT > F0_END + 2
        ev[POLL_AT] = ev.get(POLL_AT, []) + [lambda: poll_issue(vm)]
        if STP:
            ev[24] = [lambda: st.fold(), lambda: st.mark(54)] + ev[24] + [lambda: st.mark(55)]
            ev[POLL_AT] = [lambda: st.mark(56)] + ev[POLL_AT]
            F1.append(lambda: st.mark(61))
        def zflag():
            a(f"v_lshlrev_b32 v{V_S}, 7, v{V_LANE}")
            vm.wait("stG")
            a(f"""s_barrier
s_cmp_eq_u32 s{S_WAVE}, 0
s_cselect_b64 exec, 15, 0
buffer_store_dword v{V_C0}, v{V_S}, {ws}, s{S_CNT} offen sc1
s_mov_b64 exec, -1""")
        if FB >= 0:
            assert ZF1 < FB < 56
            ev[FB] = [zflag]
        def poll_check():
            if STP: st.mark(57)
            vm.wait("pl")
            if STP: st.mark(58)
            a(f"""{lab}_PR:
v_max3_u32 v{V_S}, v{PL[0]+1}, v{PL[1]+1}, v{PL[2]+1}
v_max3_u32 v{V_Q}, v{PL[3]+1}, v{PL[4]+1}, v{PL[5]+1}
v_max3_u32 v{V_S}, v{V_S}, v{V_Q}, v{PL[6]+1}
v_cmp_eq_u32 vcc, -1, v{V_S}
s_cbranch_vccnz {lab}_PW
{lab}_PX:""")
        ool += [f"""{lab}_PW:
s_sleep {PSL}
s_addk_i32 s{S_SPIN}, -1
s_cmp_lt_i32 s{S_SPIN}, 0
s_cbranch_scc1 {lab}_PX""", lambda: poll_issue(None), f"s_waitcnt vmcnt(0)\ns_branch {lab}_PR"]
        ZF = [poll_check] + ([lambda: st.mark(59)] if STP else [])
        for x, y in ((0, 1), (2, 3), (4, 5), (0, 2), (4, 6), (0, 4)):
            for h in range(2):
                ZF.append(I(a, f"v_add_f32 v{PL[x]+h}, v{PL[x]+h}, v{PL[y]+h}"))
        p0, p1 = PL[0], PL[1]
        z = k.ACC[0]
        ZF += [I(a, t) for t in f"""v_mov_b32 v{p1}, v{p0}
v_mov_b32 v{p1+1}, v{p0+1}
s_nop 0
v_permlane32_swap_b32 v{p1}, v{p0}
v_permlane32_swap_b32 v{p1+1}, v{p0+1}
v_add_f32 v{p0}, v{p0}, v{p1}
v_add_f32 v{p0+1}, v{p0+1}, v{p1+1}
v_mul_f32 v{p0}, {f32(-1/896)}, v{p0}
v_mul_f32 v{p0+1}, {f32(1/896)}, v{p0+1}
v_fma_f32 v{p0+1}, -v{p0}, v{p0}, v{p0+1}
v_max_f32 v{p0+1}, 0, v{p0+1}
v_add_f32 v{p0+1}, {f32(1e-5)}, v{p0+1}
v_rsq_f32 v{p0+1}, v{p0+1}
s_nop 0
v_mul_f32 v{p0}, v{p0}, v{p0+1}""".split("\n")]
        stz = store_tile(a, vm, "G", z, S_O)
        for hf in range(2):
            ZF += [I(a, f"v_fma_f32 v{z+r}, v{z+r}, v{p0+1}, v{p0}") for r in range(8 * hf, 8 * hf + 8)]
            ZF += [I(a, f"v_cvt_pk_bf16_f32 v{z+r}, v{z+2*r}, v{z+2*r+1}") for r in range(4 * hf, 4 * hf + 4)]
            ZF.append(stz[hf])
        if STP:
            ZF.append(lambda: st.mark(60))
        fl.append((ZF0, ZF1, ZF))
    else:
        fl.append((3, 27, F0))
    pos = [0] * len(fl)
    for p in range(NS):
        for f in ev.get(p, []):
            f()
        if p in (14, 28, 42):
            st.mark(7 + (p - 14) // 14)
        lg.wait(f"r{p}")
        L = nA + p // 28
        b = k.BR + 4 * (p % NBR)
        a(mf(k.ACC[L], b, A0 + 4 * (p % 28), ori[L], p % 28 == 0))
        if p + D < NS:
            for f in rd(p + D):
                f()
        for n, (s0, s1, lst) in enumerate(fl):
            if p < s0:
                continue
            left = len(lst) - pos[n]
            cnt = left if p >= s1 else (left + (s1 - p)) // (s1 - p + 1)
            while cnt > 0 and pos[n] < len(lst):
                f = lst[pos[n]]
                if isinstance(f, tuple):
                    if p < f[1]:
                        break
                    pos[n] += 1
                    continue
                pos[n] += 1
                if f is GAP:
                    break
                f()
                cnt -= 1
            if p == F0_END and lst is F0 and nl == 2:
                assert pos[n] == len(lst)
        if (p & 3) == 0:
            a(mf16(k.CSA, b, p % 28 == 0))
    for n, (s0, s1, lst) in enumerate(fl):
        assert pos[n] == len(lst), (n, pos[n], len(lst))
    st.fold()
    st.mark(10)
    def run(lst):
        for f in lst:
            if f is not GAP:
                f()
    LL = nA + nl - 1
    a(f"ds_write_b32 v{V_CSA}, v{k.CSA}")
    if G:
        if FAE:
            vm.wait("stQ", "stK", *(["stG"] if FAE > 1 else []))
        vm.q = ["st1"]
        if lab == "P1_A":
            a("P1_GT:")
            def last(part, pre=""):
                if part == 0:
                    a("s_waitcnt lgkmcnt(0)\n" + pre + "\ns_barrier")
                    lg.q = []
                    st.mark(11)
                else:
                    run(fix(k.ACC[LL], ori[LL], 0))
                    a(f"""v_rcp_f32 v{V_RI}, v{V_R}
v_mul_f32 v{V_C1}, v{V_R}, v{V_R}
v_mul_f32 v{V_C0}, {f32(GELU_C0)}, v{V_R}
v_mul_f32 v{V_C1}, v{V_C1}, v{V_R}
v_mul_f32 v{V_C1}, {f32(GELU_C1)}, v{V_C1}""")
                    return epilogue(a, vm, k, kinds[LL], k.ACC[LL], S_O + LL)
            last.store = lambda v: store_tile(a, v, "L", k.CV, S_O + LL)
            last.cv = k.CV
            hook_main(a, vm, st, last)
        else:
            st.pend = []
            a("s_branch P1_GT")
    else:
        vm.wait("wc")
        a("s_waitcnt lgkmcnt(0)\ns_barrier")
        lg.q = []
        st.mark(11)
        a(f"s_cmp_eq_u32 s{S_CH}, 0\ns_cbranch_scc0 {lab}_CH1")
        v0, l0 = vm.q[:], lg.q[:]
        run(fix(k.ACC[2], ori[2], 0))
        a("s_nop 11")
        run(epilogue(a, vm, k, kinds[2], k.ACC[2], S_O + 2))
        a(f"s_barrier\ns_branch {lab}_J")
        a(f"{lab}_CH1:")
        vm.q, lg.q = v0, l0
        for i in range(4):
            a(f"v_add_u32 v{WR+i}, {RING}, v{WR+i}")
            a(f"v_xor_b32 v{WR+i}, s{S_T3}, v{WR+i}")
        for p in range(D):
            run(rd(p))
        F = fix(k.ACC[2], ori[2], 0) + [GAP, GAP, GAP] + epilogue(a, vm, k, kinds[2], k.ACC[2], S_O + 2)
        q = 0
        for p in range(28):
            lg.wait(f"r{p}")
            b = k.BR + 4 * (p % NBR)
            a(mf(k.ACC[3], b, A0 + 4 * p, ori[3], p == 0))
            if p + D < 28:
                run(rd(p + D))
            for c in range(3):
                if q < len(F):
                    f = F[q]; q += 1
                    if f is GAP: break
                    f()
            if (p & 3) == 0:
                a(mf16(k.CSA, b, p == 0))
        assert q == len(F)
        a(f"ds_write_b32 v{V_CSA}, v{k.CSA} offset:2048\ns_waitcnt lgkmcnt(0)\ns_barrier")
        lg.q = []
        run(fix(k.ACC[3], ori[3], 1))
        a("s_nop 11")
        run(epilogue(a, vm, k, kinds[3], k.ACC[3], S_O + 3))
        a(f"{lab}_J:")
        vm.q = ["stV"]
        flag_check()
        hook_att(a, vm, st, ctl)
    for o in ool:
        if callable(o):
            o()
        else:
            a(o)

TAILQ = []
GAP = object()

def kind_start(a, vm, k, st):
    nA = k.nA
    a(f"""s_mul_i32 s{S_MR}, s{S_WAVE}, {k.WST}
v_add_u32 v{V_X1}, {8*896 - (1+nA)*1024}, v{V_X1}""")
    if nA == 1:
        a(f"""s_mul_i32 s{S_T2}, s{S_WAVE}, {8*3584}
s_lshl_b32 s{S_T3}, s{S_G}, 7
s_add_u32 s{S_L+2}, s{S_T2}, s{S_T3}
s_add_u32 s{S_L}, s{S_L+2}, {1792 - 1024}
s_add_u32 s{S_L+1}, s{S_T1}, s{S_T3}
s_mov_b32 s{S_A64}, {64*3584}
v_mul_u32_u24 v{V_DA}, 3584, v{T4}
v_add_u32 v{V_DA}, v{V_DA}, v{T4+2}
s_waitcnt lgkmcnt(0)""")
        srd(a, S_WA, P_WIN, 448 * 3584)
    else:
        a(f"""s_and_b32 s{S_T3}, s{S_G}, 1
s_lshl_b32 s{S_T3}, s{S_T3}, 9
s_add_u32 s{S_T3}, s{S_T3}, s{S_T1}
s_add_u32 s{S_L}, s{S_T3}, {1792 - 1024}
s_add_u32 s{S_L+1}, s{S_T3}, {1792 + 256 - 2048}
s_add_u32 s{S_L+2}, s{S_T3}, {1792 + 128}
s_add_u32 s{S_L+3}, s{S_T1}, {1792 + 384}
s_mov_b32 s{S_A64}, {B64}
v_mov_b32 v{V_DA}, v{V_DB}
s_waitcnt lgkmcnt(0)""")
        srd(a, S_WA, P_QKV, 448 * 2688)
        srd(a, S_WB, P_QKV, 448 * 2688)
    srd(a, S_X, P_X, 2048 * 896)
    st.mark(2)
    for j in range(k.DEPTH):
        for f in piece_dma(a, vm, k, j):
            f()
        if j == 0:
            lab = a.label("P1_T")
            strd = 3584 if nA == 1 else 2688
            if TOUCH:
                a(f"""s_and_b32 s{S_T2}, s{S_RB}, 3
s_mul_i32 s{S_T2}, s{S_T2}, 112
s_and_b32 s{S_T3}, s{S_WAVE}, 1
s_lshl_b32 s{S_T3}, s{S_T3}, 6
s_add_u32 s{S_T2}, s{S_T2}, s{S_T3}
s_lshl_b32 s{S_T3}, s{S_WAVE}, 3
s_sub_u32 s{S_T2}, s{S_T2}, s{S_T3}
s_mul_i32 s{S_T2}, s{S_T2}, {strd}
s_add_u32 s{S_T2}, s{S_T2}, s{S_L}
s_and_b32 s{S_T3}, s{S_WAVE}, {2 * (nA - 1)}
s_lshl_b32 s{S_T3}, s{S_T3}, 7
s_add_u32 s{S_T2}, s{S_T2}, s{S_T3}
s_add_u32 s{S_T2}, s{S_T2}, {(1024 - 64 * strd) & 0xffffffff}
v_mul_u32_u24 v{XR}, {strd}, v{V_LANE}
s_lshl_b32 s{S_T3}, s{S_RB}, 2
s_add_u32 s{S_T3}, s{S_T3}, s{S_PK}
s_mul_i32 s{S_T3}, s{S_T3}, {32*896}
s_lshl_b32 s{S_T1}, s{S_WAVE}, 13
s_add_u32 s{S_T3}, s{S_T3}, s{S_T1}
v_lshlrev_b32 v{XR+1}, 7, v{V_LANE}""")
            if PBAR:
                a("s_barrier")
            if TOUCH:
                a(f"""s_cmp_ge_u32 s{S_WAVE}, 4
s_cbranch_scc1 {lab}w
buffer_load_dword v{A0+96}, v{XR+1}, s[{S_X}:{S_X+3}], s{S_T3} offen
s_branch {lab}e
{lab}w:""")
                vm.issue("t0", f"""buffer_load_dword v{A0+96}, v{XR}, s[{S_WA}:{S_WA+3}], s{S_T2} offen
{lab}e:""")
    if nA == 1:
        srd(a, S_WB, P_QKV, 448 * 2688)
    if WSB:
        a(f"s_add_u32 s{P_WS}, s{P_WS}, {WSB}\ns_addc_u32 s{P_WS+1}, s{P_WS+1}, 0")
    srd(a, S_WS, P_WS, WS_SIZE)
    srd(a, S_SP, P_DBG, 256)
    a(f"""s_lshl_b32 s{S_T0}, s{S_CH}, 1
s_xor_b32 s{S_XO}, s{S_T0}, s{S_RW}
v_and_b32 v{T4}, 31, v{V_LANE}
v_lshrrev_b32 v{T4+1}, 5, v{V_LANE}
v_bfe_u32 v{T4+2}, v{V_LANE}, 1, 3
v_xor_b32 v{T4+2}, v{T4+2}, v{T4+1}
s_lshl_b32 s{S_T1}, s{S_XO}, 1
v_xor_b32 v{T4+2}, s{S_T1}, v{T4+2}
v_lshlrev_b32 v{T4+2}, 4, v{T4+2}
v_and_b32 v{T4+3}, 7, v{V_LANE}
v_lshl_add_u32 v{T4+2}, v{T4+3}, 7, v{T4+2}
v_bfe_u32 v{T4+3}, v{V_LANE}, 3, 1
v_mul_u32_u24 v{XR}, {(1+nA)*1024}, v{T4+3}
v_bfe_u32 v{T4+3}, v{V_LANE}, 4, 1
v_mul_u32_u24 v{T4+3}, {k.WST}, v{T4+3}
s_mul_i32 s{S_T1}, s{S_RW}, {2*k.WST}
s_add_u32 s{S_T1}, s{S_T1}, {RING}
v_add3_u32 v{T4+3}, v{T4+3}, v{XR}, s{S_T1}""")
    for i in range(4):
        a(f"v_xor_b32 v{XR+i}, {i << 5}, v{T4+2}")
        a(f"v_add_u32 v{XR+i}, v{T4+3}, v{XR+i}")
    a(f"""v_lshlrev_b32 v{V_KO}, 5, v{T4}
v_lshl_add_u32 v{V_KO}, v{T4+1}, 4, v{V_KO}
s_lshl_b32 s{S_T1}, s{S_CH}, 6
v_and_b32 v{T4}, 3, v{V_LANE}
v_lshlrev_b32 v{T4}, 3, v{T4}
v_and_b32 v{T4+2}, 16, v{V_LANE}
v_lshl_add_u32 v{T4}, v{T4+2}, 1, v{T4}
v_and_b32 v{T4+2}, 8, v{V_LANE}
v_lshlrev_b32 v{T4+2}, 3, v{T4+2}
v_xor_b32 v{T4+2}, s{S_T1}, v{T4+2}
v_or_b32 v{T4}, v{T4}, v{T4+2}
v_bfe_u32 v{T4+2}, v{V_LANE}, 2, 2
v_lshl_add_u32 v{T4}, v{T4+2}, 7, v{T4}
v_lshl_add_u32 v{V_T0}, v{T4+1}, 10, v{T4}
v_mul_u32_u24 v{T4+1}, {k.WST}, v{T4+1}
v_add_u32 v{T4}, v{T4}, v{T4+1}""")
    for i in range(4):
        a(f"""s_xor_b32 s{S_T2}, s{S_XO}, {i}
s_mul_i32 s{S_T2}, s{S_T2}, {2*k.WST}
s_add_u32 s{S_T2}, s{S_T2}, {RING + 1024}
v_add_u32 v{WR+i}, s{S_T2}, v{T4}""")
    a(f"""v_lshlrev_b32 v{V_L16}, 4, v{V_LANE}
v_lshlrev_b32 v{V_L8}, 3, v{V_LANE}
s_lshl_b32 s{S_T0}, s{S_CH}, 10
s_lshl_b32 s{S_T1}, s{S_RW}, 2
s_add_u32 s{S_T0}, s{S_T0}, s{S_T1}
s_add_u32 s{S_T0}, s{S_T0}, {SCR}
v_add_u32 v{V_CSA}, s{S_T0}, v{V_L16}
v_mov_b32 v{V_S}, 0
v_mov_b32 v{V_Q}, 0
v_mov_b32 v{V_R}, 0
v_mov_b32 v{V_C0}, 0
s_mov_b32 s{S_HI}, 0xf0f00f0f
s_mov_b32 s{S_HI+1}, 0xf0f00f0f
v_mov_b32 v{T4}, 0x3f803f80
v_cndmask_b32 v{SEL}, 0, v{T4}, s[{S_HI}:{S_HI+1}]
v_cndmask_b32 v{SEL+1}, 0, v{T4}, s[{S_HI}:{S_HI+1}]
v_cndmask_b32 v{SEL+2}, 0, v{T4}, s[{S_HI}:{S_HI+1}]
v_cndmask_b32 v{SEL+3}, 0, v{T4}, s[{S_HI}:{S_HI+1}]
s_mov_b32 s{S_HI}, 0
s_mov_b32 s{S_HI+1}, -1
v_mov_b32 v{XE+1}, 0
v_mov_b32 v{XE+2}, 0
v_mov_b32 v{XE+3}, 0
v_mov_b32 v{V_DUM}, 1
s_lshl_b32 s{S_MW}, s{S_WAVE}, 10
s_mov_b32 s{S_SPIN}, {E("SPIN", "0x8000")}
s_lshl_b32 s{S_T0}, s{S_RB}, 2
s_add_u32 s{S_T0}, s{S_T0}, s{S_RW}
s_mul_i32 s{S_T2}, s{S_T0}, 28672""")
    if nA == 1:
        lg2 = {1: 0, 2: 1, 4: 2}[len(PFL)]
        a(f"""; touchers: 16 per XCD ; rank = fq*2 + (i&1) if i >= 2 ; 14 + fq if i == 1 and fq < 2
s_lshr_b32 s{S_T1}, s2, 5
s_add_u32 s{S_T3}, s{S_T1}, 14
s_lshl_b32 s{S_T1}, s{S_T1}, 1
s_bfe_u32 s{S_PK}, s2, 0x10003
s_add_u32 s{S_T1}, s{S_T1}, s{S_PK}
s_and_b32 s{S_PK}, s2, 0xd8
s_cmp_eq_u32 s{S_PK}, 0x8
s_cselect_b32 s{S_PK}, s{S_T3}, 0x20000
s_bitcmp1_b32 s2, 4
s_cselect_b32 s{S_PK}, s{S_T1}, s{S_PK}
s_lshl_b32 s{S_PK}, s{S_PK}, 3
s_add_u32 s{S_PK}, s{S_PK}, s{S_WAVE}
s_min_u32 s{S_T1}, s{S_PK}, 0x8000
s_and_b32 s{S_T3}, s{S_T1}, 0xffe0
s_add_u32 s{S_T1}, s{S_T1}, s{S_T3}
s_lshl_b32 s{S_T1}, s{S_T1}, 14
v_lshrrev_b32 v{T4}, {4 + lg2 if PFROW else 4}, v{V_LANE}
v_bfe_u32 v{V_PF}, v{V_LANE}, {lg2}, {4 if PFROW else 4 - lg2}
v_lshlrev_b32 v{V_PF}, 7, v{V_PF}
v_lshl_add_u32 v{V_PF}, v{T4}, 12, v{V_PF}
v_add_u32 v{V_PF}, s{S_T1}, v{V_PF}
s_and_b32 s{S_T1}, s2, 7
s_lshl_b32 s{S_T1}, s{S_T1}, 7
s_add_u32 s{S_PK}, s{S_PK}, s{S_T1}
s_and_b32 s{S_T1}, s2, 4
s_lshl_b32 s{S_PFO}, s{S_T1}, 20
s_and_b32 s{S_T1}, s2, 2
s_lshl_b32 s{S_T1}, s{S_T1}, 18
s_add_u32 s{S_PFO}, s{S_PFO}, s{S_T1}
s_and_b32 s{S_T1}, s2, 1
s_lshl_b32 s{S_T1}, s{S_T1}, 11
s_add_u32 s{S_PFO}, s{S_PFO}, s{S_T1}
v_mov_b32 v{V_L2E}, {f32(LOG2E)}
s_lshl_b32 s{S_T3}, s{S_G}, 1
s_add_u32 s{S_T3}, s{S_T3}, s{S_CH}
s_lshl_b32 s{S_O}, s{S_T3}, 17
s_lshl_b32 s{S_T1}, s{S_T0}, 11
s_add_u32 s{S_O}, s{S_O}, s{S_T1}
; z1
s_lshl_b32 s{S_T1}, s{S_T3}, 10
s_add_u32 s{S_T1}, s{S_T1}, s{S_T2}
s_lshl_b32 s{S_O+2}, s{S_T1}, 1
s_add_u32 s{S_O+2}, s{S_O+2}, {WS_Z1}""")
        assert WS_Z2 == 0
        if k.kinds[1] == "Q":
            a(f"""s_lshl_b32 s{S_T1}, s{S_T3}, 11
s_add_u32 s{S_T1}, s{S_T1}, s{S_T2}
s_add_u32 s{S_O+1}, s{S_T1}, {WS_Q}""")
        else:
            a(f"s_add_u32 s{S_O+1}, s{S_T1}, {WS_K - 14*1024}")
        a(f"""; record: ST + st*4096 + g*256
s_lshl_b32 s{S_T0}, s{S_T0}, 4
s_add_u32 s{S_T0}, s{S_T0}, s{S_G}
s_lshl_b32 s{S_T0}, s{S_T0}, 8
s_add_u32 s{S_REC}, s{S_T0}, {WS_ST}
s_and_b32 s{S_T0}, s{S_G}, 14
s_lshr_b32 s{S_T1}, s{S_RB}, 3
s_add_u32 s{S_T0}, s{S_T0}, s{S_T1}
s_lshl_b32 s{S_T0}, s{S_T0}, 6
s_and_b32 s{S_T1}, s{S_RB}, 7
s_add_u32 s{S_T0}, s{S_T0}, s{S_T1}
s_lshl_b32 s{S_T0}, s{S_T0}, 1
s_and_b32 s{S_T1}, s{S_G}, 1
s_add_u32 s{S_T0}, s{S_T0}, s{S_T1}
s_lshl_b32 s{S_T0}, s{S_T0}, 2
s_add_u32 s{S_CNT}, s{S_T0}, {WS_FZ}""")
    else:
        a(f"""; tiles 8(g-14) + ch + 0,4,2 ; extra tile 6 + (g-14)
s_and_b32 s{S_T0}, s{S_G}, 1
s_lshl_b32 s{S_T1}, s{S_T0}, 3
s_add_u32 s{S_T1}, s{S_T1}, s{S_CH}
s_lshl_b32 s{S_T1}, s{S_T1}, 10
s_add_u32 s{S_T2}, s{S_T2}, {WS_V}
s_add_u32 s{S_O}, s{S_T1}, s{S_T2}
s_add_u32 s{S_O+1}, s{S_O}, 4096
s_add_u32 s{S_O+2}, s{S_O}, 2048
s_lshl_b32 s{S_T1}, s{S_T0}, 10
s_add_u32 s{S_T1}, s{S_T1}, s{S_T2}
s_add_u32 s{S_O+3}, s{S_T1}, 6144
s_lshl_b32 s{S_CNT}, s{S_RB}, 2
s_add_u32 s{S_CNT}, s{S_CNT}, s{S_T0}
s_lshl_b32 s{S_CNT}, s{S_CNT}, 2
s_lshl_b32 s{S_T1}, s{S_RB}, 1
s_add_u32 s{S_T1}, s{S_T1}, s{S_T0}
s_lshl_b32 s{S_T1}, s{S_T1}, 3
s_add_u32 s{S_T1}, s{S_T1}, s{S_WAVE}
s_lshl_b32 s{S_T2}, s{S_T1}, 8
s_add_u32 s{S_T2}, s{S_T2}, {WS_FL}
s_lshl_b32 s{S_T1}, s{S_T1}, 10
s_add_u32 s{S_REC}, s{S_T1}, {WS_ST}
s_xor_b32 s{S_T0}, s{S_T0}, 1
s_lshl_b32 s{S_T3}, s{S_T0}, 6
v_mov_b32 v{T4}, -1
v_mov_b32 v{T4+1}, -1
v_mov_b32 v{T4+2}, -1
v_mov_b32 v{T4+3}, -1
v_lshlrev_b32 v{V_L2E}, 2, v{V_LANE}
v_lshrrev_b32 v{V_PF}, 2, v{V_LANE}
v_lshlrev_b32 v{V_PF}, 5, v{V_PF}
v_and_or_b32 v{V_PF}, v{V_LANE}, 3, v{V_PF}
v_lshlrev_b32 v{V_PF}, 7, v{V_PF}
s_and_b32 s{S_T0}, s2, 6
s_lshl_b32 s{S_T0}, s{S_T0}, 4
s_and_b32 s{S_T1}, s2, 24
s_add_u32 s{S_T0}, s{S_T0}, s{S_T1}
s_add_u32 s{S_T0}, s{S_T0}, s{S_WAVE}
s_lshl_b32 s{S_T0}, s{S_T0}, 5
s_and_b32 s{S_T1}, s2, 1
s_add_u32 s{S_T0}, s{S_T0}, s{S_T1}
s_lshl_b32 s{S_PFO}, s{S_T0}, 11""")
        vm.issue("clr", f"buffer_store_dwordx4 v[{T4}:{T4+3}], v{V_L16}, s[{S_WS}:{S_WS+3}], s{S_REC} offen sc1")
        vm.issue("clr", f"buffer_store_dword v{XE+1}, v{V_L2E}, s[{S_WS}:{S_WS+3}], s{S_T2} offen sc1")
        a(f"s_lshl_b32 s{S_T2}, s{S_T2}, 1\ns_add_u32 s{S_T2}, s{S_T2}, {(WS_XB - 2 * WS_FL) & 0xffffffff}")
        vm.issue("clr", f"buffer_store_dwordx2 v[{T4}:{T4+1}], v{V_L8}, s[{S_WS}:{S_WS+3}], s{S_T2} offen sc1")
    a(f"""; own flags: FL + rb*2048 + g*4
s_lshl_b32 s{S_FL}, s{S_RB}, 9
s_add_u32 s{S_FL}, s{S_FL}, s{S_G}
s_lshl_b32 s{S_FL}, s{S_FL}, 2
s_add_u32 s{S_FL}, s{S_FL}, {WS_FL}""")

PBAR = int(E('P1_PBAR', '1'))
def gen_p1(a, name, st, hook_main, hook_att):
    kernel_begin(a, name)
    a(f"""s_cmp_ge_u32 s2, 256
s_cbranch_scc1 K_EXIT
s_load_dwordx16 s[64:79], s[0:1], 0
s_load_dwordx4 s[56:59], s[0:1], 72
s_load_dwordx2 s[60:61], s[0:1], 64""")
    st.mark(0, True)
    st.mark(1)
    st.init()
    a(f"""v_and_b32 v{V_LANE}, 63, v0
v_lshrrev_b32 v{V_T0}, 6, v0
s_lshr_b32 s{S_G}, s2, 5
v_readfirstlane_b32 s{S_WAVE}, v{V_T0}
s_lshl_b32 s{S_G}, s{S_G}, 1
s_and_b32 s{S_T0}, s2, 1
s_add_u32 s{S_G}, s{S_G}, s{S_T0}
s_and_b32 s{S_T0}, s2, 4
s_bfe_u32 s{S_T1}, s2, 0x20003
s_add_u32 s{S_RB}, s{S_T0}, s{S_T1}
s_lshl_b32 s{S_RB}, s{S_RB}, 1
s_bfe_u32 s{S_T0}, s2, 0x10001
s_add_u32 s{S_RB}, s{S_RB}, s{S_T0}
s_and_b32 s{S_RW}, s{S_WAVE}, 3
s_lshr_b32 s{S_CH}, s{S_WAVE}, 2
s_lshl_b32 s{S_T0}, s{S_RB}, 3
s_add_u32 s{S_T0}, s{S_T0}, s{S_WAVE}
s_mul_i32 s{S_XB}, s{S_T0}, {16*896}
s_mul_i32 s{S_T1}, s{S_WAVE}, {8*2688}
v_lshrrev_b32 v{T4}, 3, v{V_LANE}
v_and_b32 v{T4+1}, 7, v{V_LANE}
v_lshrrev_b32 v{T4+2}, 4, v{V_LANE}
v_xor_b32 v{T4+2}, v{T4+2}, v{T4+1}
v_mul_u32_u24 v{V_X0}, 896, v{T4}
v_xor_b32 v{T4+3}, 4, v{T4+2}
v_lshl_add_u32 v{V_X1}, v{T4+3}, 4, v{V_X0}
v_lshl_add_u32 v{V_X0}, v{T4+2}, 4, v{V_X0}
v_lshlrev_b32 v{T4+2}, 1, v{T4}
v_and_b32 v{T4+2}, 4, v{T4+2}
v_xor_b32 v{T4+2}, v{T4+2}, v{T4+1}
v_lshlrev_b32 v{T4+2}, 4, v{T4+2}
v_mul_u32_u24 v{V_DB}, 2688, v{T4}
v_add_u32 v{V_DB}, v{V_DB}, v{T4+2}
s_cmp_ge_u32 s{S_G}, 14
s_cbranch_scc1 P1_KC
s_cmp_ge_u32 s{S_G}, 7
s_cbranch_scc1 P1_KB""")
    for lab, kinds in (("P1_A", "GQL"), ("P1_B", "GKL"), ("P1_C", "VVVV")):
        a(f"{lab.replace('_', '_K')}:")
        k = K(kinds)
        vm = VM(a)
        s2 = st.copy()
        kind_start(a, vm, k, s2)
        kind_body(a, vm, k, s2, lab, hook_main, hook_att)
```

```python
from common import *
import os
import f1
from f1 import LG, I, S_WS, S_WAVE, S_RW, S_CH, S_T0, S_T1, S_T2, S_T3, S_SPIN, S_FL, V_LANE, V_L16, V_L8, V_KO, XE
from f1 import P_X, P_WO, P_BSP, P_WOUT, P_OUT, S_CNT, V_S
E = os.environ.get
Z1S = int(E("P2_Z1S", "1"))
Z1D = int(E("P2_Z1D", "1"))
Z1B = int(E("P2_Z1B", "6"))
N0 = int(E("P2_N0", "8"))
LA = int(E("P2_LA", "3"))
NC = int(E("P2_NC", "2"))
LEP = int(E("P2_LEP", "1"))
CEP = int(E("P2_CEP", "24"))
TB = int(E("P2_TB", "0"))
ZP0 = int(E("P2_ZP0", "57"))
BST = int(E("P2_BST", "7"))
LEAD = int(E("P2_LEAD", "12"))
GTAIL = int(E("P2_GT", "2"))
AHEAD = int(E("P3_AHEAD", "6"))
BS = [int(x) for x in E("P2_BS", "13,13,14,15,16,17,17").split(",")]
EB = int(E("P2_EB", "15"))
ATOUCH = int(E("A_TOUCH", "1"))
NT2 = [" nt" if c == "1" else "" for c in E("P2_NT", "0000")]
PT = [int(x) for x in E("P2_PT", "-9,-9,-9,-9").split(",")]
ZSL, ASL, HSL = [int(x) for x in E("SLP", "2,4,1").split(",")]
SF = " sc1"
AH0 = int(E("P3_AH0", "2"))
XAT = int(E("P3_XAT", "10"))
NTA = " nt" if int(E("A_NT", "0")) else ""
OPOLL = int(E("P3_OPOLL", "4"))
PRIO = int(E("P2_PRIO", "2"))
STM = int(E("STM", "0"))
SM0 = 7 if STM == 2 else 0
ROT2 = int(E("P2_ROT", "0"))
ROT3 = int(E("P3_ROT", "0"))
S_U, S_UZ, S_UW, S_FZB, S_BR = 62, 63, 45, 52, 51
SEQ = [13, 9, 10, 11, 12, 1, 2, 3, 4, 5, 6, 7, 8, 0]
NST = 16
SLOT = [0, 131072, 65536, 98304]
HB = 57344
S_SP, S_X = 12, 12
S_OUT, S_WO, S_W2, S_B = 4, 16, 20, 20
S_TT, S_FQ, S_KH, S_ZB, S_AB, S_MW, S_O, S_C1, S_M = 28, 29, 37, 38, 39, 40, 41, 42, 43
assert S_TT == f1.S_RB
S_M2 = 44
ZL = 32768
S_M64, S_A, S_XO = 46, 47, 48
ws = f"s[{S_WS}:{S_WS+3}]"
ACC3, AFR, BFR, EFR, XV, TR, V_XO, V_W = 16, 48, 192, 216, 224, 244, 250, 251

def spoll(a, lab, loads, regs, ool, sleep=0):
    a(f"{lab}_R:")
    a(loads)
    a("s_waitcnt lgkmcnt(0)")
    for r in regs[1:]:
        a(f"s_and_b64 s[{regs[0]}:{regs[0]+1}], s[{regs[0]}:{regs[0]+1}], s[{r}:{r+1}]")
    a(f"""s_and_b32 s{regs[0]}, s{regs[0]}, s{regs[0]+1}
s_cbranch_scc1 {lab}_X
{f"s_sleep {sleep}" if sleep else ""}
s_addk_i32 s{S_SPIN}, -1
s_cmp_lt_i32 s{S_SPIN}, 0
s_cbranch_scc0 {lab}_R
{lab}_X:""")

def p3_tr_setup(a, T):
    a(f"""v_bfe_u32 v{T}, v{V_LANE}, 2, 2
v_lshrrev_b32 v{T+1}, 5, v{V_LANE}
v_lshl_add_u32 v{T}, v{T+1}, 2, v{T}
v_lshlrev_b32 v{TR}, 7, v{T}
v_and_b32 v{T}, 3, v{V_LANE}
v_lshl_add_u32 v{TR}, v{T}, 3, v{TR}
v_and_b32 v{T}, 16, v{V_LANE}
v_lshl_add_u32 v{TR}, v{T}, 1, v{TR}
v_and_b32 v{T}, 8, v{V_LANE}
v_lshl_add_u32 v{TR}, v{T}, 3, v{TR}
s_lshl_b32 s{S_T0}, s{S_RW}, 5
v_xor_b32 v{TR}, s{S_T0}, v{TR}
s_lshl_b32 s{S_T0}, s{S_RW}, 11
s_add_u32 s{S_T0}, s{S_T0}, {HB}
v_add_u32 v{TR+2}, s{S_T0}, v{TR}
s_mul_i32 s{S_T0}, s{S_RW}, 14336
v_add_u32 v{TR}, s{S_T0}, v{TR}
v_xor_b32 v{TR+1}, 64, v{TR}
v_xor_b32 v{TR+3}, 64, v{TR+2}
v_add_u32 v{TR+4}, 0x10000, v{TR+2}
v_add_u32 v{TR+5}, 0x10000, v{TR+3}""")

def b_reads(kind, i, dst):
    if kind == "o":
        r, off = TR, (28 * (i >> 1) + 16 * (i & 1)) * 128
    else:
        r, off = (TR + 2, i * 8192) if i < 8 else (TR + 4, i * 8192 - 65536)
    return [f"ds_read_b64_tr_b16 v[{dst+4*ni+2*h}:{dst+4*ni+2*h+1}], v{r+ni} offset:{off + 1024*h}" for ni in range(2) for h in range(2)]

def p3_setup(a):
    srd(a, S_X, P_X, 2048 * 896)
    srd(a, S_OUT, P_OUT, 2048 * 896)
    a(f"""; tt32 = 2*m64 + ch
s_lshl_b32 s{S_T0}, s{S_M64}, 1
s_add_u32 s{S_T0}, s{S_T0}, s{S_CH}
s_mul_i32 s{S_XO}, s{S_T0}, {32*896}
s_lshl_b32 s{S_T1}, s{S_FQ}, 2
s_add_u32 s{S_T1}, s{S_T1}, s{S_RW}
s_lshl_b32 s{S_T1}, s{S_T1}, 5
s_add_u32 s{S_XO}, s{S_XO}, s{S_T1}
s_mul_i32 s{S_T0}, s{S_T0}, {144*1024}
s_add_u32 s{S_T0}, s{S_T0}, {WS_AF}
s_and_b32 s{S_T1}, s{S_M64}, {3 if ROT3 else 0}
s_add_u32 s{S_T1}, s{S_T1}, s{S_RW}
s_and_b32 s{S_T1}, s{S_T1}, 3
s_lshl_b32 s{S_T1}, s{S_T1}, 13
s_add_u32 s{S_A}, s{S_T0}, s{S_T1}
s_mul_i32 s{S_T1}, s{S_RW}, {14*1024}
s_add_u32 s{S_O}, s{S_T0}, s{S_T1}
s_add_u32 s{S_O}, s{S_O}, {32*1024}
v_and_b32 v{V_XO}, 31, v{V_LANE}
v_mul_u32_u24 v{V_XO}, 896, v{V_XO}
v_lshrrev_b32 v{V_W}, 5, v{V_LANE}
v_lshl_add_u32 v{V_XO}, v{V_W}, 4, v{V_XO}
v_add_u32 v{V_W}, {56*1024}, v{V_L16}""")

def loader(a, vm, st, last, ool):
    VD, VZ, VP, VB = 2, 6, 10, 11
    T0, T2 = 12, 13
    zok = set()
    ids(a)
    a(f"""s_lshl_b32 s{S_T0}, s{S_FQ}, 1
s_add_u32 s{S_T0}, s{S_T0}, s{S_KH}
s_lshl_b32 s{S_T0}, s{S_T0}, 2
s_bfe_u32 s{S_T1}, s2, 0x20001
s_add_u32 s{S_T0}, s{S_T0}, s{S_T1}
s_lshl_b32 s{S_T0}, s{S_T0}, 7
s_add_u32 s{S_FZB}, s{S_T0}, {WS_FZ}
s_xor_b32 s{S_U}, s{S_M64}, s{S_FQ}
s_and_b32 s{S_U}, s{S_U}, {ROT2 & 1}
s_lshl_b32 s{S_T0}, s{S_U}, 3
s_add_u32 s{S_O}, s{S_T0}, s{S_FZB}
s_mov_b64 s[72:73], -1""")
    a(f"s_mov_b32 s{S_UW}, s{S_U}")
    def unit(j, r):
        if j == 1:
            a(f"s_xor_b32 s{r}, s{r}, 1")
        elif j == 2:
            if ROT2:
                a(f"""s_and_b32 s{S_T0}, s{S_M64}, 1
s_mul_i32 s{r}, s{S_T0}, 3
s_and_b32 s{S_T0}, s{S_M64}, 2
s_add_u32 s{r}, s{r}, s{S_T0}
s_add_u32 s{r}, s{r}, s{S_FQ}
s_add_u32 s{r}, s{r}, 2
s_cmp_ge_u32 s{r}, 8
s_cselect_b32 s{S_T0}, 6, 0
s_sub_u32 s{r}, s{r}, s{S_T0}""")
            else:
                a(f"s_mov_b32 s{r}, 2")
        else:
            a(f"""s_add_u32 s{r}, s{r}, 1
s_cmp_eq_u32 s{r}, 8
s_cselect_b32 s{r}, 2, s{r}""")
    zpoll = f"s_buffer_load_dwordx2 s[72:73], {ws}, s{S_O} glc"
    def zask(j):
        if j:
            unit(j, S_U)
            a(f"s_lshl_b32 s{S_T0}, s{S_U}, 3\ns_add_u32 s{S_O}, s{S_T0}, s{S_FZB}")
        a(f"""s_cmp_lg_u32 s{S_RW}, 0
s_cbranch_scc1 L_Z{j}_A
{zpoll}
L_Z{j}_A:""")
    zp0 = f"s_buffer_load_dwordx4 s[72:75], {ws}, s{S_FZB} glc"
    a(zp0)
    a(f"""; z2 base: (4fq + 2(lw&1)) << 17 + (kh*32 + (lw>>1)) << 11
s_lshr_b32 s{S_T1}, s{S_RW}, 1
s_lshl_b32 s{S_T3}, s{S_KH}, 5
s_add_u32 s{S_T3}, s{S_T3}, s{S_T1}
s_lshl_b32 s{S_ZB}, s{S_T3}, 11
s_lshl_b32 s{S_T3}, s{S_FQ}, 1
s_and_b32 s{S_T1}, s{S_RW}, 1
s_add_u32 s{S_T3}, s{S_T3}, s{S_T1}
s_lshl_b32 s{S_T3}, s{S_T3}, 18
s_add_u32 s{S_ZB}, s{S_ZB}, s{S_T3}
v_lshrrev_b32 v{T0}, 3, v{V_LANE}
v_and_b32 v{VD+1}, 7, v{V_LANE}
v_lshrrev_b32 v{T2}, 4, v{V_LANE}
v_xor_b32 v{T2}, v{T2}, v{VD+1}
v_lshlrev_b32 v{VZ}, 12, v{T0}
v_lshl_add_u32 v{VD}, v{T2}, 4, v{VZ}
v_lshlrev_b32 v{T2}, 1, v{T0}
v_and_b32 v{T2}, 4, v{T2}
v_xor_b32 v{T2}, v{T2}, v{VD+1}
v_xor_b32 v{VD+1}, 64, v{VD}
v_add_u32 v{VD+1}, {8*4096 - 1024}, v{VD+1}
v_add_u32 v{VD+2}, {16*4096 - 2048}, v{VD}
v_add_u32 v{VD+3}, {16*4096 - 2048}, v{VD+1}
s_lshl_b32 s{S_AB}, s{S_TT}, 2
s_add_u32 s{S_AB}, s{S_AB}, s{S_RW}
s_lshl_b32 s{S_AB}, s{S_AB}, 17
s_lshl_b32 s{S_T2}, s{S_KH}, 11
s_add_u32 s{S_AB}, s{S_AB}, s{S_T2}
s_lshl_b32 s{S_MW}, s{S_RW}, 12""")
    a(f"s_mov_b32 s{S_UZ}, s{S_UW}")
    def zload(n):
        assert n // 2 in zok
        if n and n % 2 == 0:
            unit(n // 2, S_UZ)
        a(f"s_add_u32 m0, s{S_MW}, {SLOT[n & 3]}")
        a(f"s_lshl_b32 s{S_T2}, s{S_UZ}, 13\ns_add_u32 s{S_T2}, s{S_T2}, s{S_ZB}")
        if n & 1:
            a(f"s_add_u32 s{S_T2}, s{S_T2}, 4096")
        for q in range(4):
            vm.issue(f"s{n}", f"buffer_load_dwordx4 v{VZ+q}, {ws}, s{S_T2} offen offset:{q*1024}{NT2[1]} lds")
    def wload(n):
        if n and n % 2 == 0:
            unit(n // 2, S_UW)
        a(f"s_add_u32 m0, s{S_MW}, {SLOT[n & 3] + 16384}")
        a(f"s_lshl_b32 s{S_T3}, s{S_UW}, 8\ns_add_u32 s{S_T3}, s{S_T3}, s{S_AB}")
        if n & 1:
            a(f"s_add_u32 s{S_T3}, s{S_T3}, 128")
        for q in range(4):
            vm.issue(f"s{n}", f"buffer_load_dwordx4 v{VD+q}, s[{S_SP}:{S_SP+3}], s{S_T3} offen offset:{q*1024}{NT2[0]} lds")
    def bdma(tag, sr, lds, mw, grow, gmul, n):
        a(f"""s_mul_i32 s{S_T2}, s{S_RW}, {gmul // 8}
s_and_b32 s{S_T3}, s{S_M64}, {3 if ROT3 else 0}
s_mul_i32 s{S_T3}, s{S_T3}, 14
s_add_u32 s{S_T2}, s{S_T2}, s{S_T3}
s_add_u32 s{S_T2}, s{S_T2}, {grow // 8}
s_cmp_ge_u32 s{S_T2}, 56
s_cselect_b32 s{S_T3}, 56, 0
s_sub_u32 s{S_T2}, s{S_T2}, s{S_T3}
s_mul_i32 s{S_T3}, s{S_RW}, {mw}""")
        for k in range(n):
            if k:
                a(f"""s_add_u32 s{S_T2}, s{S_T2}, 1
s_cmp_eq_u32 s{S_T2}, 56
s_cselect_b32 s{S_T2}, 0, s{S_T2}""")
            a(f"s_add_u32 m0, s{S_T3}, {lds + k * 1024}")
            a(f"s_mul_i32 s{S_T1}, s{S_T2}, 7168")
            vm.issue(tag, f"buffer_load_dwordx4 v{VB}, s[{sr}:{sr+3}], s{S_T1} offen{NT2[2]} lds")
    def hblocks(tag, bs, at=None):
        a(f"""s_mul_i32 s{S_T2}, s{S_RW}, {224 * 896}
s_lshl_b32 s{S_T3}, s{S_RW}, 11""")
        for b in bs:
            a(f"""s_add_u32 s{S_T1}, s{S_BR}, {SEQ.index(b)}
s_cmp_ge_u32 s{S_T1}, 14
s_cselect_b32 s{S_T0}, 14, 0
s_sub_u32 s{S_T1}, s{S_T1}, s{S_T0}
s_mul_i32 s{S_T1}, s{S_T1}, {16 * 896}
s_add_u32 m0, s{S_T3}, {HB + (b if at is None else at) * 8192}
s_add_u32 s{S_T1}, s{S_T1}, s{S_T2}""")
            for k in range(2):
                if k:
                    a(f"s_add_u32 s{S_T1}, s{S_T1}, {8 * 896 - 1024}")
                vm.issue(tag, f"buffer_load_dwordx4 v{VB}, s[{S_W2}:{S_W2+3}], s{S_T1} offen offset:{k * 1024}{NT2[2]} lds")
    wload(0)
    wload(1)
    a(f"""v_and_b32 v{VZ}, 4, v{T0}
v_xor_b32 v{VZ}, v{VZ}, v{V_LANE}
v_lshlrev_b32 v{VZ}, 4, v{VZ}
v_xor_b32 v{VZ+1}, 128, v{VZ}
v_add_u32 v{VZ+2}, {(1 << 17) - 2048}, v{VZ}
v_add_u32 v{VZ+3}, {(1 << 17) - 2048}, v{VZ+1}""")
    def pcheck(lab, r, poll, sl):
        a(f"""s_waitcnt lgkmcnt(0)
s_and_b32 s{r}, s{r}, s{r+1}
s_cbranch_scc0 {lab}_W
{lab}_X:""")
        ool.append(f"""{lab}_W:
s_sleep {sl}
{poll}
s_waitcnt lgkmcnt(0)
s_and_b32 s{r}, s{r}, s{r+1}
s_cbranch_scc1 {lab}_X
s_addk_i32 s{S_SPIN}, -1
s_cmp_lt_i32 s{S_SPIN}, 0
s_cbranch_scc0 {lab}_W
s_branch {lab}_X""")
    def zcheck(j):
        pcheck(f"L_Z{j}", 72, zpoll, ZSL)
    S_DN = 54
    a(f"s_mov_b32 s{S_DN}, 0")
    last(0)
    zok.update((0, 1))
    st.mark(12)
    q0 = list(vm.q)
    def ztry(i, fin=False):
        vm.q = list(q0)
        if i:
            a(f"s_cmp_lg_u32 s{S_DN}, 0\ns_cbranch_scc1 L_T{i}_X")
        a(f"""L_T{i}_R:
s_waitcnt lgkmcnt(0)
s_and_b64 s[72:73], s[72:73], s[74:75]
s_and_b32 s{S_DN}, s72, s73
s_cbranch_scc0 L_T{i}_{"W" if fin else "X"}
L_T{i}_G:""")
        zload(0)
        zload(1)
        wload(2)
        if NC < 0:
            zload(2)
        a(f"L_T{i}_X:")
        if fin:
            ool.append(f"""L_T{i}_W:
s_sleep {ZSL}
{zp0}
s_addk_i32 s{S_SPIN}, -1
s_cmp_lt_i32 s{S_SPIN}, 0
s_cbranch_scc0 L_T{i}_R
s_waitcnt lgkmcnt(0)
s_branch L_T{i}_G""")
    def reask(i):
        a(f"s_cmp_lg_u32 s{S_DN}, 0\ns_cbranch_scc1 L_T{i}_A\n{zp0}\nL_T{i}_A:")
    assert LA == 3
    ztry(0)
    ep = last(1)
    reask(1)
    ep = f1.spread(LEP + 1, ep)
    a("s_nop 7")
    for f in ep[0]:
        f()
    ztry(1, True)
    a(f"s_mov_b64 s[72:73], -1\ns_xor_b32 s{S_U}, s{S_U}, 1")
    st.mark(13)
    a(f"""v_mul_u32_u24 v{VB}, 896, v{T0}
v_lshl_add_u32 v{VB}, v{T2}, 4, v{VB}
s_lshl_b32 s{S_T0}, s{S_FQ}, 7
v_add_u32 v{VB}, s{S_T0}, v{VB}""")
    a(f"""; z1 flags: FL + tt*2048 + 1024 + fq*8
s_lshl_b32 s{S_C1}, s{S_TT}, 8
s_add_u32 s{S_C1}, s{S_C1}, s{S_FQ}
s_lshl_b32 s{S_C1}, s{S_C1}, 3
s_add_u32 s{S_C1}, s{S_C1}, {WS_FL + 1024}
s_mov_b64 s[70:71], -1""")
    p3_tr_setup(a, T0)
    ypoll = f"s_buffer_load_dwordx2 s[70:71], {ws}, s{S_C1} glc"
    zs = [[n + 2] if (n < NC or LA == 2) else [n + 2, n + 3] if n == NC else [n + 3] for n in range(NST)]
    zs = [[x for x in l if x < NST] for l in zs]
    need = [max([x // 2 for x in l], default=0) for l in zs]
    asked = 1
    post = []
    def bact(n):
        for nm, (lo, at, f) in BA.items():
            assert at >= lo, nm
            if at == n:
                f()
    BA = {"E": (-1, BS[0], lambda: hblocks("E", [13], 0)),
          "b9": (14, BS[3], lambda: hblocks("hb", [9, 10, 11, 12])),
          "b1": (15, BS[4], lambda: hblocks("hb", [1, 2, 3, 4])),
          "b5": (16, BS[6], lambda: hblocks("hb", [5, 6, 7, 8])),
          "b0": (EB + 1, BS[5], lambda: hblocks("hb", [0])),
          "woH": (-1, BS[1], lambda: bdma("wo", S_WO, 32768, 6144, 256, 48, 6)),
          "woL": (13, BS[2], lambda: bdma("wo", S_WO, 0, 8192, 0, 64, 8))}
    assert BS[0] < EB and max(BS[1:3]) < 16 and BS[1] > Z1B
    def btouch(which):
        k = 28 << which
        VQ = 40 + which
        a(f"""s_bfe_u32 s{S_T0}, s2, 0x20003
s_lshl_b32 s{S_T0}, s{S_T0}, 2
s_add_u32 s{S_T0}, s{S_T0}, s{S_RW}
s_mul_i32 s{S_T0}, s{S_T0}, {k * 896}
s_lshl_b32 s{S_T1}, s{S_FQ}, 7
s_add_u32 s{S_T0}, s{S_T0}, s{S_T1}
v_min_u32 v{VQ}, {k - 1}, v{V_LANE}
v_mul_u32_u24 v{VQ}, 896, v{VQ}""")
        sr = (S_WO, S_W2)[which]
        vm.issue("bt", f"buffer_load_dword v{VQ}, v{VQ}, s[{sr}:{sr+3}], s{S_T0} offen")
    bact(-1)
    for n in range(NST):
        if STM and 0 <= n - SM0 < 9:
            st.mark(27 + 3 * (n - SM0))
        if need[n] not in zok:
            assert asked == need[n]
            zcheck(need[n])
            zok.add(need[n])
        if n == N0:
            pcheck("L_Y1", 70, ypoll, HSL)
        if STM and 0 <= n - SM0 < 9:
            st.fold()
            st.mark(28 + 3 * (n - SM0))
        vm.wait(f"s{n}", *(["E"] if n == EB else ["stL"] if n == Z1B else []))
        if STM and 0 <= n - SM0 < 9:
            st.mark(29 + 3 * (n - SM0))
        if n in (0, 4, 8, 12):
            st.mark(14 + n // 4)
        if n in (EB + 1, Z1B):
            a("s_waitcnt lgkmcnt(0)")
        a("s_barrier")
        if n + 1 < NST and need[n + 1] not in zok:
            asked = need[n + 1]
            zask(asked)
        if n + 1 == N0:
            a(f"s_cmp_lg_u32 s{S_RW}, 0\ns_cbranch_scc1 L_Y1_A\n{ypoll}\nL_Y1_A:")
        for x in zs[n]:
            zload(x)
        if n + LA < NST:
            wload(n + LA)
        if n in (Z1S, Z1S + 2 * Z1D):
            for f in last.store(vm)[(n - Z1S) // max(1, 2 * Z1D):][:2 - min(1, Z1D)]:
                f()
        if n < LEP:
            assert n < Z1S
            for f in ep[n + 1]:
                f()
        if n == Z1S:
            a(f"v_add_u32 v{T0}, s{S_MW}, v{V_L16}")
            for q in range(2):
                a(f"ds_write_b128 v{T0}, v[{last.cv+4*q}:{last.cv+4*q+3}] offset:{ZL + q*1024}")
        if n == EB:
            for t in b_reads("h", 0, EFR):
                a(t)
        for w in range(2):
            if PT[w] == n:
                assert n > LEP
                btouch(w)
        bact(n)
    st.fold()
    p3_setup(a)
    vm.wait("wo")
    a(f"""s_cmp_lg_u32 s{S_RW}, 0
s_cbranch_scc1 L_O_X
s_lshl_b32 s{S_T0}, s{S_M64}, 7
s_add_u32 s{S_T0}, s{S_T0}, {WS_F3}""")
    spoll(a, "L_O", f"s_buffer_load_dwordx16 s[64:79], {ws}, s{S_T0} glc", list(range(64, 80, 2)), ool, HSL)
    a("s_waitcnt lgkmcnt(0)")
    st.mark(18)
    a("s_barrier")
    o_loads(a)
    o_reads(a)
    n0 = len(vm.q)
    bact(16)
    st.mark(19)
    o_part(a, len(vm.q) - n0)
    st.mark(20)
    bact(17)
    st.mark(21)
    a("s_branch P3_GO")

OB = AFR + 32
def o_reads(a):
    for i in range(8):
        for t in b_reads("o", i, OB + 8 * i):
            a(t)
def o_part(a, after):
    a("s_waitcnt lgkmcnt(0)")
    for i in range(8):
        a(f"s_waitcnt vmcnt({7 - i + after})")
        for ni in range(2):
            c, bf, x = ACC3 + 16 * ni, OB + 8 * i, AFR + 4 * i
            a(f"v_mfma_f32_32x32x16_bf16 v[{c}:{c+15}], v[{bf+4*ni}:{bf+4*ni+3}], v[{x}:{x+3}], " + ("0" if i == 0 else f"v[{c}:{c+15}]"))
def o_loads(a):
    for i in range(8):
        if i == 4:
            a(f"s_add_u32 s{S_A}, s{S_A}, 4096")
        a(f"buffer_load_dwordx4 v[{AFR+4*i}:{AFR+4*i+3}], v{V_L16}, {ws}, s{S_A} offen offset:{(i & 3) * 1024}")

def compute(a, vm, st, last, ool):
    lg = LG(a)
    AD = [2, 128, 8, 8]
    AO = [0, 0, 0, 32768]
    V_C0 = 15
    ACC, FR, GZ, TP, BF, ONE = 16, 80, 144, 136, 232, 240
    T1, T2 = TP, TP + 1
    def wflag(n, vo, so, off=0):
        a(f"""s_cmp_eq_u32 s{S_RW}, 0
s_cselect_b64 exec, {(1 << n) - 1}, 0
buffer_store_dword v0, v{vo}, {ws}, s{so} offen offset:{off} sc1
s_mov_b64 exec, -1""")
    a(f"v_mov_b32 v0, 1")
    a(f"v_lshlrev_b32 v2, 7, v{V_LANE}")
    last(0)
    if f1.FAE > 1:
        wflag(4, 2, S_CNT)
    if f1.FAE:
        wflag(8, 2, S_FL)
    ep = last(1)
    st.mark(12)
    ids(a)
    AR, BRD = 2, 4
    a(f"""v_and_b32 v{T1}, 31, v{V_LANE}
v_lshrrev_b32 v{T2}, 5, v{V_LANE}
v_bfe_u32 v{AR}, v{V_LANE}, 1, 3
v_xor_b32 v{AR}, v{AR}, v{T2}
v_lshlrev_b32 v{AR}, 4, v{AR}
v_lshl_add_u32 v{AR}, v{T1}, 7, v{AR}
s_lshr_b32 s{S_T1}, s{S_RW}, 1
s_lshl_b32 s{S_T3}, s{S_T1}, 13
s_add_u32 s{S_T3}, s{S_T3}, 16384
v_add_u32 v{BRD}, s{S_T3}, v{AR}""")
    for k in range(1, 4):
        a(f"v_xor_b32 v{BRD+k}, {k << 5}, v{BRD}")
    a(f"""v_lshlrev_b32 v{BF+1}, 1, v{T1}
v_bfe_u32 v{AR}, v{V_LANE}, 4, 1
v_lshlrev_b32 v{AR}, 1, v{AR}
v_and_b32 v{T1}, 1, v{V_LANE}
v_add_u32 v{AR}, v{AR}, v{T1}
v_mul_u32_u24 v{AR}, 576, v{AR}
v_lshlrev_b32 v{T2}, 7, v{T2}
v_xor_b32 v{AR}, v{AR}, v{T2}
v_bfe_u32 v{T1}, v{V_LANE}, 2, 2
v_lshl_add_u32 v{AR}, v{T1}, 4, v{AR}
v_bfe_u32 v{T1}, v{V_LANE}, 1, 1
v_lshl_add_u32 v{AR}, v{T1}, 3, v{AR}
s_and_b32 s{S_T0}, s{S_RW}, 1
s_lshl_b32 s{S_T3}, s{S_T0}, 12
v_add_u32 v{AR}, s{S_T3}, v{AR}
v_xor_b32 v{AR+1}, 64, v{AR}
s_lshl_b32 s{S_T2}, s{S_TT}, 1
s_add_u32 s{S_T2}, s{S_T2}, s{S_T1}
s_lshl_b32 s{S_AB}, s{S_T2}, 7
s_lshl_b32 s{S_T3}, s{S_FQ}, 1
s_add_u32 s{S_T3}, s{S_T3}, s{S_T0}
s_lshl_b32 s{S_T3}, s{S_T3}, 12
s_mul_i32 s{S_ZB}, s{S_T2}, {2*28*2048}
s_add_u32 s{S_ZB}, s{S_ZB}, s{S_T3}
s_add_u32 s{S_ZB}, s{S_ZB}, {WS_Z1}
s_add_u32 s{S_C1}, s{S_ZB}, {28*2048}
s_mul_i32 s{S_O}, s{S_T2}, {2*144*1024}
s_add_u32 s{S_O}, s{S_O}, s{S_T3}
s_mul_i32 s{S_T3}, s{S_KH}, {56*1024}
s_add_u32 s{S_O}, s{S_O}, s{S_T3}
s_add_u32 s{S_O}, s{S_O}, {WS_AF + 32*1024}
s_lshl_b32 s{S_MW}, s{S_T2}, 2
s_lshr_b32 s{S_T3}, s{S_FQ}, 1
s_add_u32 s{S_MW}, s{S_MW}, s{S_T3}
s_lshl_b32 s{S_MW}, s{S_MW}, 3
s_and_b32 s{S_T3}, s{S_FQ}, 1
s_add_u32 s{S_MW}, s{S_MW}, s{S_T3}
s_lshl_b32 s{S_MW}, s{S_MW}, 1
s_add_u32 s{S_MW}, s{S_MW}, s{S_KH}
s_lshl_b32 s{S_MW}, s{S_MW}, 1
s_add_u32 s{S_MW}, s{S_MW}, s{S_T0}
s_lshl_b32 s{S_MW}, s{S_MW}, 2
s_add_u32 s{S_MW}, s{S_MW}, {WS_F2}
s_cmp_eq_u32 s{S_KH}, 0
s_cselect_b32 s{S_M2}, -1, 0
s_mov_b32 s{S_M2+1}, 0
s_cmp_lg_u32 s{S_KH}, s{S_T0}
s_cselect_b64 vcc, -1, 0""")
    srd(a, S_B, P_BSP, 4096)
    pre = [f"v_add_u32 v{AD[1]+i}, 0x20000, v{2+i}" for i in range(6)] + [f"v_add_u32 v{8+i}, 0x10000, v{2+i}" for i in range(6)]
    pre += [f"v_mov_b32 v{BF+r}, 0" for r in (2, 3, 4)] + [f"v_mov_b32 v{ONE+r}, 0x3f803f80" for r in range(4)]
    for t in pre:
        a(t)
    p3_tr_setup(a, TP)
    a(f"v_lshlrev_b32 v{TP}, 7, v{V_LANE}")
    def bias_load():
        vm.issue("b", f"buffer_load_ushort v{BF}, v{BF+1}, s[{S_B}:{S_B+3}], s{S_AB} offen")
        vm.issue("b", f"buffer_load_ushort v{BF+5}, v{BF+1}, s[{S_B}:{S_B+3}], s{S_AB} offen offset:64")
    def bias_prep():
        vm.wait("b")
        a(f"""v_cndmask_b32 v{BF}, 0, v{BF}, s[{S_M2}:{S_M2+1}]
v_cndmask_b32 v{BF+5}, 0, v{BF+5}, s[{S_M2}:{S_M2+1}]
v_mov_b32 v{BF+1}, 0""")
    QD = ((0, 0), (1, 0), (0, 1), (1, 1))
    def bias_mf(k):
        fi, ti = QD[k]
        c = ACC + 32 * fi + 16 * ti
        a(f"v_mfma_f32_32x32x16_bf16 v[{c}:{c+15}], v[{ONE}:{ONE+3}], v[{BF+2*ti}:{BF+2*ti+3}], v[{c}:{c+15}]")
    gl = []
    for e in range(64):
        src = GZ + 8 * (e >> 3) + 4 + ((e & 7) >> 1)
        gl.append(f"v_lshlrev_b32 v{GZ+e}, 16, v{src}" if e % 2 == 0 else f"v_and_b32 v{GZ+e}, 0xffff0000, v{src}")
    G0G, GEND = ZP0 * 4, 256 - GTAIL
    ngap = GEND - G0G
    ZL0 = (4 * N0 - 2) * 4
    assert G0G - ZL0 >= 24
    gi = [0, 0, 0]
    def zissue(li):
        fi, ti, q = li >> 2, (li >> 1) & 1, li & 1
        r = GZ + 8 * li + 4
        assert "b" not in vm.q
        a(f"s_cbranch_vccz C_Z{li}")
        vm.issue(f"z{li}", f"buffer_load_dwordx4 v[{r}:{r+3}], v{V_L16}, {ws}, s{S_ZB if ti == 0 else S_C1} offen offset:{fi*2048 + q*1024}{NT2[3]}")
        a(f"C_Z{li}:")
    def fill():
        g = gi[1]
        gi[1] += 1
        if g < CEP:
            assert CEP <= (4 * (Z1S + Z1D) - 2) * 4
            for f in ep[len(ep) * g // CEP:len(ep) * (g + 1) // CEP]:
                f()
        while gi[2] < 8 and g >= ZL0 + LEAD * gi[2]:
            zissue(gi[2])
            gi[2] += 1
        if g < G0G:
            return
        tgt = min(len(gl), (len(gl) * (g - G0G + 1) + ngap - 1) // ngap)
        while gi[0] < tgt:
            if gi[0] % 8 == 0:
                assert gi[2] > gi[0] // 8
                vm.wait(f"z{gi[0] // 8}")
            a(gl[gi[0]])
            gi[0] += 1
    def reads(p):
        n, ks = p >> 2, p & 3
        f = FR + 16 * (p % 3)
        ad, ao = AD[n & 3], AO[n & 3]
        zo = ao + (ks >> 1) * 8192 + (ks & 1) * 256
        l = []
        for i in range(2):
            l.append(f"ds_read_b64_tr_b16 v[{f+4*i}:{f+4*i+1}], v{ad} offset:{zo + i*2048}")
            l.append(f"ds_read_b64_tr_b16 v[{f+4*i+2}:{f+4*i+3}], v{ad+1} offset:{zo + i*2048}")
            l.append(f"ds_read_b128 v[{f+8+4*i}:{f+8+4*i+3}], v{ad+2+ks} offset:{ao + i*4096}")
        return [(f"r{p}", t) for t in l]
    if PRIO & 1:
        a("s_setprio 3")
    vm.wait("st1")
    st.mark(13)
    a("s_barrier")
    st.mark(14)
    for t in reads(0) + reads(1):
        lg.issue(*t)
    if f1.FAE < 2:
        wflag(4, TP, S_CNT)
    if not f1.FAE:
        wflag(8, TP, S_FL)
    for p in range(64):
        n, ks = p >> 2, p & 3
        if ks == 2 and n < 15:
            if n + 1 == Z1B:
                a("s_waitcnt vmcnt(0)")
                vm.q = []
            if LA == 3:
                lg.all()
            a("s_barrier")
            if n + 1 == Z1B:
                wflag(1, BF + 2, S_FL, 1024)
                a(f"""s_and_b32 s{S_T0}, s{S_RW}, 2
s_lshl_b32 s{S_T0}, s{S_T0}, 12
v_add_u32 v{TP+1}, s{S_T0}, v{V_L16}
s_cbranch_vccnz C_ZO""")
                for li in range(8):
                    fi, ti, q = li >> 2, (li >> 1) & 1, li & 1
                    a(f"ds_read_b128 v[{GZ+8*li+4}:{GZ+8*li+7}], v{TP+1} offset:{ZL + ti*4096 + fi*2048 + q*1024}")
                a("C_ZO:")
            if n + 1 == Z1S + Z1D:
                a(f"s_lshl_b32 s{S_T0}, s{S_RW}, 12\nv_add_u32 v{TP+1}, s{S_T0}, v{V_L16}")
                for q in range(2):
                    lg.issue("w", f"ds_write_b128 v{TP+1}, v[{last.cv+4*q}:{last.cv+4*q+3}] offset:{ZL + 2048 + q*1024}")
            if n + 1 in (Z1S + Z1D, Z1S + 3 * Z1D):
                for f in last.store(vm)[(n + 1 - Z1S) // max(1, 2 * Z1D):][:2 - min(1, Z1D)]:
                    f()
            if n + 1 in (4, 8, 12):
                st.mark(14 + (n + 1) // 4)
        lg.wait(f"r{p}")
        if p == 63:
            lg.all()
            st.fold()
            st.mark(18)
            if TB:
                a("s_barrier")
        rl = reads(p + 2) if p + 2 < 64 else []
        if p == 4 * EB - 1:
            rl = rl + [("E", t) for t in b_reads("h", 0, EFR)]
        f = FR + 16 * (p % 3)
        for k, (fi, ti) in enumerate(QD):
            c = ACC + 32 * fi + 16 * ti
            a(f"v_mfma_f32_32x32x16_bf16 v[{c}:{c+15}], v[{f+4*fi}:{f+4*fi+3}], v[{f+8+4*ti}:{f+8+4*ti+3}], " + ("0" if p == 0 else f"v[{c}:{c+15}]"))
            for t in (rl[2 * k:2 * k + 2] if k < 3 else rl[6:]):
                lg.issue(*t)
            if ks == 1 and 0 <= n - BST < 4 and k == (n - BST + 2) % 4:
                bias_mf(n - BST)
            fill()
        if ks == 0 and n == BST - 4:
            bias_load()
        if ks == 0 and n == BST:
            bias_prep()
    assert gi[0] == len(gl)
    for k, (fi, ti) in enumerate(QD):
        if k == 0:
            a("s_setprio 3\ns_nop 2" if PRIO & 2 else "s_nop 3")
        if k == 2:
            a(f"s_add_u32 s{S_O}, s{S_O}, {144*1024}")
        c = ACC + 32 * fi + 16 * ti
        g = GZ + 32 * fi + 16 * ti
        o = FR + 8 * (2 * ti + fi) + 16
        for q in range(2):
            for r in range(8 * q, 8 * q + 8, 2):
                a(f"v_pk_mul_f32 v[{c+r}:{c+r+1}], v[{c+r}:{c+r+1}], v[{g+r}:{g+r+1}]")
            for r in range(4 * q, 4 * q + 4):
                a(f"v_cvt_pk_bf16_f32 v{o+r}, v{c+2*r}, v{c+2*r+1}")
            vm.issue("st", f"buffer_store_dwordx4 v[{o+4*q}:{o+4*q+3}], v{V_L16}, {ws}, s{S_O} offen offset:{fi*2048 + q*1024}{SF}")
    p3_setup(a)
    if not TB:
        a("s_barrier")
    st.mark(19)
    o_loads(a)
    a(f"""v_mov_b32 v{TP}, 1
s_mov_b64 exec, 1
s_waitcnt vmcnt(8)
buffer_store_dword v{TP}, v{BF+2}, {ws}, s{S_MW} offen sc1
s_mov_b64 exec, -1""")
    if PRIO:
        a("s_setprio 0")
    st.mark(20)
    o_reads(a)
    o_part(a, 1)
    st.mark(21)
    a(f"""s_cmp_lg_u32 s{S_RW}, 0
s_cbranch_scc1 L_H_X
s_lshl_b32 s{S_T0}, s{S_M64}, 9
s_add_u32 s{S_T0}, s{S_T0}, {WS_F2}
s_add_u32 s{S_T1}, s{S_T0}, 128
s_add_u32 s{S_T2}, s{S_T0}, 256
s_add_u32 s{S_T3}, s{S_T0}, 384""")
    spoll(a, "L_H", f"""s_buffer_load_dwordx8 s[56:63], {ws}, s{S_T0} glc
s_buffer_load_dwordx8 s[64:71], {ws}, s{S_T1} glc
s_buffer_load_dwordx8 s[72:79], {ws}, s{S_T2} glc
s_buffer_load_dwordx4 s[8:11], {ws}, s{S_T3} glc""", list(range(56, 80, 2)) + [8, 10], ool, HSL)

def phase3(a, st, ool):
    vm, lg = VM(a), LG(a)
    a("P3_GO:")
    horder = SEQ[1:] + SEQ[:1]
    a("s_barrier")
    st.mark(22)
    def breads(si):
        if horder[si] == 13:
            return []
        return [(f"b{si}", t) for t in b_reads("h", horder[si], BFR + 8 * (si % 3))]
    nx = [0]
    def pump(lim):
        while nx[0] < min(lim, 28):
            j, h = nx[0] >> 1, nx[0] & 1
            if h == 0:
                a(f"""s_add_u32 s{S_BR}, s{S_BR}, 1
s_cmp_eq_u32 s{S_BR}, 14
s_cselect_b32 s{S_BR}, 0, s{S_BR}
s_lshl_b32 s{S_T0}, s{S_BR}, 10
s_add_u32 s{S_T0}, s{S_T0}, s{S_O}""")
            r = AFR + 32 + 4 * nx[0]
            vm.issue(f"h{nx[0]}", f"buffer_load_dwordx4 v[{r}:{r+3}], v{V_W if h else V_L16}, {ws}, s{S_T0} offen")
            nx[0] += 1
    pump(AH0)
    a(f"s_waitcnt vmcnt({AH0})\ns_barrier")
    st.mark(23)
    for t in breads(0) + breads(1):
        lg.issue(*t)
    pump(AHEAD)
    for si in range(14):
        if si == 4: st.mark(24)
        if si == 9: st.mark(25)
        if si == XAT:
            vm.issue("x", f"buffer_load_dwordx4 v[{XV}:{XV+3}], v{V_XO}, s[{S_X}:{S_X+3}], s{S_XO} offen")
        bf = EFR if horder[si] == 13 else BFR + 8 * (si % 3)
        rl = breads(si + 2) if si + 2 < 14 else []
        lg.wait(f"b{si}")
        for h in range(2):
            cons = 2 * si + h
            vm.wait(f"h{cons}")
            x = AFR + 32 + 4 * cons
            for ni in range(2):
                c = ACC3 + 16 * ni
                a(f"v_mfma_f32_32x32x16_bf16 v[{c}:{c+15}], v[{bf+4*ni}:{bf+4*ni+3}], v[{x}:{x+3}], v[{c}:{c+15}]")
                k = 2 * h + ni
                for t in rl[k:k + 1]:
                    lg.issue(*t)
                if ni == 0:
                    pump(cons + 1 + AHEAD)
    st.mark(26)
    vm.wait("x")
    U = AFR
    for lp in (1, 2, 3):
        a(f"""s_xor_b32 s{S_T0}, s{S_WAVE}, {lp}
s_mul_i32 s{S_T0}, s{S_T0}, 6144
v_add_u32 v{BFR+lp}, s{S_T0}, v{V_L16}""")
    a(f"""s_mul_i32 s{S_T0}, s{S_WAVE}, 6144
v_add_u32 v{BFR}, s{S_T0}, v{V_L16}""")
    for d in range(4):
        a(f"v_lshlrev_b32 v{U+2*d}, 16, v{XV+d}")
        a(f"v_and_b32 v{U+2*d+1}, 0xffff0000, v{XV+d}")
    for lp in (1, 2, 3):
        for k in range(2):
            c = ACC3 + 8 * lp + 4 * k
            a(f"ds_write_b128 v{BFR+lp}, v[{c}:{c+3}] offset:{(lp-1)*2048 + k*1024}")
    a("s_waitcnt lgkmcnt(0)\ns_barrier")
    for k in range(6):
        c = ACC3 + 8 + 4 * k
        a(f"ds_read_b128 v[{c}:{c+3}], v{BFR} offset:{k*1024}")
    for lp in (1, 2, 3):
        a(f"s_waitcnt lgkmcnt({6 - 2*lp})")
        for r in range(0, 8, 2):
            a(f"v_pk_add_f32 v[{ACC3+r}:{ACC3+r+1}], v[{ACC3+r}:{ACC3+r+1}], v[{ACC3+8*lp+r}:{ACC3+8*lp+r+1}]")
    a("s_nop 1")
    for d in range(4):
        a(f"v_permlane32_swap_b32 v{ACC3+d}, v{ACC3+4+d}")
    for r in range(0, 8, 2):
        a(f"v_pk_add_f32 v[{ACC3+r}:{ACC3+r+1}], v[{ACC3+r}:{ACC3+r+1}], v[{U+r}:{U+r+1}]")
    for r in range(4):
        a(f"v_cvt_pk_bf16_f32 v{XV+r}, v{ACC3+2*r}, v{ACC3+2*r+1}")
    a(f"buffer_store_dwordx4 v[{XV}:{XV+3}], v{V_XO}, s[{S_OUT}:{S_OUT+3}], s{S_XO} offen")
    st.flush(S_WS, S_WAVE)
    a("s_endpgm")

def ids(a):
    a(f"""s_and_b32 s{S_KH}, s2, 1
s_bfe_u32 s{S_T1}, s2, 0x20003
s_and_b32 s{S_T0}, s2, 7
s_lshl_b32 s{S_M64}, s{S_T0}, 2
s_add_u32 s{S_M64}, s{S_M64}, s{S_T1}
s_lshr_b32 s{S_FQ}, s2, 5
s_mul_i32 s{S_BR}, s{S_T1}, {7 if ROT3 else 0}
s_lshr_b32 s{S_BR}, s{S_BR}, 1
s_mul_i32 s{S_T0}, s{S_FQ}, {ROT3 & 2}
s_add_u32 s{S_BR}, s{S_BR}, s{S_T0}
s_cmp_ge_u32 s{S_BR}, 14
s_cselect_b32 s{S_T0}, 14, 0
s_sub_u32 s{S_BR}, s{S_BR}, s{S_T0}""")

def hook_main(a, vm, st, last):
    ool = []
    a(f"""s_cmp_eq_u32 s{S_CH}, 0
s_cbranch_scc0 P2_CMP""")
    q0, p0 = list(vm.q), list(st.pend)
    loader(a, vm, st, last, ool)
    pl = list(st.pend)
    a("P2_CMP:")
    vm.q, st.pend = q0, p0
    compute(a, vm, st, last, ool)
    assert st.pend == pl
    phase3(a, st, ool)
    for o in ool:
        a(o)

def hook_att(a, vm, st, ctl):
    V_T0, V_T1, V_T2, V_L8B = 2, 3, 4, 5
    KF, QF, ACC, ZAC, ONE, KVB, TP = 16, 144, 176, 192, 208, 212, 220
    S_H, S_HF, S_MK = 28, 29, 42
    st.mark(12)
    a(f"""; head = 2x + (c&1) ; half = c>>1
s_and_b32 s{S_T0}, s2, 7
s_lshl_b32 s{S_H}, s{S_T0}, 1
s_bfe_u32 s{S_T0}, s2, 0x10003
s_add_u32 s{S_H}, s{S_H}, s{S_T0}
s_bfe_u32 s{S_HF}, s2, 0x10004
s_lshl_b32 s{S_T3}, s{S_HF}, 3
s_add_u32 s{S_O}, s{S_T3}, s{S_WAVE}
v_lshlrev_b32 v{V_T0}, 7, v{V_LANE}
v_mov_b32 v{V_T1}, 1
s_waitcnt vmcnt(0)
s_barrier
s_cmp_eq_u32 s{S_WAVE}, 0
s_cselect_b64 exec, 0xff, 0
buffer_store_dword v{V_T1}, v{V_T0}, {ws}, s{S_FL} offen sc1""")
    st.mark(13)
    if ATOUCH:
        srd(a, 20, P_BSP, 4096)
        a(f"s_cmp_eq_u32 s{S_WAVE}, 0\ns_cselect_b64 exec, -1, 0")
        a(f"buffer_load_dword v{TP}, v{V_T0}, s[20:23], 0 offen")
    a("s_mov_b64 exec, -1")
    for t in ctl:
        t()
    a(f"""s_and_b32 s{S_T0}, s2, 7
s_lshl_b32 s{S_T0}, s{S_T0}, 7
s_lshl_b32 s{S_M2}, s{S_O}, 11
s_add_u32 s{S_M2}, s{S_M2}, s{S_T0}
s_add_u32 s{S_T3}, s{S_M2}, {WS_FL + 56}
s_mul_i32 s{S_T0}, s{S_H}, 7
s_lshr_b32 s{S_T0}, s{S_T0}, 4
s_lshl_b32 s{S_T0}, s{S_T0}, 2
s_add_u32 s{S_M2}, s{S_M2}, s{S_T0}
s_add_u32 s{S_M2}, s{S_M2}, {WS_FL}
s_add_u32 s{S_T2}, s{S_M2}, 28""")
    spoll(a, "A_KV", f"s_buffer_load_dwordx2 s[56:57], {ws}, s{S_T2} glc\ns_buffer_load_dwordx2 s[58:59], {ws}, s{S_T3} glc", [56, 58], None, ASL)
    vm.q = []
    st.mark(14)
    a(f"""s_mul_i32 s{S_T1}, s{S_O}, {4*28672}
s_mul_i32 s{S_T2}, s{S_H}, 896
s_add_u32 s{S_T1}, s{S_T1}, s{S_T2}
s_add_u32 s{S_T1}, s{S_T1}, {WS_K}
v_add_u32 v{V_T2}, {WS_V - WS_K}, v{V_KO}""")
    NK = 8
    for i in range(NK):
        vm.issue(f"k{i}", f"buffer_load_dwordx4 v[{KF+8*i}:{KF+8*i+3}], v{V_KO}, {ws}, s{S_T1} offen{NTA}")
        vm.issue(f"k{i}", f"buffer_load_dwordx4 v[{KF+8*i+4}:{KF+8*i+7}], v{V_T2}, {ws}, s{S_T1} offen{NTA}")
        a(f"s_add_u32 s{S_T1}, s{S_T1}, 14336")
    spoll(a, "A_Q", f"s_buffer_load_dwordx2 s[56:57], {ws}, s{S_M2} glc", [56], None, ASL)
    a(f"""v_and_b32 v{V_L8B}, 0xff, v{V_L8}
s_mul_i32 s{S_T1}, s{S_O}, {4*28672}
s_lshl_b32 s{S_T2}, s{S_T2}, 1
s_add_u32 s{S_T1}, s{S_T1}, s{S_T2}
s_add_u32 s{S_T1}, s{S_T1}, {WS_Q}
s_lshl_b32 s{S_C1+1}, s{S_O}, 8
s_lshl_b32 s{S_T3}, s{S_H}, 2
s_add_u32 s{S_FL}, s{S_C1+1}, s{S_T3}
s_add_u32 s{S_FL}, s{S_FL}, {WS_F3}
s_mul_i32 s{S_O}, s{S_O}, {4*144*1024}
s_lshl_b32 s{S_T3}, s{S_H}, 11
s_add_u32 s{S_O}, s{S_O}, s{S_T3}
s_add_u32 s{S_O}, s{S_O}, {WS_AF}""")
    for u in range(4):
        for i in range(4):
            r = QF + 8 * u + 2 * i
            vm.issue("q", f"buffer_load_dwordx2 v[{r}:{r+1}], v{V_L8 if i < 3 else V_L8B}, {ws}, s{S_T1} offen offset:{512*i}{NTA}")
        a(f"s_add_u32 s{S_T1}, s{S_T1}, 28672")
    for r in range(4):
        a(f"v_mov_b32 v{ONE+r}, 0x3f803f80")
    a(f"""s_mov_b32 s{S_MK}, 0x10000000
s_mov_b32 s{S_MK+1}, 0x10000000
s_mov_b32 s{S_M2}, -1
s_mov_b32 s{S_M2+1}, 0""")
    for i in range(NK):
        vm.wait(f"k{i}")
        c0 = "0" if i == 0 else f"v[{ACC}:{ACC+15}]"
        c1 = "0" if i == 0 else f"v[{ZAC}:{ZAC+15}]"
        a(f"v_mfma_f32_32x32x16_bf16 v[{ACC}:{ACC+15}], v[{KF+8*i}:{KF+8*i+3}], v[{KF+8*i+4}:{KF+8*i+7}], {c0}")
        a(f"v_mfma_f32_32x32x16_bf16 v[{ZAC}:{ZAC+15}], v[{KF+8*i}:{KF+8*i+3}], v[{ONE}:{ONE+3}], {c1}")
    st.mark(15)
    a(f"""s_lshl_b32 s{S_T1}, s{S_WAVE}, 12
v_add_u32 v{V_T2}, s{S_T1}, v{V_L8}
s_nop 10""")
    for r in range(16):
        a(f"v_cndmask_b32 v{ACC+r}, v{ACC+r}, v{ZAC+r}, s[{S_MK}:{S_MK+1}]")
    for p in range(8):
        a(f"ds_write_b64 v{V_T2}, v[{ACC+2*p}:{ACC+2*p+1}] offset:{512*p}")
    a(f"""s_lshl_b32 s{S_T1}, s{S_WAVE}, 9
v_add_u32 v{V_T2}, s{S_T1}, v{V_L8}""")
    a("s_waitcnt lgkmcnt(0)\ns_barrier")
    for w in range(8):
        a(f"ds_read_b64 v[{ACC+2*w}:{ACC+2*w+1}], v{V_T2} offset:{4096*w}")
    a(f"""s_cmp_ge_u32 s{S_WAVE}, 6
s_mov_b32 s{S_MK}, 0x1fffffff
s_cselect_b32 s{S_MK+1}, 0, s{S_MK}
s_lshl_b32 s{S_T2}, s{S_H}, 1
s_add_u32 s{S_T2}, s{S_T2}, s{S_HF}
s_lshl_b32 s{S_T2}, s{S_T2}, 3
s_add_u32 s{S_T2}, s{S_T2}, s{S_WAVE}
s_lshl_b32 s{S_T2}, s{S_T2}, 9
s_add_u32 s{S_T2}, s{S_T2}, {WS_XB}
s_xor_b32 s{S_T3}, s{S_T2}, 4096
s_lshl_b32 s{S_T1}, s{S_WAVE}, 2
s_add_u32 s{S_T1}, s{S_T1}, 32768
v_lshl_add_u32 v{V_T2}, v{V_LANE}, 5, s{S_T1}
s_waitcnt lgkmcnt(0)""")
    for w in (4, 2, 1):
        for k in range(w):
            a(f"v_pk_add_f32 v[{ACC+2*k}:{ACC+2*k+1}], v[{ACC+2*k}:{ACC+2*k+1}], v[{ACC+2*(k+w)}:{ACC+2*(k+w)+1}]")
    a(f"""v_cndmask_b32 v{ACC}, 0, v{ACC}, s[{S_MK}:{S_MK+1}]
v_cndmask_b32 v{ACC+1}, 0, v{ACC+1}, s[{S_MK}:{S_MK+1}]
buffer_store_dwordx2 v[{ACC}:{ACC+1}], v{V_L8}, {ws}, s{S_T2} offen sc1
A_X_R:
buffer_load_dwordx2 v[{ACC+2}:{ACC+3}], v{V_L8}, {ws}, s{S_T3} offen sc1
s_waitcnt vmcnt(0)
v_max_u32 v{ACC+4}, v{ACC+2}, v{ACC+3}
v_cmp_eq_u32 vcc, -1, v{ACC+4}
s_cbranch_vccz A_X_X
s_sleep {ASL}
s_addk_i32 s{S_SPIN}, -1
s_cmp_lt_i32 s{S_SPIN}, 0
s_cbranch_scc0 A_X_R
A_X_X:
v_pk_add_f32 v[{ACC}:{ACC+1}], v[{ACC}:{ACC+1}], v[{ACC+2}:{ACC+3}]""")
    vm.q = []
    a(f"""v_cvt_pk_bf16_f32 v{ACC}, v{ACC}, v{ACC+1}
ds_write_b32 v{V_T2}, v{ACC}
v_lshlrev_b32 v{V_T2}, 5, v{V_LANE}
s_waitcnt lgkmcnt(0)
s_barrier
ds_read_b128 v[{KVB}:{KVB+3}], v{V_T2} offset:32768
ds_read_b128 v[{KVB+4}:{KVB+7}], v{V_T2} offset:32784
s_waitcnt lgkmcnt(0)""")
    vm.wait("q")
    st.mark(16)
    for u in range(4):
        c = KF + 16 * u
        a(f"v_mfma_f32_32x32x16_bf16 v[{c}:{c+15}], v[{KVB}:{KVB+3}], v[{QF+8*u}:{QF+8*u+3}], 0")
        a(f"v_mfma_f32_32x32x16_bf16 v[{c}:{c+15}], v[{KVB+4}:{KVB+7}], v[{QF+8*u+4}:{QF+8*u+7}], v[{c}:{c+15}]")
    a("s_nop 5")
    for u in range(4):
        c = KF + 16 * u
        o = KF + 64 + 8 * u
        a(f"""v_add_f32 v{TP}, {f32(1e-6)}, v{c+12}
v_mov_b32 v{TP+1}, v{TP}
s_nop 1
v_permlane32_swap_b32 v{TP+1}, v{TP}
v_rcp_f32 v{TP}, v{TP}
s_nop 0""")
        for r in range(16):
            a(f"v_mul_f32 v{c+r}, v{c+r}, v{TP}")
        for r in range(8):
            a(f"v_cvt_pk_bf16_f32 v{o+r}, v{c+2*r}, v{c+2*r+1}")
        a(f"v_cndmask_b32 v{o+6}, 0, v{o+6}, s[{S_M2}:{S_M2+1}]")
        a(f"v_cndmask_b32 v{o+7}, 0, v{o+7}, s[{S_M2}:{S_M2+1}]")
        vm.issue("st", f"buffer_store_dwordx4 v[{o}:{o+3}], v{V_L16}, {ws}, s{S_O} offen{SF}")
        vm.issue("st", f"buffer_store_dwordx4 v[{o+4}:{o+7}], v{V_L16}, {ws}, s{S_O} offen offset:1024{SF}")
        a(f"s_add_u32 s{S_O}, s{S_O}, {144*1024}")
    st.mark(17)
    a(f"""v_mov_b32 v{TP}, 1
v_lshlrev_b32 v{TP+1}, 7, v{V_LANE}
s_mov_b64 exec, 3
s_waitcnt vmcnt(0)
buffer_store_dword v{TP}, v{TP+1}, {ws}, s{S_FL} offen sc1""")
    st.flush(S_WS, S_WAVE)
    a("s_endpgm")
```

```python
from asmlib import *
import struct

def f32(x):
    return "0x%08x" % struct.unpack("<I", struct.pack("<f", x))[0]

WS_Z2 = 0x0000000
WS_Z1 = 0x0400000
WS_Q = 0x0800000
WS_K = 0x0A00000
WS_V = 0x0C00000
WS_ST = 0x0E00000
WS_XB = 0x0E40000
WS_SF = 0x0F00000
WS_FL = 0x0F00000
WS_F2 = WS_FL + 0x8000
WS_F3 = WS_FL + 0xC000
WS_FZ = WS_FL + 0xD000
WS_AF = 0x1000000
WS_WF = 0x2000000
WS_SIZE = 0x3000000
WS_STAMP = 0x8000000

class VM:
    def __init__(self, a):
        self.a = a
        self.q = []
    def issue(self, tag, text):
        self.a(text)
        self.q.append(tag)
    def wait(self, *tags):
        last = -1
        for i, t in enumerate(self.q):
            if t in tags:
                last = i
        if last < 0:
            return
        n = len(self.q) - 1 - last
        assert n <= 63, n
        self.a(f"s_waitcnt vmcnt({n})")
        self.q = self.q[last + 1:]
    def copy(self, a=None):
        v = VM(a or self.a)
        v.q = list(self.q)
        return v

GELU_C0 = -2.0 * 0.7978845608028654 * 1.4426950408889634
GELU_C1 = GELU_C0 * 0.044715
LOG2E = 1.4426950408889634

class Stamp:
    def __init__(self, a, on, kern=0):
        self.a, self.on, self.kern = a, on, kern
    def mark(self, i, real=False):
        if self.on:
            self.a(f"{'s_memrealtime' if real else 's_memtime'} s[{70+2*i}:{71+2*i}]")
    def clear(self):
        if self.on:
            for i in range(14):
                self.a(f"s_mov_b32 s{70+2*i}, 0")
    def flush(self, s_ws, s_wave):
        if not self.on:
            return
        a = self.a
        a("s_waitcnt vmcnt(0)")
        self.mark(12)
        self.mark(13, True)
        a(f"""s_waitcnt lgkmcnt(0)
s_mov_b64 exec, 1
s_lshl_b32 s98, s2, 9
s_lshl_b32 s99, s{s_wave}, 6
s_add_u32 s98, s98, s99
s_add_u32 s98, s98, {WS_STAMP + self.kern * 0x100000}
s_mov_b32 s{s_ws+2}, 0x10000000
v_mov_b32 v20, 0""")
        for i in range(14):
            a(f"v_mov_b32 v{2+i}, s{70+2*i}")
        a("v_mov_b32 v16, 0\nv_mov_b32 v17, 0")
        for q in range(4):
            a(f"buffer_store_dwordx4 v[{2+4*q}:{5+4*q}], v20, s[{s_ws}:{s_ws+3}], s98 offen offset:{16*q}")


def finalize_stats(a, NP, s_ws, s_dbg, s_part, s_st, v_l16, T, lab_end, st_flags):
    NL = (NP + 3) // 4
    a(f"""s_waitcnt vmcnt(0)
s_mov_b64 exec, 1
v_mov_b32 v{T}, 1
v_mov_b32 v{T+1}, 0
s_lshl_b32 s58, s{s_st}, 2
buffer_atomic_add v{T}, v{T+1}, s[{s_dbg}:{s_dbg+3}], s58 offen sc0 sc1
s_waitcnt vmcnt(0)
v_readfirstlane_b32 s59, v{T}
s_mov_b64 exec, -1
s_cmp_lg_u32 s59, {NP-1}
s_cbranch_scc1 {lab_end}""")
    if NP % 4:
        for r in range(4):
            a(f"v_mov_b32 v{T+4*(NL-1)+r}, 0")
    for i in range(NL):
        if i == NL - 1 and NP % 4:
            m = (1 << (16 * (NP % 4))) - 1
            a(f"s_mov_b32 exec_lo, 0x{m & 0xffffffff:x}\ns_mov_b32 exec_hi, 0x{m >> 32:x}")
        if i == 4:
            a(f"s_add_u32 s{s_part}, s{s_part}, 4096")
        a(f"buffer_load_dwordx4 v[{T+4*i}:{T+4*i+3}], v{v_l16}, s[{s_ws}:{s_ws+3}], s{s_part} offen offset:{(i&3)*1024} sc0 sc1")
    a("s_mov_b64 exec, -1")
    a(f"s_lshl_b32 s58, s{s_st}, 8\ns_add_u32 s58, s58, {WS_SF}")
    for i in range(1, NL):
        a(f"s_waitcnt vmcnt({NL-1-i})")
        for h in (0, 2):
            a(f"v_pk_add_f32 v[{T+h}:{T+h+1}], v[{T+h}:{T+h+1}], v[{T+4*i+h}:{T+4*i+h+1}]")
    for op in ("v_permlane32_swap_b32", "v_permlane16_swap_b32"):
        for r in range(4):
            a(f"v_mov_b32 v{T+4+r}, v{T+r}")
        a("s_nop 1")
        for r in range(4):
            a(f"{op} v{T+4+r}, v{T+r}")
        for h in (0, 2):
            a(f"v_pk_add_f32 v[{T+h}:{T+h+1}], v[{T+h}:{T+h+1}], v[{T+4+h}:{T+4+h+1}]")
    for r in (0, 2):
        a(f"v_mul_f32 v{T+r}, {f32(-1/896)}, v{T+r}")
        a(f"v_mul_f32 v{T+r+1}, {f32(1/896)}, v{T+r+1}")
    for r in (0, 2):
        a(f"v_fma_f32 v{T+r+1}, -v{T+r}, v{T+r}, v{T+r+1}")
    for r in (0, 2):
        a(f"v_max_f32 v{T+r+1}, 0, v{T+r+1}")
    for r in (0, 2):
        a(f"v_add_f32 v{T+r+1}, {f32(1e-5)}, v{T+r+1}")
    for r in (0, 2):
        a(f"v_rsq_f32 v{T+r+1}, v{T+r+1}")
    a("s_nop 0")
    for r in (0, 2):
        a(f"v_mul_f32 v{T+r}, v{T+r}, v{T+r+1}")
    a(f"""s_mov_b64 exec, 0xffff
buffer_store_dwordx4 v[{T}:{T+3}], v{v_l16}, s[{s_ws}:{s_ws+3}], s58 offen{st_flags}""")


class Stamp2:
    V = 231
    def __init__(self, a, on):
        self.a, self.on, self.pend = a, on, []
    def copy(self):
        t = Stamp2(self.a, self.on)
        t.pend = list(self.pend)
        return t
    def init(self):
        if self.on:
            self.a(f"v_mov_b32 v{self.V}, 0")
    def mark(self, i, real=False):
        if self.on:
            n = len(self.pend)
            assert n < 10, self.pend
            self.a(f"{'s_memrealtime' if real else 's_memtime'} s[{80+2*n}:{81+2*n}]")
            self.pend.append(i)
    def fold(self):
        if self.on and self.pend:
            self.a("s_waitcnt lgkmcnt(0)")
            for n, i in enumerate(self.pend):
                self.a(f"v_writelane_b32 v{self.V}, s{80+2*n}, {i}")
            self.pend = []
    def flush(self, s_ws, s_wave):
        if not self.on:
            return
        a = self.a
        self.fold()
        a("s_waitcnt vmcnt(0)")
        self.mark(62)
        self.mark(63, True)
        self.fold()
        a(f"""s_mov_b64 exec, -1
s_lshl_b32 s98, s2, 11
s_lshl_b32 s99, s{s_wave}, 8
s_add_u32 s98, s98, s99
s_add_u32 s98, s98, {WS_STAMP}
s_mov_b32 s{s_ws+2}, 0x10000000
v_mbcnt_lo_u32_b32 v2, -1, 0
v_mbcnt_hi_u32_b32 v2, -1, v2
v_lshlrev_b32 v2, 2, v2
buffer_store_dword v{self.V}, v2, s[{s_ws}:{s_ws+3}], s98 offen""")
        import os
        if os.environ.get("DBGW"):
            lab = a.label("DBG")
            a(f"""s_cmp_lg_u32 s2, {os.environ["DBGW"]}
s_cbranch_scc1 {lab}
s_cmp_lg_u32 s{s_wave}, 4
s_cbranch_scc1 {lab}
s_load_dwordx2 s[90:91], s[0:1], 72
v_readlane_b32 s92, v{self.V}, 1
v_mov_b32 v2, 0x1000
s_waitcnt lgkmcnt(0)""")
            srd(a, 84, 90, 256)
            a(f"v_subrev_u32 v3, s92, v{self.V}")
            for w, m in zip((2, 3, 6, 7, 10, 11, 14, 15), [int(x) for x in os.environ.get("DBGM", "3,6,11,14,17,18,22,62").split(",")]):
                a(f"s_mov_b32 s93, {4 * w}\nv_writelane_b32 v2, s93, {m}")
            a(f"s_nop 4\nbuffer_store_dword v3, v2, s[84:87], 0 offen\n{lab}:")
```

```python
from asmlib import *
import struct

def f32(x):
    return "0x%08x" % struct.unpack("<I", struct.pack("<f", x))[0]

WS_Z2 = 0x0000000
WS_Z1 = 0x0400000
WS_Q = 0x0800000
WS_K = 0x0A00000
WS_V = 0x0C00000
WS_ST = 0x0E00000
WS_XB = 0x0E40000
WS_SF = 0x0F00000
WS_FL = 0x0F00000
WS_F2 = WS_FL + 0x8000
WS_F3 = WS_FL + 0xC000
WS_FZ = WS_FL + 0xD000
WS_AF = 0x1000000
WS_WF = 0x2000000
WS_SIZE = 0x3000000
WS_STAMP = 0x8000000

class VM:
    def __init__(self, a):
        self.a = a
        self.q = []
    def issue(self, tag, text):
        self.a(text)
        self.q.append(tag)
    def wait(self, *tags):
        last = -1
        for i, t in enumerate(self.q):
            if t in tags:
                last = i
        if last < 0:
            return
        n = len(self.q) - 1 - last
        assert n <= 63, n
        self.a(f"s_waitcnt vmcnt({n})")
        self.q = self.q[last + 1:]
    def copy(self, a=None):
        v = VM(a or self.a)
        v.q = list(self.q)
        return v

GELU_C0 = -2.0 * 0.7978845608028654 * 1.4426950408889634
GELU_C1 = GELU_C0 * 0.044715
LOG2E = 1.4426950408889634

class Stamp:
    def __init__(self, a, on, kern=0):
        self.a, self.on, self.kern = a, on, kern
    def mark(self, i, real=False):
        if self.on:
            self.a(f"{'s_memrealtime' if real else 's_memtime'} s[{70+2*i}:{71+2*i}]")
    def clear(self):
        if self.on:
            for i in range(14):
                self.a(f"s_mov_b32 s{70+2*i}, 0")
    def flush(self, s_ws, s_wave):
        if not self.on:
            return
        a = self.a
        a("s_waitcnt vmcnt(0)")
        self.mark(12)
        self.mark(13, True)
        a(f"""s_waitcnt lgkmcnt(0)
s_mov_b64 exec, 1
s_lshl_b32 s98, s2, 9
s_lshl_b32 s99, s{s_wave}, 6
s_add_u32 s98, s98, s99
s_add_u32 s98, s98, {WS_STAMP + self.kern * 0x100000}
s_mov_b32 s{s_ws+2}, 0x10000000
v_mov_b32 v20, 0""")
        for i in range(14):
            a(f"v_mov_b32 v{2+i}, s{70+2*i}")
        a("v_mov_b32 v16, 0\nv_mov_b32 v17, 0")
        for q in range(4):
            a(f"buffer_store_dwordx4 v[{2+4*q}:{5+4*q}], v20, s[{s_ws}:{s_ws+3}], s98 offen offset:{16*q}")


def finalize_stats(a, NP, s_ws, s_dbg, s_part, s_st, v_l16, T, lab_end, st_flags):
    NL = (NP + 3) // 4
    a(f"""s_waitcnt vmcnt(0)
s_mov_b64 exec, 1
v_mov_b32 v{T}, 1
v_mov_b32 v{T+1}, 0
s_lshl_b32 s58, s{s_st}, 2
buffer_atomic_add v{T}, v{T+1}, s[{s_dbg}:{s_dbg+3}], s58 offen sc0 sc1
s_waitcnt vmcnt(0)
v_readfirstlane_b32 s59, v{T}
s_mov_b64 exec, -1
s_cmp_lg_u32 s59, {NP-1}
s_cbranch_scc1 {lab_end}""")
    if NP % 4:
        for r in range(4):
            a(f"v_mov_b32 v{T+4*(NL-1)+r}, 0")
    for i in range(NL):
        if i == NL - 1 and NP % 4:
            m = (1 << (16 * (NP % 4))) - 1
            a(f"s_mov_b32 exec_lo, 0x{m & 0xffffffff:x}\ns_mov_b32 exec_hi, 0x{m >> 32:x}")
        if i == 4:
            a(f"s_add_u32 s{s_part}, s{s_part}, 4096")
        a(f"buffer_load_dwordx4 v[{T+4*i}:{T+4*i+3}], v{v_l16}, s[{s_ws}:{s_ws+3}], s{s_part} offen offset:{(i&3)*1024} sc0 sc1")
    a("s_mov_b64 exec, -1")
    a(f"s_lshl_b32 s58, s{s_st}, 8\ns_add_u32 s58, s58, {WS_SF}")
    for i in range(1, NL):
        a(f"s_waitcnt vmcnt({NL-1-i})")
        for h in (0, 2):
            a(f"v_pk_add_f32 v[{T+h}:{T+h+1}], v[{T+h}:{T+h+1}], v[{T+4*i+h}:{T+4*i+h+1}]")
    for op in ("v_permlane32_swap_b32", "v_permlane16_swap_b32"):
        for r in range(4):
            a(f"v_mov_b32 v{T+4+r}, v{T+r}")
        a("s_nop 1")
        for r in range(4):
            a(f"{op} v{T+4+r}, v{T+r}")
        for h in (0, 2):
            a(f"v_pk_add_f32 v[{T+h}:{T+h+1}], v[{T+h}:{T+h+1}], v[{T+4+h}:{T+4+h+1}]")
    for r in (0, 2):
        a(f"v_mul_f32 v{T+r}, {f32(-1/896)}, v{T+r}")
        a(f"v_mul_f32 v{T+r+1}, {f32(1/896)}, v{T+r+1}")
    for r in (0, 2):
        a(f"v_fma_f32 v{T+r+1}, -v{T+r}, v{T+r}, v{T+r+1}")
    for r in (0, 2):
        a(f"v_max_f32 v{T+r+1}, 0, v{T+r+1}")
    for r in (0, 2):
        a(f"v_add_f32 v{T+r+1}, {f32(1e-5)}, v{T+r+1}")
    for r in (0, 2):
        a(f"v_rsq_f32 v{T+r+1}, v{T+r+1}")
    a("s_nop 0")
    for r in (0, 2):
        a(f"v_mul_f32 v{T+r}, v{T+r}, v{T+r+1}")
    a(f"""s_mov_b64 exec, 0xffff
buffer_store_dwordx4 v[{T}:{T+3}], v{v_l16}, s[{s_ws}:{s_ws+3}], s58 offen{st_flags}""")


class Stamp2:
    V = 231
    def __init__(self, a, on):
        self.a, self.on, self.pend = a, on, []
    def copy(self):
        t = Stamp2(self.a, self.on)
        t.pend = list(self.pend)
        return t
    def init(self):
        if self.on:
            self.a(f"v_mov_b32 v{self.V}, 0")
    def mark(self, i, real=False):
        if self.on:
            n = len(self.pend)
            assert n < 10, self.pend
            self.a(f"{'s_memrealtime' if real else 's_memtime'} s[{80+2*n}:{81+2*n}]")
            self.pend.append(i)
    def fold(self):
        if self.on and self.pend:
            self.a("s_waitcnt lgkmcnt(0)")
            for n, i in enumerate(self.pend):
                self.a(f"v_writelane_b32 v{self.V}, s{80+2*n}, {i}")
            self.pend = []
    def flush(self, s_ws, s_wave):
        if not self.on:
            return
        a = self.a
        self.fold()
        a("s_waitcnt vmcnt(0)")
        self.mark(62)
        self.mark(63, True)
        self.fold()
        a(f"""s_mov_b64 exec, -1
s_lshl_b32 s98, s2, 11
s_lshl_b32 s99, s{s_wave}, 8
s_add_u32 s98, s98, s99
s_add_u32 s98, s98, {WS_STAMP}
s_mov_b32 s{s_ws+2}, 0x10000000
v_mbcnt_lo_u32_b32 v2, -1, 0
v_mbcnt_hi_u32_b32 v2, -1, v2
v_lshlrev_b32 v2, 2, v2
buffer_store_dword v{self.V}, v2, s[{s_ws}:{s_ws+3}], s98 offen""")
        import os
        if os.environ.get("ENC"):
            lab = a.label("ENC")
            w, m = os.environ["ENC"].split(",")
            a(f"""s_cmp_lg_u32 s2, {w}
s_cbranch_scc1 {lab}
s_cmp_lg_u32 s{s_wave}, 4
s_cbranch_scc1 {lab}
v_readlane_b32 s92, v{self.V}, 1
v_readlane_b32 s93, v{self.V}, {m}
v_readlane_b32 s94, v{self.V}, 0
s_sub_u32 s92, s93, s92
s_lshr_b32 s92, s92, 3
s_min_u32 s92, s92, 12000
s_add_u32 s92, s92, 4000
s_mov_b32 s95, 100000
{lab}r:
s_memrealtime s[90:91]
s_waitcnt lgkmcnt(0)
s_sub_u32 s90, s90, s94
s_addk_i32 s95, -1
s_cmp_lt_i32 s95, 0
s_cbranch_scc1 {lab}
s_cmp_lt_u32 s90, s92
s_cbranch_scc1 {lab}r
{lab}:""")
        if os.environ.get("DBGW"):
            lab = a.label("DBG")
            a(f"""s_cmp_lg_u32 s2, {os.environ["DBGW"]}
s_cbranch_scc1 {lab}
s_cmp_lg_u32 s{s_wave}, 4
s_cbranch_scc1 {lab}
s_load_dwordx2 s[90:91], s[0:1], 72
v_readlane_b32 s92, v{self.V}, 1
v_mov_b32 v2, 0x1000
s_waitcnt lgkmcnt(0)""")
            srd(a, 84, 90, 256)
            a(f"v_subrev_u32 v3, s92, v{self.V}")
            for w, m in zip((2, 3, 6, 7, 10, 11, 14, 15), [int(x) for x in os.environ.get("DBGM", "3,6,11,14,17,18,22,62").split(",")]):
                a(f"s_mov_b32 s93, {4 * w}\nv_writelane_b32 v2, s93, {m}")
            a(f"s_nop 4\nbuffer_store_dword v3, v2, s[84:87], 0 offen\n{lab}:")
```

```python
from asmlib import *
import struct

def f32(x):
    return "0x%08x" % struct.unpack("<I", struct.pack("<f", x))[0]

WS_Z2 = 0x0000000
WS_Z1 = 0x0400000
WS_Q = 0x0800000
WS_K = 0x0A00000
WS_V = 0x0C00000
WS_ST = 0x0E00000
WS_XB = 0x0E40000
WS_SF = 0x0F00000
WS_FL = 0x0F00000
WS_F2 = WS_FL + 0x8000
WS_F3 = WS_FL + 0xC000
WS_FZ = WS_FL + 0xD000
WS_AF = 0x1000000
WS_WF = 0x2000000
WS_SIZE = 0x3000000
WS_STAMP = 0x8000000

class VM:
    def __init__(self, a):
        self.a = a
        self.q = []
    def issue(self, tag, text):
        self.a(text)
        self.q.append(tag)
    def wait(self, *tags):
        last = -1
        for i, t in enumerate(self.q):
            if t in tags:
                last = i
        if last < 0:
            return
        n = len(self.q) - 1 - last
        assert n <= 63, n
        self.a(f"s_waitcnt vmcnt({n})")
        self.q = self.q[last + 1:]
    def copy(self, a=None):
        v = VM(a or self.a)
        v.q = list(self.q)
        return v

GELU_C0 = -2.0 * 0.7978845608028654 * 1.4426950408889634
GELU_C1 = GELU_C0 * 0.044715
LOG2E = 1.4426950408889634

class Stamp:
    def __init__(self, a, on, kern=0):
        self.a, self.on, self.kern = a, on, kern
    def mark(self, i, real=False):
        if self.on:
            self.a(f"{'s_memrealtime' if real else 's_memtime'} s[{70+2*i}:{71+2*i}]")
    def clear(self):
        if self.on:
            for i in range(14):
                self.a(f"s_mov_b32 s{70+2*i}, 0")
    def flush(self, s_ws, s_wave):
        if not self.on:
            return
        a = self.a
        a("s_waitcnt vmcnt(0)")
        self.mark(12)
        self.mark(13, True)
        a(f"""s_waitcnt lgkmcnt(0)
s_mov_b64 exec, 1
s_lshl_b32 s98, s2, 9
s_lshl_b32 s99, s{s_wave}, 6
s_add_u32 s98, s98, s99
s_add_u32 s98, s98, {WS_STAMP + self.kern * 0x100000}
s_mov_b32 s{s_ws+2}, 0x10000000
v_mov_b32 v20, 0""")
        for i in range(14):
            a(f"v_mov_b32 v{2+i}, s{70+2*i}")
        a("v_mov_b32 v16, 0\nv_mov_b32 v17, 0")
        for q in range(4):
            a(f"buffer_store_dwordx4 v[{2+4*q}:{5+4*q}], v20, s[{s_ws}:{s_ws+3}], s98 offen offset:{16*q}")


def finalize_stats(a, NP, s_ws, s_dbg, s_part, s_st, v_l16, T, lab_end, st_flags):
    NL = (NP + 3) // 4
    a(f"""s_waitcnt vmcnt(0)
s_mov_b64 exec, 1
v_mov_b32 v{T}, 1
v_mov_b32 v{T+1}, 0
s_lshl_b32 s58, s{s_st}, 2
buffer_atomic_add v{T}, v{T+1}, s[{s_dbg}:{s_dbg+3}], s58 offen sc0 sc1
s_waitcnt vmcnt(0)
v_readfirstlane_b32 s59, v{T}
s_mov_b64 exec, -1
s_cmp_lg_u32 s59, {NP-1}
s_cbranch_scc1 {lab_end}""")
    if NP % 4:
        for r in range(4):
            a(f"v_mov_b32 v{T+4*(NL-1)+r}, 0")
    for i in range(NL):
        if i == NL - 1 and NP % 4:
            m = (1 << (16 * (NP % 4))) - 1
            a(f"s_mov_b32 exec_lo, 0x{m & 0xffffffff:x}\ns_mov_b32 exec_hi, 0x{m >> 32:x}")
        if i == 4:
            a(f"s_add_u32 s{s_part}, s{s_part}, 4096")
        a(f"buffer_load_dwordx4 v[{T+4*i}:{T+4*i+3}], v{v_l16}, s[{s_ws}:{s_ws+3}], s{s_part} offen offset:{(i&3)*1024} sc0 sc1")
    a("s_mov_b64 exec, -1")
    a(f"s_lshl_b32 s58, s{s_st}, 8\ns_add_u32 s58, s58, {WS_SF}")
    for i in range(1, NL):
        a(f"s_waitcnt vmcnt({NL-1-i})")
        for h in (0, 2):
            a(f"v_pk_add_f32 v[{T+h}:{T+h+1}], v[{T+h}:{T+h+1}], v[{T+4*i+h}:{T+4*i+h+1}]")
    for op in ("v_permlane32_swap_b32", "v_permlane16_swap_b32"):
        for r in range(4):
            a(f"v_mov_b32 v{T+4+r}, v{T+r}")
        a("s_nop 1")
        for r in range(4):
            a(f"{op} v{T+4+r}, v{T+r}")
        for h in (0, 2):
            a(f"v_pk_add_f32 v[{T+h}:{T+h+1}], v[{T+h}:{T+h+1}], v[{T+4+h}:{T+4+h+1}]")
    for r in (0, 2):
        a(f"v_mul_f32 v{T+r}, {f32(-1/896)}, v{T+r}")
        a(f"v_mul_f32 v{T+r+1}, {f32(1/896)}, v{T+r+1}")
    for r in (0, 2):
        a(f"v_fma_f32 v{T+r+1}, -v{T+r}, v{T+r}, v{T+r+1}")
    for r in (0, 2):
        a(f"v_max_f32 v{T+r+1}, 0, v{T+r+1}")
    for r in (0, 2):
        a(f"v_add_f32 v{T+r+1}, {f32(1e-5)}, v{T+r+1}")
    for r in (0, 2):
        a(f"v_rsq_f32 v{T+r+1}, v{T+r+1}")
    a("s_nop 0")
    for r in (0, 2):
        a(f"v_mul_f32 v{T+r}, v{T+r}, v{T+r+1}")
    a(f"""s_mov_b64 exec, 0xffff
buffer_store_dwordx4 v[{T}:{T+3}], v{v_l16}, s[{s_ws}:{s_ws+3}], s58 offen{st_flags}""")


class Stamp2:
    V = 231
    def __init__(self, a, on):
        self.a, self.on, self.pend = a, on, []
    def copy(self):
        t = Stamp2(self.a, self.on)
        t.pend = list(self.pend)
        return t
    def init(self):
        if self.on:
            self.a(f"v_mov_b32 v{self.V}, 0")
    def mark(self, i, real=False):
        if self.on:
            n = len(self.pend)
            assert n < 10, self.pend
            self.a(f"{'s_memrealtime' if real else 's_memtime'} s[{80+2*n}:{81+2*n}]")
            self.pend.append(i)
    def fold(self):
        if self.on and self.pend:
            self.a("s_waitcnt lgkmcnt(0)")
            for n, i in enumerate(self.pend):
                self.a(f"v_writelane_b32 v{self.V}, s{80+2*n}, {i}")
            self.pend = []
    def flush(self, s_ws, s_wave):
        if not self.on:
            return
        a = self.a
        self.fold()
        a("s_waitcnt vmcnt(0)")
        import os
        if os.environ.get("ICP"):
            lab = a.label("ICP")
            a(f"""s_cmp_lg_u32 s2, 53
s_cbranch_scc1 {lab}
s_cmp_lg_u32 s{s_wave}, 4
s_cbranch_scc1 {lab}
s_sleep 100""")
            self.mark(1)
            a("s_mov_b32 s98, 0x12345678\n" * 1024)
            self.mark(60)
            self.fold()
            a(f"{lab}:")
        self.mark(62)
        self.mark(63, True)
        self.fold()
        a(f"""s_mov_b64 exec, -1
s_lshl_b32 s98, s2, 11
s_lshl_b32 s99, s{s_wave}, 8
s_add_u32 s98, s98, s99
s_add_u32 s98, s98, {WS_STAMP}
s_mov_b32 s{s_ws+2}, 0x10000000
v_mbcnt_lo_u32_b32 v2, -1, 0
v_mbcnt_hi_u32_b32 v2, -1, v2
v_lshlrev_b32 v2, 2, v2
buffer_store_dword v{self.V}, v2, s[{s_ws}:{s_ws+3}], s98 offen""")
        import os
        if os.environ.get("ENC"):
            lab = a.label("ENC")
            w, m = os.environ["ENC"].split(",")
            a(f"""s_cmp_lg_u32 s2, {w}
s_cbranch_scc1 {lab}
s_cmp_lg_u32 s{s_wave}, 4
s_cbranch_scc1 {lab}
v_readlane_b32 s92, v{self.V}, 1
v_readlane_b32 s93, v{self.V}, {m}
v_readlane_b32 s94, v{self.V}, 0
s_sub_u32 s92, s93, s92
s_lshr_b32 s92, s92, 3
s_min_u32 s92, s92, 12000
s_add_u32 s92, s92, 4000
s_mov_b32 s95, 100000
{lab}r:
s_memrealtime s[90:91]
s_waitcnt lgkmcnt(0)
s_sub_u32 s90, s90, s94
s_addk_i32 s95, -1
s_cmp_lt_i32 s95, 0
s_cbranch_scc1 {lab}
s_cmp_lt_u32 s90, s92
s_cbranch_scc1 {lab}r
{lab}:""")
        if os.environ.get("DBGW"):
            lab = a.label("DBG")
            a(f"""s_cmp_lg_u32 s2, {os.environ["DBGW"]}
s_cbranch_scc1 {lab}
s_cmp_lg_u32 s{s_wave}, 4
s_cbranch_scc1 {lab}
s_load_dwordx2 s[90:91], s[0:1], 72
v_readlane_b32 s92, v{self.V}, 1
v_mov_b32 v2, 0x1000
s_waitcnt lgkmcnt(0)""")
            srd(a, 84, 90, 256)
            a(f"v_subrev_u32 v3, s92, v{self.V}")
            for w, m in zip((2, 3, 6, 7, 10, 11, 14, 15), [int(x) for x in os.environ.get("DBGM", "3,6,11,14,17,18,22,62").split(",")]):
                a(f"s_mov_b32 s93, {4 * w}\nv_writelane_b32 v2, s93, {m}")
            a(f"s_nop 4\nbuffer_store_dword v3, v2, s[84:87], 0 offen\n{lab}:")
```

```python
from common import *
import os
R1 = 0
RING = 57344
SCR = RING + 57344
DEAD = SCR + 8192
P1_LDS = 163840
P1_VGPR = 256
E = os.environ.get
ROTMODE = 1
STORE_FLAGS = E("SF", " sc1")
PFL = [int(x) for x in E("P1_PFL", "9,16,23,30").split(",")]
PFROW = int(E("P1_PFROW", "0"))
WPF = int(E("P1_WPF", "13"))
NTP, NTX, NTW, NTO = [" nt" if c == "1" else "" for c in E("P1_NT", "1000")]
NTQ = E("P1_NTQ", "0000")
CPF = [int(x) for x in E("P1_CPF", "-1,-1,-1,-1").split(",")]
WSB = int(E("WSB", "0"), 0)
CSTAT = E("P1_CSTAT", "valu")
SCH = {"E": [int(x) for x in E("P1_SE", "17,28,32,37,38,52,46").split(",")],
       "L": [int(x) for x in E("P1_SL", "22,46,50,55,30,43,-1").split(",")]}
LATEF = int(E("P1_LATEF", "2"))
PSL = int(E("P1_PSL", "3"))
RTL = [int(x) for x in E("P1_RTL", "-1,-1,-1,-1").split(",")]
TOUCH = 0
assert max(CPF) < 0
WPX = [int(x) for x in E("P1_WPX", "-1,-1").split(",")]
FAE = int(E("P1_FAE", "0"))
STP = int(E("STP", "0"))
WC0 = int(E("P1_WC0", "0"))
PS1 = dict(zip("EL", E("P1_PS1", "11")))
PMASK = int(E("P1_PMASK", "1"))

P_X, P_QKV, P_WO, P_WIN, P_SP, P_BSP, P_WOUT, P_DBG, P_WS, P_OUT = 64, 66, 68, 72, 74, 76, 78, 56, 58, 60
X = E("P1_X", "")

V_LANE = 1
V_X0, V_X1, V_DA, V_DB = 2, 3, 4, 5
XR, WR = 6, 10
V_L16, V_T0 = 14, 15
A0 = 16
V_S, V_Q = 224, 225
V_R, V_C0, V_C1, V_RI, V_L2E = 226, 227, 228, 229, 230
V_PF = 0
SEL = 232
XE, CE = 236, 240
T4 = 248
V_KO, V_L8, V_CSA, V_DUM = 252, 253, 254, 255

S_SP = 4
S_PFO, S_CNT, S_REC, S_FL = 8, 9, 10, 11
S_X, S_WA, S_WB, S_WS = 12, 16, 20, 24
S_RB, S_G, S_WAVE, S_RW, S_CH = 28, 29, 30, 31, 32
S_T0, S_T1, S_T2, S_T3 = 33, 34, 35, 36
S_PK = 37
S_XB = 38
S_L = 39
S_A64 = 43
S_MR, S_MW = 44, 45
S_XO = 46
S_O = 47
S_SA = 52
S_SPIN = 53
S_HI = 54
B64 = 64 * 2688

class K:
    def __init__(s, kinds):
        s.kinds = kinds
        s.nA = 2 if kinds[0] == "V" else 1
        s.WST = (2 + s.nA) * 1024
        s.SLOT = 8 * s.WST
        s.NSL = 98304 // s.SLOT
        s.DEPTH = s.NSL - 1
        s.ori = [k in "GLQ" for k in kinds]
        s.WB, s.CV, s.CSA = 160, 212, 220
        if s.nA == 1:
            s.ACC = [128, 144, 160]
            s.BR, s.TMP, s.R16, s.XS = 176, 196, A0, CE + 4
            s.stat = E("P1_ASTAT", "mix")
        else:
            s.ACC = [128, 144, 160, 128]
            s.BR, s.TMP, s.R16, s.XS = 192, 176, 176, 228
            s.stat = CSTAT
NBR = 5

class LG:
    def __init__(self, a):
        self.a, self.q = a, []
    def issue(self, tag, text):
        self.a(text)
        self.q.append(tag)
    def wait(self, *tags):
        last = -1
        for i, t in enumerate(self.q):
            if t in tags:
                last = i
        if last < 0:
            return
        n = min(15, len(self.q) - 1 - last)
        self.a(f"s_waitcnt lgkmcnt({n})")
        self.q = self.q[len(self.q) - n:] if n else []
    def all(self):
        if self.q:
            self.a("s_waitcnt lgkmcnt(0)")
        self.q = []
    def copy(self):
        v = LG(self.a)
        v.q = list(self.q)
        return v

def mf(acc, w, x, orient, first=False):
    c = "0" if first else f"v[{acc}:{acc+15}]"
    if orient:
        return f"v_mfma_f32_32x32x16_bf16 v[{acc}:{acc+15}], v[{w}:{w+3}], v[{x}:{x+3}], {c}"
    return f"v_mfma_f32_32x32x16_bf16 v[{acc}:{acc+15}], v[{x}:{x+3}], v[{w}:{w+3}], {c}"

def mf16(c, b, first):
    return f"v_mfma_f32_16x16x32_bf16 v[{c}:{c+3}], v[{SEL}:{SEL+3}], v[{b}:{b+3}], " + ("0" if first else f"v[{c}:{c+3}]")

def adv_pk(a):
    if ROTMODE != 1:
        a(f"""s_add_u32 s{S_PK}, s{S_PK}, 1
s_cmp_eq_u32 s{S_PK}, 7
s_cselect_b32 s{S_PK}, 0, s{S_PK}""")

def line_src(L):
    if L == 1:
        return V_DB, S_WB, str(B64)
    return V_DA, S_WA, f"s{S_A64}"

def w_off(a, L, dst):
    v, s, st = line_src(L)
    if ROTMODE == 1:
        return S_L + L
    a(f"s_mul_i32 s{dst}, s{S_PK}, {st}\ns_add_u32 s{dst}, s{dst}, s{S_L+L}")
    return dst

def w_adv(a, L):
    if ROTMODE == 1:
        a(f"s_add_u32 s{S_L+L}, s{S_L+L}, {line_src(L)[2]}")

def piece_dma(a, vm, k, j):
    sl = RING + (j % k.NSL) * k.SLOT
    def x0():
        a(f"s_add_u32 m0, s{S_MR}, {sl}")
        if ROTMODE == 1:
            a(f"s_add_u32 s{S_T0}, s{S_XB}, {128 * j}")
        else:
            a(f"s_lshl_b32 s{S_T0}, s{S_PK}, 7\ns_add_u32 s{S_T0}, s{S_T0}, s{S_XB}")
        vm.issue(f"p{j}", f"buffer_load_dwordx4 v{V_X0}, s[{S_X}:{S_X+3}], s{S_T0} offen{NTX} lds")
    def x1():
        vm.issue(f"p{j}", f"buffer_load_dwordx4 v{V_X1}, s[{S_X}:{S_X+3}], s{S_T0} offen offset:{(1+k.nA)*1024}{NTX} lds")
    def w(L):
        def f():
            v, s, _ = line_src(L)
            o = w_off(a, L, S_T1)
            vm.issue(f"p{j}", f"buffer_load_dwordx4 v{v}, s[{s}:{s+3}], s{o} offen offset:{(1+L)*1024}{NTW} lds")
            w_adv(a, L)
            if L == k.nA - 1:
                adv_pk(a)
        return f
    return [x0, x1] + [w(L) for L in range(k.nA)]

def line_dma(a, vm, L, b, base, tag):
    def f():
        v, s, _ = line_src(L)
        a(f"s_add_u32 m0, s{S_MW}, {base + b * 8192}")
        o = w_off(a, L, S_T1)
        if ROTMODE == 1:
            a("s_nop 0")
        vm.issue(tag, f"buffer_load_dwordx4 v{v}, s[{s}:{s+3}], s{o} offen{NTW} lds")
        w_adv(a, L)
        adv_pk(a)
    return f

def I(a, s):
    return lambda: a(s)

def spread(n, lst):
    return [lst[len(lst) * i // n: len(lst) * (i + 1) // n] for i in range(n)]

def ce_build(ce, src):
    return [f"v_add_f32 v{src}, v{src}, v{src+1}",
            f"v_add_f32 v{src+2}, v{src+2}, v{src+3}",
            f"v_add_f32 v{src}, v{src}, v{src+2}",
            f"v_and_b32 v{src+1}, 0xffff0000, v{src}",
            f"v_sub_f32 v{src}, v{src}, v{src+1}",
            f"v_cvt_pk_bf16_f32 v{ce}, v{src+1}, v{src}"]

def store_tile(a, vm, kind, src, so):
    tg = "st" + kind
    ws = f"s[{S_WS}:{S_WS+3}]"
    l = []
    if kind in "GL":
        l.append(lambda: vm.issue(tg, f"buffer_store_dwordx4 v[{src}:{src+3}], v{V_L16}, {ws}, s{so} offen{STORE_FLAGS}"))
        l.append(lambda: vm.issue(tg, f"buffer_store_dwordx4 v[{src+4}:{src+7}], v{V_L16}, {ws}, s{so} offen offset:1024{STORE_FLAGS}"))
    elif kind == "Q":
        for i in range(4):
            l.append(lambda i=i: vm.issue(tg, f"buffer_store_dwordx2 v[{src+2*i}:{src+2*i+1}], v{V_L8}, {ws}, s{so} offen offset:{512*i}{STORE_FLAGS}"))
    else:
        l.append(lambda: vm.issue(tg, f"buffer_store_dwordx4 v[{src}:{src+3}], v{V_KO}, {ws}, s{so} offen{STORE_FLAGS}"))
        def second():
            a(f"s_add_u32 s{so}, s{so}, 14336")
            vm.issue(tg, f"buffer_store_dwordx4 v[{src+4}:{src+7}], v{V_KO}, {ws}, s{so} offen{STORE_FLAGS}")
        l.append(second)
    return l

def epilogue(a, vm, k, kind, acc, so):
    T = k.TMP
    R = (lambda r: V_R) if kind in "GLQ" else (lambda r: k.R16 + r)
    s = []
    for h in range(2):
        rs = range(8 * h, 8 * h + 8)
        if kind in "GL":
            s += [f"v_mul_f32 v{T+r}, v{acc+r}, v{acc+r}" for r in rs]
            s += [f"v_fma_f32 v{T+r}, v{T+r}, v{V_C1}, v{V_C0}" for r in rs]
            s += [f"v_mul_f32 v{T+r}, v{T+r}, v{acc+r}" for r in rs]
            s += [f"v_exp_f32 v{T+r}, v{T+r}" for r in rs]
            s += [f"v_fma_f32 v{T+r}, v{T+r}, v{V_RI}, v{V_RI}" for r in rs]
            s += [f"v_rcp_f32 v{T+r}, v{T+r}" for r in rs]
            s += [f"v_mul_f32 v{acc+r}, v{T+r}, v{acc+r}" for r in rs]
            for r in (rs if kind == "G" else []):
                s.append(f"v_add_f32 v{V_S}, v{V_S}, v{acc+r}" if r else f"v_mov_b32 v{V_S}, v{acc}")
                s.append(f"v_fmac_f32 v{V_Q}, v{acc+r}, v{acc+r}" if r else f"v_mul_f32 v{V_Q}, v{acc}, v{acc}")
        elif kind in "QK":
            s += [f"v_fmaak_f32 v{acc+r}, v{acc+r}, v{R(r)}, {f32(1e-6)}" for r in rs]
            s += [f"v_fmaak_f32 v{T+r}, v{acc+r}, v{V_L2E}, {f32(-1e-6*LOG2E)}" for r in rs]
            s += [f"v_exp_f32_e64 v{T+r}, v{T+r} clamp" for r in rs]
            s += [f"v_max_f32 v{acc+r}, {f32(1e-6)}, v{acc+r}" for r in rs]
            s += [f"v_add_f32 v{acc+r}, v{acc+r}, v{T+r}" for r in rs]
        else:
            s += [f"v_mul_f32 v{acc+r}, v{acc+r}, v{R(r)}" for r in rs]
    l = [I(a, x) for x in s]
    if kind != "G":
        l += [I(a, f"v_cvt_pk_bf16_f32 v{k.CV+r}, v{acc+2*r}, v{acc+2*r+1}") for r in range(8)]
        if kind != "L":
            l += store_tile(a, vm, kind, k.CV, so)
    return l

def phase_a(a, vm, lg, k, st, tail_fill):
    nA = k.nA
    late = [line_dma(a, vm, nA, b, R1, "wa" if b < 3 else "wb") for b in range(7)]
    lsp = spread(k.DEPTH, late) if k.DEPTH == 3 else [late[:4], late[4:]]
    if k.DEPTH == 3:
        lsp = [late[:3], late[3:5], late[5:]]
    XS = k.XS
    for j in range(8):
        main, reads, dots, dmas, extra = [], [], [], [], []
        if j < 7:
            vm.wait(f"p{j}")
            a("s_barrier")
            if j in (0, 3, 6):
                st.mark(3 + j // 3)
            so = (j % k.NSL) * k.SLOT
            for i in range(4):
                x = A0 + 16 * j + 4 * i
                xr, xo = (XR + i, so) if so < 65536 else (None, None)
                reads.append(("x", x, i, so))
                for L in range(nA):
                    b = k.WB + 16 * nA * (j & 1) + 16 * L + 4 * i
                    reads.append(("w", b, i, so + L * 1024))
                    reads.append(("w", b + 2, i, so + L * 1024 + 512))
            def rd(t, r, i, off):
                def f():
                    if t == "x":
                        lg.issue("a", f"ds_read_b128 v[{r}:{r+3}], v{XR+i} offset:{off - hi(off)}")
                    else:
                        lg.issue("a", f"ds_read_b64_tr_b16 v[{r}:{r+1}], v{WR+i} offset:{off - hi(off)}")
                return f
            hi = lambda off: 49152 if so >= 49152 else 0
            prev = ((j - 1) % k.NSL) * k.SLOT if j else 0
            if (prev >= 49152) != (so >= 49152):
                op = "v_add_u32" if so >= 49152 else "v_subrev_u32"
                for r in list(range(XR, XR + 4)) + list(range(WR, WR + 4)):
                    a(f"{op} v{r}, 49152, v{r}")
            reads = [rd(*r) for r in reads]
            if j + k.DEPTH < 7:
                dmas = piece_dma(a, vm, k, j + k.DEPTH)
            else:
                dmas = lsp[j + k.DEPTH - 7]
            if j == k.DEPTH and k.kinds[0] == "V":
                def flag():
                    a(f"s_cmp_eq_u32 s{S_WAVE}, 7\ns_cselect_b64 exec, 1, 0")
                    a(f"buffer_store_dword v{V_DUM}, v{XE+1}, s[{S_SP}:{S_SP+3}], s{S_CNT} offen sc1")
                    a(f"s_mov_b64 exec, -1")
                assert "clr" not in vm.q
                dmas = dmas + [flag]
        else:
            vm.wait("wa")
            a("s_barrier")
            reads = tail_fill
        if j > 0:
            p = j - 1
            for i in range(4):
                x = A0 + 16 * p + 4 * i
                for L in range(nA):
                    b = k.WB + 16 * nA * (p & 1) + 16 * L + 4 * i
                    main.append(I(a, mf(k.ACC[L], b, x, k.ori[L], p == 0 and i == 0)))
            for L in range(nA):
                extra.append(I(a, mf16(CE + 4 * L, k.WB + 16 * nA * (p & 1) + 16 * L, p == 0)))
            if k.stat == "mix":
                for i in range(2):
                    extra.append(I(a, mf16(XS, A0 + 16 * p + 4 * i, p == 0 and i == 0)))
            for d in range(8):
                x = A0 + 16 * p + d
                t = T4 + 2 * (d & 1)
                dots.append(I(a, f"v_lshlrev_b32 v{t}, 16, v{x}"))
                dots.append(I(a, f"v_and_b32 v{t+1}, 0xffff0000, v{x}"))
                if k.stat != "mix":
                    dots.append(I(a, f"v_add_f32 v{V_S}, v{V_S}, v{t}"))
                dots.append(I(a, f"v_fmac_f32 v{V_Q}, v{t}, v{t}"))
                if k.stat != "mix":
                    dots.append(I(a, f"v_add_f32 v{V_R}, v{V_R}, v{t+1}"))
                dots.append(I(a, f"v_fmac_f32 v{V_C0}, v{t+1}, v{t+1}"))
        if main:
            n = len(main)
            rs, ds, ms, es = spread(n, reads), spread(n, dots), spread(n, dmas), spread(n, extra)
            for g in range(n):
                main[g]()
                for f in rs[g] + ms[g] + ds[g] + es[g]:
                    f()
        else:
            for f in reads + dmas:
                f()
        if j < 7:
            lg.all()
    return XS

def kind_body(a, vm0, k, st, lab, hook_main, hook_att):
    vm = Vm = vm0.copy()
    lg = LG(a)
    kinds, ori, nA = k.kinds, k.ori, k.nA
    G = kinds[0] == "G"
    T = k.TMP
    D = 4
    dbg = f"s[{S_SP}:{S_SP+3}]"
    ws = f"s[{S_WS}:{S_WS+3}]"
    nl = 2 if nA == 1 else 1
    NS = 28 * nl
    def rd(p):
        b = k.BR + 4 * (p % NBR)
        off = ((p % 28) >> 2) * 8192
        def f0():
            if p == 28:
                for i in range(4):
                    a(f"v_add_u32 v{WR+i}, {RING}, v{WR+i}")
            lg.issue(f"r{p}", f"ds_read_b64_tr_b16 v[{b}:{b+1}], v{WR + (p & 3)} offset:{off}")
        return [f0, lambda: lg.issue(f"r{p}", f"ds_read_b64_tr_b16 v[{b+2}:{b+3}], v{WR + (p & 3)} offset:{off+512}")]
    def wr_fix():
        for i in range(4):
            a(f"s_xor_b32 s{S_T2}, s{S_XO}, {i}\ns_lshl_b32 s{S_T2}, s{S_T2}, 11")
            a(f"v_add_u32 v{WR+i}, s{S_T2}, v{V_T0}")
    tail = [wr_fix] + [f for p in range(D) for f in rd(p)]
    XS = phase_a(a, vm, lg, k, st, tail)
    st.mark(6)
    if not G:
        return kind_stream(a, vm, lg, k, st, lab, hook_main, hook_att, rd, XS, "E")
    a(f"""s_and_b32 s{S_T0}, s{S_RB}, 7
s_cmp_ge_u32 s{S_T0}, {LATEF}
s_cbranch_scc1 {lab}L""")
    sv = list(vm.q), list(lg.q), list(st.pend)
    kind_stream(a, vm, lg, k, st, lab, hook_main, hook_att, rd, XS, "E")
    a(f"{lab}L:")
    vm.q, lg.q, st.pend = sv
    kind_stream(a, vm, lg, k, st, lab + "L", hook_main, hook_att, rd, XS, "L")

def kind_stream(a, vm, lg, k, st, lab, hook_main, hook_att, rd, XS, cls):
    kinds, ori, nA = k.kinds, k.ori, k.nA
    G = kinds[0] == "G"
    T = k.TMP
    D = 4
    dbg = f"s[{S_SP}:{S_SP+3}]"
    ws = f"s[{S_WS}:{S_WS+3}]"
    nl = 2 if nA == 1 else 1
    NS = 28 * nl
    F0_END, POLL_AT, ZF0, ZF1, F1_BEG, F1_END, FB = SCH[cls]
    pre = []
    if k.stat == "mix":
        pre.append(I(a, f"v_add_f32 v{XS+1}, v{V_Q}, v{V_C0}"))
        xs = XS
    else:
        pre.append(I(a, f"v_add_f32 v{V_S}, v{V_S}, v{V_R}\nv_add_f32 v{V_Q}, v{V_Q}, v{V_C0}"))
        xs = V_S
    pre.append(I(a, f"""s_lshl_b32 s{S_T0}, s{S_WAVE}, 9
s_add_u32 s{S_T0}, s{S_T0}, {SCR + 4096}
v_add_u32 v{V_T0}, s{S_T0}, v{V_L8}"""))
    pre.append(lambda: lg.issue("w", f"ds_write_b64 v{V_T0}, v[{xs}:{xs+1}]"))
    for L in range(nA):
        pre.append(lambda L=L: lg.issue("w", f"ds_write_b32 v{V_CSA}, v{CE+4*L} offset:{L*2048}"))
    pre.append(I(a, f"v_xor_b32 v{V_T0}, 2048, v{V_T0}"))
    def bar(*vtags):
        def f():
            vm.wait(*vtags)
            lg.wait("w")
            a("s_barrier")
        return f
    F0 = [lambda: lg.issue("x", f"ds_read_b64 v[{T}:{T+1}], v{V_T0}"),
          I(a, f"v_and_b32 v{V_T0}, 0xfffffff0, v{V_CSA}")]
    for L in range(nA):
        F0.append(lambda L=L: lg.issue("c", f"ds_read_b128 v[{T+4+4*L}:{T+7+4*L}], v{V_T0} offset:{L*2048}"))
    F0.append(GAP)
    F0.append(lambda: lg.wait("x"))
    F0 += [I(a, s) for s in f"""v_add_f32 v{V_S}, v{xs}, v{T}
v_add_f32 v{V_Q}, v{xs+1}, v{T+1}
v_mov_b32 v{T}, v{V_S}
v_mov_b32 v{T+1}, v{V_Q}
v_mov_b32 v{CE+1}, 0
v_mov_b32 v{CE+2}, 0
v_permlane32_swap_b32 v{T+1}, v{V_Q}""".split("\n")]
    if k.stat != "mix":
        F0 += [I(a, f"v_permlane32_swap_b32 v{T}, v{V_S}"), I(a, f"v_add_f32 v{V_S}, v{V_S}, v{T}")]
    F0 += [I(a, s) for s in f"""v_add_f32 v{V_Q}, v{V_Q}, v{T+1}
v_mul_f32 v{V_S}, {f32(-1/448)}, v{V_S}
v_mul_f32 v{V_Q}, {f32(1/448)}, v{V_Q}
v_and_b32 v{T}, 0xffff0000, v{V_S}
v_fma_f32 v{V_Q}, -v{V_S}, v{V_S}, v{V_Q}
v_sub_f32 v{T+1}, v{V_S}, v{T}
v_max_f32 v{V_Q}, 0, v{V_Q}
v_cndmask_b32 v{T}, v{T}, v{T+1}, s[{S_HI}:{S_HI+1}]
v_add_f32 v{V_Q}, {f32(1e-5)}, v{V_Q}
v_cvt_pk_bf16_f32 v{XE}, v{T}, v{T}
v_rsq_f32 v{V_R}, v{V_Q}
v_mov_b32 v{CE+3}, 0""".split("\n")]
    if nA == 2:
        F0 += [I(a, f"v_mov_b32 v{CE+r}, 0") for r in (5, 6, 7)]
    F0.append(lambda: lg.wait("c"))
    for L in range(nA):
        F0 += [I(a, s) for s in ce_build(CE + 4 * L, T + 4 + 4 * L)]
    def r16(_=None):
        t0, t1 = XR, XR + 1
        l = [I(a, f"""s_lshl_b32 s{S_T2}, s{S_WAVE}, 8
s_add_u32 s{S_T2}, s{S_T2}, {DEAD}
v_lshl_add_u32 v{t0}, v{V_LANE}, 2, s{S_T2}"""),
             lambda: lg.issue("q", f"ds_write_b32 v{t0}, v{V_R}"),
             I(a, f"v_lshrrev_b32 v{t1}, 5, v{V_LANE}"),
             I(a, f"v_lshl_add_u32 v{t1}, v{t1}, 4, s{S_T2}")]
        for q in range(4):
            l.append(lambda q=q: lg.issue("q", f"ds_read_b128 v[{k.R16+4*q}:{k.R16+4*q+3}], v{t1} offset:{32*q}"))
        return l
    if G:
        F0 += [I(a, s) for s in f"""v_mul_f32 v{V_RI}, v{V_Q}, v{V_R}
v_mul_f32 v{V_C0}, {f32(GELU_C0)}, v{V_R}""".split("\n")]
    else:
        F0 += r16()[:2]
    for L in range(nA):
        F0.append(I(a, mf(k.ACC[L], CE + 4 * L, XE, ori[L])))
    if G:
        F0 += [I(a, s) for s in f"""v_mul_f32 v{V_C1}, v{V_R}, v{V_R}
v_mul_f32 v{V_C1}, v{V_C1}, v{V_R}
v_mul_f32 v{V_C1}, {f32(GELU_C1)}, v{V_C1}""".split("\n")]
    else:
        F0 += r16()[2:]
    F0 += [GAP, GAP, GAP]
    if not G:
        F0.append(lambda: lg.wait("q"))
    F0 += epilogue(a, vm, k, kinds[0], k.ACC[0], S_O)
    if nA == 2:
        F0 += epilogue(a, vm, k, kinds[1], k.ACC[1], S_O + 1)
    def fix(acc, orient, slot):
        return ([lambda: lg.issue("c", f"ds_read_b128 v[{T4}:{T4+3}], v{V_T0} offset:{slot*2048}"), GAP, lambda: lg.wait("c")] +
                [I(a, s) for s in ce_build(CE, T4)] + [I(a, "s_nop 1"), I(a, mf(acc, CE, XE, orient))])
    ev = {}
    fl = []
    NPT = len(PFL)
    def touch(i, NTP=NTP):
        def f():
            if PFROW:
                vm.issue("pf", f"buffer_load_dword v{V_DUM}, v{V_PF}, s[{S_X}:{S_X+3}], s{S_PFO} offen{NTP}")
                a(f"s_add_u32 s{S_PFO}, s{S_PFO}, {4 * 4096 // NPT}")
            else:
                vm.issue("pf", f"buffer_load_dword v{V_DUM}, v{V_PF}, s[{S_X}:{S_X+3}], s{S_PFO} offen offset:{i * 2048 // NPT}{NTP}")
        return f
    def wtouch():
        a(f"""s_mul_i32 s{S_T0}, s{S_PK}, 392
s_lshl_b32 s{S_T1}, s{S_T0}, 1""")
        vm.issue("pf", f"buffer_load_dword v{V_DUM}, v{V_L8}, s[{S_WA}:{S_WA+3}], s{S_T0} offen{NTO}")
        vm.issue("pf", f"buffer_load_dword v{V_DUM}, v{V_L16}, s[{S_WB}:{S_WB+3}], s{S_T1} offen{NTO}")
    def xtouch(which):
        def f():
            a(f"""s_and_b32 s{S_T0}, s{S_PK}, 0xfffffc7f
s_min_u32 s{S_T0}, s{S_T0}, 0x1000
s_mul_i32 s{S_T0}, s{S_T0}, {3136 << which}
v_lshlrev_b32 v{V_PF}, {6 + which}, v{V_LANE}""")
            assert min(WPX) > max(PFL + RTL)
            vm.issue("pf", f"buffer_load_dword v{V_DUM}, v{V_PF}, s[{(S_WA, S_WB)[which]}:{(S_WA, S_WB)[which]+3}], s{S_T0} offen")
        return f
    def flag_check():
        vm.wait("cnt")
        a(f"""{lab}_CR:
v_cmp_eq_u32 vcc, 0, v{V_X0}
s_and_b64 vcc, vcc, s[{S_L+1}:{S_L+2}]
s_cbranch_vccnz {lab}_CW
{lab}_CX:""")
    def cnt_load(f):
        a(f"v_lshrrev_b32 v{V_X0}, 1, v{V_L8}")
        f(f"buffer_load_dword v{V_X0}, v{V_X0}, {dbg}, 0 offen sc1")
    ool = [f"""{lab}_CW:
s_addk_i32 s{S_SPIN}, -1
s_cmp_lt_i32 s{S_SPIN}, 0
s_cbranch_scc1 {lab}_CX""", lambda: cnt_load(a), f"""s_waitcnt vmcnt(0)
s_branch {lab}_CR"""]
    lateL = nA + 1
    dm = [line_dma(a, vm, lateL, b, RING, "wc") for b in range(7)]
    XA = XR + 2
    if G:
        F0 += [I(a, f"v_mov_b32 v{T}, v{V_S}"), I(a, f"v_mov_b32 v{T+1}, v{V_Q}"),
               I(a, f"s_lshl_b32 s{S_T0}, s{S_WAVE}, 9\ns_add_u32 s{S_T0}, s{S_T0}, {SCR + 4096}\nv_add_u32 v{XA}, s{S_T0}, v{V_L8}"),
               I(a, f"v_mov_b32 v{V_C0}, 1"),
               I(a, f"v_permlane32_swap_b32 v{T}, v{V_S}"), I(a, f"v_permlane32_swap_b32 v{T+1}, v{V_Q}"),
               I(a, f"v_add_f32 v{V_S}, v{V_S}, v{T}"), I(a, f"v_add_f32 v{V_Q}, v{V_Q}, v{T+1}"),
               lambda: lg.issue("w", f"ds_write_b64 v{XA}, v[{V_S}:{V_Q}]"),
               I(a, f"v_xor_b32 v{XA}, 2048, v{XA}")]
        def rec_store():
            a(f"""s_lshl_b32 s{S_T0}, s{S_CH}, 4
s_lshl_b32 exec_lo, 0xffff, s{S_T0}
s_mov_b32 exec_hi, 0""")
            vm.issue("rec", f"buffer_store_dwordx2 v[{V_S}:{V_Q}], v{V_L8}, {ws}, s{S_REC} offen sc1")
            a(f"s_mov_b64 exec, -1\ns_and_b32 s{S_REC}, s{S_REC}, 0xfffff000")
        FR_ = [lambda: lg.issue("x", f"ds_read_b64 v[{T}:{T+1}], v{XA}"), flag_check, GAP, lambda: lg.wait("x"),
               I(a, f"v_add_f32 v{V_S}, v{V_S}, v{T}"), I(a, f"v_add_f32 v{V_Q}, v{V_Q}, v{T+1}"), rec_store]
    else:
        F0.append(I(a, f"v_mov_b32 v{V_C0}, 1"))
    dm = [lambda: cnt_load(lambda t: vm.issue("cnt", t))] + dm
    ev[0] = [lambda: srd(a, S_X, P_SP, 2048 * 4096)]
    def srdfix():
        if G:
            srd(a, S_WA, P_WO, 448 * 896)
            srd(a, S_WB, P_WOUT, 896 * 896)
        a(f"""s_mov_b32 s{S_L+1}, 0x33333333
s_mov_b32 s{S_L+2}, 0x33333333""")
    ev[1] = pre
    ev[3] = [bar()]
    fl.append((WC0, 8, dm + [srdfix]))
    if cls == "L":
        for i, p in enumerate(PFL):
            if p >= 0:
                fl.append((p, p, [touch(i, " nt" if NTQ[i] == "1" else "")]))
            if RTL[i] >= 0:
                fl.append((RTL[i], RTL[i], [touch(i, " sc1")]))
        if WPF >= 0:
            fl.append((WPF, WPF, [wtouch]))
        for w in range(2):
            if WPX[w] >= 0:
                fl.append((WPX[w], WPX[w], [xtouch(w)]))
    ctl = []
    if not G:
        for i, p in enumerate(CPF):
            t = lambda i=i: vm.issue("pf", f"buffer_load_dword v{V_DUM}, v{V_PF}, s[{S_X}:{S_X+3}], s{S_PFO} offen offset:{i * 512}")
            if 0 <= p < 28:
                fl.append((p, p, [t]))
            elif p >= 28:
                ctl.append(t)
    ev[12 - D] = [bar("wb")]
    PL = [V_X0, V_DA, XR, XR + 2, CE + 4, CE + 6, V_C1]
    def poll_issue(v):
        for i in range(7):
            t = f"buffer_load_dwordx2 v[{PL[i]}:{PL[i]+1}], v{V_L8}, {ws}, s{S_REC} offen offset:{i*512}"
            if v:
                v.issue("pl", t + (" sc1" if PS1[cls] == "1" else ""))
            elif PMASK:
                a(f"""v_cmp_eq_u32 vcc, -1, v{PL[i]+1}
s_cbranch_vccz {lab}_PS{i}
s_mov_b64 exec, vcc
{t} sc1
s_mov_b64 exec, -1
{lab}_PS{i}:""")
            else:
                a(t + " sc1")
    if nl == 2:
        fl.append((3, F0_END, F0))
        assert F0_END < 28 - D
        FRB = F0_END + 1 if F0_END < 20 else 28 - D
        ev[FRB] = [bar()]
        ev[28 - D] = [bar("wc")]
        fl.append((FRB, FRB + 1, FR_))
        ev[28] = [lambda: lg.issue("w", f"ds_write_b32 v{V_CSA}, v{k.CSA} offset:2048")]
        ev[30] = [bar()]
        F1 = fix(k.ACC[1], ori[1], 1)
        if not ori[1]:
            rr = r16(V_X0)
            F1 = rr[:4] + F1 + [("min", 33)] + rr[4:]
        F1 += [GAP, GAP, GAP]
        if not ori[1]:
            F1.append(lambda: lg.wait("q"))
        F1 += epilogue(a, vm, k, kinds[1], k.ACC[1], S_O + 1)
        fl.append((F1_BEG, F1_END, F1))
        assert POLL_AT >= F1_BEG + 6 or F1_BEG > ZF1
        assert F1_BEG >= 30 and POLL_AT > F0_END + 2
        ev[POLL_AT] = ev.get(POLL_AT, []) + [lambda: poll_issue(vm)]
        if STP:
            ev[24] = [lambda: st.fold(), lambda: st.mark(54)] + ev[24] + [lambda: st.mark(55)]
            ev[POLL_AT] = [lambda: st.mark(56)] + ev[POLL_AT]
            F1.append(lambda: st.mark(61))
        def zflag():
            a(f"v_lshlrev_b32 v{V_S}, 7, v{V_LANE}")
            vm.wait("stG")
            a(f"""s_barrier
s_cmp_eq_u32 s{S_WAVE}, 0
s_cselect_b64 exec, 15, 0
buffer_store_dword v{V_C0}, v{V_S}, {ws}, s{S_CNT} offen sc1
s_mov_b64 exec, -1""")
        if FB >= 0:
            assert ZF1 < FB < 56
            ev[FB] = [zflag]
        def poll_check():
            if STP: st.mark(57)
            vm.wait("pl")
            if STP: st.mark(58)
            a(f"""{lab}_PR:
v_max3_u32 v{V_S}, v{PL[0]+1}, v{PL[1]+1}, v{PL[2]+1}
v_max3_u32 v{V_Q}, v{PL[3]+1}, v{PL[4]+1}, v{PL[5]+1}
v_max3_u32 v{V_S}, v{V_S}, v{V_Q}, v{PL[6]+1}
v_cmp_eq_u32 vcc, -1, v{V_S}
s_cbranch_vccnz {lab}_PW
{lab}_PX:""")
        ool += [f"""{lab}_PW:
s_sleep {PSL}
s_addk_i32 s{S_SPIN}, -1
s_cmp_lt_i32 s{S_SPIN}, 0
s_cbranch_scc1 {lab}_PX""", lambda: poll_issue(None), f"s_waitcnt vmcnt(0)\ns_branch {lab}_PR"]
        ZF = [poll_check] + ([lambda: st.mark(59)] if STP else [])
        for x, y in ((0, 1), (2, 3), (4, 5), (0, 2), (4, 6), (0, 4)):
            for h in range(2):
                ZF.append(I(a, f"v_add_f32 v{PL[x]+h}, v{PL[x]+h}, v{PL[y]+h}"))
        p0, p1 = PL[0], PL[1]
        z = k.ACC[0]
        ZF += [I(a, t) for t in f"""v_mov_b32 v{p1}, v{p0}
v_mov_b32 v{p1+1}, v{p0+1}
s_nop 0
v_permlane32_swap_b32 v{p1}, v{p0}
v_permlane32_swap_b32 v{p1+1}, v{p0+1}
v_add_f32 v{p0}, v{p0}, v{p1}
v_add_f32 v{p0+1}, v{p0+1}, v{p1+1}
v_mul_f32 v{p0}, {f32(-1/896)}, v{p0}
v_mul_f32 v{p0+1}, {f32(1/896)}, v{p0+1}
v_fma_f32 v{p0+1}, -v{p0}, v{p0}, v{p0+1}
v_max_f32 v{p0+1}, 0, v{p0+1}
v_add_f32 v{p0+1}, {f32(1e-5)}, v{p0+1}
v_rsq_f32 v{p0+1}, v{p0+1}
s_nop 0
v_mul_f32 v{p0}, v{p0}, v{p0+1}""".split("\n")]
        stz = store_tile(a, vm, "G", z, S_O)
        for hf in range(2):
            ZF += [I(a, f"v_fma_f32 v{z+r}, v{z+r}, v{p0+1}, v{p0}") for r in range(8 * hf, 8 * hf + 8)]
            ZF += [I(a, f"v_cvt_pk_bf16_f32 v{z+r}, v{z+2*r}, v{z+2*r+1}") for r in range(4 * hf, 4 * hf + 4)]
            ZF.append(stz[hf])
        if STP:
            ZF.append(lambda: st.mark(60))
        fl.append((ZF0, ZF1, ZF))
    else:
        fl.append((3, 27, F0))
    pos = [0] * len(fl)
    for p in range(NS):
        for f in ev.get(p, []):
            f()
        if p in (14, 28, 42):
            st.mark(7 + (p - 14) // 14)
        lg.wait(f"r{p}")
        L = nA + p // 28
        b = k.BR + 4 * (p % NBR)
        a(mf(k.ACC[L], b, A0 + 4 * (p % 28), ori[L], p % 28 == 0))
        if p + D < NS:
            for f in rd(p + D):
                f()
        for n, (s0, s1, lst) in enumerate(fl):
            if p < s0:
                continue
            left = len(lst) - pos[n]
            cnt = left if p >= s1 else (left + (s1 - p)) // (s1 - p + 1)
            while cnt > 0 and pos[n] < len(lst):
                f = lst[pos[n]]
                if isinstance(f, tuple):
                    if p < f[1]:
                        break
                    pos[n] += 1
                    continue
                pos[n] += 1
                if f is GAP:
                    break
                f()
                cnt -= 1
            if p == F0_END and lst is F0 and nl == 2:
                assert pos[n] == len(lst)
        if (p & 3) == 0:
            a(mf16(k.CSA, b, p % 28 == 0))
    for n, (s0, s1, lst) in enumerate(fl):
        assert pos[n] == len(lst), (n, pos[n], len(lst))
    st.fold()
    st.mark(10)
    def run(lst):
        for f in lst:
            if f is not GAP:
                f()
    LL = nA + nl - 1
    a(f"ds_write_b32 v{V_CSA}, v{k.CSA}")
    if G:
        if FAE:
            vm.wait("stQ", "stK", *(["stG"] if FAE > 1 else []))
        vm.q = ["st1"]
        if lab == "P1_A":
            a("P1_GT:")
            def last(part, pre=""):
                if part == 0:
                    a("s_waitcnt lgkmcnt(0)\n" + pre + "\ns_barrier")
                    lg.q = []
                    st.mark(11)
                else:
                    run(fix(k.ACC[LL], ori[LL], 0))
                    a(f"""v_rcp_f32 v{V_RI}, v{V_R}
v_mul_f32 v{V_C1}, v{V_R}, v{V_R}
v_mul_f32 v{V_C0}, {f32(GELU_C0)}, v{V_R}
v_mul_f32 v{V_C1}, v{V_C1}, v{V_R}
v_mul_f32 v{V_C1}, {f32(GELU_C1)}, v{V_C1}""")
                    return epilogue(a, vm, k, kinds[LL], k.ACC[LL], S_O + LL)
            last.store = lambda v: store_tile(a, v, "L", k.CV, S_O + LL)
            last.cv = k.CV
            hook_main(a, vm, st, last)
        else:
            st.pend = []
            a("s_branch P1_GT")
    else:
        vm.wait("wc")
        a("s_waitcnt lgkmcnt(0)\ns_barrier")
        lg.q = []
        st.mark(11)
        a(f"s_cmp_eq_u32 s{S_CH}, 0\ns_cbranch_scc0 {lab}_CH1")
        v0, l0 = vm.q[:], lg.q[:]
        run(fix(k.ACC[2], ori[2], 0))
        a("s_nop 11")
        run(epilogue(a, vm, k, kinds[2], k.ACC[2], S_O + 2))
        a(f"s_barrier\ns_branch {lab}_J")
        a(f"{lab}_CH1:")
        vm.q, lg.q = v0, l0
        for i in range(4):
            a(f"v_add_u32 v{WR+i}, {RING}, v{WR+i}")
            a(f"v_xor_b32 v{WR+i}, s{S_T3}, v{WR+i}")
        for p in range(D):
            run(rd(p))
        F = fix(k.ACC[2], ori[2], 0) + [GAP, GAP, GAP] + epilogue(a, vm, k, kinds[2], k.ACC[2], S_O + 2)
        q = 0
        for p in range(28):
            lg.wait(f"r{p}")
            b = k.BR + 4 * (p % NBR)
            a(mf(k.ACC[3], b, A0 + 4 * p, ori[3], p == 0))
            if p + D < 28:
                run(rd(p + D))
            for c in range(3):
                if q < len(F):
                    f = F[q]; q += 1
                    if f is GAP: break
                    f()
            if (p & 3) == 0:
                a(mf16(k.CSA, b, p == 0))
        assert q == len(F)
        a(f"ds_write_b32 v{V_CSA}, v{k.CSA} offset:2048\ns_waitcnt lgkmcnt(0)\ns_barrier")
        lg.q = []
        run(fix(k.ACC[3], ori[3], 1))
        a("s_nop 11")
        run(epilogue(a, vm, k, kinds[3], k.ACC[3], S_O + 3))
        a(f"{lab}_J:")
        vm.q = ["stV"]
        flag_check()
        hook_att(a, vm, st, ctl)
    for o in ool:
        if callable(o):
            o()
        else:
            a(o)

TAILQ = []
GAP = object()

def kind_start(a, vm, k, st):
    nA = k.nA
    a(f"""s_mul_i32 s{S_MR}, s{S_WAVE}, {k.WST}
v_add_u32 v{V_X1}, {8*896 - (1+nA)*1024}, v{V_X1}""")
    if nA == 1:
        a(f"""s_mul_i32 s{S_T2}, s{S_WAVE}, {8*3584}
s_lshl_b32 s{S_T3}, s{S_G}, 7
s_add_u32 s{S_L+2}, s{S_T2}, s{S_T3}
s_add_u32 s{S_L}, s{S_L+2}, {1792 - 1024}
s_add_u32 s{S_L+1}, s{S_T1}, s{S_T3}
s_mov_b32 s{S_A64}, {64*3584}
v_mul_u32_u24 v{V_DA}, 3584, v{T4}
v_add_u32 v{V_DA}, v{V_DA}, v{T4+2}
s_waitcnt lgkmcnt(0)""")
        srd(a, S_WA, P_WIN, 448 * 3584)
    else:
        a(f"""s_and_b32 s{S_T3}, s{S_G}, 1
s_lshl_b32 s{S_T3}, s{S_T3}, 9
s_add_u32 s{S_T3}, s{S_T3}, s{S_T1}
s_add_u32 s{S_L}, s{S_T3}, {1792 - 1024}
s_add_u32 s{S_L+1}, s{S_T3}, {1792 + 256 - 2048}
s_add_u32 s{S_L+2}, s{S_T3}, {1792 + 128}
s_add_u32 s{S_L+3}, s{S_T1}, {1792 + 384}
s_mov_b32 s{S_A64}, {B64}
v_mov_b32 v{V_DA}, v{V_DB}
s_waitcnt lgkmcnt(0)""")
        srd(a, S_WA, P_QKV, 448 * 2688)
        srd(a, S_WB, P_QKV, 448 * 2688)
    srd(a, S_X, P_X, 2048 * 896)
    st.mark(2)
    for j in range(k.DEPTH):
        for f in piece_dma(a, vm, k, j):
            f()
        if j == 0:
            lab = a.label("P1_T")
            strd = 3584 if nA == 1 else 2688
            if TOUCH:
                a(f"""s_and_b32 s{S_T2}, s{S_RB}, 3
s_mul_i32 s{S_T2}, s{S_T2}, 112
s_and_b32 s{S_T3}, s{S_WAVE}, 1
s_lshl_b32 s{S_T3}, s{S_T3}, 6
s_add_u32 s{S_T2}, s{S_T2}, s{S_T3}
s_lshl_b32 s{S_T3}, s{S_WAVE}, 3
s_sub_u32 s{S_T2}, s{S_T2}, s{S_T3}
s_mul_i32 s{S_T2}, s{S_T2}, {strd}
s_add_u32 s{S_T2}, s{S_T2}, s{S_L}
s_and_b32 s{S_T3}, s{S_WAVE}, {2 * (nA - 1)}
s_lshl_b32 s{S_T3}, s{S_T3}, 7
s_add_u32 s{S_T2}, s{S_T2}, s{S_T3}
s_add_u32 s{S_T2}, s{S_T2}, {(1024 - 64 * strd) & 0xffffffff}
v_mul_u32_u24 v{XR}, {strd}, v{V_LANE}
s_lshl_b32 s{S_T3}, s{S_RB}, 2
s_add_u32 s{S_T3}, s{S_T3}, s{S_PK}
s_mul_i32 s{S_T3}, s{S_T3}, {32*896}
s_lshl_b32 s{S_T1}, s{S_WAVE}, 13
s_add_u32 s{S_T3}, s{S_T3}, s{S_T1}
v_lshlrev_b32 v{XR+1}, 7, v{V_LANE}""")
            if PBAR:
                a("s_barrier")
            if TOUCH:
                a(f"""s_cmp_ge_u32 s{S_WAVE}, 4
s_cbranch_scc1 {lab}w
buffer_load_dword v{A0+96}, v{XR+1}, s[{S_X}:{S_X+3}], s{S_T3} offen
s_branch {lab}e
{lab}w:""")
                vm.issue("t0", f"""buffer_load_dword v{A0+96}, v{XR}, s[{S_WA}:{S_WA+3}], s{S_T2} offen
{lab}e:""")
    if nA == 1:
        srd(a, S_WB, P_QKV, 448 * 2688)
    if WSB:
        a(f"s_add_u32 s{P_WS}, s{P_WS}, {WSB}\ns_addc_u32 s{P_WS+1}, s{P_WS+1}, 0")
    srd(a, S_WS, P_WS, WS_SIZE)
    srd(a, S_SP, P_DBG, 256)
    a(f"""s_lshl_b32 s{S_T0}, s{S_CH}, 1
s_xor_b32 s{S_XO}, s{S_T0}, s{S_RW}
v_and_b32 v{T4}, 31, v{V_LANE}
v_lshrrev_b32 v{T4+1}, 5, v{V_LANE}
v_bfe_u32 v{T4+2}, v{V_LANE}, 1, 3
v_xor_b32 v{T4+2}, v{T4+2}, v{T4+1}
s_lshl_b32 s{S_T1}, s{S_XO}, 1
v_xor_b32 v{T4+2}, s{S_T1}, v{T4+2}
v_lshlrev_b32 v{T4+2}, 4, v{T4+2}
v_and_b32 v{T4+3}, 7, v{V_LANE}
v_lshl_add_u32 v{T4+2}, v{T4+3}, 7, v{T4+2}
v_bfe_u32 v{T4+3}, v{V_LANE}, 3, 1
v_mul_u32_u24 v{XR}, {(1+nA)*1024}, v{T4+3}
v_bfe_u32 v{T4+3}, v{V_LANE}, 4, 1
v_mul_u32_u24 v{T4+3}, {k.WST}, v{T4+3}
s_mul_i32 s{S_T1}, s{S_RW}, {2*k.WST}
s_add_u32 s{S_T1}, s{S_T1}, {RING}
v_add3_u32 v{T4+3}, v{T4+3}, v{XR}, s{S_T1}""")
    for i in range(4):
        a(f"v_xor_b32 v{XR+i}, {i << 5}, v{T4+2}")
        a(f"v_add_u32 v{XR+i}, v{T4+3}, v{XR+i}")
    a(f"""v_lshlrev_b32 v{V_KO}, 5, v{T4}
v_lshl_add_u32 v{V_KO}, v{T4+1}, 4, v{V_KO}
s_lshl_b32 s{S_T1}, s{S_CH}, 6
v_and_b32 v{T4}, 3, v{V_LANE}
v_lshlrev_b32 v{T4}, 3, v{T4}
v_and_b32 v{T4+2}, 16, v{V_LANE}
v_lshl_add_u32 v{T4}, v{T4+2}, 1, v{T4}
v_and_b32 v{T4+2}, 8, v{V_LANE}
v_lshlrev_b32 v{T4+2}, 3, v{T4+2}
v_xor_b32 v{T4+2}, s{S_T1}, v{T4+2}
v_or_b32 v{T4}, v{T4}, v{T4+2}
v_bfe_u32 v{T4+2}, v{V_LANE}, 2, 2
v_lshl_add_u32 v{T4}, v{T4+2}, 7, v{T4}
v_lshl_add_u32 v{V_T0}, v{T4+1}, 10, v{T4}
v_mul_u32_u24 v{T4+1}, {k.WST}, v{T4+1}
v_add_u32 v{T4}, v{T4}, v{T4+1}""")
    for i in range(4):
        a(f"""s_xor_b32 s{S_T2}, s{S_XO}, {i}
s_mul_i32 s{S_T2}, s{S_T2}, {2*k.WST}
s_add_u32 s{S_T2}, s{S_T2}, {RING + 1024}
v_add_u32 v{WR+i}, s{S_T2}, v{T4}""")
    a(f"""v_lshlrev_b32 v{V_L16}, 4, v{V_LANE}
v_lshlrev_b32 v{V_L8}, 3, v{V_LANE}
s_lshl_b32 s{S_T0}, s{S_CH}, 10
s_lshl_b32 s{S_T1}, s{S_RW}, 2
s_add_u32 s{S_T0}, s{S_T0}, s{S_T1}
s_add_u32 s{S_T0}, s{S_T0}, {SCR}
v_add_u32 v{V_CSA}, s{S_T0}, v{V_L16}
v_mov_b32 v{V_S}, 0
v_mov_b32 v{V_Q}, 0
v_mov_b32 v{V_R}, 0
v_mov_b32 v{V_C0}, 0
s_mov_b32 s{S_HI}, 0xf0f00f0f
s_mov_b32 s{S_HI+1}, 0xf0f00f0f
v_mov_b32 v{T4}, 0x3f803f80
v_cndmask_b32 v{SEL}, 0, v{T4}, s[{S_HI}:{S_HI+1}]
v_cndmask_b32 v{SEL+1}, 0, v{T4}, s[{S_HI}:{S_HI+1}]
v_cndmask_b32 v{SEL+2}, 0, v{T4}, s[{S_HI}:{S_HI+1}]
v_cndmask_b32 v{SEL+3}, 0, v{T4}, s[{S_HI}:{S_HI+1}]
s_mov_b32 s{S_HI}, 0
s_mov_b32 s{S_HI+1}, -1
v_mov_b32 v{XE+1}, 0
v_mov_b32 v{XE+2}, 0
v_mov_b32 v{XE+3}, 0
v_mov_b32 v{V_DUM}, 1
s_lshl_b32 s{S_MW}, s{S_WAVE}, 10
s_mov_b32 s{S_SPIN}, {E("SPIN", "0x8000")}
s_lshl_b32 s{S_T0}, s{S_RB}, 2
s_add_u32 s{S_T0}, s{S_T0}, s{S_RW}
s_mul_i32 s{S_T2}, s{S_T0}, 28672""")
    if nA == 1:
        lg2 = {1: 0, 2: 1, 4: 2}[len(PFL)]
        a(f"""; touchers: 16 per XCD ; rank = fq*2 + (i&1) if i >= 2 ; 14 + fq if i == 1 and fq < 2
s_lshr_b32 s{S_T1}, s2, 5
s_add_u32 s{S_T3}, s{S_T1}, 14
s_lshl_b32 s{S_T1}, s{S_T1}, 1
s_bfe_u32 s{S_PK}, s2, 0x10003
s_add_u32 s{S_T1}, s{S_T1}, s{S_PK}
s_and_b32 s{S_PK}, s2, 0xd8
s_cmp_eq_u32 s{S_PK}, 0x8
s_cselect_b32 s{S_PK}, s{S_T3}, 0x20000
s_bitcmp1_b32 s2, 4
s_cselect_b32 s{S_PK}, s{S_T1}, s{S_PK}
s_lshl_b32 s{S_PK}, s{S_PK}, 3
s_add_u32 s{S_PK}, s{S_PK}, s{S_WAVE}
s_min_u32 s{S_T1}, s{S_PK}, 0x8000
s_and_b32 s{S_T3}, s{S_T1}, 0xffe0
s_add_u32 s{S_T1}, s{S_T1}, s{S_T3}
s_lshl_b32 s{S_T1}, s{S_T1}, 14
v_lshrrev_b32 v{T4}, {4 + lg2 if PFROW else 4}, v{V_LANE}
v_bfe_u32 v{V_PF}, v{V_LANE}, {lg2}, {4 if PFROW else 4 - lg2}
v_lshlrev_b32 v{V_PF}, 7, v{V_PF}
v_lshl_add_u32 v{V_PF}, v{T4}, 12, v{V_PF}
v_add_u32 v{V_PF}, s{S_T1}, v{V_PF}
s_and_b32 s{S_T1}, s2, 7
s_lshl_b32 s{S_T1}, s{S_T1}, 7
s_add_u32 s{S_PK}, s{S_PK}, s{S_T1}
s_and_b32 s{S_T1}, s2, 4
s_lshl_b32 s{S_PFO}, s{S_T1}, 20
s_and_b32 s{S_T1}, s2, 2
s_lshl_b32 s{S_T1}, s{S_T1}, 18
s_add_u32 s{S_PFO}, s{S_PFO}, s{S_T1}
s_and_b32 s{S_T1}, s2, 1
s_lshl_b32 s{S_T1}, s{S_T1}, 11
s_add_u32 s{S_PFO}, s{S_PFO}, s{S_T1}
v_mov_b32 v{V_L2E}, {f32(LOG2E)}
s_lshl_b32 s{S_T3}, s{S_G}, 1
s_add_u32 s{S_T3}, s{S_T3}, s{S_CH}
s_lshl_b32 s{S_O}, s{S_T3}, 17
s_lshl_b32 s{S_T1}, s{S_T0}, 11
s_add_u32 s{S_O}, s{S_O}, s{S_T1}
; z1
s_lshl_b32 s{S_T1}, s{S_T3}, 10
s_add_u32 s{S_T1}, s{S_T1}, s{S_T2}
s_lshl_b32 s{S_O+2}, s{S_T1}, 1
s_add_u32 s{S_O+2}, s{S_O+2}, {WS_Z1}""")
        assert WS_Z2 == 0
        if k.kinds[1] == "Q":
            a(f"""s_lshl_b32 s{S_T1}, s{S_T3}, 11
s_add_u32 s{S_T1}, s{S_T1}, s{S_T2}
s_add_u32 s{S_O+1}, s{S_T1}, {WS_Q}""")
        else:
            a(f"s_add_u32 s{S_O+1}, s{S_T1}, {WS_K - 14*1024}")
        a(f"""; record: ST + st*4096 + g*256
s_lshl_b32 s{S_T0}, s{S_T0}, 4
s_add_u32 s{S_T0}, s{S_T0}, s{S_G}
s_lshl_b32 s{S_T0}, s{S_T0}, 8
s_add_u32 s{S_REC}, s{S_T0}, {WS_ST}
s_and_b32 s{S_T0}, s{S_G}, 14
s_lshr_b32 s{S_T1}, s{S_RB}, 3
s_add_u32 s{S_T0}, s{S_T0}, s{S_T1}
s_lshl_b32 s{S_T0}, s{S_T0}, 6
s_and_b32 s{S_T1}, s{S_RB}, 7
s_add_u32 s{S_T0}, s{S_T0}, s{S_T1}
s_lshl_b32 s{S_T0}, s{S_T0}, 1
s_and_b32 s{S_T1}, s{S_G}, 1
s_add_u32 s{S_T0}, s{S_T0}, s{S_T1}
s_lshl_b32 s{S_T0}, s{S_T0}, 2
s_add_u32 s{S_CNT}, s{S_T0}, {WS_FZ}""")
    else:
        a(f"""; tiles 8(g-14) + ch + 0,4,2 ; extra tile 6 + (g-14)
s_and_b32 s{S_T0}, s{S_G}, 1
s_lshl_b32 s{S_T1}, s{S_T0}, 3
s_add_u32 s{S_T1}, s{S_T1}, s{S_CH}
s_lshl_b32 s{S_T1}, s{S_T1}, 10
s_add_u32 s{S_T2}, s{S_T2}, {WS_V}
s_add_u32 s{S_O}, s{S_T1}, s{S_T2}
s_add_u32 s{S_O+1}, s{S_O}, 4096
s_add_u32 s{S_O+2}, s{S_O}, 2048
s_lshl_b32 s{S_T1}, s{S_T0}, 10
s_add_u32 s{S_T1}, s{S_T1}, s{S_T2}
s_add_u32 s{S_O+3}, s{S_T1}, 6144
s_lshl_b32 s{S_CNT}, s{S_RB}, 2
s_add_u32 s{S_CNT}, s{S_CNT}, s{S_T0}
s_lshl_b32 s{S_CNT}, s{S_CNT}, 2
s_lshl_b32 s{S_T1}, s{S_RB}, 1
s_add_u32 s{S_T1}, s{S_T1}, s{S_T0}
s_lshl_b32 s{S_T1}, s{S_T1}, 3
s_add_u32 s{S_T1}, s{S_T1}, s{S_WAVE}
s_lshl_b32 s{S_T2}, s{S_T1}, 8
s_add_u32 s{S_T2}, s{S_T2}, {WS_FL}
s_lshl_b32 s{S_T1}, s{S_T1}, 10
s_add_u32 s{S_REC}, s{S_T1}, {WS_ST}
s_xor_b32 s{S_T0}, s{S_T0}, 1
s_lshl_b32 s{S_T3}, s{S_T0}, 6
v_mov_b32 v{T4}, -1
v_mov_b32 v{T4+1}, -1
v_mov_b32 v{T4+2}, -1
v_mov_b32 v{T4+3}, -1
v_lshlrev_b32 v{V_L2E}, 2, v{V_LANE}
v_lshrrev_b32 v{V_PF}, 2, v{V_LANE}
v_lshlrev_b32 v{V_PF}, 5, v{V_PF}
v_and_or_b32 v{V_PF}, v{V_LANE}, 3, v{V_PF}
v_lshlrev_b32 v{V_PF}, 7, v{V_PF}
s_and_b32 s{S_T0}, s2, 6
s_lshl_b32 s{S_T0}, s{S_T0}, 4
s_and_b32 s{S_T1}, s2, 24
s_add_u32 s{S_T0}, s{S_T0}, s{S_T1}
s_add_u32 s{S_T0}, s{S_T0}, s{S_WAVE}
s_lshl_b32 s{S_T0}, s{S_T0}, 5
s_and_b32 s{S_T1}, s2, 1
s_add_u32 s{S_T0}, s{S_T0}, s{S_T1}
s_lshl_b32 s{S_PFO}, s{S_T0}, 11""")
        vm.issue("clr", f"buffer_store_dwordx4 v[{T4}:{T4+3}], v{V_L16}, s[{S_WS}:{S_WS+3}], s{S_REC} offen sc1")
        vm.issue("clr", f"buffer_store_dword v{XE+1}, v{V_L2E}, s[{S_WS}:{S_WS+3}], s{S_T2} offen sc1")
        a(f"s_lshl_b32 s{S_T2}, s{S_T2}, 1\ns_add_u32 s{S_T2}, s{S_T2}, {(WS_XB - 2 * WS_FL) & 0xffffffff}")
        vm.issue("clr", f"buffer_store_dwordx2 v[{T4}:{T4+1}], v{V_L8}, s[{S_WS}:{S_WS+3}], s{S_T2} offen sc1")
    a(f"""; own flags: FL + rb*2048 + g*4
s_lshl_b32 s{S_FL}, s{S_RB}, 9
s_add_u32 s{S_FL}, s{S_FL}, s{S_G}
s_lshl_b32 s{S_FL}, s{S_FL}, 2
s_add_u32 s{S_FL}, s{S_FL}, {WS_FL}""")

PBAR = int(E('P1_PBAR', '1'))
def gen_p1(a, name, st, hook_main, hook_att):
    kernel_begin(a, name)
    a(f"""s_cmp_ge_u32 s2, 256
s_cbranch_scc1 K_EXIT
s_load_dwordx16 s[64:79], s[0:1], 0
s_load_dwordx4 s[56:59], s[0:1], 72
s_load_dwordx2 s[60:61], s[0:1], 64""")
    st.mark(0, True)
    st.mark(1)
    st.init()
    a(f"""v_and_b32 v{V_LANE}, 63, v0
v_lshrrev_b32 v{V_T0}, 6, v0
s_lshr_b32 s{S_G}, s2, 5
v_readfirstlane_b32 s{S_WAVE}, v{V_T0}
s_lshl_b32 s{S_G}, s{S_G}, 1
s_and_b32 s{S_T0}, s2, 1
s_add_u32 s{S_G}, s{S_G}, s{S_T0}
s_and_b32 s{S_T0}, s2, 4
s_bfe_u32 s{S_T1}, s2, 0x20003
s_add_u32 s{S_RB}, s{S_T0}, s{S_T1}
s_lshl_b32 s{S_RB}, s{S_RB}, 1
s_bfe_u32 s{S_T0}, s2, 0x10001
s_add_u32 s{S_RB}, s{S_RB}, s{S_T0}
s_and_b32 s{S_RW}, s{S_WAVE}, 3
s_lshr_b32 s{S_CH}, s{S_WAVE}, 2
s_lshl_b32 s{S_T0}, s{S_RB}, 3
s_add_u32 s{S_T0}, s{S_T0}, s{S_WAVE}
s_mul_i32 s{S_XB}, s{S_T0}, {16*896}
s_mul_i32 s{S_T1}, s{S_WAVE}, {8*2688}
v_lshrrev_b32 v{T4}, 3, v{V_LANE}
v_and_b32 v{T4+1}, 7, v{V_LANE}
v_lshrrev_b32 v{T4+2}, 4, v{V_LANE}
v_xor_b32 v{T4+2}, v{T4+2}, v{T4+1}
v_mul_u32_u24 v{V_X0}, 896, v{T4}
v_xor_b32 v{T4+3}, 4, v{T4+2}
v_lshl_add_u32 v{V_X1}, v{T4+3}, 4, v{V_X0}
v_lshl_add_u32 v{V_X0}, v{T4+2}, 4, v{V_X0}
v_lshlrev_b32 v{T4+2}, 1, v{T4}
v_and_b32 v{T4+2}, 4, v{T4+2}
v_xor_b32 v{T4+2}, v{T4+2}, v{T4+1}
v_lshlrev_b32 v{T4+2}, 4, v{T4+2}
v_mul_u32_u24 v{V_DB}, 2688, v{T4}
v_add_u32 v{V_DB}, v{V_DB}, v{T4+2}
s_cmp_ge_u32 s{S_G}, 14
s_cbranch_scc1 P1_KC
s_cmp_ge_u32 s{S_G}, 7
s_cbranch_scc1 P1_KB""")
    for lab, kinds in (("P1_A", "GQL"), ("P1_B", "GKL"), ("P1_C", "VVVV")):
        a(f"{lab.replace('_', '_K')}:")
        k = K(kinds)
        vm = VM(a)
        s2 = st.copy()
        kind_start(a, vm, k, s2)
        kind_body(a, vm, k, s2, lab, hook_main, hook_att)
```

```python
from common import *
import os
import f1
from f1 import LG, I, S_WS, S_WAVE, S_RW, S_CH, S_T0, S_T1, S_T2, S_T3, S_SPIN, S_FL, V_LANE, V_L16, V_L8, V_KO, XE
from f1 import P_X, P_WO, P_BSP, P_WOUT, P_OUT, S_CNT, V_S
E = os.environ.get
Z1S = int(E("P2_Z1S", "1"))
Z1D = int(E("P2_Z1D", "1"))
Z1B = int(E("P2_Z1B", "6"))
N0 = int(E("P2_N0", "8"))
LA = int(E("P2_LA", "3"))
NC = int(E("P2_NC", "2"))
LEP = int(E("P2_LEP", "1"))
CEP = int(E("P2_CEP", "24"))
TB = int(E("P2_TB", "0"))
ZP0 = int(E("P2_ZP0", "57"))
BST = int(E("P2_BST", "7"))
LEAD = int(E("P2_LEAD", "12"))
GTAIL = int(E("P2_GT", "2"))
AHEAD = int(E("P3_AHEAD", "6"))
BS = [int(x) for x in E("P2_BS", "13,13,14,15,16,17,17").split(",")]
EB = int(E("P2_EB", "15"))
ATOUCH = int(E("A_TOUCH", "1"))
NT2 = [" nt" if c == "1" else "" for c in E("P2_NT", "0000")]
PT = [int(x) for x in E("P2_PT", "-9,-9,-9,-9").split(",")]
ST2 = [[int(y) for y in x.split(":")] for x in E("P2_ST", "").split(",") if x]
ZSL, ASL, HSL = [int(x) for x in E("SLP", "2,4,1").split(",")]
SF = " sc1"
AH0 = int(E("P3_AH0", "2"))
XAT = int(E("P3_XAT", "10"))
NTA = " nt" if int(E("A_NT", "0")) else ""
OPOLL = int(E("P3_OPOLL", "4"))
PRIO = int(E("P2_PRIO", "2"))
STM = int(E("STM", "0"))
SM0 = 7 if STM == 2 else 0
ROT2 = int(E("P2_ROT", "0"))
ROT3 = int(E("P3_ROT", "0"))
S_U, S_UZ, S_UW, S_FZB, S_BR = 62, 63, 45, 52, 51
SEQ = [13, 9, 10, 11, 12, 1, 2, 3, 4, 5, 6, 7, 8, 0]
NST = 16
SLOT = [0, 131072, 65536, 98304]
HB = 57344
S_SP, S_X = 12, 12
S_OUT, S_WO, S_W2, S_B = 4, 16, 20, 20
S_TT, S_FQ, S_KH, S_ZB, S_AB, S_MW, S_O, S_C1, S_M = 28, 29, 37, 38, 39, 40, 41, 42, 43
assert S_TT == f1.S_RB
S_M2 = 44
ZL = 32768
S_M64, S_A, S_XO = 46, 47, 48
ws = f"s[{S_WS}:{S_WS+3}]"
ACC3, AFR, BFR, EFR, XV, TR, V_XO, V_W = 16, 48, 192, 216, 224, 244, 250, 251

def spoll(a, lab, loads, regs, ool, sleep=0):
    a(f"{lab}_R:")
    a(loads)
    a("s_waitcnt lgkmcnt(0)")
    for r in regs[1:]:
        a(f"s_and_b64 s[{regs[0]}:{regs[0]+1}], s[{regs[0]}:{regs[0]+1}], s[{r}:{r+1}]")
    a(f"""s_and_b32 s{regs[0]}, s{regs[0]}, s{regs[0]+1}
s_cbranch_scc1 {lab}_X
{f"s_sleep {sleep}" if sleep else ""}
s_addk_i32 s{S_SPIN}, -1
s_cmp_lt_i32 s{S_SPIN}, 0
s_cbranch_scc0 {lab}_R
{lab}_X:""")

def p3_tr_setup(a, T):
    a(f"""v_bfe_u32 v{T}, v{V_LANE}, 2, 2
v_lshrrev_b32 v{T+1}, 5, v{V_LANE}
v_lshl_add_u32 v{T}, v{T+1}, 2, v{T}
v_lshlrev_b32 v{TR}, 7, v{T}
v_and_b32 v{T}, 3, v{V_LANE}
v_lshl_add_u32 v{TR}, v{T}, 3, v{TR}
v_and_b32 v{T}, 16, v{V_LANE}
v_lshl_add_u32 v{TR}, v{T}, 1, v{TR}
v_and_b32 v{T}, 8, v{V_LANE}
v_lshl_add_u32 v{TR}, v{T}, 3, v{TR}
s_lshl_b32 s{S_T0}, s{S_RW}, 5
v_xor_b32 v{TR}, s{S_T0}, v{TR}
s_lshl_b32 s{S_T0}, s{S_RW}, 11
s_add_u32 s{S_T0}, s{S_T0}, {HB}
v_add_u32 v{TR+2}, s{S_T0}, v{TR}
s_mul_i32 s{S_T0}, s{S_RW}, 14336
v_add_u32 v{TR}, s{S_T0}, v{TR}
v_xor_b32 v{TR+1}, 64, v{TR}
v_xor_b32 v{TR+3}, 64, v{TR+2}
v_add_u32 v{TR+4}, 0x10000, v{TR+2}
v_add_u32 v{TR+5}, 0x10000, v{TR+3}""")

def b_reads(kind, i, dst):
    if kind == "o":
        r, off = TR, (28 * (i >> 1) + 16 * (i & 1)) * 128
    else:
        r, off = (TR + 2, i * 8192) if i < 8 else (TR + 4, i * 8192 - 65536)
    return [f"ds_read_b64_tr_b16 v[{dst+4*ni+2*h}:{dst+4*ni+2*h+1}], v{r+ni} offset:{off + 1024*h}" for ni in range(2) for h in range(2)]

def p3_setup(a):
    srd(a, S_X, P_X, 2048 * 896)
    srd(a, S_OUT, P_OUT, 2048 * 896)
    a(f"""; tt32 = 2*m64 + ch
s_lshl_b32 s{S_T0}, s{S_M64}, 1
s_add_u32 s{S_T0}, s{S_T0}, s{S_CH}
s_mul_i32 s{S_XO}, s{S_T0}, {32*896}
s_lshl_b32 s{S_T1}, s{S_FQ}, 2
s_add_u32 s{S_T1}, s{S_T1}, s{S_RW}
s_lshl_b32 s{S_T1}, s{S_T1}, 5
s_add_u32 s{S_XO}, s{S_XO}, s{S_T1}
s_mul_i32 s{S_T0}, s{S_T0}, {144*1024}
s_add_u32 s{S_T0}, s{S_T0}, {WS_AF}
s_and_b32 s{S_T1}, s{S_M64}, {3 if ROT3 else 0}
s_add_u32 s{S_T1}, s{S_T1}, s{S_RW}
s_and_b32 s{S_T1}, s{S_T1}, 3
s_lshl_b32 s{S_T1}, s{S_T1}, 13
s_add_u32 s{S_A}, s{S_T0}, s{S_T1}
s_mul_i32 s{S_T1}, s{S_RW}, {14*1024}
s_add_u32 s{S_O}, s{S_T0}, s{S_T1}
s_add_u32 s{S_O}, s{S_O}, {32*1024}
v_and_b32 v{V_XO}, 31, v{V_LANE}
v_mul_u32_u24 v{V_XO}, 896, v{V_XO}
v_lshrrev_b32 v{V_W}, 5, v{V_LANE}
v_lshl_add_u32 v{V_XO}, v{V_W}, 4, v{V_XO}
v_add_u32 v{V_W}, {56*1024}, v{V_L16}""")

def loader(a, vm, st, last, ool):
    VD, VZ, VP, VB = 2, 6, 10, 11
    T0, T2 = 12, 13
    zok = set()
    ids(a)
    a(f"""s_lshl_b32 s{S_T0}, s{S_FQ}, 1
s_add_u32 s{S_T0}, s{S_T0}, s{S_KH}
s_lshl_b32 s{S_T0}, s{S_T0}, 2
s_bfe_u32 s{S_T1}, s2, 0x20001
s_add_u32 s{S_T0}, s{S_T0}, s{S_T1}
s_lshl_b32 s{S_T0}, s{S_T0}, 7
s_add_u32 s{S_FZB}, s{S_T0}, {WS_FZ}
s_xor_b32 s{S_U}, s{S_M64}, s{S_FQ}
s_and_b32 s{S_U}, s{S_U}, {ROT2 & 1}
s_lshl_b32 s{S_T0}, s{S_U}, 3
s_add_u32 s{S_O}, s{S_T0}, s{S_FZB}
s_mov_b64 s[72:73], -1""")
    a(f"s_mov_b32 s{S_UW}, s{S_U}")
    def unit(j, r):
        if j == 1:
            a(f"s_xor_b32 s{r}, s{r}, 1")
        elif j == 2:
            if ROT2:
                a(f"""s_and_b32 s{S_T0}, s{S_M64}, 1
s_mul_i32 s{r}, s{S_T0}, 3
s_and_b32 s{S_T0}, s{S_M64}, 2
s_add_u32 s{r}, s{r}, s{S_T0}
s_add_u32 s{r}, s{r}, s{S_FQ}
s_add_u32 s{r}, s{r}, 2
s_cmp_ge_u32 s{r}, 8
s_cselect_b32 s{S_T0}, 6, 0
s_sub_u32 s{r}, s{r}, s{S_T0}""")
            else:
                a(f"s_mov_b32 s{r}, 2")
        else:
            a(f"""s_add_u32 s{r}, s{r}, 1
s_cmp_eq_u32 s{r}, 8
s_cselect_b32 s{r}, 2, s{r}""")
    zpoll = f"s_buffer_load_dwordx2 s[72:73], {ws}, s{S_O} glc"
    def zask(j):
        if j:
            unit(j, S_U)
            a(f"s_lshl_b32 s{S_T0}, s{S_U}, 3\ns_add_u32 s{S_O}, s{S_T0}, s{S_FZB}")
        a(f"""s_cmp_lg_u32 s{S_RW}, 0
s_cbranch_scc1 L_Z{j}_A
{zpoll}
L_Z{j}_A:""")
    zp0 = f"s_buffer_load_dwordx4 s[72:75], {ws}, s{S_FZB} glc"
    a(zp0)
    a(f"""; z2 base: (4fq + 2(lw&1)) << 17 + (kh*32 + (lw>>1)) << 11
s_lshr_b32 s{S_T1}, s{S_RW}, 1
s_lshl_b32 s{S_T3}, s{S_KH}, 5
s_add_u32 s{S_T3}, s{S_T3}, s{S_T1}
s_lshl_b32 s{S_ZB}, s{S_T3}, 11
s_lshl_b32 s{S_T3}, s{S_FQ}, 1
s_and_b32 s{S_T1}, s{S_RW}, 1
s_add_u32 s{S_T3}, s{S_T3}, s{S_T1}
s_lshl_b32 s{S_T3}, s{S_T3}, 18
s_add_u32 s{S_ZB}, s{S_ZB}, s{S_T3}
v_lshrrev_b32 v{T0}, 3, v{V_LANE}
v_and_b32 v{VD+1}, 7, v{V_LANE}
v_lshrrev_b32 v{T2}, 4, v{V_LANE}
v_xor_b32 v{T2}, v{T2}, v{VD+1}
v_lshlrev_b32 v{VZ}, 12, v{T0}
v_lshl_add_u32 v{VD}, v{T2}, 4, v{VZ}
v_lshlrev_b32 v{T2}, 1, v{T0}
v_and_b32 v{T2}, 4, v{T2}
v_xor_b32 v{T2}, v{T2}, v{VD+1}
v_xor_b32 v{VD+1}, 64, v{VD}
v_add_u32 v{VD+1}, {8*4096 - 1024}, v{VD+1}
v_add_u32 v{VD+2}, {16*4096 - 2048}, v{VD}
v_add_u32 v{VD+3}, {16*4096 - 2048}, v{VD+1}
s_lshl_b32 s{S_AB}, s{S_TT}, 2
s_add_u32 s{S_AB}, s{S_AB}, s{S_RW}
s_lshl_b32 s{S_AB}, s{S_AB}, 17
s_lshl_b32 s{S_T2}, s{S_KH}, 11
s_add_u32 s{S_AB}, s{S_AB}, s{S_T2}
s_lshl_b32 s{S_MW}, s{S_RW}, 12""")
    a(f"s_mov_b32 s{S_UZ}, s{S_UW}")
    def zload(n):
        assert n // 2 in zok
        if n and n % 2 == 0:
            unit(n // 2, S_UZ)
        a(f"s_add_u32 m0, s{S_MW}, {SLOT[n & 3]}")
        a(f"s_lshl_b32 s{S_T2}, s{S_UZ}, 13\ns_add_u32 s{S_T2}, s{S_T2}, s{S_ZB}")
        if n & 1:
            a(f"s_add_u32 s{S_T2}, s{S_T2}, 4096")
        for q in range(4):
            vm.issue(f"s{n}", f"buffer_load_dwordx4 v{VZ+q}, {ws}, s{S_T2} offen offset:{q*1024}{NT2[1]} lds")
    def wload(n):
        if n and n % 2 == 0:
            unit(n // 2, S_UW)
        a(f"s_add_u32 m0, s{S_MW}, {SLOT[n & 3] + 16384}")
        a(f"s_lshl_b32 s{S_T3}, s{S_UW}, 8\ns_add_u32 s{S_T3}, s{S_T3}, s{S_AB}")
        if n & 1:
            a(f"s_add_u32 s{S_T3}, s{S_T3}, 128")
        for q in range(4):
            vm.issue(f"s{n}", f"buffer_load_dwordx4 v{VD+q}, s[{S_SP}:{S_SP+3}], s{S_T3} offen offset:{q*1024}{NT2[0]} lds")
    def bdma(tag, sr, lds, mw, grow, gmul, n):
        a(f"""s_mul_i32 s{S_T2}, s{S_RW}, {gmul // 8}
s_and_b32 s{S_T3}, s{S_M64}, {3 if ROT3 else 0}
s_mul_i32 s{S_T3}, s{S_T3}, 14
s_add_u32 s{S_T2}, s{S_T2}, s{S_T3}
s_add_u32 s{S_T2}, s{S_T2}, {grow // 8}
s_cmp_ge_u32 s{S_T2}, 56
s_cselect_b32 s{S_T3}, 56, 0
s_sub_u32 s{S_T2}, s{S_T2}, s{S_T3}
s_mul_i32 s{S_T3}, s{S_RW}, {mw}""")
        for k in range(n):
            if k:
                a(f"""s_add_u32 s{S_T2}, s{S_T2}, 1
s_cmp_eq_u32 s{S_T2}, 56
s_cselect_b32 s{S_T2}, 0, s{S_T2}""")
            a(f"s_add_u32 m0, s{S_T3}, {lds + k * 1024}")
            a(f"s_mul_i32 s{S_T1}, s{S_T2}, 7168")
            vm.issue(tag, f"buffer_load_dwordx4 v{VB}, s[{sr}:{sr+3}], s{S_T1} offen{NT2[2]} lds")
    def hblocks(tag, bs, at=None):
        a(f"""s_mul_i32 s{S_T2}, s{S_RW}, {224 * 896}
s_lshl_b32 s{S_T3}, s{S_RW}, 11""")
        for b in bs:
            a(f"""s_add_u32 s{S_T1}, s{S_BR}, {SEQ.index(b)}
s_cmp_ge_u32 s{S_T1}, 14
s_cselect_b32 s{S_T0}, 14, 0
s_sub_u32 s{S_T1}, s{S_T1}, s{S_T0}
s_mul_i32 s{S_T1}, s{S_T1}, {16 * 896}
s_add_u32 m0, s{S_T3}, {HB + (b if at is None else at) * 8192}
s_add_u32 s{S_T1}, s{S_T1}, s{S_T2}""")
            for k in range(2):
                if k:
                    a(f"s_add_u32 s{S_T1}, s{S_T1}, {8 * 896 - 1024}")
                vm.issue(tag, f"buffer_load_dwordx4 v{VB}, s[{S_W2}:{S_W2+3}], s{S_T1} offen offset:{k * 1024}{NT2[2]} lds")
    wload(0)
    wload(1)
    a(f"""v_and_b32 v{VZ}, 4, v{T0}
v_xor_b32 v{VZ}, v{VZ}, v{V_LANE}
v_lshlrev_b32 v{VZ}, 4, v{VZ}
v_xor_b32 v{VZ+1}, 128, v{VZ}
v_add_u32 v{VZ+2}, {(1 << 17) - 2048}, v{VZ}
v_add_u32 v{VZ+3}, {(1 << 17) - 2048}, v{VZ+1}""")
    def pcheck(lab, r, poll, sl):
        a(f"""s_waitcnt lgkmcnt(0)
s_and_b32 s{r}, s{r}, s{r+1}
s_cbranch_scc0 {lab}_W
{lab}_X:""")
        ool.append(f"""{lab}_W:
s_sleep {sl}
{poll}
s_waitcnt lgkmcnt(0)
s_and_b32 s{r}, s{r}, s{r+1}
s_cbranch_scc1 {lab}_X
s_addk_i32 s{S_SPIN}, -1
s_cmp_lt_i32 s{S_SPIN}, 0
s_cbranch_scc0 {lab}_W
s_branch {lab}_X""")
    def zcheck(j):
        pcheck(f"L_Z{j}", 72, zpoll, ZSL)
    S_DN = 54
    a(f"s_mov_b32 s{S_DN}, 0")
    last(0)
    zok.update((0, 1))
    st.mark(12)
    q0 = list(vm.q)
    def ztry(i, fin=False):
        vm.q = list(q0)
        if i:
            a(f"s_cmp_lg_u32 s{S_DN}, 0\ns_cbranch_scc1 L_T{i}_X")
        a(f"""L_T{i}_R:
s_waitcnt lgkmcnt(0)
s_and_b64 s[72:73], s[72:73], s[74:75]
s_and_b32 s{S_DN}, s72, s73
s_cbranch_scc0 L_T{i}_{"W" if fin else "X"}
L_T{i}_G:""")
        zload(0)
        zload(1)
        wload(2)
        if NC < 0:
            zload(2)
        a(f"L_T{i}_X:")
        if fin:
            ool.append(f"""L_T{i}_W:
s_sleep {ZSL}
{zp0}
s_addk_i32 s{S_SPIN}, -1
s_cmp_lt_i32 s{S_SPIN}, 0
s_cbranch_scc0 L_T{i}_R
s_waitcnt lgkmcnt(0)
s_branch L_T{i}_G""")
    def reask(i):
        a(f"s_cmp_lg_u32 s{S_DN}, 0\ns_cbranch_scc1 L_T{i}_A\n{zp0}\nL_T{i}_A:")
    assert LA == 3
    ztry(0)
    ep = last(1)
    reask(1)
    ep = f1.spread(LEP + 1, ep)
    a("s_nop 7")
    for f in ep[0]:
        f()
    ztry(1, True)
    a(f"s_mov_b64 s[72:73], -1\ns_xor_b32 s{S_U}, s{S_U}, 1")
    st.mark(13)
    a(f"""v_mul_u32_u24 v{VB}, 896, v{T0}
v_lshl_add_u32 v{VB}, v{T2}, 4, v{VB}
s_lshl_b32 s{S_T0}, s{S_FQ}, 7
v_add_u32 v{VB}, s{S_T0}, v{VB}""")
    a(f"""; z1 flags: FL + tt*2048 + 1024 + fq*8
s_lshl_b32 s{S_C1}, s{S_TT}, 8
s_add_u32 s{S_C1}, s{S_C1}, s{S_FQ}
s_lshl_b32 s{S_C1}, s{S_C1}, 3
s_add_u32 s{S_C1}, s{S_C1}, {WS_FL + 1024}
s_mov_b64 s[70:71], -1""")
    p3_tr_setup(a, T0)
    ypoll = f"s_buffer_load_dwordx2 s[70:71], {ws}, s{S_C1} glc"
    zs = [[n + 2] if (n < NC or LA == 2) else [n + 2, n + 3] if n == NC else [n + 3] for n in range(NST)]
    zs = [[x for x in l if x < NST] for l in zs]
    need = [max([x // 2 for x in l], default=0) for l in zs]
    asked = 1
    post = []
    def bact(n):
        for nm, (lo, at, f) in BA.items():
            assert at >= lo, nm
            if at == n:
                f()
    BA = {"E": (-1, BS[0], lambda: hblocks("E", [13], 0)),
          "b9": (14, BS[3], lambda: hblocks("hb", [9, 10, 11, 12])),
          "b1": (15, BS[4], lambda: hblocks("hb", [1, 2, 3, 4])),
          "b5": (16, BS[6], lambda: hblocks("hb", [5, 6, 7, 8])),
          "b0": (EB + 1, BS[5], lambda: hblocks("hb", [0])),
          "woH": (-1, BS[1], lambda: bdma("wo", S_WO, 32768, 6144, 256, 48, 6)),
          "woL": (13, BS[2], lambda: bdma("wo", S_WO, 0, 8192, 0, 64, 8))}
    assert BS[0] < EB and max(BS[1:3]) < 16 and BS[1] > Z1B
    def btouch(which):
        k = 28 << which
        VQ = 40 + which
        a(f"""s_bfe_u32 s{S_T0}, s2, 0x20003
s_lshl_b32 s{S_T0}, s{S_T0}, 2
s_add_u32 s{S_T0}, s{S_T0}, s{S_RW}
s_mul_i32 s{S_T0}, s{S_T0}, {k * 896}
s_lshl_b32 s{S_T1}, s{S_FQ}, 7
s_add_u32 s{S_T0}, s{S_T0}, s{S_T1}
v_min_u32 v{VQ}, {k - 1}, v{V_LANE}
v_mul_u32_u24 v{VQ}, 896, v{VQ}""")
        sr = (S_WO, S_W2)[which]
        vm.issue("bt", f"buffer_load_dword v{VQ}, v{VQ}, s[{sr}:{sr+3}], s{S_T0} offen")
    def stouch(k, p0, lg, fl):
        nl = 512 << lg
        per = (nl + 27) // 28
        VQ = 42 + k
        a(f"""s_lshl_b32 s{S_T0}, s{S_FQ}, 2
s_add_u32 s{S_T0}, s{S_T0}, s{S_RW}
s_mul_i32 s{S_T0}, s{S_T0}, {per}
v_min_u32 v{VQ}, {per - 1}, v{V_LANE}
v_add_u32 v{VQ}, s{S_T0}, v{VQ}
v_min_u32 v{VQ}, {nl - 1}, v{VQ}
v_lshrrev_b32 v39, {2 + lg}, v{VQ}
v_and_b32 v{VQ}, {(4 << lg) - 1}, v{VQ}
v_lshlrev_b32 v{VQ}, 7, v{VQ}
v_lshl_add_u32 v{VQ}, v39, 12, v{VQ}
s_lshl_b32 s{S_T0}, s{S_TT}, 19
s_lshl_b32 s{S_T1}, s{S_KH}, 11
s_add_u32 s{S_T0}, s{S_T0}, s{S_T1}""")
        vm.issue("bt", f"buffer_load_dword v{VQ}, v{VQ}, s[{S_SP}:{S_SP+3}], s{S_T0} offen offset:{p0 * 512}{fl}")
    bact(-1)
    for n in range(NST):
        if STM and 0 <= n - SM0 < 9:
            st.mark(27 + 3 * (n - SM0))
        if need[n] not in zok:
            assert asked == need[n]
            zcheck(need[n])
            zok.add(need[n])
        if n == N0:
            pcheck("L_Y1", 70, ypoll, HSL)
        if STM and 0 <= n - SM0 < 9:
            st.fold()
            st.mark(28 + 3 * (n - SM0))
        vm.wait(f"s{n}", *(["E"] if n == EB else ["stL"] if n == Z1B else []))
        if STM and 0 <= n - SM0 < 9:
            st.mark(29 + 3 * (n - SM0))
        if n in (0, 4, 8, 12):
            st.mark(14 + n // 4)
        if n in (EB + 1, Z1B):
            a("s_waitcnt lgkmcnt(0)")
        a("s_barrier")
        if n + 1 < NST and need[n + 1] not in zok:
            asked = need[n + 1]
            zask(asked)
        if n + 1 == N0:
            a(f"s_cmp_lg_u32 s{S_RW}, 0\ns_cbranch_scc1 L_Y1_A\n{ypoll}\nL_Y1_A:")
        for x in zs[n]:
            zload(x)
        if n + LA < NST:
            wload(n + LA)
        if n in (Z1S, Z1S + 2 * Z1D):
            for f in last.store(vm)[(n - Z1S) // max(1, 2 * Z1D):][:2 - min(1, Z1D)]:
                f()
        if n < LEP:
            assert n < Z1S
            for f in ep[n + 1]:
                f()
        if n == Z1S:
            a(f"v_add_u32 v{T0}, s{S_MW}, v{V_L16}")
            for q in range(2):
                a(f"ds_write_b128 v{T0}, v[{last.cv+4*q}:{last.cv+4*q+3}] offset:{ZL + q*1024}")
        if n == EB:
            for t in b_reads("h", 0, EFR):
                a(t)
        for k, (at, p0, lg, fl) in enumerate(ST2):
            if at == n:
                stouch(k, p0, lg, ["", " nt", " sc1"][fl])
        for w in range(2):
            if PT[w] == n:
                assert n > LEP
                btouch(w)
        bact(n)
    st.fold()
    p3_setup(a)
    vm.wait("wo")
    a(f"""s_cmp_lg_u32 s{S_RW}, 0
s_cbranch_scc1 L_O_X
s_lshl_b32 s{S_T0}, s{S_M64}, 7
s_add_u32 s{S_T0}, s{S_T0}, {WS_F3}""")
    spoll(a, "L_O", f"s_buffer_load_dwordx16 s[64:79], {ws}, s{S_T0} glc", list(range(64, 80, 2)), ool, HSL)
    a("s_waitcnt lgkmcnt(0)")
    st.mark(18)
    a("s_barrier")
    o_loads(a)
    o_reads(a)
    n0 = len(vm.q)
    bact(16)
    st.mark(19)
    o_part(a, len(vm.q) - n0)
    st.mark(20)
    bact(17)
    st.mark(21)
    a("s_branch P3_GO")

OB = AFR + 32
def o_reads(a):
    for i in range(8):
        for t in b_reads("o", i, OB + 8 * i):
            a(t)
def o_part(a, after):
    a("s_waitcnt lgkmcnt(0)")
    for i in range(8):
        a(f"s_waitcnt vmcnt({7 - i + after})")
        for ni in range(2):
            c, bf, x = ACC3 + 16 * ni, OB + 8 * i, AFR + 4 * i
            a(f"v_mfma_f32_32x32x16_bf16 v[{c}:{c+15}], v[{bf+4*ni}:{bf+4*ni+3}], v[{x}:{x+3}], " + ("0" if i == 0 else f"v[{c}:{c+15}]"))
def o_loads(a):
    for i in range(8):
        if i == 4:
            a(f"s_add_u32 s{S_A}, s{S_A}, 4096")
        a(f"buffer_load_dwordx4 v[{AFR+4*i}:{AFR+4*i+3}], v{V_L16}, {ws}, s{S_A} offen offset:{(i & 3) * 1024}")

def compute(a, vm, st, last, ool):
    lg = LG(a)
    AD = [2, 128, 8, 8]
    AO = [0, 0, 0, 32768]
    V_C0 = 15
    ACC, FR, GZ, TP, BF, ONE = 16, 80, 144, 136, 232, 240
    T1, T2 = TP, TP + 1
    def wflag(n, vo, so, off=0):
        a(f"""s_cmp_eq_u32 s{S_RW}, 0
s_cselect_b64 exec, {(1 << n) - 1}, 0
buffer_store_dword v0, v{vo}, {ws}, s{so} offen offset:{off} sc1
s_mov_b64 exec, -1""")
    a(f"v_mov_b32 v0, 1")
    a(f"v_lshlrev_b32 v2, 7, v{V_LANE}")
    last(0)
    if f1.FAE > 1:
        wflag(4, 2, S_CNT)
    if f1.FAE:
        wflag(8, 2, S_FL)
    ep = last(1)
    st.mark(12)
    ids(a)
    AR, BRD = 2, 4
    a(f"""v_and_b32 v{T1}, 31, v{V_LANE}
v_lshrrev_b32 v{T2}, 5, v{V_LANE}
v_bfe_u32 v{AR}, v{V_LANE}, 1, 3
v_xor_b32 v{AR}, v{AR}, v{T2}
v_lshlrev_b32 v{AR}, 4, v{AR}
v_lshl_add_u32 v{AR}, v{T1}, 7, v{AR}
s_lshr_b32 s{S_T1}, s{S_RW}, 1
s_lshl_b32 s{S_T3}, s{S_T1}, 13
s_add_u32 s{S_T3}, s{S_T3}, 16384
v_add_u32 v{BRD}, s{S_T3}, v{AR}""")
    for k in range(1, 4):
        a(f"v_xor_b32 v{BRD+k}, {k << 5}, v{BRD}")
    a(f"""v_lshlrev_b32 v{BF+1}, 1, v{T1}
v_bfe_u32 v{AR}, v{V_LANE}, 4, 1
v_lshlrev_b32 v{AR}, 1, v{AR}
v_and_b32 v{T1}, 1, v{V_LANE}
v_add_u32 v{AR}, v{AR}, v{T1}
v_mul_u32_u24 v{AR}, 576, v{AR}
v_lshlrev_b32 v{T2}, 7, v{T2}
v_xor_b32 v{AR}, v{AR}, v{T2}
v_bfe_u32 v{T1}, v{V_LANE}, 2, 2
v_lshl_add_u32 v{AR}, v{T1}, 4, v{AR}
v_bfe_u32 v{T1}, v{V_LANE}, 1, 1
v_lshl_add_u32 v{AR}, v{T1}, 3, v{AR}
s_and_b32 s{S_T0}, s{S_RW}, 1
s_lshl_b32 s{S_T3}, s{S_T0}, 12
v_add_u32 v{AR}, s{S_T3}, v{AR}
v_xor_b32 v{AR+1}, 64, v{AR}
s_lshl_b32 s{S_T2}, s{S_TT}, 1
s_add_u32 s{S_T2}, s{S_T2}, s{S_T1}
s_lshl_b32 s{S_AB}, s{S_T2}, 7
s_lshl_b32 s{S_T3}, s{S_FQ}, 1
s_add_u32 s{S_T3}, s{S_T3}, s{S_T0}
s_lshl_b32 s{S_T3}, s{S_T3}, 12
s_mul_i32 s{S_ZB}, s{S_T2}, {2*28*2048}
s_add_u32 s{S_ZB}, s{S_ZB}, s{S_T3}
s_add_u32 s{S_ZB}, s{S_ZB}, {WS_Z1}
s_add_u32 s{S_C1}, s{S_ZB}, {28*2048}
s_mul_i32 s{S_O}, s{S_T2}, {2*144*1024}
s_add_u32 s{S_O}, s{S_O}, s{S_T3}
s_mul_i32 s{S_T3}, s{S_KH}, {56*1024}
s_add_u32 s{S_O}, s{S_O}, s{S_T3}
s_add_u32 s{S_O}, s{S_O}, {WS_AF + 32*1024}
s_lshl_b32 s{S_MW}, s{S_T2}, 2
s_lshr_b32 s{S_T3}, s{S_FQ}, 1
s_add_u32 s{S_MW}, s{S_MW}, s{S_T3}
s_lshl_b32 s{S_MW}, s{S_MW}, 3
s_and_b32 s{S_T3}, s{S_FQ}, 1
s_add_u32 s{S_MW}, s{S_MW}, s{S_T3}
s_lshl_b32 s{S_MW}, s{S_MW}, 1
s_add_u32 s{S_MW}, s{S_MW}, s{S_KH}
s_lshl_b32 s{S_MW}, s{S_MW}, 1
s_add_u32 s{S_MW}, s{S_MW}, s{S_T0}
s_lshl_b32 s{S_MW}, s{S_MW}, 2
s_add_u32 s{S_MW}, s{S_MW}, {WS_F2}
s_cmp_eq_u32 s{S_KH}, 0
s_cselect_b32 s{S_M2}, -1, 0
s_mov_b32 s{S_M2+1}, 0
s_cmp_lg_u32 s{S_KH}, s{S_T0}
s_cselect_b64 vcc, -1, 0""")
    srd(a, S_B, P_BSP, 4096)
    pre = [f"v_add_u32 v{AD[1]+i}, 0x20000, v{2+i}" for i in range(6)] + [f"v_add_u32 v{8+i}, 0x10000, v{2+i}" for i in range(6)]
    pre += [f"v_mov_b32 v{BF+r}, 0" for r in (2, 3, 4)] + [f"v_mov_b32 v{ONE+r}, 0x3f803f80" for r in range(4)]
    for t in pre:
        a(t)
    p3_tr_setup(a, TP)
    a(f"v_lshlrev_b32 v{TP}, 7, v{V_LANE}")
    def bias_load():
        vm.issue("b", f"buffer_load_ushort v{BF}, v{BF+1}, s[{S_B}:{S_B+3}], s{S_AB} offen")
        vm.issue("b", f"buffer_load_ushort v{BF+5}, v{BF+1}, s[{S_B}:{S_B+3}], s{S_AB} offen offset:64")
    def bias_prep():
        vm.wait("b")
        a(f"""v_cndmask_b32 v{BF}, 0, v{BF}, s[{S_M2}:{S_M2+1}]
v_cndmask_b32 v{BF+5}, 0, v{BF+5}, s[{S_M2}:{S_M2+1}]
v_mov_b32 v{BF+1}, 0""")
    QD = ((0, 0), (1, 0), (0, 1), (1, 1))
    def bias_mf(k):
        fi, ti = QD[k]
        c = ACC + 32 * fi + 16 * ti
        a(f"v_mfma_f32_32x32x16_bf16 v[{c}:{c+15}], v[{ONE}:{ONE+3}], v[{BF+2*ti}:{BF+2*ti+3}], v[{c}:{c+15}]")
    gl = []
    for e in range(64):
        src = GZ + 8 * (e >> 3) + 4 + ((e & 7) >> 1)
        gl.append(f"v_lshlrev_b32 v{GZ+e}, 16, v{src}" if e % 2 == 0 else f"v_and_b32 v{GZ+e}, 0xffff0000, v{src}")
    G0G, GEND = ZP0 * 4, 256 - GTAIL
    ngap = GEND - G0G
    ZL0 = (4 * N0 - 2) * 4
    assert G0G - ZL0 >= 24
    gi = [0, 0, 0]
    def zissue(li):
        fi, ti, q = li >> 2, (li >> 1) & 1, li & 1
        r = GZ + 8 * li + 4
        assert "b" not in vm.q
        a(f"s_cbranch_vccz C_Z{li}")
        vm.issue(f"z{li}", f"buffer_load_dwordx4 v[{r}:{r+3}], v{V_L16}, {ws}, s{S_ZB if ti == 0 else S_C1} offen offset:{fi*2048 + q*1024}{NT2[3]}")
        a(f"C_Z{li}:")
    def fill():
        g = gi[1]
        gi[1] += 1
        if g < CEP:
            assert CEP <= (4 * (Z1S + Z1D) - 2) * 4
            for f in ep[len(ep) * g // CEP:len(ep) * (g + 1) // CEP]:
                f()
        while gi[2] < 8 and g >= ZL0 + LEAD * gi[2]:
            zissue(gi[2])
            gi[2] += 1
        if g < G0G:
            return
        tgt = min(len(gl), (len(gl) * (g - G0G + 1) + ngap - 1) // ngap)
        while gi[0] < tgt:
            if gi[0] % 8 == 0:
                assert gi[2] > gi[0] // 8
                vm.wait(f"z{gi[0] // 8}")
            a(gl[gi[0]])
            gi[0] += 1
    def reads(p):
        n, ks = p >> 2, p & 3
        f = FR + 16 * (p % 3)
        ad, ao = AD[n & 3], AO[n & 3]
        zo = ao + (ks >> 1) * 8192 + (ks & 1) * 256
        l = []
        for i in range(2):
            l.append(f"ds_read_b64_tr_b16 v[{f+4*i}:{f+4*i+1}], v{ad} offset:{zo + i*2048}")
            l.append(f"ds_read_b64_tr_b16 v[{f+4*i+2}:{f+4*i+3}], v{ad+1} offset:{zo + i*2048}")
            l.append(f"ds_read_b128 v[{f+8+4*i}:{f+8+4*i+3}], v{ad+2+ks} offset:{ao + i*4096}")
        return [(f"r{p}", t) for t in l]
    if PRIO & 1:
        a("s_setprio 3")
    vm.wait("st1")
    st.mark(13)
    a("s_barrier")
    st.mark(14)
    for t in reads(0) + reads(1):
        lg.issue(*t)
    if f1.FAE < 2:
        wflag(4, TP, S_CNT)
    if not f1.FAE:
        wflag(8, TP, S_FL)
    for p in range(64):
        n, ks = p >> 2, p & 3
        if ks == 2 and n < 15:
            if n + 1 == Z1B:
                a("s_waitcnt vmcnt(0)")
                vm.q = []
            if LA == 3:
                lg.all()
            a("s_barrier")
            if n + 1 == Z1B:
                wflag(1, BF + 2, S_FL, 1024)
                a(f"""s_and_b32 s{S_T0}, s{S_RW}, 2
s_lshl_b32 s{S_T0}, s{S_T0}, 12
v_add_u32 v{TP+1}, s{S_T0}, v{V_L16}
s_cbranch_vccnz C_ZO""")
                for li in range(8):
                    fi, ti, q = li >> 2, (li >> 1) & 1, li & 1
                    a(f"ds_read_b128 v[{GZ+8*li+4}:{GZ+8*li+7}], v{TP+1} offset:{ZL + ti*4096 + fi*2048 + q*1024}")
                a("C_ZO:")
            if n + 1 == Z1S + Z1D:
                a(f"s_lshl_b32 s{S_T0}, s{S_RW}, 12\nv_add_u32 v{TP+1}, s{S_T0}, v{V_L16}")
                for q in range(2):
                    lg.issue("w", f"ds_write_b128 v{TP+1}, v[{last.cv+4*q}:{last.cv+4*q+3}] offset:{ZL + 2048 + q*1024}")
            if n + 1 in (Z1S + Z1D, Z1S + 3 * Z1D):
                for f in last.store(vm)[(n + 1 - Z1S) // max(1, 2 * Z1D):][:2 - min(1, Z1D)]:
                    f()
            if n + 1 in (4, 8, 12):
                st.mark(14 + (n + 1) // 4)
        lg.wait(f"r{p}")
        if p == 63:
            lg.all()
            st.fold()
            st.mark(18)
            if TB:
                a("s_barrier")
        rl = reads(p + 2) if p + 2 < 64 else []
        if p == 4 * EB - 1:
            rl = rl + [("E", t) for t in b_reads("h", 0, EFR)]
        f = FR + 16 * (p % 3)
        for k, (fi, ti) in enumerate(QD):
            c = ACC + 32 * fi + 16 * ti
            a(f"v_mfma_f32_32x32x16_bf16 v[{c}:{c+15}], v[{f+4*fi}:{f+4*fi+3}], v[{f+8+4*ti}:{f+8+4*ti+3}], " + ("0" if p == 0 else f"v[{c}:{c+15}]"))
            for t in (rl[2 * k:2 * k + 2] if k < 3 else rl[6:]):
                lg.issue(*t)
            if ks == 1 and 0 <= n - BST < 4 and k == (n - BST + 2) % 4:
                bias_mf(n - BST)
            fill()
        if ks == 0 and n == BST - 4:
            bias_load()
        if ks == 0 and n == BST:
            bias_prep()
    assert gi[0] == len(gl)
    for k, (fi, ti) in enumerate(QD):
        if k == 0:
            a("s_setprio 3\ns_nop 2" if PRIO & 2 else "s_nop 3")
        if k == 2:
            a(f"s_add_u32 s{S_O}, s{S_O}, {144*1024}")
        c = ACC + 32 * fi + 16 * ti
        g = GZ + 32 * fi + 16 * ti
        o = FR + 8 * (2 * ti + fi) + 16
        for q in range(2):
            for r in range(8 * q, 8 * q + 8, 2):
                a(f"v_pk_mul_f32 v[{c+r}:{c+r+1}], v[{c+r}:{c+r+1}], v[{g+r}:{g+r+1}]")
            for r in range(4 * q, 4 * q + 4):
                a(f"v_cvt_pk_bf16_f32 v{o+r}, v{c+2*r}, v{c+2*r+1}")
            vm.issue("st", f"buffer_store_dwordx4 v[{o+4*q}:{o+4*q+3}], v{V_L16}, {ws}, s{S_O} offen offset:{fi*2048 + q*1024}{SF}")
    p3_setup(a)
    if not TB:
        a("s_barrier")
    st.mark(19)
    o_loads(a)
    a(f"""v_mov_b32 v{TP}, 1
s_mov_b64 exec, 1
s_waitcnt vmcnt(8)
buffer_store_dword v{TP}, v{BF+2}, {ws}, s{S_MW} offen sc1
s_mov_b64 exec, -1""")
    if PRIO:
        a("s_setprio 0")
    st.mark(20)
    o_reads(a)
    o_part(a, 1)
    st.mark(21)
    a(f"""s_cmp_lg_u32 s{S_RW}, 0
s_cbranch_scc1 L_H_X
s_lshl_b32 s{S_T0}, s{S_M64}, 9
s_add_u32 s{S_T0}, s{S_T0}, {WS_F2}
s_add_u32 s{S_T1}, s{S_T0}, 128
s_add_u32 s{S_T2}, s{S_T0}, 256
s_add_u32 s{S_T3}, s{S_T0}, 384""")
    spoll(a, "L_H", f"""s_buffer_load_dwordx8 s[56:63], {ws}, s{S_T0} glc
s_buffer_load_dwordx8 s[64:71], {ws}, s{S_T1} glc
s_buffer_load_dwordx8 s[72:79], {ws}, s{S_T2} glc
s_buffer_load_dwordx4 s[8:11], {ws}, s{S_T3} glc""", list(range(56, 80, 2)) + [8, 10], ool, HSL)

def phase3(a, st, ool):
    vm, lg = VM(a), LG(a)
    a("P3_GO:")
    horder = SEQ[1:] + SEQ[:1]
    a("s_barrier")
    st.mark(22)
    def breads(si):
        if horder[si] == 13:
            return []
        return [(f"b{si}", t) for t in b_reads("h", horder[si], BFR + 8 * (si % 3))]
    nx = [0]
    def pump(lim):
        while nx[0] < min(lim, 28):
            j, h = nx[0] >> 1, nx[0] & 1
            if h == 0:
                a(f"""s_add_u32 s{S_BR}, s{S_BR}, 1
s_cmp_eq_u32 s{S_BR}, 14
s_cselect_b32 s{S_BR}, 0, s{S_BR}
s_lshl_b32 s{S_T0}, s{S_BR}, 10
s_add_u32 s{S_T0}, s{S_T0}, s{S_O}""")
            r = AFR + 32 + 4 * nx[0]
            vm.issue(f"h{nx[0]}", f"buffer_load_dwordx4 v[{r}:{r+3}], v{V_W if h else V_L16}, {ws}, s{S_T0} offen")
            nx[0] += 1
    pump(AH0)
    a(f"s_waitcnt vmcnt({AH0})\ns_barrier")
    st.mark(23)
    for t in breads(0) + breads(1):
        lg.issue(*t)
    pump(AHEAD)
    for si in range(14):
        if si == 4: st.mark(24)
        if si == 9: st.mark(25)
        if si == XAT:
            vm.issue("x", f"buffer_load_dwordx4 v[{XV}:{XV+3}], v{V_XO}, s[{S_X}:{S_X+3}], s{S_XO} offen")
        bf = EFR if horder[si] == 13 else BFR + 8 * (si % 3)
        rl = breads(si + 2) if si + 2 < 14 else []
        lg.wait(f"b{si}")
        for h in range(2):
            cons = 2 * si + h
            vm.wait(f"h{cons}")
            x = AFR + 32 + 4 * cons
            for ni in range(2):
                c = ACC3 + 16 * ni
                a(f"v_mfma_f32_32x32x16_bf16 v[{c}:{c+15}], v[{bf+4*ni}:{bf+4*ni+3}], v[{x}:{x+3}], v[{c}:{c+15}]")
                k = 2 * h + ni
                for t in rl[k:k + 1]:
                    lg.issue(*t)
                if ni == 0:
                    pump(cons + 1 + AHEAD)
    st.mark(26)
    vm.wait("x")
    U = AFR
    for lp in (1, 2, 3):
        a(f"""s_xor_b32 s{S_T0}, s{S_WAVE}, {lp}
s_mul_i32 s{S_T0}, s{S_T0}, 6144
v_add_u32 v{BFR+lp}, s{S_T0}, v{V_L16}""")
    a(f"""s_mul_i32 s{S_T0}, s{S_WAVE}, 6144
v_add_u32 v{BFR}, s{S_T0}, v{V_L16}""")
    for d in range(4):
        a(f"v_lshlrev_b32 v{U+2*d}, 16, v{XV+d}")
        a(f"v_and_b32 v{U+2*d+1}, 0xffff0000, v{XV+d}")
    for lp in (1, 2, 3):
        for k in range(2):
            c = ACC3 + 8 * lp + 4 * k
            a(f"ds_write_b128 v{BFR+lp}, v[{c}:{c+3}] offset:{(lp-1)*2048 + k*1024}")
    a("s_waitcnt lgkmcnt(0)\ns_barrier")
    for k in range(6):
        c = ACC3 + 8 + 4 * k
        a(f"ds_read_b128 v[{c}:{c+3}], v{BFR} offset:{k*1024}")
    for lp in (1, 2, 3):
        a(f"s_waitcnt lgkmcnt({6 - 2*lp})")
        for r in range(0, 8, 2):
            a(f"v_pk_add_f32 v[{ACC3+r}:{ACC3+r+1}], v[{ACC3+r}:{ACC3+r+1}], v[{ACC3+8*lp+r}:{ACC3+8*lp+r+1}]")
    a("s_nop 1")
    for d in range(4):
        a(f"v_permlane32_swap_b32 v{ACC3+d}, v{ACC3+4+d}")
    for r in range(0, 8, 2):
        a(f"v_pk_add_f32 v[{ACC3+r}:{ACC3+r+1}], v[{ACC3+r}:{ACC3+r+1}], v[{U+r}:{U+r+1}]")
    for r in range(4):
        a(f"v_cvt_pk_bf16_f32 v{XV+r}, v{ACC3+2*r}, v{ACC3+2*r+1}")
    a(f"buffer_store_dwordx4 v[{XV}:{XV+3}], v{V_XO}, s[{S_OUT}:{S_OUT+3}], s{S_XO} offen")
    st.flush(S_WS, S_WAVE)
    a("s_endpgm")

def ids(a):
    a(f"""s_and_b32 s{S_KH}, s2, 1
s_bfe_u32 s{S_T1}, s2, 0x20003
s_and_b32 s{S_T0}, s2, 7
s_lshl_b32 s{S_M64}, s{S_T0}, 2
s_add_u32 s{S_M64}, s{S_M64}, s{S_T1}
s_lshr_b32 s{S_FQ}, s2, 5
s_mul_i32 s{S_BR}, s{S_T1}, {7 if ROT3 else 0}
s_lshr_b32 s{S_BR}, s{S_BR}, 1
s_mul_i32 s{S_T0}, s{S_FQ}, {ROT3 & 2}
s_add_u32 s{S_BR}, s{S_BR}, s{S_T0}
s_cmp_ge_u32 s{S_BR}, 14
s_cselect_b32 s{S_T0}, 14, 0
s_sub_u32 s{S_BR}, s{S_BR}, s{S_T0}""")

def hook_main(a, vm, st, last):
    ool = []
    a(f"""s_cmp_eq_u32 s{S_CH}, 0
s_cbranch_scc0 P2_CMP""")
    q0, p0 = list(vm.q), list(st.pend)
    loader(a, vm, st, last, ool)
    pl = list(st.pend)
    a("P2_CMP:")
    vm.q, st.pend = q0, p0
    compute(a, vm, st, last, ool)
    assert st.pend == pl
    phase3(a, st, ool)
    for o in ool:
        a(o)

def hook_att(a, vm, st, ctl):
    V_T0, V_T1, V_T2, V_L8B = 2, 3, 4, 5
    KF, QF, ACC, ZAC, ONE, KVB, TP = 16, 144, 176, 192, 208, 212, 220
    S_H, S_HF, S_MK = 28, 29, 42
    st.mark(12)
    a(f"""; head = 2x + (c&1) ; half = c>>1
s_and_b32 s{S_T0}, s2, 7
s_lshl_b32 s{S_H}, s{S_T0}, 1
s_bfe_u32 s{S_T0}, s2, 0x10003
s_add_u32 s{S_H}, s{S_H}, s{S_T0}
s_bfe_u32 s{S_HF}, s2, 0x10004
s_lshl_b32 s{S_T3}, s{S_HF}, 3
s_add_u32 s{S_O}, s{S_T3}, s{S_WAVE}
v_lshlrev_b32 v{V_T0}, 7, v{V_LANE}
v_mov_b32 v{V_T1}, 1
s_waitcnt vmcnt(0)
s_barrier
s_cmp_eq_u32 s{S_WAVE}, 0
s_cselect_b64 exec, 0xff, 0
buffer_store_dword v{V_T1}, v{V_T0}, {ws}, s{S_FL} offen sc1""")
    st.mark(13)
    if ATOUCH:
        srd(a, 20, P_BSP, 4096)
        a(f"s_cmp_eq_u32 s{S_WAVE}, 0\ns_cselect_b64 exec, -1, 0")
        a(f"buffer_load_dword v{TP}, v{V_T0}, s[20:23], 0 offen")
    a("s_mov_b64 exec, -1")
    for t in ctl:
        t()
    a(f"""s_and_b32 s{S_T0}, s2, 7
s_lshl_b32 s{S_T0}, s{S_T0}, 7
s_lshl_b32 s{S_M2}, s{S_O}, 11
s_add_u32 s{S_M2}, s{S_M2}, s{S_T0}
s_add_u32 s{S_T3}, s{S_M2}, {WS_FL + 56}
s_mul_i32 s{S_T0}, s{S_H}, 7
s_lshr_b32 s{S_T0}, s{S_T0}, 4
s_lshl_b32 s{S_T0}, s{S_T0}, 2
s_add_u32 s{S_M2}, s{S_M2}, s{S_T0}
s_add_u32 s{S_M2}, s{S_M2}, {WS_FL}
s_add_u32 s{S_T2}, s{S_M2}, 28""")
    spoll(a, "A_KV", f"s_buffer_load_dwordx2 s[56:57], {ws}, s{S_T2} glc\ns_buffer_load_dwordx2 s[58:59], {ws}, s{S_T3} glc", [56, 58], None, ASL)
    vm.q = []
    st.mark(14)
    a(f"""s_mul_i32 s{S_T1}, s{S_O}, {4*28672}
s_mul_i32 s{S_T2}, s{S_H}, 896
s_add_u32 s{S_T1}, s{S_T1}, s{S_T2}
s_add_u32 s{S_T1}, s{S_T1}, {WS_K}
v_add_u32 v{V_T2}, {WS_V - WS_K}, v{V_KO}""")
    NK = 8
    for i in range(NK):
        vm.issue(f"k{i}", f"buffer_load_dwordx4 v[{KF+8*i}:{KF+8*i+3}], v{V_KO}, {ws}, s{S_T1} offen{NTA}")
        vm.issue(f"k{i}", f"buffer_load_dwordx4 v[{KF+8*i+4}:{KF+8*i+7}], v{V_T2}, {ws}, s{S_T1} offen{NTA}")
        a(f"s_add_u32 s{S_T1}, s{S_T1}, 14336")
    spoll(a, "A_Q", f"s_buffer_load_dwordx2 s[56:57], {ws}, s{S_M2} glc", [56], None, ASL)
    a(f"""v_and_b32 v{V_L8B}, 0xff, v{V_L8}
s_mul_i32 s{S_T1}, s{S_O}, {4*28672}
s_lshl_b32 s{S_T2}, s{S_T2}, 1
s_add_u32 s{S_T1}, s{S_T1}, s{S_T2}
s_add_u32 s{S_T1}, s{S_T1}, {WS_Q}
s_lshl_b32 s{S_C1+1}, s{S_O}, 8
s_lshl_b32 s{S_T3}, s{S_H}, 2
s_add_u32 s{S_FL}, s{S_C1+1}, s{S_T3}
s_add_u32 s{S_FL}, s{S_FL}, {WS_F3}
s_mul_i32 s{S_O}, s{S_O}, {4*144*1024}
s_lshl_b32 s{S_T3}, s{S_H}, 11
s_add_u32 s{S_O}, s{S_O}, s{S_T3}
s_add_u32 s{S_O}, s{S_O}, {WS_AF}""")
    for u in range(4):
        for i in range(4):
            r = QF + 8 * u + 2 * i
            vm.issue("q", f"buffer_load_dwordx2 v[{r}:{r+1}], v{V_L8 if i < 3 else V_L8B}, {ws}, s{S_T1} offen offset:{512*i}{NTA}")
        a(f"s_add_u32 s{S_T1}, s{S_T1}, 28672")
    for r in range(4):
        a(f"v_mov_b32 v{ONE+r}, 0x3f803f80")
    a(f"""s_mov_b32 s{S_MK}, 0x10000000
s_mov_b32 s{S_MK+1}, 0x10000000
s_mov_b32 s{S_M2}, -1
s_mov_b32 s{S_M2+1}, 0""")
    for i in range(NK):
        vm.wait(f"k{i}")
        c0 = "0" if i == 0 else f"v[{ACC}:{ACC+15}]"
        c1 = "0" if i == 0 else f"v[{ZAC}:{ZAC+15}]"
        a(f"v_mfma_f32_32x32x16_bf16 v[{ACC}:{ACC+15}], v[{KF+8*i}:{KF+8*i+3}], v[{KF+8*i+4}:{KF+8*i+7}], {c0}")
        a(f"v_mfma_f32_32x32x16_bf16 v[{ZAC}:{ZAC+15}], v[{KF+8*i}:{KF+8*i+3}], v[{ONE}:{ONE+3}], {c1}")
    st.mark(15)
    a(f"""s_lshl_b32 s{S_T1}, s{S_WAVE}, 12
v_add_u32 v{V_T2}, s{S_T1}, v{V_L8}
s_nop 10""")
    for r in range(16):
        a(f"v_cndmask_b32 v{ACC+r}, v{ACC+r}, v{ZAC+r}, s[{S_MK}:{S_MK+1}]")
    for p in range(8):
        a(f"ds_write_b64 v{V_T2}, v[{ACC+2*p}:{ACC+2*p+1}] offset:{512*p}")
    a(f"""s_lshl_b32 s{S_T1}, s{S_WAVE}, 9
v_add_u32 v{V_T2}, s{S_T1}, v{V_L8}""")
    a("s_waitcnt lgkmcnt(0)\ns_barrier")
    for w in range(8):
        a(f"ds_read_b64 v[{ACC+2*w}:{ACC+2*w+1}], v{V_T2} offset:{4096*w}")
    a(f"""s_cmp_ge_u32 s{S_WAVE}, 6
s_mov_b32 s{S_MK}, 0x1fffffff
s_cselect_b32 s{S_MK+1}, 0, s{S_MK}
s_lshl_b32 s{S_T2}, s{S_H}, 1
s_add_u32 s{S_T2}, s{S_T2}, s{S_HF}
s_lshl_b32 s{S_T2}, s{S_T2}, 3
s_add_u32 s{S_T2}, s{S_T2}, s{S_WAVE}
s_lshl_b32 s{S_T2}, s{S_T2}, 9
s_add_u32 s{S_T2}, s{S_T2}, {WS_XB}
s_xor_b32 s{S_T3}, s{S_T2}, 4096
s_lshl_b32 s{S_T1}, s{S_WAVE}, 2
s_add_u32 s{S_T1}, s{S_T1}, 32768
v_lshl_add_u32 v{V_T2}, v{V_LANE}, 5, s{S_T1}
s_waitcnt lgkmcnt(0)""")
    for w in (4, 2, 1):
        for k in range(w):
            a(f"v_pk_add_f32 v[{ACC+2*k}:{ACC+2*k+1}], v[{ACC+2*k}:{ACC+2*k+1}], v[{ACC+2*(k+w)}:{ACC+2*(k+w)+1}]")
    a(f"""v_cndmask_b32 v{ACC}, 0, v{ACC}, s[{S_MK}:{S_MK+1}]
v_cndmask_b32 v{ACC+1}, 0, v{ACC+1}, s[{S_MK}:{S_MK+1}]
buffer_store_dwordx2 v[{ACC}:{ACC+1}], v{V_L8}, {ws}, s{S_T2} offen sc1
A_X_R:
buffer_load_dwordx2 v[{ACC+2}:{ACC+3}], v{V_L8}, {ws}, s{S_T3} offen sc1
s_waitcnt vmcnt(0)
v_max_u32 v{ACC+4}, v{ACC+2}, v{ACC+3}
v_cmp_eq_u32 vcc, -1, v{ACC+4}
s_cbranch_vccz A_X_X
s_sleep {ASL}
s_addk_i32 s{S_SPIN}, -1
s_cmp_lt_i32 s{S_SPIN}, 0
s_cbranch_scc0 A_X_R
A_X_X:
v_pk_add_f32 v[{ACC}:{ACC+1}], v[{ACC}:{ACC+1}], v[{ACC+2}:{ACC+3}]""")
    vm.q = []
    a(f"""v_cvt_pk_bf16_f32 v{ACC}, v{ACC}, v{ACC+1}
ds_write_b32 v{V_T2}, v{ACC}
v_lshlrev_b32 v{V_T2}, 5, v{V_LANE}
s_waitcnt lgkmcnt(0)
s_barrier
ds_read_b128 v[{KVB}:{KVB+3}], v{V_T2} offset:32768
ds_read_b128 v[{KVB+4}:{KVB+7}], v{V_T2} offset:32784
s_waitcnt lgkmcnt(0)""")
    vm.wait("q")
    st.mark(16)
    for u in range(4):
        c = KF + 16 * u
        a(f"v_mfma_f32_32x32x16_bf16 v[{c}:{c+15}], v[{KVB}:{KVB+3}], v[{QF+8*u}:{QF+8*u+3}], 0")
        a(f"v_mfma_f32_32x32x16_bf16 v[{c}:{c+15}], v[{KVB+4}:{KVB+7}], v[{QF+8*u+4}:{QF+8*u+7}], v[{c}:{c+15}]")
    a("s_nop 5")
    for u in range(4):
        c = KF + 16 * u
        o = KF + 64 + 8 * u
        a(f"""v_add_f32 v{TP}, {f32(1e-6)}, v{c+12}
v_mov_b32 v{TP+1}, v{TP}
s_nop 1
v_permlane32_swap_b32 v{TP+1}, v{TP}
v_rcp_f32 v{TP}, v{TP}
s_nop 0""")
        for r in range(16):
            a(f"v_mul_f32 v{c+r}, v{c+r}, v{TP}")
        for r in range(8):
            a(f"v_cvt_pk_bf16_f32 v{o+r}, v{c+2*r}, v{c+2*r+1}")
        a(f"v_cndmask_b32 v{o+6}, 0, v{o+6}, s[{S_M2}:{S_M2+1}]")
        a(f"v_cndmask_b32 v{o+7}, 0, v{o+7}, s[{S_M2}:{S_M2+1}]")
        vm.issue("st", f"buffer_store_dwordx4 v[{o}:{o+3}], v{V_L16}, {ws}, s{S_O} offen{SF}")
        vm.issue("st", f"buffer_store_dwordx4 v[{o+4}:{o+7}], v{V_L16}, {ws}, s{S_O} offen offset:1024{SF}")
        a(f"s_add_u32 s{S_O}, s{S_O}, {144*1024}")
    st.mark(17)
    a(f"""v_mov_b32 v{TP}, 1
v_lshlrev_b32 v{TP+1}, 7, v{V_LANE}
s_mov_b64 exec, 3
s_waitcnt vmcnt(0)
buffer_store_dword v{TP}, v{TP+1}, {ws}, s{S_FL} offen sc1""")
    st.flush(S_WS, S_WAVE)
    a("s_endpgm")
```

```python
from asmlib import *
import struct

def f32(x):
    return "0x%08x" % struct.unpack("<I", struct.pack("<f", x))[0]

WS_Z2 = 0x0000000
WS_Z1 = 0x0400000
WS_Q = 0x0800000
WS_K = 0x0A00000
WS_V = 0x0C00000
WS_ST = 0x0E00000
WS_XB = 0x0E40000
WS_SF = 0x0F00000
WS_FL = 0x0F00000
WS_F2 = WS_FL + 0x8000
WS_F3 = WS_FL + 0xC000
WS_FZ = WS_FL + 0xD000
WS_AF = 0x1000000
WS_WF = 0x2000000
WS_SIZE = 0x3000000
WS_STAMP = 0x8000000

class VM:
    def __init__(self, a):
        self.a = a
        self.q = []
    def issue(self, tag, text):
        self.a(text)
        self.q.append(tag)
    def wait(self, *tags):
        last = -1
        for i, t in enumerate(self.q):
            if t in tags:
                last = i
        if last < 0:
            return
        n = len(self.q) - 1 - last
        assert n <= 63, n
        self.a(f"s_waitcnt vmcnt({n})")
        self.q = self.q[last + 1:]
    def copy(self, a=None):
        v = VM(a or self.a)
        v.q = list(self.q)
        return v

GELU_C0 = -2.0 * 0.7978845608028654 * 1.4426950408889634
GELU_C1 = GELU_C0 * 0.044715
LOG2E = 1.4426950408889634

class Stamp:
    def __init__(self, a, on, kern=0):
        self.a, self.on, self.kern = a, on, kern
    def mark(self, i, real=False):
        if self.on:
            self.a(f"{'s_memrealtime' if real else 's_memtime'} s[{70+2*i}:{71+2*i}]")
    def clear(self):
        if self.on:
            for i in range(14):
                self.a(f"s_mov_b32 s{70+2*i}, 0")
    def flush(self, s_ws, s_wave):
        if not self.on:
            return
        a = self.a
        a("s_waitcnt vmcnt(0)")
        self.mark(12)
        self.mark(13, True)
        a(f"""s_waitcnt lgkmcnt(0)
s_mov_b64 exec, 1
s_lshl_b32 s98, s2, 9
s_lshl_b32 s99, s{s_wave}, 6
s_add_u32 s98, s98, s99
s_add_u32 s98, s98, {WS_STAMP + self.kern * 0x100000}
s_mov_b32 s{s_ws+2}, 0x10000000
v_mov_b32 v20, 0""")
        for i in range(14):
            a(f"v_mov_b32 v{2+i}, s{70+2*i}")
        a("v_mov_b32 v16, 0\nv_mov_b32 v17, 0")
        for q in range(4):
            a(f"buffer_store_dwordx4 v[{2+4*q}:{5+4*q}], v20, s[{s_ws}:{s_ws+3}], s98 offen offset:{16*q}")


def finalize_stats(a, NP, s_ws, s_dbg, s_part, s_st, v_l16, T, lab_end, st_flags):
    NL = (NP + 3) // 4
    a(f"""s_waitcnt vmcnt(0)
s_mov_b64 exec, 1
v_mov_b32 v{T}, 1
v_mov_b32 v{T+1}, 0
s_lshl_b32 s58, s{s_st}, 2
buffer_atomic_add v{T}, v{T+1}, s[{s_dbg}:{s_dbg+3}], s58 offen sc0 sc1
s_waitcnt vmcnt(0)
v_readfirstlane_b32 s59, v{T}
s_mov_b64 exec, -1
s_cmp_lg_u32 s59, {NP-1}
s_cbranch_scc1 {lab_end}""")
    if NP % 4:
        for r in range(4):
            a(f"v_mov_b32 v{T+4*(NL-1)+r}, 0")
    for i in range(NL):
        if i == NL - 1 and NP % 4:
            m = (1 << (16 * (NP % 4))) - 1
            a(f"s_mov_b32 exec_lo, 0x{m & 0xffffffff:x}\ns_mov_b32 exec_hi, 0x{m >> 32:x}")
        if i == 4:
            a(f"s_add_u32 s{s_part}, s{s_part}, 4096")
        a(f"buffer_load_dwordx4 v[{T+4*i}:{T+4*i+3}], v{v_l16}, s[{s_ws}:{s_ws+3}], s{s_part} offen offset:{(i&3)*1024} sc0 sc1")
    a("s_mov_b64 exec, -1")
    a(f"s_lshl_b32 s58, s{s_st}, 8\ns_add_u32 s58, s58, {WS_SF}")
    for i in range(1, NL):
        a(f"s_waitcnt vmcnt({NL-1-i})")
        for h in (0, 2):
            a(f"v_pk_add_f32 v[{T+h}:{T+h+1}], v[{T+h}:{T+h+1}], v[{T+4*i+h}:{T+4*i+h+1}]")
    for op in ("v_permlane32_swap_b32", "v_permlane16_swap_b32"):
        for r in range(4):
            a(f"v_mov_b32 v{T+4+r}, v{T+r}")
        a("s_nop 1")
        for r in range(4):
            a(f"{op} v{T+4+r}, v{T+r}")
        for h in (0, 2):
            a(f"v_pk_add_f32 v[{T+h}:{T+h+1}], v[{T+h}:{T+h+1}], v[{T+4+h}:{T+4+h+1}]")
    for r in (0, 2):
        a(f"v_mul_f32 v{T+r}, {f32(-1/896)}, v{T+r}")
        a(f"v_mul_f32 v{T+r+1}, {f32(1/896)}, v{T+r+1}")
    for r in (0, 2):
        a(f"v_fma_f32 v{T+r+1}, -v{T+r}, v{T+r}, v{T+r+1}")
    for r in (0, 2):
        a(f"v_max_f32 v{T+r+1}, 0, v{T+r+1}")
    for r in (0, 2):
        a(f"v_add_f32 v{T+r+1}, {f32(1e-5)}, v{T+r+1}")
    for r in (0, 2):
        a(f"v_rsq_f32 v{T+r+1}, v{T+r+1}")
    a("s_nop 0")
    for r in (0, 2):
        a(f"v_mul_f32 v{T+r}, v{T+r}, v{T+r+1}")
    a(f"""s_mov_b64 exec, 0xffff
buffer_store_dwordx4 v[{T}:{T+3}], v{v_l16}, s[{s_ws}:{s_ws+3}], s58 offen{st_flags}""")


class Stamp2:
    V = 231
    def __init__(self, a, on):
        self.a, self.on, self.pend = a, on, []
    def copy(self):
        t = Stamp2(self.a, self.on)
        t.pend = list(self.pend)
        return t
    def init(self):
        if self.on:
            self.a(f"v_mov_b32 v{self.V}, 0")
    def mark(self, i, real=False):
        if self.on:
            n = len(self.pend)
            assert n < 10, self.pend
            self.a(f"{'s_memrealtime' if real else 's_memtime'} s[{80+2*n}:{81+2*n}]")
            self.pend.append(i)
    def fold(self):
        if self.on and self.pend:
            self.a("s_waitcnt lgkmcnt(0)")
            for n, i in enumerate(self.pend):
                self.a(f"v_writelane_b32 v{self.V}, s{80+2*n}, {i}")
            self.pend = []
    def flush(self, s_ws, s_wave):
        if not self.on:
            return
        a = self.a
        self.fold()
        a("s_waitcnt vmcnt(0)")
        import os
        if os.environ.get("ICP"):
            lab = a.label("ICP")
            a(f"""s_cmp_lg_u32 s{s_wave}, 4
s_cbranch_scc1 {lab}
s_cmp_eq_u32 s2, 53
s_cbranch_scc1 {lab}a
s_sleep 127
s_sleep 127
s_sleep 127
{lab}a:
s_sleep 60""")
            self.mark(1)
            a("s_mov_b32 s98, 0x12345678\n" * 1024)
            self.mark(60)
            self.fold()
            a(f"{lab}:")
        self.mark(62)
        self.mark(63, True)
        self.fold()
        a(f"""s_mov_b64 exec, -1
s_lshl_b32 s98, s2, 11
s_lshl_b32 s99, s{s_wave}, 8
s_add_u32 s98, s98, s99
s_add_u32 s98, s98, {WS_STAMP}
s_mov_b32 s{s_ws+2}, 0x10000000
v_mbcnt_lo_u32_b32 v2, -1, 0
v_mbcnt_hi_u32_b32 v2, -1, v2
v_lshlrev_b32 v2, 2, v2
buffer_store_dword v{self.V}, v2, s[{s_ws}:{s_ws+3}], s98 offen""")
        import os
        if os.environ.get("ENC"):
            lab = a.label("ENC")
            w, m = os.environ["ENC"].split(",")
            a(f"""s_cmp_lg_u32 s2, {w}
s_cbranch_scc1 {lab}
s_cmp_lg_u32 s{s_wave}, 4
s_cbranch_scc1 {lab}
v_readlane_b32 s92, v{self.V}, 1
v_readlane_b32 s93, v{self.V}, {m}
v_readlane_b32 s94, v{self.V}, 0
s_sub_u32 s92, s93, s92
s_lshr_b32 s92, s92, 3
s_min_u32 s92, s92, 12000
s_add_u32 s92, s92, 4000
s_mov_b32 s95, 100000
{lab}r:
s_memrealtime s[90:91]
s_waitcnt lgkmcnt(0)
s_sub_u32 s90, s90, s94
s_addk_i32 s95, -1
s_cmp_lt_i32 s95, 0
s_cbranch_scc1 {lab}
s_cmp_lt_u32 s90, s92
s_cbranch_scc1 {lab}r
{lab}:""")
        if os.environ.get("DBGW"):
            lab = a.label("DBG")
            a(f"""s_cmp_lg_u32 s2, {os.environ["DBGW"]}
s_cbranch_scc1 {lab}
s_cmp_lg_u32 s{s_wave}, 4
s_cbranch_scc1 {lab}
s_load_dwordx2 s[90:91], s[0:1], 72
v_readlane_b32 s92, v{self.V}, 1
v_mov_b32 v2, 0x1000
s_waitcnt lgkmcnt(0)""")
            srd(a, 84, 90, 256)
            a(f"v_subrev_u32 v3, s92, v{self.V}")
            for w, m in zip((2, 3, 6, 7, 10, 11, 14, 15), [int(x) for x in os.environ.get("DBGM", "3,6,11,14,17,18,22,62").split(",")]):
                a(f"s_mov_b32 s93, {4 * w}\nv_writelane_b32 v2, s93, {m}")
            a(f"s_nop 4\nbuffer_store_dword v3, v2, s[84:87], 0 offen\n{lab}:")
```

```python
from common import *
import os
R1 = 0
RING = 57344
SCR = RING + 57344
DEAD = SCR + 8192
P1_LDS = 163840
P1_VGPR = 256
E = os.environ.get
ROTMODE = 1
STORE_FLAGS = E("SF", " sc1")
PFL = [int(x) for x in E("P1_PFL", "9,16,23,30").split(",")]
PFROW = int(E("P1_PFROW", "0"))
WPF = int(E("P1_WPF", "13"))
NTP, NTX, NTW, NTO = [" nt" if c == "1" else "" for c in E("P1_NT", "1000")]
NTQ = E("P1_NTQ", "0000")
CPF = [int(x) for x in E("P1_CPF", "-1,-1,-1,-1").split(",")]
WSB = int(E("WSB", "0"), 0)
CSTAT = E("P1_CSTAT", "valu")
SCH = {"E": [int(x) for x in E("P1_SE", "17,28,32,37,38,52,46").split(",")],
       "L": [int(x) for x in E("P1_SL", "22,46,50,55,30,43,-1").split(",")]}
LATEF = int(E("P1_LATEF", "2"))
PSL = int(E("P1_PSL", "3"))
RTL = [int(x) for x in E("P1_RTL", "-1,-1,-1,-1").split(",")]
TOUCH = 0
assert max(CPF) < 0
WPX = [int(x) for x in E("P1_WPX", "-1,-1").split(",")]
FAE = int(E("P1_FAE", "0"))
STP = int(E("STP", "0"))
ICF = int(E("ICF", "1"))
WC0 = int(E("P1_WC0", "0"))
PS1 = dict(zip("EL", E("P1_PS1", "11")))
PMASK = int(E("P1_PMASK", "1"))

P_X, P_QKV, P_WO, P_WIN, P_SP, P_BSP, P_WOUT, P_DBG, P_WS, P_OUT = 64, 66, 68, 72, 74, 76, 78, 56, 58, 60
X = E("P1_X", "")

V_LANE = 1
V_X0, V_X1, V_DA, V_DB = 2, 3, 4, 5
XR, WR = 6, 10
V_L16, V_T0 = 14, 15
A0 = 16
V_S, V_Q = 224, 225
V_R, V_C0, V_C1, V_RI, V_L2E = 226, 227, 228, 229, 230
V_PF = 0
SEL = 232
XE, CE = 236, 240
T4 = 248
V_KO, V_L8, V_CSA, V_DUM = 252, 253, 254, 255

S_SP = 4
S_PFO, S_CNT, S_REC, S_FL = 8, 9, 10, 11
S_X, S_WA, S_WB, S_WS = 12, 16, 20, 24
S_RB, S_G, S_WAVE, S_RW, S_CH = 28, 29, 30, 31, 32
S_T0, S_T1, S_T2, S_T3 = 33, 34, 35, 36
S_PK = 37
S_XB = 38
S_L = 39
S_A64 = 43
S_MR, S_MW = 44, 45
S_XO = 46
S_O = 47
S_SA = 52
S_SPIN = 53
S_HI = 54
B64 = 64 * 2688

class K:
    def __init__(s, kinds):
        s.kinds = kinds
        s.nA = 2 if kinds[0] == "V" else 1
        s.WST = (2 + s.nA) * 1024
        s.SLOT = 8 * s.WST
        s.NSL = 98304 // s.SLOT
        s.DEPTH = s.NSL - 1
        s.ori = [k in "GLQ" for k in kinds]
        s.WB, s.CV, s.CSA = 160, 212, 220
        if s.nA == 1:
            s.ACC = [128, 144, 160]
            s.BR, s.TMP, s.R16, s.XS = 176, 196, A0, CE + 4
            s.stat = E("P1_ASTAT", "mix")
        else:
            s.ACC = [128, 144, 160, 128]
            s.BR, s.TMP, s.R16, s.XS = 192, 176, 176, 228
            s.stat = CSTAT
NBR = 5

class LG:
    def __init__(self, a):
        self.a, self.q = a, []
    def issue(self, tag, text):
        self.a(text)
        self.q.append(tag)
    def wait(self, *tags):
        last = -1
        for i, t in enumerate(self.q):
            if t in tags:
                last = i
        if last < 0:
            return
        n = min(15, len(self.q) - 1 - last)
        self.a(f"s_waitcnt lgkmcnt({n})")
        self.q = self.q[len(self.q) - n:] if n else []
    def all(self):
        if self.q:
            self.a("s_waitcnt lgkmcnt(0)")
        self.q = []
    def copy(self):
        v = LG(self.a)
        v.q = list(self.q)
        return v

def mf(acc, w, x, orient, first=False):
    c = "0" if first else f"v[{acc}:{acc+15}]"
    if orient:
        return f"v_mfma_f32_32x32x16_bf16 v[{acc}:{acc+15}], v[{w}:{w+3}], v[{x}:{x+3}], {c}"
    return f"v_mfma_f32_32x32x16_bf16 v[{acc}:{acc+15}], v[{x}:{x+3}], v[{w}:{w+3}], {c}"

def mf16(c, b, first):
    return f"v_mfma_f32_16x16x32_bf16 v[{c}:{c+3}], v[{SEL}:{SEL+3}], v[{b}:{b+3}], " + ("0" if first else f"v[{c}:{c+3}]")

def adv_pk(a):
    if ROTMODE != 1:
        a(f"""s_add_u32 s{S_PK}, s{S_PK}, 1
s_cmp_eq_u32 s{S_PK}, 7
s_cselect_b32 s{S_PK}, 0, s{S_PK}""")

def line_src(L):
    if L == 1:
        return V_DB, S_WB, str(B64)
    return V_DA, S_WA, f"s{S_A64}"

def w_off(a, L, dst):
    v, s, st = line_src(L)
    if ROTMODE == 1:
        return S_L + L
    a(f"s_mul_i32 s{dst}, s{S_PK}, {st}\ns_add_u32 s{dst}, s{dst}, s{S_L+L}")
    return dst

def w_adv(a, L):
    if ROTMODE == 1:
        a(f"s_add_u32 s{S_L+L}, s{S_L+L}, {line_src(L)[2]}")

def piece_dma(a, vm, k, j):
    sl = RING + (j % k.NSL) * k.SLOT
    def x0():
        a(f"s_add_u32 m0, s{S_MR}, {sl}")
        if ROTMODE == 1:
            a(f"s_add_u32 s{S_T0}, s{S_XB}, {128 * j}")
        else:
            a(f"s_lshl_b32 s{S_T0}, s{S_PK}, 7\ns_add_u32 s{S_T0}, s{S_T0}, s{S_XB}")
        vm.issue(f"p{j}", f"buffer_load_dwordx4 v{V_X0}, s[{S_X}:{S_X+3}], s{S_T0} offen{NTX} lds")
    def x1():
        vm.issue(f"p{j}", f"buffer_load_dwordx4 v{V_X1}, s[{S_X}:{S_X+3}], s{S_T0} offen offset:{(1+k.nA)*1024}{NTX} lds")
    def w(L):
        def f():
            v, s, _ = line_src(L)
            o = w_off(a, L, S_T1)
            vm.issue(f"p{j}", f"buffer_load_dwordx4 v{v}, s[{s}:{s+3}], s{o} offen offset:{(1+L)*1024}{NTW} lds")
            w_adv(a, L)
            if L == k.nA - 1:
                adv_pk(a)
        return f
    return [x0, x1] + [w(L) for L in range(k.nA)]

def line_dma(a, vm, L, b, base, tag):
    def f():
        v, s, _ = line_src(L)
        a(f"s_add_u32 m0, s{S_MW}, {base + b * 8192}")
        o = w_off(a, L, S_T1)
        if ROTMODE == 1:
            a("s_nop 0")
        vm.issue(tag, f"buffer_load_dwordx4 v{v}, s[{s}:{s+3}], s{o} offen{NTW} lds")
        w_adv(a, L)
        adv_pk(a)
    return f

def I(a, s):
    return lambda: a(s)

def spread(n, lst):
    return [lst[len(lst) * i // n: len(lst) * (i + 1) // n] for i in range(n)]

def ce_build(ce, src):
    return [f"v_add_f32 v{src}, v{src}, v{src+1}",
            f"v_add_f32 v{src+2}, v{src+2}, v{src+3}",
            f"v_add_f32 v{src}, v{src}, v{src+2}",
            f"v_and_b32 v{src+1}, 0xffff0000, v{src}",
            f"v_sub_f32 v{src}, v{src}, v{src+1}",
            f"v_cvt_pk_bf16_f32 v{ce}, v{src+1}, v{src}"]

def store_tile(a, vm, kind, src, so):
    tg = "st" + kind
    ws = f"s[{S_WS}:{S_WS+3}]"
    l = []
    if kind in "GL":
        l.append(lambda: vm.issue(tg, f"buffer_store_dwordx4 v[{src}:{src+3}], v{V_L16}, {ws}, s{so} offen{STORE_FLAGS}"))
        l.append(lambda: vm.issue(tg, f"buffer_store_dwordx4 v[{src+4}:{src+7}], v{V_L16}, {ws}, s{so} offen offset:1024{STORE_FLAGS}"))
    elif kind == "Q":
        for i in range(4):
            l.append(lambda i=i: vm.issue(tg, f"buffer_store_dwordx2 v[{src+2*i}:{src+2*i+1}], v{V_L8}, {ws}, s{so} offen offset:{512*i}{STORE_FLAGS}"))
    else:
        l.append(lambda: vm.issue(tg, f"buffer_store_dwordx4 v[{src}:{src+3}], v{V_KO}, {ws}, s{so} offen{STORE_FLAGS}"))
        def second():
            a(f"s_add_u32 s{so}, s{so}, 14336")
            vm.issue(tg, f"buffer_store_dwordx4 v[{src+4}:{src+7}], v{V_KO}, {ws}, s{so} offen{STORE_FLAGS}")
        l.append(second)
    return l

def epilogue(a, vm, k, kind, acc, so):
    T = k.TMP
    R = (lambda r: V_R) if kind in "GLQ" else (lambda r: k.R16 + r)
    s = []
    for h in range(2):
        rs = range(8 * h, 8 * h + 8)
        if kind in "GL":
            s += [f"v_mul_f32 v{T+r}, v{acc+r}, v{acc+r}" for r in rs]
            s += [f"v_fma_f32 v{T+r}, v{T+r}, v{V_C1}, v{V_C0}" for r in rs]
            s += [f"v_mul_f32 v{T+r}, v{T+r}, v{acc+r}" for r in rs]
            s += [f"v_exp_f32 v{T+r}, v{T+r}" for r in rs]
            s += [f"v_fma_f32 v{T+r}, v{T+r}, v{V_RI}, v{V_RI}" for r in rs]
            s += [f"v_rcp_f32 v{T+r}, v{T+r}" for r in rs]
            s += [f"v_mul_f32 v{acc+r}, v{T+r}, v{acc+r}" for r in rs]
            for r in (rs if kind == "G" else []):
                s.append(f"v_add_f32 v{V_S}, v{V_S}, v{acc+r}" if r else f"v_mov_b32 v{V_S}, v{acc}")
                s.append(f"v_fmac_f32 v{V_Q}, v{acc+r}, v{acc+r}" if r else f"v_mul_f32 v{V_Q}, v{acc}, v{acc}")
        elif kind in "QK":
            s += [f"v_fmaak_f32 v{acc+r}, v{acc+r}, v{R(r)}, {f32(1e-6)}" for r in rs]
            s += [f"v_fmaak_f32 v{T+r}, v{acc+r}, v{V_L2E}, {f32(-1e-6*LOG2E)}" for r in rs]
            s += [f"v_exp_f32_e64 v{T+r}, v{T+r} clamp" for r in rs]
            s += [f"v_max_f32 v{acc+r}, {f32(1e-6)}, v{acc+r}" for r in rs]
            s += [f"v_add_f32 v{acc+r}, v{acc+r}, v{T+r}" for r in rs]
        else:
            s += [f"v_mul_f32 v{acc+r}, v{acc+r}, v{R(r)}" for r in rs]
    l = [I(a, x) for x in s]
    if kind != "G":
        l += [I(a, f"v_cvt_pk_bf16_f32 v{k.CV+r}, v{acc+2*r}, v{acc+2*r+1}") for r in range(8)]
        if kind != "L":
            l += store_tile(a, vm, kind, k.CV, so)
    return l

def phase_a(a, vm, lg, k, st, tail_fill):
    nA = k.nA
    late = [line_dma(a, vm, nA, b, R1, "wa" if b < 3 else "wb") for b in range(7)]
    lsp = spread(k.DEPTH, late) if k.DEPTH == 3 else [late[:4], late[4:]]
    if k.DEPTH == 3:
        lsp = [late[:3], late[3:5], late[5:]]
    XS = k.XS
    for j in range(8):
        main, reads, dots, dmas, extra = [], [], [], [], []
        if j < 7:
            vm.wait(f"p{j}")
            a("s_barrier")
            if j in (0, 3, 6):
                st.mark(3 + j // 3)
            so = (j % k.NSL) * k.SLOT
            for i in range(4):
                x = A0 + 16 * j + 4 * i
                xr, xo = (XR + i, so) if so < 65536 else (None, None)
                reads.append(("x", x, i, so))
                for L in range(nA):
                    b = k.WB + 16 * nA * (j & 1) + 16 * L + 4 * i
                    reads.append(("w", b, i, so + L * 1024))
                    reads.append(("w", b + 2, i, so + L * 1024 + 512))
            def rd(t, r, i, off):
                def f():
                    if t == "x":
                        lg.issue("a", f"ds_read_b128 v[{r}:{r+3}], v{XR+i} offset:{off - hi(off)}")
                    else:
                        lg.issue("a", f"ds_read_b64_tr_b16 v[{r}:{r+1}], v{WR+i} offset:{off - hi(off)}")
                return f
            hi = lambda off: 49152 if so >= 49152 else 0
            prev = ((j - 1) % k.NSL) * k.SLOT if j else 0
            if (prev >= 49152) != (so >= 49152):
                op = "v_add_u32" if so >= 49152 else "v_subrev_u32"
                for r in list(range(XR, XR + 4)) + list(range(WR, WR + 4)):
                    a(f"{op} v{r}, 49152, v{r}")
            reads = [rd(*r) for r in reads]
            if j + k.DEPTH < 7:
                dmas = piece_dma(a, vm, k, j + k.DEPTH)
            else:
                dmas = lsp[j + k.DEPTH - 7]
            if j == k.DEPTH and k.kinds[0] == "V":
                def flag():
                    a(f"s_cmp_eq_u32 s{S_WAVE}, 7\ns_cselect_b64 exec, 1, 0")
                    a(f"buffer_store_dword v{V_DUM}, v{XE+1}, s[{S_SP}:{S_SP+3}], s{S_CNT} offen sc1")
                    a(f"s_mov_b64 exec, -1")
                assert "clr" not in vm.q
                dmas = dmas + [flag]
        else:
            vm.wait("wa")
            a("s_barrier")
            reads = tail_fill
        if j > 0:
            p = j - 1
            for i in range(4):
                x = A0 + 16 * p + 4 * i
                for L in range(nA):
                    b = k.WB + 16 * nA * (p & 1) + 16 * L + 4 * i
                    main.append(I(a, mf(k.ACC[L], b, x, k.ori[L], p == 0 and i == 0)))
            for L in range(nA):
                extra.append(I(a, mf16(CE + 4 * L, k.WB + 16 * nA * (p & 1) + 16 * L, p == 0)))
            if k.stat == "mix":
                for i in range(2):
                    extra.append(I(a, mf16(XS, A0 + 16 * p + 4 * i, p == 0 and i == 0)))
            for d in range(8):
                x = A0 + 16 * p + d
                t = T4 + 2 * (d & 1)
                dots.append(I(a, f"v_lshlrev_b32 v{t}, 16, v{x}"))
                dots.append(I(a, f"v_and_b32 v{t+1}, 0xffff0000, v{x}"))
                if k.stat != "mix":
                    dots.append(I(a, f"v_add_f32 v{V_S}, v{V_S}, v{t}"))
                dots.append(I(a, f"v_fmac_f32 v{V_Q}, v{t}, v{t}"))
                if k.stat != "mix":
                    dots.append(I(a, f"v_add_f32 v{V_R}, v{V_R}, v{t+1}"))
                dots.append(I(a, f"v_fmac_f32 v{V_C0}, v{t+1}, v{t+1}"))
        if main:
            n = len(main)
            rs, ds, ms, es = spread(n, reads), spread(n, dots), spread(n, dmas), spread(n, extra)
            for g in range(n):
                main[g]()
                for f in rs[g] + ms[g] + ds[g] + es[g]:
                    f()
        else:
            for f in reads + dmas:
                f()
        if j < 7:
            lg.all()
    return XS

def kind_body(a, vm0, k, st, lab, hook_main, hook_att):
    vm = Vm = vm0.copy()
    lg = LG(a)
    kinds, ori, nA = k.kinds, k.ori, k.nA
    G = kinds[0] == "G"
    T = k.TMP
    D = 4
    dbg = f"s[{S_SP}:{S_SP+3}]"
    ws = f"s[{S_WS}:{S_WS+3}]"
    nl = 2 if nA == 1 else 1
    NS = 28 * nl
    def rd(p):
        b = k.BR + 4 * (p % NBR)
        off = ((p % 28) >> 2) * 8192
        def f0():
            if p == 28:
                for i in range(4):
                    a(f"v_add_u32 v{WR+i}, {RING}, v{WR+i}")
            lg.issue(f"r{p}", f"ds_read_b64_tr_b16 v[{b}:{b+1}], v{WR + (p & 3)} offset:{off}")
        return [f0, lambda: lg.issue(f"r{p}", f"ds_read_b64_tr_b16 v[{b+2}:{b+3}], v{WR + (p & 3)} offset:{off+512}")]
    def wr_fix():
        for i in range(4):
            a(f"s_xor_b32 s{S_T2}, s{S_XO}, {i}\ns_lshl_b32 s{S_T2}, s{S_T2}, 11")
            a(f"v_add_u32 v{WR+i}, s{S_T2}, v{V_T0}")
    tail = [wr_fix] + [f for p in range(D) for f in rd(p)]
    XS = phase_a(a, vm, lg, k, st, tail)
    st.mark(6)
    if not G:
        return kind_stream(a, vm, lg, k, st, lab, hook_main, hook_att, rd, XS, "E")
    a(f"""s_and_b32 s{S_T0}, s{S_RB}, 7
s_cmp_ge_u32 s{S_T0}, {LATEF}
s_cbranch_scc1 {lab}L""")
    sv = list(vm.q), list(lg.q), list(st.pend)
    kind_stream(a, vm, lg, k, st, lab, hook_main, hook_att, rd, XS, "E")
    a(f"{lab}L:")
    vm.q, lg.q, st.pend = sv
    kind_stream(a, vm, lg, k, st, lab + "L", hook_main, hook_att, rd, XS, "L")

def kind_stream(a, vm, lg, k, st, lab, hook_main, hook_att, rd, XS, cls):
    kinds, ori, nA = k.kinds, k.ori, k.nA
    G = kinds[0] == "G"
    T = k.TMP
    D = 4
    dbg = f"s[{S_SP}:{S_SP+3}]"
    ws = f"s[{S_WS}:{S_WS+3}]"
    nl = 2 if nA == 1 else 1
    NS = 28 * nl
    F0_END, POLL_AT, ZF0, ZF1, F1_BEG, F1_END, FB = SCH[cls]
    pre = []
    if k.stat == "mix":
        pre.append(I(a, f"v_add_f32 v{XS+1}, v{V_Q}, v{V_C0}"))
        xs = XS
    else:
        pre.append(I(a, f"v_add_f32 v{V_S}, v{V_S}, v{V_R}\nv_add_f32 v{V_Q}, v{V_Q}, v{V_C0}"))
        xs = V_S
    pre.append(I(a, f"""s_lshl_b32 s{S_T0}, s{S_WAVE}, 9
s_add_u32 s{S_T0}, s{S_T0}, {SCR + 4096}
v_add_u32 v{V_T0}, s{S_T0}, v{V_L8}"""))
    pre.append(lambda: lg.issue("w", f"ds_write_b64 v{V_T0}, v[{xs}:{xs+1}]"))
    for L in range(nA):
        pre.append(lambda L=L: lg.issue("w", f"ds_write_b32 v{V_CSA}, v{CE+4*L} offset:{L*2048}"))
    pre.append(I(a, f"v_xor_b32 v{V_T0}, 2048, v{V_T0}"))
    def bar(*vtags):
        def f():
            vm.wait(*vtags)
            lg.wait("w")
            a("s_barrier")
        return f
    F0 = [lambda: lg.issue("x", f"ds_read_b64 v[{T}:{T+1}], v{V_T0}"),
          I(a, f"v_and_b32 v{V_T0}, 0xfffffff0, v{V_CSA}")]
    for L in range(nA):
        F0.append(lambda L=L: lg.issue("c", f"ds_read_b128 v[{T+4+4*L}:{T+7+4*L}], v{V_T0} offset:{L*2048}"))
    F0.append(GAP)
    F0.append(lambda: lg.wait("x"))
    F0 += [I(a, s) for s in f"""v_add_f32 v{V_S}, v{xs}, v{T}
v_add_f32 v{V_Q}, v{xs+1}, v{T+1}
v_mov_b32 v{T}, v{V_S}
v_mov_b32 v{T+1}, v{V_Q}
v_mov_b32 v{CE+1}, 0
v_mov_b32 v{CE+2}, 0
v_permlane32_swap_b32 v{T+1}, v{V_Q}""".split("\n")]
    if k.stat != "mix":
        F0 += [I(a, f"v_permlane32_swap_b32 v{T}, v{V_S}"), I(a, f"v_add_f32 v{V_S}, v{V_S}, v{T}")]
    F0 += [I(a, s) for s in f"""v_add_f32 v{V_Q}, v{V_Q}, v{T+1}
v_mul_f32 v{V_S}, {f32(-1/448)}, v{V_S}
v_mul_f32 v{V_Q}, {f32(1/448)}, v{V_Q}
v_and_b32 v{T}, 0xffff0000, v{V_S}
v_fma_f32 v{V_Q}, -v{V_S}, v{V_S}, v{V_Q}
v_sub_f32 v{T+1}, v{V_S}, v{T}
v_max_f32 v{V_Q}, 0, v{V_Q}
v_cndmask_b32 v{T}, v{T}, v{T+1}, s[{S_HI}:{S_HI+1}]
v_add_f32 v{V_Q}, {f32(1e-5)}, v{V_Q}
v_cvt_pk_bf16_f32 v{XE}, v{T}, v{T}
v_rsq_f32 v{V_R}, v{V_Q}
v_mov_b32 v{CE+3}, 0""".split("\n")]
    if nA == 2:
        F0 += [I(a, f"v_mov_b32 v{CE+r}, 0") for r in (5, 6, 7)]
    F0.append(lambda: lg.wait("c"))
    for L in range(nA):
        F0 += [I(a, s) for s in ce_build(CE + 4 * L, T + 4 + 4 * L)]
    def r16(_=None):
        t0, t1 = XR, XR + 1
        l = [I(a, f"""s_lshl_b32 s{S_T2}, s{S_WAVE}, 8
s_add_u32 s{S_T2}, s{S_T2}, {DEAD}
v_lshl_add_u32 v{t0}, v{V_LANE}, 2, s{S_T2}"""),
             lambda: lg.issue("q", f"ds_write_b32 v{t0}, v{V_R}"),
             I(a, f"v_lshrrev_b32 v{t1}, 5, v{V_LANE}"),
             I(a, f"v_lshl_add_u32 v{t1}, v{t1}, 4, s{S_T2}")]
        for q in range(4):
            l.append(lambda q=q: lg.issue("q", f"ds_read_b128 v[{k.R16+4*q}:{k.R16+4*q+3}], v{t1} offset:{32*q}"))
        return l
    if G:
        F0 += [I(a, s) for s in f"""v_mul_f32 v{V_RI}, v{V_Q}, v{V_R}
v_mul_f32 v{V_C0}, {f32(GELU_C0)}, v{V_R}""".split("\n")]
    else:
        F0 += r16()[:2]
    for L in range(nA):
        F0.append(I(a, mf(k.ACC[L], CE + 4 * L, XE, ori[L])))
    if G:
        F0 += [I(a, s) for s in f"""v_mul_f32 v{V_C1}, v{V_R}, v{V_R}
v_mul_f32 v{V_C1}, v{V_C1}, v{V_R}
v_mul_f32 v{V_C1}, {f32(GELU_C1)}, v{V_C1}""".split("\n")]
    else:
        F0 += r16()[2:]
    F0 += [GAP, GAP, GAP]
    if not G:
        F0.append(lambda: lg.wait("q"))
    F0 += epilogue(a, vm, k, kinds[0], k.ACC[0], S_O)
    if nA == 2:
        F0 += epilogue(a, vm, k, kinds[1], k.ACC[1], S_O + 1)
    def fix(acc, orient, slot):
        return ([lambda: lg.issue("c", f"ds_read_b128 v[{T4}:{T4+3}], v{V_T0} offset:{slot*2048}"), GAP, lambda: lg.wait("c")] +
                [I(a, s) for s in ce_build(CE, T4)] + [I(a, "s_nop 1"), I(a, mf(acc, CE, XE, orient))])
    ev = {}
    fl = []
    NPT = len(PFL)
    def touch(i, NTP=NTP):
        def f():
            if PFROW:
                vm.issue("pf", f"buffer_load_dword v{V_DUM}, v{V_PF}, s[{S_X}:{S_X+3}], s{S_PFO} offen{NTP}")
                a(f"s_add_u32 s{S_PFO}, s{S_PFO}, {4 * 4096 // NPT}")
            else:
                vm.issue("pf", f"buffer_load_dword v{V_DUM}, v{V_PF}, s[{S_X}:{S_X+3}], s{S_PFO} offen offset:{i * 2048 // NPT}{NTP}")
        return f
    def wtouch():
        a(f"""s_mul_i32 s{S_T0}, s{S_PK}, 392
s_lshl_b32 s{S_T1}, s{S_T0}, 1""")
        vm.issue("pf", f"buffer_load_dword v{V_DUM}, v{V_L8}, s[{S_WA}:{S_WA+3}], s{S_T0} offen{NTO}")
        vm.issue("pf", f"buffer_load_dword v{V_DUM}, v{V_L16}, s[{S_WB}:{S_WB+3}], s{S_T1} offen{NTO}")
    def xtouch(which):
        def f():
            a(f"""s_and_b32 s{S_T0}, s{S_PK}, 0xfffffc7f
s_min_u32 s{S_T0}, s{S_T0}, 0x1000
s_mul_i32 s{S_T0}, s{S_T0}, {3136 << which}
v_lshlrev_b32 v{V_PF}, {6 + which}, v{V_LANE}""")
            assert min(WPX) > max(PFL + RTL)
            vm.issue("pf", f"buffer_load_dword v{V_DUM}, v{V_PF}, s[{(S_WA, S_WB)[which]}:{(S_WA, S_WB)[which]+3}], s{S_T0} offen")
        return f
    def flag_check():
        vm.wait("cnt")
        a(f"""{lab}_CR:
v_cmp_eq_u32 vcc, 0, v{V_X0}
s_and_b64 vcc, vcc, s[{S_L+1}:{S_L+2}]
s_cbranch_vccnz {lab}_CW
{lab}_CX:""")
    def cnt_load(f):
        a(f"v_lshrrev_b32 v{V_X0}, 1, v{V_L8}")
        f(f"buffer_load_dword v{V_X0}, v{V_X0}, {dbg}, 0 offen sc1")
    ool = [f"""{lab}_CW:
s_addk_i32 s{S_SPIN}, -1
s_cmp_lt_i32 s{S_SPIN}, 0
s_cbranch_scc1 {lab}_CX""", lambda: cnt_load(a), f"""s_waitcnt vmcnt(0)
s_branch {lab}_CR"""]
    lateL = nA + 1
    dm = [line_dma(a, vm, lateL, b, RING, "wc") for b in range(7)]
    XA = XR + 2
    if G:
        F0 += [I(a, f"v_mov_b32 v{T}, v{V_S}"), I(a, f"v_mov_b32 v{T+1}, v{V_Q}"),
               I(a, f"s_lshl_b32 s{S_T0}, s{S_WAVE}, 9\ns_add_u32 s{S_T0}, s{S_T0}, {SCR + 4096}\nv_add_u32 v{XA}, s{S_T0}, v{V_L8}"),
               I(a, f"v_mov_b32 v{V_C0}, 1"),
               I(a, f"v_permlane32_swap_b32 v{T}, v{V_S}"), I(a, f"v_permlane32_swap_b32 v{T+1}, v{V_Q}"),
               I(a, f"v_add_f32 v{V_S}, v{V_S}, v{T}"), I(a, f"v_add_f32 v{V_Q}, v{V_Q}, v{T+1}"),
               lambda: lg.issue("w", f"ds_write_b64 v{XA}, v[{V_S}:{V_Q}]"),
               I(a, f"v_xor_b32 v{XA}, 2048, v{XA}")]
        def rec_store():
            a(f"""s_lshl_b32 s{S_T0}, s{S_CH}, 4
s_lshl_b32 exec_lo, 0xffff, s{S_T0}
s_mov_b32 exec_hi, 0""")
            vm.issue("rec", f"buffer_store_dwordx2 v[{V_S}:{V_Q}], v{V_L8}, {ws}, s{S_REC} offen sc1")
            a(f"s_mov_b64 exec, -1\ns_and_b32 s{S_REC}, s{S_REC}, 0xfffff000")
        FR_ = [lambda: lg.issue("x", f"ds_read_b64 v[{T}:{T+1}], v{XA}"), flag_check, GAP, lambda: lg.wait("x"),
               I(a, f"v_add_f32 v{V_S}, v{V_S}, v{T}"), I(a, f"v_add_f32 v{V_Q}, v{V_Q}, v{T+1}"), rec_store]
    else:
        F0.append(I(a, f"v_mov_b32 v{V_C0}, 1"))
    dm = [lambda: cnt_load(lambda t: vm.issue("cnt", t))] + dm
    ev[0] = [lambda: srd(a, S_X, P_SP, 2048 * 4096)]
    def srdfix():
        if G:
            srd(a, S_WA, P_WO, 448 * 896)
            srd(a, S_WB, P_WOUT, 896 * 896)
        a(f"""s_mov_b32 s{S_L+1}, 0x33333333
s_mov_b32 s{S_L+2}, 0x33333333""")
    ev[1] = pre
    ev[3] = [bar()]
    fl.append((WC0, 8, dm + [srdfix]))
    if cls == "L":
        for i, p in enumerate(PFL):
            if p >= 0:
                fl.append((p, p, [touch(i, " nt" if NTQ[i] == "1" else "")]))
            if RTL[i] >= 0:
                fl.append((RTL[i], RTL[i], [touch(i, " sc1")]))
        if WPF >= 0:
            fl.append((WPF, WPF, [wtouch]))
        for w in range(2):
            if WPX[w] >= 0:
                fl.append((WPX[w], WPX[w], [xtouch(w)]))
    ctl = []
    if not G:
        for i, p in enumerate(CPF):
            t = lambda i=i: vm.issue("pf", f"buffer_load_dword v{V_DUM}, v{V_PF}, s[{S_X}:{S_X+3}], s{S_PFO} offen offset:{i * 512}")
            if 0 <= p < 28:
                fl.append((p, p, [t]))
            elif p >= 28:
                ctl.append(t)
    ev[12 - D] = [bar("wb")]
    PL = [V_X0, V_DA, XR, XR + 2, CE + 4, CE + 6, V_C1]
    def poll_issue(v):
        for i in range(7):
            t = f"buffer_load_dwordx2 v[{PL[i]}:{PL[i]+1}], v{V_L8}, {ws}, s{S_REC} offen offset:{i*512}"
            if v:
                v.issue("pl", t + (" sc1" if PS1[cls] == "1" else ""))
            elif PMASK:
                a(f"""v_cmp_eq_u32 vcc, -1, v{PL[i]+1}
s_cbranch_vccz {lab}_PS{i}
s_mov_b64 exec, vcc
{t} sc1
s_mov_b64 exec, -1
{lab}_PS{i}:""")
            else:
                a(t + " sc1")
    if nl == 2:
        fl.append((3, F0_END, F0))
        assert F0_END < 28 - D
        FRB = F0_END + 1 if F0_END < 20 else 28 - D
        ev[FRB] = [bar()]
        ev[28 - D] = [bar("wc")]
        fl.append((FRB, FRB + 1, FR_))
        ev[28] = [lambda: lg.issue("w", f"ds_write_b32 v{V_CSA}, v{k.CSA} offset:2048")]
        ev[30] = [bar()]
        F1 = fix(k.ACC[1], ori[1], 1)
        if not ori[1]:
            rr = r16(V_X0)
            F1 = rr[:4] + F1 + [("min", 33)] + rr[4:]
        F1 += [GAP, GAP, GAP]
        if not ori[1]:
            F1.append(lambda: lg.wait("q"))
        F1 += epilogue(a, vm, k, kinds[1], k.ACC[1], S_O + 1)
        fl.append((F1_BEG, F1_END, F1))
        assert POLL_AT >= F1_BEG + 6 or F1_BEG > ZF1
        assert F1_BEG >= 30 and POLL_AT > F0_END + 2
        ev[POLL_AT] = ev.get(POLL_AT, []) + [lambda: poll_issue(vm)]
        if STP:
            ev[24] = [lambda: st.fold(), lambda: st.mark(54)] + ev[24] + [lambda: st.mark(55)]
            ev[POLL_AT] = [lambda: st.mark(56)] + ev[POLL_AT]
            F1.append(lambda: st.mark(61))
        def zflag():
            a(f"v_lshlrev_b32 v{V_S}, 7, v{V_LANE}")
            vm.wait("stG")
            a(f"""s_barrier
s_cmp_eq_u32 s{S_WAVE}, 0
s_cselect_b64 exec, 15, 0
buffer_store_dword v{V_C0}, v{V_S}, {ws}, s{S_CNT} offen sc1
s_mov_b64 exec, -1""")
        if FB >= 0:
            assert ZF1 < FB < 56
            ev[FB] = [zflag]
        def poll_check():
            if STP: st.mark(57)
            vm.wait("pl")
            if STP: st.mark(58)
            a(f"""{lab}_PR:
v_max3_u32 v{V_S}, v{PL[0]+1}, v{PL[1]+1}, v{PL[2]+1}
v_max3_u32 v{V_Q}, v{PL[3]+1}, v{PL[4]+1}, v{PL[5]+1}
v_max3_u32 v{V_S}, v{V_S}, v{V_Q}, v{PL[6]+1}
v_cmp_eq_u32 vcc, -1, v{V_S}
s_cbranch_vccnz {lab}_PW
{lab}_PX:""")
        ool += [f"""{lab}_PW:
s_sleep {PSL}
s_addk_i32 s{S_SPIN}, -1
s_cmp_lt_i32 s{S_SPIN}, 0
s_cbranch_scc1 {lab}_PX""", lambda: poll_issue(None), f"s_waitcnt vmcnt(0)\ns_branch {lab}_PR"]
        ZF = [poll_check] + ([lambda: st.mark(59)] if STP else [])
        for x, y in ((0, 1), (2, 3), (4, 5), (0, 2), (4, 6), (0, 4)):
            for h in range(2):
                ZF.append(I(a, f"v_add_f32 v{PL[x]+h}, v{PL[x]+h}, v{PL[y]+h}"))
        p0, p1 = PL[0], PL[1]
        z = k.ACC[0]
        ZF += [I(a, t) for t in f"""v_mov_b32 v{p1}, v{p0}
v_mov_b32 v{p1+1}, v{p0+1}
s_nop 0
v_permlane32_swap_b32 v{p1}, v{p0}
v_permlane32_swap_b32 v{p1+1}, v{p0+1}
v_add_f32 v{p0}, v{p0}, v{p1}
v_add_f32 v{p0+1}, v{p0+1}, v{p1+1}
v_mul_f32 v{p0}, {f32(-1/896)}, v{p0}
v_mul_f32 v{p0+1}, {f32(1/896)}, v{p0+1}
v_fma_f32 v{p0+1}, -v{p0}, v{p0}, v{p0+1}
v_max_f32 v{p0+1}, 0, v{p0+1}
v_add_f32 v{p0+1}, {f32(1e-5)}, v{p0+1}
v_rsq_f32 v{p0+1}, v{p0+1}
s_nop 0
v_mul_f32 v{p0}, v{p0}, v{p0+1}""".split("\n")]
        stz = store_tile(a, vm, "G", z, S_O)
        for hf in range(2):
            ZF += [I(a, f"v_fma_f32 v{z+r}, v{z+r}, v{p0+1}, v{p0}") for r in range(8 * hf, 8 * hf + 8)]
            ZF += [I(a, f"v_cvt_pk_bf16_f32 v{z+r}, v{z+2*r}, v{z+2*r+1}") for r in range(4 * hf, 4 * hf + 4)]
            ZF.append(stz[hf])
        if STP:
            ZF.append(lambda: st.mark(60))
        fl.append((ZF0, ZF1, ZF))
    else:
        fl.append((3, 27, F0))
    pos = [0] * len(fl)
    for p in range(NS):
        for f in ev.get(p, []):
            f()
        if p in (14, 28, 42):
            st.mark(7 + (p - 14) // 14)
        lg.wait(f"r{p}")
        L = nA + p // 28
        b = k.BR + 4 * (p % NBR)
        a(mf(k.ACC[L], b, A0 + 4 * (p % 28), ori[L], p % 28 == 0))
        if p + D < NS:
            for f in rd(p + D):
                f()
        for n, (s0, s1, lst) in enumerate(fl):
            if p < s0:
                continue
            left = len(lst) - pos[n]
            cnt = left if p >= s1 else (left + (s1 - p)) // (s1 - p + 1)
            while cnt > 0 and pos[n] < len(lst):
                f = lst[pos[n]]
                if isinstance(f, tuple):
                    if p < f[1]:
                        break
                    pos[n] += 1
                    continue
                pos[n] += 1
                if f is GAP:
                    break
                f()
                cnt -= 1
            if p == F0_END and lst is F0 and nl == 2:
                assert pos[n] == len(lst)
        if (p & 3) == 0:
            a(mf16(k.CSA, b, p % 28 == 0))
    for n, (s0, s1, lst) in enumerate(fl):
        assert pos[n] == len(lst), (n, pos[n], len(lst))
    st.fold()
    st.mark(10)
    def run(lst):
        for f in lst:
            if f is not GAP:
                f()
    LL = nA + nl - 1
    a(f"ds_write_b32 v{V_CSA}, v{k.CSA}")
    if G:
        if FAE:
            vm.wait("stQ", "stK", *(["stG"] if FAE > 1 else []))
        vm.q = ["st1"]
        if lab == "P1_A":
            a("P1_GT:")
            def last(part, pre=""):
                if part == 0:
                    a("s_waitcnt lgkmcnt(0)\n" + pre + "\ns_barrier")
                    lg.q = []
                    st.mark(11)
                else:
                    run(fix(k.ACC[LL], ori[LL], 0))
                    a(f"""v_rcp_f32 v{V_RI}, v{V_R}
v_mul_f32 v{V_C1}, v{V_R}, v{V_R}
v_mul_f32 v{V_C0}, {f32(GELU_C0)}, v{V_R}
v_mul_f32 v{V_C1}, v{V_C1}, v{V_R}
v_mul_f32 v{V_C1}, {f32(GELU_C1)}, v{V_C1}""")
                    return epilogue(a, vm, k, kinds[LL], k.ACC[LL], S_O + LL)
            last.store = lambda v: store_tile(a, v, "L", k.CV, S_O + LL)
            last.cv = k.CV
            hook_main(a, vm, st, last)
        else:
            st.pend = []
            a("s_branch P1_GT")
    else:
        vm.wait("wc")
        a("s_waitcnt lgkmcnt(0)\ns_barrier")
        lg.q = []
        st.mark(11)
        a(f"s_cmp_eq_u32 s{S_CH}, 0\ns_cbranch_scc0 {lab}_CH1")
        v0, l0 = vm.q[:], lg.q[:]
        run(fix(k.ACC[2], ori[2], 0))
        a("s_nop 11")
        run(epilogue(a, vm, k, kinds[2], k.ACC[2], S_O + 2))
        a(f"s_barrier\ns_branch {lab}_J")
        a(f"{lab}_CH1:")
        vm.q, lg.q = v0, l0
        for i in range(4):
            a(f"v_add_u32 v{WR+i}, {RING}, v{WR+i}")
            a(f"v_xor_b32 v{WR+i}, s{S_T3}, v{WR+i}")
        for p in range(D):
            run(rd(p))
        F = fix(k.ACC[2], ori[2], 0) + [GAP, GAP, GAP] + epilogue(a, vm, k, kinds[2], k.ACC[2], S_O + 2)
        q = 0
        for p in range(28):
            lg.wait(f"r{p}")
            b = k.BR + 4 * (p % NBR)
            a(mf(k.ACC[3], b, A0 + 4 * p, ori[3], p == 0))
            if p + D < 28:
                run(rd(p + D))
            for c in range(3):
                if q < len(F):
                    f = F[q]; q += 1
                    if f is GAP: break
                    f()
            if (p & 3) == 0:
                a(mf16(k.CSA, b, p == 0))
        assert q == len(F)
        a(f"ds_write_b32 v{V_CSA}, v{k.CSA} offset:2048\ns_waitcnt lgkmcnt(0)\ns_barrier")
        lg.q = []
        run(fix(k.ACC[3], ori[3], 1))
        a("s_nop 11")
        run(epilogue(a, vm, k, kinds[3], k.ACC[3], S_O + 3))
        a(f"{lab}_J:")
        vm.q = ["stV"]
        flag_check()
        hook_att(a, vm, st, ctl)
    for o in ool:
        if callable(o):
            o()
        else:
            a(o)

TAILQ = []
GAP = object()

def kind_start(a, vm, k, st):
    nA = k.nA
    a(f"""s_mul_i32 s{S_MR}, s{S_WAVE}, {k.WST}
v_add_u32 v{V_X1}, {8*896 - (1+nA)*1024}, v{V_X1}""")
    if nA == 1:
        a(f"""s_mul_i32 s{S_T2}, s{S_WAVE}, {8*3584}
s_lshl_b32 s{S_T3}, s{S_G}, 7
s_add_u32 s{S_L+2}, s{S_T2}, s{S_T3}
s_add_u32 s{S_L}, s{S_L+2}, {1792 - 1024}
s_add_u32 s{S_L+1}, s{S_T1}, s{S_T3}
s_mov_b32 s{S_A64}, {64*3584}
v_mul_u32_u24 v{V_DA}, 3584, v{T4}
v_add_u32 v{V_DA}, v{V_DA}, v{T4+2}
s_waitcnt lgkmcnt(0)""")
        srd(a, S_WA, P_WIN, 448 * 3584)
    else:
        a(f"""s_and_b32 s{S_T3}, s{S_G}, 1
s_lshl_b32 s{S_T3}, s{S_T3}, 9
s_add_u32 s{S_T3}, s{S_T3}, s{S_T1}
s_add_u32 s{S_L}, s{S_T3}, {1792 - 1024}
s_add_u32 s{S_L+1}, s{S_T3}, {1792 + 256 - 2048}
s_add_u32 s{S_L+2}, s{S_T3}, {1792 + 128}
s_add_u32 s{S_L+3}, s{S_T1}, {1792 + 384}
s_mov_b32 s{S_A64}, {B64}
v_mov_b32 v{V_DA}, v{V_DB}
s_waitcnt lgkmcnt(0)""")
        srd(a, S_WA, P_QKV, 448 * 2688)
        srd(a, S_WB, P_QKV, 448 * 2688)
    srd(a, S_X, P_X, 2048 * 896)
    st.mark(2)
    for j in range(k.DEPTH):
        for f in piece_dma(a, vm, k, j):
            f()
        if j == 0:
            lab = a.label("P1_T")
            strd = 3584 if nA == 1 else 2688
            if TOUCH:
                a(f"""s_and_b32 s{S_T2}, s{S_RB}, 3
s_mul_i32 s{S_T2}, s{S_T2}, 112
s_and_b32 s{S_T3}, s{S_WAVE}, 1
s_lshl_b32 s{S_T3}, s{S_T3}, 6
s_add_u32 s{S_T2}, s{S_T2}, s{S_T3}
s_lshl_b32 s{S_T3}, s{S_WAVE}, 3
s_sub_u32 s{S_T2}, s{S_T2}, s{S_T3}
s_mul_i32 s{S_T2}, s{S_T2}, {strd}
s_add_u32 s{S_T2}, s{S_T2}, s{S_L}
s_and_b32 s{S_T3}, s{S_WAVE}, {2 * (nA - 1)}
s_lshl_b32 s{S_T3}, s{S_T3}, 7
s_add_u32 s{S_T2}, s{S_T2}, s{S_T3}
s_add_u32 s{S_T2}, s{S_T2}, {(1024 - 64 * strd) & 0xffffffff}
v_mul_u32_u24 v{XR}, {strd}, v{V_LANE}
s_lshl_b32 s{S_T3}, s{S_RB}, 2
s_add_u32 s{S_T3}, s{S_T3}, s{S_PK}
s_mul_i32 s{S_T3}, s{S_T3}, {32*896}
s_lshl_b32 s{S_T1}, s{S_WAVE}, 13
s_add_u32 s{S_T3}, s{S_T3}, s{S_T1}
v_lshlrev_b32 v{XR+1}, 7, v{V_LANE}""")
            if PBAR:
                a("s_barrier")
            if TOUCH:
                a(f"""s_cmp_ge_u32 s{S_WAVE}, 4
s_cbranch_scc1 {lab}w
buffer_load_dword v{A0+96}, v{XR+1}, s[{S_X}:{S_X+3}], s{S_T3} offen
s_branch {lab}e
{lab}w:""")
                vm.issue("t0", f"""buffer_load_dword v{A0+96}, v{XR}, s[{S_WA}:{S_WA+3}], s{S_T2} offen
{lab}e:""")
    if nA == 1:
        srd(a, S_WB, P_QKV, 448 * 2688)
    if WSB:
        a(f"s_add_u32 s{P_WS}, s{P_WS}, {WSB}\ns_addc_u32 s{P_WS+1}, s{P_WS+1}, 0")
    srd(a, S_WS, P_WS, WS_SIZE)
    srd(a, S_SP, P_DBG, 256)
    a(f"""s_lshl_b32 s{S_T0}, s{S_CH}, 1
s_xor_b32 s{S_XO}, s{S_T0}, s{S_RW}
v_and_b32 v{T4}, 31, v{V_LANE}
v_lshrrev_b32 v{T4+1}, 5, v{V_LANE}
v_bfe_u32 v{T4+2}, v{V_LANE}, 1, 3
v_xor_b32 v{T4+2}, v{T4+2}, v{T4+1}
s_lshl_b32 s{S_T1}, s{S_XO}, 1
v_xor_b32 v{T4+2}, s{S_T1}, v{T4+2}
v_lshlrev_b32 v{T4+2}, 4, v{T4+2}
v_and_b32 v{T4+3}, 7, v{V_LANE}
v_lshl_add_u32 v{T4+2}, v{T4+3}, 7, v{T4+2}
v_bfe_u32 v{T4+3}, v{V_LANE}, 3, 1
v_mul_u32_u24 v{XR}, {(1+nA)*1024}, v{T4+3}
v_bfe_u32 v{T4+3}, v{V_LANE}, 4, 1
v_mul_u32_u24 v{T4+3}, {k.WST}, v{T4+3}
s_mul_i32 s{S_T1}, s{S_RW}, {2*k.WST}
s_add_u32 s{S_T1}, s{S_T1}, {RING}
v_add3_u32 v{T4+3}, v{T4+3}, v{XR}, s{S_T1}""")
    for i in range(4):
        a(f"v_xor_b32 v{XR+i}, {i << 5}, v{T4+2}")
        a(f"v_add_u32 v{XR+i}, v{T4+3}, v{XR+i}")
    a(f"""v_lshlrev_b32 v{V_KO}, 5, v{T4}
v_lshl_add_u32 v{V_KO}, v{T4+1}, 4, v{V_KO}
s_lshl_b32 s{S_T1}, s{S_CH}, 6
v_and_b32 v{T4}, 3, v{V_LANE}
v_lshlrev_b32 v{T4}, 3, v{T4}
v_and_b32 v{T4+2}, 16, v{V_LANE}
v_lshl_add_u32 v{T4}, v{T4+2}, 1, v{T4}
v_and_b32 v{T4+2}, 8, v{V_LANE}
v_lshlrev_b32 v{T4+2}, 3, v{T4+2}
v_xor_b32 v{T4+2}, s{S_T1}, v{T4+2}
v_or_b32 v{T4}, v{T4}, v{T4+2}
v_bfe_u32 v{T4+2}, v{V_LANE}, 2, 2
v_lshl_add_u32 v{T4}, v{T4+2}, 7, v{T4}
v_lshl_add_u32 v{V_T0}, v{T4+1}, 10, v{T4}
v_mul_u32_u24 v{T4+1}, {k.WST}, v{T4+1}
v_add_u32 v{T4}, v{T4}, v{T4+1}""")
    for i in range(4):
        a(f"""s_xor_b32 s{S_T2}, s{S_XO}, {i}
s_mul_i32 s{S_T2}, s{S_T2}, {2*k.WST}
s_add_u32 s{S_T2}, s{S_T2}, {RING + 1024}
v_add_u32 v{WR+i}, s{S_T2}, v{T4}""")
    a(f"""v_lshlrev_b32 v{V_L16}, 4, v{V_LANE}
v_lshlrev_b32 v{V_L8}, 3, v{V_LANE}
s_lshl_b32 s{S_T0}, s{S_CH}, 10
s_lshl_b32 s{S_T1}, s{S_RW}, 2
s_add_u32 s{S_T0}, s{S_T0}, s{S_T1}
s_add_u32 s{S_T0}, s{S_T0}, {SCR}
v_add_u32 v{V_CSA}, s{S_T0}, v{V_L16}
v_mov_b32 v{V_S}, 0
v_mov_b32 v{V_Q}, 0
v_mov_b32 v{V_R}, 0
v_mov_b32 v{V_C0}, 0
s_mov_b32 s{S_HI}, 0xf0f00f0f
s_mov_b32 s{S_HI+1}, 0xf0f00f0f
v_mov_b32 v{T4}, 0x3f803f80
v_cndmask_b32 v{SEL}, 0, v{T4}, s[{S_HI}:{S_HI+1}]
v_cndmask_b32 v{SEL+1}, 0, v{T4}, s[{S_HI}:{S_HI+1}]
v_cndmask_b32 v{SEL+2}, 0, v{T4}, s[{S_HI}:{S_HI+1}]
v_cndmask_b32 v{SEL+3}, 0, v{T4}, s[{S_HI}:{S_HI+1}]
s_mov_b32 s{S_HI}, 0
s_mov_b32 s{S_HI+1}, -1
v_mov_b32 v{XE+1}, 0
v_mov_b32 v{XE+2}, 0
v_mov_b32 v{XE+3}, 0
v_mov_b32 v{V_DUM}, 1
s_lshl_b32 s{S_MW}, s{S_WAVE}, 10
s_mov_b32 s{S_SPIN}, {E("SPIN", "0x8000")}
s_lshl_b32 s{S_T0}, s{S_RB}, 2
s_add_u32 s{S_T0}, s{S_T0}, s{S_RW}
s_mul_i32 s{S_T2}, s{S_T0}, 28672""")
    if nA == 1:
        lg2 = {1: 0, 2: 1, 4: 2}[len(PFL)]
        a(f"""; touchers: 16 per XCD ; rank = fq*2 + (i&1) if i >= 2 ; 14 + fq if i == 1 and fq < 2
s_lshr_b32 s{S_T1}, s2, 5
s_add_u32 s{S_T3}, s{S_T1}, 14
s_lshl_b32 s{S_T1}, s{S_T1}, 1
s_bfe_u32 s{S_PK}, s2, 0x10003
s_add_u32 s{S_T1}, s{S_T1}, s{S_PK}
s_and_b32 s{S_PK}, s2, 0xd8
s_cmp_eq_u32 s{S_PK}, 0x8
s_cselect_b32 s{S_PK}, s{S_T3}, 0x20000
s_bitcmp1_b32 s2, 4
s_cselect_b32 s{S_PK}, s{S_T1}, s{S_PK}
s_lshl_b32 s{S_PK}, s{S_PK}, 3
s_add_u32 s{S_PK}, s{S_PK}, s{S_WAVE}
s_min_u32 s{S_T1}, s{S_PK}, 0x8000
s_and_b32 s{S_T3}, s{S_T1}, 0xffe0
s_add_u32 s{S_T1}, s{S_T1}, s{S_T3}
s_lshl_b32 s{S_T1}, s{S_T1}, 14
v_lshrrev_b32 v{T4}, {4 + lg2 if PFROW else 4}, v{V_LANE}
v_bfe_u32 v{V_PF}, v{V_LANE}, {lg2}, {4 if PFROW else 4 - lg2}
v_lshlrev_b32 v{V_PF}, 7, v{V_PF}
v_lshl_add_u32 v{V_PF}, v{T4}, 12, v{V_PF}
v_add_u32 v{V_PF}, s{S_T1}, v{V_PF}
s_and_b32 s{S_T1}, s2, 7
s_lshl_b32 s{S_T1}, s{S_T1}, 7
s_add_u32 s{S_PK}, s{S_PK}, s{S_T1}
s_and_b32 s{S_T1}, s2, 4
s_lshl_b32 s{S_PFO}, s{S_T1}, 20
s_and_b32 s{S_T1}, s2, 2
s_lshl_b32 s{S_T1}, s{S_T1}, 18
s_add_u32 s{S_PFO}, s{S_PFO}, s{S_T1}
s_and_b32 s{S_T1}, s2, 1
s_lshl_b32 s{S_T1}, s{S_T1}, 11
s_add_u32 s{S_PFO}, s{S_PFO}, s{S_T1}
v_mov_b32 v{V_L2E}, {f32(LOG2E)}
s_lshl_b32 s{S_T3}, s{S_G}, 1
s_add_u32 s{S_T3}, s{S_T3}, s{S_CH}
s_lshl_b32 s{S_O}, s{S_T3}, 17
s_lshl_b32 s{S_T1}, s{S_T0}, 11
s_add_u32 s{S_O}, s{S_O}, s{S_T1}
; z1
s_lshl_b32 s{S_T1}, s{S_T3}, 10
s_add_u32 s{S_T1}, s{S_T1}, s{S_T2}
s_lshl_b32 s{S_O+2}, s{S_T1}, 1
s_add_u32 s{S_O+2}, s{S_O+2}, {WS_Z1}""")
        assert WS_Z2 == 0
        if k.kinds[1] == "Q":
            a(f"""s_lshl_b32 s{S_T1}, s{S_T3}, 11
s_add_u32 s{S_T1}, s{S_T1}, s{S_T2}
s_add_u32 s{S_O+1}, s{S_T1}, {WS_Q}""")
        else:
            a(f"s_add_u32 s{S_O+1}, s{S_T1}, {WS_K - 14*1024}")
        a(f"""; record: ST + st*4096 + g*256
s_lshl_b32 s{S_T0}, s{S_T0}, 4
s_add_u32 s{S_T0}, s{S_T0}, s{S_G}
s_lshl_b32 s{S_T0}, s{S_T0}, 8
s_add_u32 s{S_REC}, s{S_T0}, {WS_ST}
s_and_b32 s{S_T0}, s{S_G}, 14
s_lshr_b32 s{S_T1}, s{S_RB}, 3
s_add_u32 s{S_T0}, s{S_T0}, s{S_T1}
s_lshl_b32 s{S_T0}, s{S_T0}, 6
s_and_b32 s{S_T1}, s{S_RB}, 7
s_add_u32 s{S_T0}, s{S_T0}, s{S_T1}
s_lshl_b32 s{S_T0}, s{S_T0}, 1
s_and_b32 s{S_T1}, s{S_G}, 1
s_add_u32 s{S_T0}, s{S_T0}, s{S_T1}
s_lshl_b32 s{S_T0}, s{S_T0}, 2
s_add_u32 s{S_CNT}, s{S_T0}, {WS_FZ}""")
    else:
        a(f"""; tiles 8(g-14) + ch + 0,4,2 ; extra tile 6 + (g-14)
s_and_b32 s{S_T0}, s{S_G}, 1
s_lshl_b32 s{S_T1}, s{S_T0}, 3
s_add_u32 s{S_T1}, s{S_T1}, s{S_CH}
s_lshl_b32 s{S_T1}, s{S_T1}, 10
s_add_u32 s{S_T2}, s{S_T2}, {WS_V}
s_add_u32 s{S_O}, s{S_T1}, s{S_T2}
s_add_u32 s{S_O+1}, s{S_O}, 4096
s_add_u32 s{S_O+2}, s{S_O}, 2048
s_lshl_b32 s{S_T1}, s{S_T0}, 10
s_add_u32 s{S_T1}, s{S_T1}, s{S_T2}
s_add_u32 s{S_O+3}, s{S_T1}, 6144
s_lshl_b32 s{S_CNT}, s{S_RB}, 2
s_add_u32 s{S_CNT}, s{S_CNT}, s{S_T0}
s_lshl_b32 s{S_CNT}, s{S_CNT}, 2
s_lshl_b32 s{S_T1}, s{S_RB}, 1
s_add_u32 s{S_T1}, s{S_T1}, s{S_T0}
s_lshl_b32 s{S_T1}, s{S_T1}, 3
s_add_u32 s{S_T1}, s{S_T1}, s{S_WAVE}
s_lshl_b32 s{S_T2}, s{S_T1}, 8
s_add_u32 s{S_T2}, s{S_T2}, {WS_FL}
s_lshl_b32 s{S_T1}, s{S_T1}, 10
s_add_u32 s{S_REC}, s{S_T1}, {WS_ST}
s_xor_b32 s{S_T0}, s{S_T0}, 1
s_lshl_b32 s{S_T3}, s{S_T0}, 6
v_mov_b32 v{T4}, -1
v_mov_b32 v{T4+1}, -1
v_mov_b32 v{T4+2}, -1
v_mov_b32 v{T4+3}, -1
v_lshlrev_b32 v{V_L2E}, 2, v{V_LANE}
v_lshrrev_b32 v{V_PF}, 2, v{V_LANE}
v_lshlrev_b32 v{V_PF}, 5, v{V_PF}
v_and_or_b32 v{V_PF}, v{V_LANE}, 3, v{V_PF}
v_lshlrev_b32 v{V_PF}, 7, v{V_PF}
s_and_b32 s{S_T0}, s2, 6
s_lshl_b32 s{S_T0}, s{S_T0}, 4
s_and_b32 s{S_T1}, s2, 24
s_add_u32 s{S_T0}, s{S_T0}, s{S_T1}
s_add_u32 s{S_T0}, s{S_T0}, s{S_WAVE}
s_lshl_b32 s{S_T0}, s{S_T0}, 5
s_and_b32 s{S_T1}, s2, 1
s_add_u32 s{S_T0}, s{S_T0}, s{S_T1}
s_lshl_b32 s{S_PFO}, s{S_T0}, 11""")
        vm.issue("clr", f"buffer_store_dwordx4 v[{T4}:{T4+3}], v{V_L16}, s[{S_WS}:{S_WS+3}], s{S_REC} offen sc1")
        vm.issue("clr", f"buffer_store_dword v{XE+1}, v{V_L2E}, s[{S_WS}:{S_WS+3}], s{S_T2} offen sc1")
        a(f"s_lshl_b32 s{S_T2}, s{S_T2}, 1\ns_add_u32 s{S_T2}, s{S_T2}, {(WS_XB - 2 * WS_FL) & 0xffffffff}")
        vm.issue("clr", f"buffer_store_dwordx2 v[{T4}:{T4+1}], v{V_L8}, s[{S_WS}:{S_WS+3}], s{S_T2} offen sc1")
    a(f"""; own flags: FL + rb*2048 + g*4
s_lshl_b32 s{S_FL}, s{S_RB}, 9
s_add_u32 s{S_FL}, s{S_FL}, s{S_G}
s_lshl_b32 s{S_FL}, s{S_FL}, 2
s_add_u32 s{S_FL}, s{S_FL}, {WS_FL}""")

PBAR = int(E('P1_PBAR', '1'))
def gen_p1(a, name, st, hook_main, hook_att):
    kernel_begin(a, name)
    a(f"""s_cmp_ge_u32 s2, 256
s_cbranch_scc1 K_EXIT
s_load_dwordx16 s[64:79], s[0:1], 0
s_load_dwordx4 s[56:59], s[0:1], 72
s_load_dwordx2 s[60:61], s[0:1], 64""")
    if ICF:
        a(f"""s_getpc_b64 s[4:5]
s_lshr_b32 s6, s2, 3
s_lshl_b32 s6, s6, 5
v_lshrrev_b32 v2, 4, v0
v_add_lshl_u32 v2, v2, s6, 7
s_and_b32 s4, s4, 0xffffff00
v_min_u32 v2, K_EXIT-{name}, v2
global_load_dword v{A0+97}, v2, s[4:5]""")
    st.mark(0, True)
    st.mark(1)
    st.init()
    a(f"""v_and_b32 v{V_LANE}, 63, v0
v_lshrrev_b32 v{V_T0}, 6, v0
s_lshr_b32 s{S_G}, s2, 5
v_readfirstlane_b32 s{S_WAVE}, v{V_T0}
s_lshl_b32 s{S_G}, s{S_G}, 1
s_and_b32 s{S_T0}, s2, 1
s_add_u32 s{S_G}, s{S_G}, s{S_T0}
s_and_b32 s{S_T0}, s2, 4
s_bfe_u32 s{S_T1}, s2, 0x20003
s_add_u32 s{S_RB}, s{S_T0}, s{S_T1}
s_lshl_b32 s{S_RB}, s{S_RB}, 1
s_bfe_u32 s{S_T0}, s2, 0x10001
s_add_u32 s{S_RB}, s{S_RB}, s{S_T0}
s_and_b32 s{S_RW}, s{S_WAVE}, 3
s_lshr_b32 s{S_CH}, s{S_WAVE}, 2
s_lshl_b32 s{S_T0}, s{S_RB}, 3
s_add_u32 s{S_T0}, s{S_T0}, s{S_WAVE}
s_mul_i32 s{S_XB}, s{S_T0}, {16*896}
s_mul_i32 s{S_T1}, s{S_WAVE}, {8*2688}
v_lshrrev_b32 v{T4}, 3, v{V_LANE}
v_and_b32 v{T4+1}, 7, v{V_LANE}
v_lshrrev_b32 v{T4+2}, 4, v{V_LANE}
v_xor_b32 v{T4+2}, v{T4+2}, v{T4+1}
v_mul_u32_u24 v{V_X0}, 896, v{T4}
v_xor_b32 v{T4+3}, 4, v{T4+2}
v_lshl_add_u32 v{V_X1}, v{T4+3}, 4, v{V_X0}
v_lshl_add_u32 v{V_X0}, v{T4+2}, 4, v{V_X0}
v_lshlrev_b32 v{T4+2}, 1, v{T4}
v_and_b32 v{T4+2}, 4, v{T4+2}
v_xor_b32 v{T4+2}, v{T4+2}, v{T4+1}
v_lshlrev_b32 v{T4+2}, 4, v{T4+2}
v_mul_u32_u24 v{V_DB}, 2688, v{T4}
v_add_u32 v{V_DB}, v{V_DB}, v{T4+2}
s_cmp_ge_u32 s{S_G}, 14
s_cbranch_scc1 P1_KC
s_cmp_ge_u32 s{S_G}, 7
s_cbranch_scc1 P1_KB""")
    for lab, kinds in (("P1_A", "GQL"), ("P1_B", "GKL"), ("P1_C", "VVVV")):
        a(f"{lab.replace('_', '_K')}:")
        k = K(kinds)
        vm = VM(a)
        s2 = st.copy()
        kind_start(a, vm, k, s2)
        kind_body(a, vm, k, s2, lab, hook_main, hook_att)
```
